```python
import torch

def _softmax(x, axis=-1):
    return torch.softmax(x, dim=axis)
def _gelu(x):
    return torch.nn.functional.gelu(x, approximate="tanh")
def _silu(x):
    return torch.nn.functional.silu(x)
def _sigmoid(x):
    return torch.sigmoid(x)
def _layernorm(x, axis=-1, eps=1e-5):
    m = x.mean(dim=axis, keepdim=True)
    v = x.var(dim=axis, keepdim=True, unbiased=False)
    return (x - m) / torch.sqrt(v + eps)
def _scatter_add(tgt, idx, src, axis=0):
    return tgt.clone().index_add_(axis, idx, src)
def _segment_sum(src, seg, n):
    out = torch.zeros((n,) + src.shape[1:], dtype=src.dtype)
    return out.index_add_(0, seg, src)
def _pad(x, pw):
    flat = tuple(v for pair in reversed(pw) for v in pair)
    return torch.nn.functional.pad(x, flat)

kernel_name = 'concat_heads__sliding_block_cached__mha_block_cached__decode'

def setup_inputs():

    _w = (lambda a: (lambda t: t.to(torch.bfloat16) if t.is_floating_point() else t)(torch.as_tensor(a)))
    def _A_setup():
        B, Sq, D = 2, 1, 576
        Hq, Hkv, Sk, Dh = 32, 16, 8192, 128
        assert Hq % Hkv == 0, (Hq, Hkv)
        return {
            "x": _w((lambda *s: torch.randn(*s, dtype=torch.bfloat16) * 0.8)(B, Sq, D)),
            "k_cache": _w((lambda *s: torch.randn(*s, dtype=torch.bfloat16) * 1.6)(B, Hkv, Sk, Dh)),
            "v_cache": _w((lambda *s: torch.randn(*s, dtype=torch.bfloat16) * 0.2)(B, Hkv, Sk, Dh)),
            "wq": _w((lambda *s: torch.randn(*s, dtype=torch.bfloat16) * 1.6)(D, Hq * Dh) * (D ** -0.5)),
            "wo": _w((lambda *s: torch.randn(*s, dtype=torch.bfloat16) * 0.2)(Hq * Dh, D) * ((Hq * Dh) ** -0.5)),
        }
    _A_in = _A_setup()

    def _B_setup():
        B, Sq, D = 2, 1, 576
        H, Sk, Dh = 32, 8192, 128
        return {
            "x": _w((lambda *s: torch.randn(*s, dtype=torch.bfloat16) * 0.8)(B, Sq, D)),
            "k_cache": _w((lambda *s: torch.randn(*s, dtype=torch.bfloat16) * 1.6)(B, H, Sk, Dh)),
            "v_cache": _w((lambda *s: torch.randn(*s, dtype=torch.bfloat16) * 0.2)(B, H, Sk, Dh)),
            "wq": _w((lambda *s: torch.randn(*s, dtype=torch.bfloat16) * 1.6)(D, H * Dh) * (D ** -0.5)),
            "wo": _w((lambda *s: torch.randn(*s, dtype=torch.bfloat16) * 0.2)(H * Dh, D) * ((H * Dh) ** -0.5)),
        }
    _B_in = _B_setup()

    return {
        "A_x": _A_in["x"],
        "A_k_cache": _A_in["k_cache"],
        "A_v_cache": _A_in["v_cache"],
        "A_wq": _A_in["wq"],
        "A_wo": _A_in["wo"],
        "B_x": _B_in["x"],
        "B_k_cache": _B_in["k_cache"],
        "B_v_cache": _B_in["v_cache"],
        "B_wq": _B_in["wq"],
        "B_wo": _B_in["wo"],
    }

def reference(A_x, A_k_cache, A_v_cache, A_wq, A_wo, B_x, B_k_cache, B_v_cache, B_wq, B_wo):
    def _A_ref(x, k_cache, v_cache, wq, wo):
        B, Sq, D = x.shape
        Hq, Dh = 32, 128
        Hkv, Sk = k_cache.shape[1], k_cache.shape[2]
        W = min(4096, max(256, Sk // 4))
        rep = Hq // Hkv
        q = (lambda x, *d: x.permute(*d))((x @ wq).reshape(B, Sq, Hq, Dh), 0, 2, 1, 3)
        k = (lambda x, n, axis: torch.repeat_interleave(x, n, dim=axis))(k_cache[:, :, Sk - W:, :], rep, axis=1)
        v = (lambda x, n, axis: torch.repeat_interleave(x, n, dim=axis))(v_cache[:, :, Sk - W:, :], rep, axis=1)
        scores = torch.einsum("bhqd,bhkd->bhqk", q, k) * (Dh ** -0.5)
        p = _softmax(scores, axis=-1)
        o = torch.einsum("bhqk,bhkd->bhqd", p, v)
        return (lambda x, *d: x.permute(*d))(o, 0, 2, 1, 3).reshape(B, Sq, Hq * Dh) @ wo

    def _B_ref(x, k_cache, v_cache, wq, wo):
        B, Sq, D = x.shape
        H, Dh = 32, 128
        q = (lambda x, *d: x.permute(*d))((x @ wq).reshape(B, Sq, H, Dh), 0, 2, 1, 3)
        scores = torch.einsum("bhqd,bhkd->bhqk", q, k_cache) * (Dh ** -0.5)
        p = _softmax(scores, axis=-1)
        o = torch.einsum("bhqk,bhkd->bhqd", p, v_cache)
        return (lambda x, *d: x.permute(*d))(o, 0, 2, 1, 3).reshape(B, Sq, H * Dh) @ wo

    a = _A_ref(A_x, A_k_cache, A_v_cache, A_wq, A_wo)
    b = _B_ref(B_x, B_k_cache, B_v_cache, B_wq, B_wo)
    return torch.concatenate([a, b], axis=-1)
```

```python
import sys, math, struct

KN = "concat_heads__sliding_block_cached__mha_block_cached__decode_kernel"

def f32bits(x):
    return struct.unpack("<I", struct.pack("<f", x))[0]

class Gen:
    def __init__(self):
        self.lines = []
        self.q = []
    def e(self, s):
        self.lines.append("    " + s)
    def lab(self, s):
        self.lines.append(s + ":")
    def c(self, s):
        self.lines.append("    ; " + s)
    def vm(self, s, tag=None):
        self.e(s)
        self.q.append(tag)
    def wait_tag(self, tag):
        idx = max(i for i, t in enumerate(self.q) if t == tag)
        n = len(self.q) - 1 - idx
        assert n <= 63
        self.e(f"s_waitcnt vmcnt({n})")
    def text(self):
        return "\n".join(self.lines) + "\n"

def vr(a, n=1):
    return f"v{a}" if n == 1 else f"v[{a}:{a+n-1}]"
def sr(a, n=1):
    return f"s{a}" if n == 1 else f"s[{a}:{a+n-1}]"

HEADER = open("concat_heads__sliding_block_cached__mha_block_cached__decode.s.ref").read().split("; Override launch")[0]

NROWS = 320
YROW = 2304
ML_OFF = NROWS * YROW
WS_BYTES = ML_OFF + NROWS * 8
LDS_WO = 0
LDS_OT = 73728
OT_STRIDE = 272
LDS_M = LDS_OT + 16 * OT_STRIDE
LDS_L = LDS_M + 64
LDS_QP = LDS_L + 64
LDS_TOTAL = LDS_QP + 2048
CSCALE = (128 ** -0.5) * math.log2(math.e)

def gen(opts):
    D = opts.get("D", 4)
    NT = " nt" if opts.get("nt", 0) else ""
    g = Gen()
    e = g.e
    sW = 3
    sK, sV, sWQ, sX, sWO, sWS = 36, 40, 44, 48, 52, 56
    sH, sRest, sB, sR, sT0, sT1, sT2 = 60, 61, 62, 63, 64, 65, 66
    sOff, sIter, sC, sSelLo, sSelHi, sLdsW, sJ = 67, 68, 69, 70, 71, 72, 73
    sKvo = 74
    vTid, vLane, vG, vCc = 0, 1, 2, 3
    vK, vV, vWO, vTR, vWQ, vX = 4, 5, 6, 7, 8, 9
    vT0, vT1, vM, vL = 10, 11, 12, 13
    vXr = 14
    vS = 16
    vP = 20
    vA, vMn, vE0 = 14, 15, 28
    vO = 32
    vQ = 40
    vWOr = 56
    vBuf = 128
    def kreg(d, j): return vBuf + d * 32 + j * 4
    def vreg(d, r): return vBuf + d * 32 + 16 + r * 4
    def wqreg(j):
        return 192 + 4 * j if j < 16 else 48 + 4 * (j - 16)

    g.lab(KN)
    e("s_cmp_ge_u32 s2, 320")
    e("s_cbranch_scc1 L_exit")
    e("s_load_dwordx16 s[8:23], s[0:1], 0")
    e("s_load_dwordx8 s[24:31], s[0:1], 64")
    e("s_load_dwordx2 s[32:33], s[0:1], 96")
    e(f"v_lshrrev_b32 {vr(vT0)}, 6, v0")
    e(f"v_and_b32 {vr(vLane)}, 63, v0")
    e(f"v_readfirstlane_b32 {sr(sW)}, {vr(vT0)}")
    e(f"v_lshrrev_b32 {vr(vG)}, 4, {vr(vLane)}")
    e(f"v_and_b32 {vr(vCc)}, 15, {vr(vLane)}")
    e(f"s_and_b32 {sr(sT0)}, s2, 7")
    e(f"s_lshl_b32 {sr(sT0)}, {sr(sT0)}, 2")
    e(f"s_lshr_b32 {sr(sT1)}, s2, 3")
    e(f"s_and_b32 {sr(sT1)}, {sr(sT1)}, 3")
    e(f"s_or_b32 {sr(sH)}, {sr(sT0)}, {sr(sT1)}")
    e(f"s_lshr_b32 {sr(sRest)}, s2, 5")
    e(f"s_and_b32 {sr(sRest)}, {sr(sRest)}, 7")
    e(f"s_lshr_b32 {sr(sB)}, {sr(sRest)}, 2")
    e(f"s_lshl_b32 {sr(sT0)}, {sr(sB)}, 5")
    e(f"s_add_u32 {sr(sT0)}, {sr(sT0)}, {sr(sH)}")
    e(f"s_lshl_b32 {sr(sT0)}, {sr(sT0)}, 2")
    e(f"s_and_b32 {sr(sT1)}, {sr(sRest)}, 3")
    e(f"s_add_u32 {sr(sR)}, {sr(sT0)}, {sr(sT1)}")
    e(f"s_lshl_b32 {sr(sKvo)}, {sr(sR)}, 19")
    e(f"s_lshl_b32 {sr(sT0)}, {sr(sRest)}, 5")
    e(f"s_add_u32 {sr(sT0)}, {sr(sT0)}, {sr(sH)}")
    e(f"s_add_u32 {sr(sT0)}, {sr(sT0)}, 256")
    e(f"s_lshl_b32 {sr(sT1)}, {sr(sRest)}, 4")
    e(f"s_lshr_b32 {sr(sT2)}, {sr(sH)}, 1")
    e(f"s_add_u32 {sr(sT1)}, {sr(sT1)}, {sr(sT2)}")
    e(f"s_lshl_b32 {sr(sT1)}, {sr(sT1)}, 21")
    e(f"s_add_u32 {sr(sT1)}, {sr(sT1)}, 0x180000")
    e("s_cmp_ge_u32 s2, 256")
    e(f"s_cselect_b32 {sr(sR)}, {sr(sT0)}, {sr(sR)}")
    e(f"s_cselect_b32 {sr(sKvo)}, {sr(sT1)}, {sr(sKvo)}")
    e(f"s_cselect_b32 {sr(sB)}, {sr(sRest)}, {sr(sB)}")
    e("s_waitcnt lgkmcnt(0)")
    e("s_cmp_ge_u32 s2, 256")
    e(f"s_cselect_b64 {sr(sX,2)}, s[8:9], s[18:19]")
    e(f"s_cselect_b64 {sr(sK,2)}, s[10:11], s[20:21]")
    e(f"s_cselect_b64 {sr(sV,2)}, s[12:13], s[22:23]")
    e(f"s_cselect_b64 {sr(sWQ,2)}, s[14:15], s[24:25]")
    e(f"s_cselect_b64 {sr(sWO,2)}, s[16:17], s[26:27]")
    e(f"s_mul_i32 {sr(sT0)}, {sr(sB)}, 1152")
    e(f"s_add_u32 {sr(sX)}, {sr(sX)}, {sr(sT0)}")
    e(f"s_addc_u32 {sr(sX+1)}, {sr(sX+1)}, 0")
    e(f"s_mov_b32 {sr(sX+2)}, 1152")
    e(f"s_mov_b32 {sr(sX+3)}, 0x00020000")
    e(f"s_lshl_b32 {sr(sT0)}, {sr(sH)}, 8")
    e(f"s_add_u32 {sr(sWQ)}, {sr(sWQ)}, {sr(sT0)}")
    e(f"s_addc_u32 {sr(sWQ+1)}, {sr(sWQ+1)}, 0")
    e(f"s_mov_b32 {sr(sWQ+2)}, {575*8192+256}")
    e(f"s_mov_b32 {sr(sWQ+3)}, 0x00020000")
    e(f"s_mul_i32 {sr(sT0)}, {sr(sW)}, 144")
    e(f"v_mul_u32_u24 {vr(vT0)}, 36, {vr(vG)}")
    e(f"v_add_u32 {vr(vT0)}, {sr(sT0)}, {vr(vT0)}")
    e(f"v_lshlrev_b32 {vr(vX)}, 1, {vr(vT0)}")
    e(f"v_lshlrev_b32 {vr(vWQ)}, 13, {vr(vT0)}")
    e(f"v_lshl_add_u32 {vr(vWQ)}, {vr(vCc)}, 4, {vr(vWQ)}")
    for i in range(4):
        g.vm(f"buffer_load_dwordx4 {vr(vXr+4*i,4)}, {vr(vX)}, {sr(sX,4)}, 0 offen offset:{16*i}", "x")
    g.vm(f"buffer_load_dwordx2 {vr(vXr+16,2)}, {vr(vX)}, {sr(sX,4)}, 0 offen offset:64", "x")
    e(f"s_mov_b32 {sr(sOff)}, 0")
    for j in range(36):
        g.vm(f"buffer_load_dwordx4 {vr(wqreg(j),4)}, {vr(vWQ)}, {sr(sWQ,4)}, {sr(sOff)} offen", ("wq", j))
        if j < 35:
            e(f"s_add_u32 {sr(sOff)}, {sr(sOff)}, 8192")
    for s in (sK, sV):
        e(f"s_add_u32 {sr(s)}, {sr(s)}, {sr(sKvo)}")
        e(f"s_addc_u32 {sr(s+1)}, {sr(s+1)}, 0")
        e(f"s_mov_b32 {sr(s+2)}, 0x80000")
        e(f"s_mov_b32 {sr(s+3)}, 0x00020000")
    e(f"s_lshl_b32 {sr(sT0)}, {sr(sW)}, 12")
    e(f"v_lshlrev_b32 {vr(vK)}, 8, {vr(vCc)}")
    e(f"v_lshl_add_u32 {vr(vK)}, {vr(vG)}, 4, {vr(vK)}")
    e(f"v_add_u32 {vr(vK)}, {sr(sT0)}, {vr(vK)}")
    e(f"v_lshlrev_b32 {vr(vV)}, 10, {vr(vG)}")
    e(f"v_lshl_add_u32 {vr(vV)}, {vr(vCc)}, 4, {vr(vV)}")
    e(f"v_add_u32 {vr(vV)}, {sr(sT0)}, {vr(vV)}")
    def issue_k(d, soff, tag=None):
        for j in range(4):
            g.vm(f"buffer_load_dwordx4 {vr(kreg(d,j),4)}, {vr(vK)}, {sr(sK,4)}, {soff} offen offset:{64*j}{NT}", tag)
    def issue_v(d, soff, tag=None):
        for r in range(4):
            g.vm(f"buffer_load_dwordx4 {vr(vreg(d,r),4)}, {vr(vV)}, {sr(sV,4)}, {soff} offen offset:{256*r}{NT}", tag)
    e(f"s_mov_b32 {sr(sOff)}, 0")
    for d in range(2):
        issue_k(d, sr(sOff)); issue_v(d, sr(sOff))
        e(f"s_add_u32 {sr(sOff)}, {sr(sOff)}, 16384")
    e(f"s_mul_i32 {sr(sT0)}, {sr(sH)}, 147456")
    e(f"s_add_u32 {sr(sWO)}, {sr(sWO)}, {sr(sT0)}")
    e(f"s_addc_u32 {sr(sWO+1)}, {sr(sWO+1)}, 0")
    e(f"s_mov_b32 {sr(sWO+2)}, 147456")
    e(f"s_mov_b32 {sr(sWO+3)}, 0x00020000")
    e(f"s_mov_b32 {sr(sWS)}, s32")
    e(f"s_mov_b32 {sr(sWS+1)}, s33")
    e(f"s_mov_b32 {sr(sWS+2)}, {WS_BYTES}")
    e(f"s_mov_b32 {sr(sWS+3)}, 0x00020000")
    e(f"s_mov_b32 {sr(sC)}, 0x{f32bits(CSCALE):08x}")
    e(f"s_mov_b32 {sr(sSelLo)}, 0x05040100")
    e(f"s_mov_b32 {sr(sSelHi)}, 0x07060302")
    e(f"s_mul_i32 {sr(sLdsW)}, {sr(sW)}, 18432")
    e(f"v_lshrrev_b32 {vr(vT0)}, 5, {vr(vLane)}")
    e(f"v_lshlrev_b32 {vr(vT0)}, 2, {vr(vT0)}")
    e(f"v_and_b32 {vr(vT1)}, 24, {vr(vLane)}")
    e(f"v_add_u32 {vr(vT0)}, {vr(vT0)}, {vr(vT1)}")
    e(f"v_bfe_u32 {vr(vT1)}, {vr(vLane)}, 1, 2")
    e(f"v_add_u32 {vr(vT0)}, {vr(vT0)}, {vr(vT1)}")
    e(f"v_mul_u32_u24 {vr(vWO)}, 1152, {vr(vT0)}")
    e(f"v_and_b32 {vr(vT1)}, 1, {vr(vLane)}")
    e(f"v_lshl_add_u32 {vr(vWO)}, {vr(vT1)}, 4, {vr(vWO)}")
    e(f"s_mul_i32 {sr(sT0)}, {sr(sW)}, 288")
    e(f"v_add_u32 {vr(vWO)}, {sr(sT0)}, {vr(vWO)}")
    e(f"v_lshlrev_b32 {vr(vTR)}, 3, {vr(vLane)}")
    e(f"v_add_u32 {vr(vTR)}, {sr(sLdsW)}, {vr(vTR)}")
    for i in range(8):
        e(f"v_mov_b32 {vr(vO+i)}, 0")
    for p in range(18):
        g.wait_tag(("wq", 2*p+1))
        a, b = wqreg(2*p), wqreg(2*p+1)
        for d in range(4):
            e(f"v_perm_b32 {vr(vT0)}, {vr(b+d)}, {vr(a+d)}, {sr(sSelLo)}")
            e(f"v_perm_b32 {vr(vT1)}, {vr(b+d)}, {vr(a+d)}, {sr(sSelHi)}")
            e(f"v_dot2c_f32_bf16 {vr(vO+2*d)}, {vr(vT0)}, {vr(vXr+p)}")
            e(f"v_dot2c_f32_bf16 {vr(vO+2*d+1)}, {vr(vT1)}, {vr(vXr+p)}")
        if p == 7 and D == 4:
            for d in range(2, 4):
                issue_k(d, sr(sOff)); issue_v(d, sr(sOff))
                e(f"s_add_u32 {sr(sOff)}, {sr(sOff)}, 16384")
    e("s_nop 3")
    for i in range(4):
        e(f"v_permlane32_swap_b32 {vr(vO+i)}, {vr(vO+i+4)}")
    e("s_nop 1")
    for i in range(4):
        e(f"v_add_f32 {vr(vO+i)}, {vr(vO+i)}, {vr(vO+i+4)}")
    e("s_nop 1")
    e(f"v_permlane16_swap_b32 {vr(vO+0)}, {vr(vO+2)}")
    e(f"v_permlane16_swap_b32 {vr(vO+1)}, {vr(vO+3)}")
    e("s_nop 1")
    e(f"v_add_f32 {vr(vO+0)}, {vr(vO+0)}, {vr(vO+2)}")
    e(f"v_add_f32 {vr(vO+1)}, {vr(vO+1)}, {vr(vO+3)}")
    e(f"s_lshl_b32 {sr(sT0)}, {sr(sW)}, 9")
    e(f"v_lshlrev_b32 {vr(vT0)}, 5, {vr(vCc)}")
    e(f"v_lshl_add_u32 {vr(vT0)}, {vr(vG)}, 3, {vr(vT0)}")
    e(f"v_add_u32 {vr(vT0)}, {sr(sT0)}, {vr(vT0)}")
    e(f"v_add_u32 {vr(vT0)}, {LDS_QP}, {vr(vT0)}")
    e(f"ds_write_b64 {vr(vT0)}, {vr(vO,2)}")
    e(f"v_and_b32 {vr(vT1)}, 3, {vr(vCc)}")
    e(f"v_lshlrev_b32 {vr(vT1)}, 7, {vr(vT1)}")
    e(f"v_lshl_add_u32 {vr(vT1)}, {vr(vG)}, 5, {vr(vT1)}")
    e(f"v_add_u32 {vr(vT1)}, {LDS_QP}, {vr(vT1)}")
    e("s_waitcnt lgkmcnt(0)")
    e("s_barrier")
    tq = 56
    for w in range(4):
        for hh in range(2):
            e(f"ds_read_b128 {vr(tq+w*8+hh*4,4)}, {vr(vT1)} offset:{w*512+hh*16}")
    e("s_waitcnt lgkmcnt(0)")
    for i in range(8):
        e(f"v_add_f32 {vr(tq+i)}, {vr(tq+i)}, {vr(tq+8+i)}")
        e(f"v_add_f32 {vr(tq+16+i)}, {vr(tq+16+i)}, {vr(tq+24+i)}")
    for i in range(8):
        e(f"v_add_f32 {vr(tq+i)}, {vr(tq+i)}, {vr(tq+16+i)}")
    for d in range(4):
        e(f"v_cvt_pk_bf16_f32 {vr(tq+8+d)}, {vr(tq+2*d)}, {vr(tq+2*d+1)}")
    e("s_nop 1")
    for j in range(4):
        for d in range(4):
            e(f"v_mov_b32_dpp {vr(vQ+4*j+d)}, {vr(tq+8+d)} quad_perm:[{j},{j},{j},{j}] row_mask:0xf bank_mask:0xf")
    for i in range(8):
        e(f"v_mov_b32 {vr(vO+i)}, 0")
    e(f"v_mov_b32 {vr(vM)}, 0xff800000")
    e(f"v_mov_b32 {vr(vL)}, 0")
    def dma_half(hf):
        e(f"s_mov_b32 m0, {sr(sLdsW)}")
        for jj in range(2):
            e(f"s_mov_b32 {sr(sJ)}, {(2*hf+jj)*36864}")
            for t in range(9):
                g.vm(f"buffer_load_dwordx4 {vr(vWO)}, {sr(sWO,4)}, {sr(sJ)} offen offset:{32*t} lds", "dma")
                if not (jj == 1 and t == 8):
                    inc = 992 if t < 8 else (1024 + 8*32)
                    e(f"s_add_u32 m0, m0, {inc}")
                    if t == 8: pass
                    else: e("s_nop 0")
    dma_half(0)
    e(f"s_mov_b32 {sr(sIter)}, 0")
    W = 8 * D - 4
    NIT = 32 // D
    g.lab("L_loop")
    for d in range(D):
        e(f"s_waitcnt vmcnt({W})")
        for j in range(4):
            cc = "0" if j == 0 else vr(vS,4)
            e(f"v_mfma_f32_16x16x32_bf16 {vr(vS,4)}, {vr(kreg(d,j),4)}, {vr(vQ+4*j,4)}, {cc}")
        issue_k(d, sr(sOff))
        e("s_nop 3")
        e(f"v_max3_f32 {vr(vT0)}, {vr(vS)}, {vr(vS+1)}, {vr(vS+2)}")
        e(f"v_max_f32 {vr(vT0)}, {vr(vT0)}, {vr(vS+3)}")
        e(f"v_mul_f32 {vr(vT0)}, {sr(sC)}, {vr(vT0)}")
        e(f"v_max_f32 {vr(vMn)}, {vr(vT0)}, {vr(vM)}")
        e(f"v_sub_f32 {vr(vA)}, {vr(vM)}, {vr(vMn)}")
        for r in range(4):
            e(f"v_fma_f32 {vr(vE0+r)}, {vr(vS+r)}, {sr(sC)}, -{vr(vMn)}")
        e(f"v_exp_f32 {vr(vA)}, {vr(vA)}")
        for r in range(4):
            e(f"v_exp_f32 {vr(vE0+r)}, {vr(vE0+r)}")
        e(f"v_mov_b32 {vr(vM)}, {vr(vMn)}")
        for i in range(8):
            e(f"v_mul_f32 {vr(vO+i)}, {vr(vA)}, {vr(vO+i)}")
        e(f"v_fma_f32 {vr(vL)}, {vr(vL)}, {vr(vA)}, {vr(vE0)}")
        e(f"v_add_f32 {vr(vT0)}, {vr(vE0+1)}, {vr(vE0+2)}")
        e(f"v_add_f32 {vr(vL)}, {vr(vL)}, {vr(vE0+3)}")
        e(f"v_add_f32 {vr(vL)}, {vr(vL)}, {vr(vT0)}")
        for r in range(4):
            e(f"v_cvt_pk_bf16_f32 {vr(vP+2*r)}, {vr(vE0+r)}, 0")
            e(f"v_cvt_pk_bf16_f32 {vr(vP+2*r+1)}, 0, {vr(vE0+r)}")
        e(f"s_waitcnt vmcnt({W})")
        for r in range(4):
            for dd in range(4):
                e(f"v_dot2c_f32_bf16 {vr(vO+2*dd)}, {vr(vreg(d,r)+dd)}, {vr(vP+2*r)}")
                e(f"v_dot2c_f32_bf16 {vr(vO+2*dd+1)}, {vr(vreg(d,r)+dd)}, {vr(vP+2*r+1)}")
        issue_v(d, sr(sOff))
        e(f"s_add_u32 {sr(sOff)}, {sr(sOff)}, 16384")
    e(f"s_add_u32 {sr(sIter)}, {sr(sIter)}, 1")
    e(f"s_cmp_eq_u32 {sr(sIter)}, {8 // D}")
    e("s_cbranch_scc1 L_mid")
    e(f"s_cmp_lt_u32 {sr(sIter)}, {NIT}")
    e("s_cbranch_scc1 L_loop")
    e("s_branch L_tail")
    g.lab("L_mid")
    for jj in range(2):
        for t in range(9):
            for hf in range(2):
                e(f"ds_read_b64_tr_b16 {vr(vWOr+(jj*9+t)*4+hf*2,2)}, {vr(vTR)} offset:{(jj*9+t)*1024+hf*512}")
    e("s_waitcnt lgkmcnt(0)")
    dma_half(1)
    e("s_branch L_loop")
    g.lab("L_tail")
    vW2 = 128
    vAcc = 200
    vAop = 236
    vMall = 40
    vMo, vLo = 16, 20
    e("s_waitcnt vmcnt(0)")
    for jj in range(2):
        for t in range(9):
            for hf in range(2):
                e(f"ds_read_b64_tr_b16 {vr(vW2+(jj*9+t)*4+hf*2,2)}, {vr(vTR)} offset:{(jj*9+t)*1024+hf*512}")
    for d in range(4):
        e(f"v_cvt_pk_bf16_f32 {vr(vP+d)}, {vr(vO+2*d)}, {vr(vO+2*d+1)}")
    e(f"s_lshl_b32 {sr(sT0)}, {sr(sW)}, 2")
    e(f"v_add_u32 {vr(vT0)}, {sr(sT0)}, {vr(vG)}")
    e(f"v_mul_u32_u24 {vr(vT1)}, {OT_STRIDE}, {vr(vT0)}")
    e(f"v_lshl_add_u32 {vr(vT1)}, {vr(vCc)}, 4, {vr(vT1)}")
    e(f"v_add_u32 {vr(vT1)}, {LDS_OT}, {vr(vT1)}")
    e(f"ds_write_b128 {vr(vT1)}, {vr(vP,4)}")
    e(f"v_lshlrev_b32 {vr(vT0)}, 2, {vr(vT0)}")
    e(f"v_add_u32 {vr(vT0)}, {LDS_M}, {vr(vT0)}")
    e(f"ds_write_b32 {vr(vT0)}, {vr(vM)}")
    e(f"ds_write_b32 {vr(vT0)}, {vr(vL)} offset:64")
    e(f"v_mul_u32_u24 {vr(vT1)}, {OT_STRIDE}, {vr(vCc)}")
    e(f"v_lshl_add_u32 {vr(vT1)}, {vr(vG)}, 4, {vr(vT1)}")
    e(f"v_add_u32 {vr(vT1)}, {LDS_OT}, {vr(vT1)}")
    e(f"v_lshlrev_b32 {vr(vT0)}, 4, {vr(vG)}")
    e(f"v_add_u32 {vr(vT0)}, {LDS_M}, {vr(vT0)}")
    e(f"v_mov_b32 {vr(vA)}, {LDS_M}")
    e("s_waitcnt lgkmcnt(0)")
    e("s_barrier")
    for j in range(4):
        e(f"ds_read_b128 {vr(vAop+4*j,4)}, {vr(vT1)} offset:{64*j}")
    for i in range(4):
        e(f"ds_read_b128 {vr(vMall+4*i,4)}, {vr(vA)} offset:{16*i}")
    e(f"ds_read_b128 {vr(vMo,4)}, {vr(vT0)}")
    e(f"ds_read_b128 {vr(vLo,4)}, {vr(vT0)} offset:64")
    e("s_waitcnt lgkmcnt(6)")
    for j in range(4):
        for t in range(9):
            B = (vWOr + (j*9+t)*4) if j < 2 else (vW2 + ((j-2)*9+t)*4)
            cc = "0" if j == 0 else vr(vAcc+4*t,4)
            e(f"v_mfma_f32_16x16x32_bf16 {vr(vAcc+4*t,4)}, {vr(vAop+4*j,4)}, {vr(B,4)}, {cc}")
        if j == 0:
            e("s_waitcnt lgkmcnt(0)")
            e(f"v_max3_f32 {vr(vT0)}, {vr(vMall)}, {vr(vMall+1)}, {vr(vMall+2)}")
            for i in range(3, 15, 2):
                e(f"v_max3_f32 {vr(vT0)}, {vr(vT0)}, {vr(vMall+i)}, {vr(vMall+i+1)}")
            e(f"v_max_f32 {vr(vM)}, {vr(vT0)}, {vr(vMall+15)}")
            for r in range(4):
                e(f"v_sub_f32 {vr(vMo+r)}, {vr(vMo+r)}, {vr(vM)}")
            for r in range(4):
                e(f"v_exp_f32 {vr(vMo+r)}, {vr(vMo+r)}")
        if j == 1:
            e(f"v_mul_f32 {vr(vL)}, {vr(vMo)}, {vr(vLo)}")
            for r in range(1, 4):
                e(f"v_fma_f32 {vr(vL)}, {vr(vMo+r)}, {vr(vLo+r)}, {vr(vL)}")
            e(f"v_mul_f32 {vr(vM)}, 0.5, {vr(vM)}")
            e(f"v_and_b32 {vr(vT0)}, 1, {vr(vG)}")
            e(f"v_lshlrev_b32 {vr(vT0)}, 1, {vr(vT0)}")
            e(f"v_lshrrev_b32 {vr(vT1)}, 1, {vr(vG)}")
            e(f"v_or_b32 {vr(vT0)}, {vr(vT0)}, {vr(vT1)}")
            e(f"v_lshlrev_b32 {vr(vT0)}, 6, {vr(vT0)}")
            e(f"v_lshl_add_u32 {vr(vT0)}, {vr(vCc)}, 2, {vr(vT0)}")
            e(f"s_mul_i32 {sr(sT0)}, {sr(sR)}, {YROW}")
            e(f"s_mul_i32 {sr(sT1)}, {sr(sW)}, 576")
            e(f"s_add_u32 {sr(sT0)}, {sr(sT0)}, {sr(sT1)}")
            e(f"v_add_u32 {vr(vK)}, {sr(sT0)}, {vr(vT0)}")
            e(f"v_lshlrev_b32 {vr(vV)}, 2, {vr(vCc)}")
            e(f"v_add_u32 {vr(vV)}, {sr(sT0)}, {vr(vV)}")
            e(f"v_add_u32 {vr(vV)}, 512, {vr(vV)}")
            e(f"v_mov_b32 {vr(vT1)}, 0x40000000")
            e(f"v_cmp_gt_u32 vcc, 16, {vr(vLane)}")
            e("s_nop 1")
            e(f"v_cndmask_b32 {vr(vV)}, {vr(vT1)}, {vr(vV)}, vcc")
            e(f"s_lshl_b32 {sr(sT1)}, {sr(sR)}, 3")
            e(f"s_add_u32 {sr(sT1)}, {sr(sT1)}, {ML_OFF}")
            e(f"s_cmp_eq_u32 {sr(sW)}, 0")
            e(f"s_cselect_b32 {sr(sT1)}, {sr(sT1)}, 0x40000000")
            e(f"v_mov_b32 {vr(vT1)}, {sr(sT1)}")
            e(f"v_cmp_eq_u32 vcc, 16, {vr(vLane)}")
            e("s_nop 1")
            e(f"v_cndmask_b32 {vr(vV)}, {vr(vV)}, {vr(vT1)}, vcc")
            e(f"v_add_u32 {vr(vT1)}, 4, {vr(vT1)}")
            e(f"v_cmp_eq_u32 vcc, 32, {vr(vLane)}")
            e("s_nop 1")
            e(f"v_cndmask_b32 {vr(vV)}, {vr(vV)}, {vr(vT1)}, vcc")
    e("s_nop 7")
    for t in range(9):
        a = vAcc + 4*t
        e(f"v_mul_f32 {vr(a)}, {vr(vMo)}, {vr(a)}")
        for r in range(1, 4):
            e(f"v_fmac_f32 {vr(a)}, {vr(vMo+r)}, {vr(a+r)}")
    vals = [vAcc + 4*t for t in range(9)] + [vL]
    e("s_nop 1")
    for k in range(5):
        e(f"v_permlane32_swap_b32 {vr(vals[2*k])}, {vr(vals[2*k+1])}")
    e("s_nop 1")
    for k in range(5):
        e(f"v_add_f32 {vr(vals[2*k])}, {vr(vals[2*k])}, {vr(vals[2*k+1])}")
    ss = [vals[2*k] for k in range(5)] + [vM]
    e("s_nop 1")
    for k in range(3):
        e(f"v_permlane16_swap_b32 {vr(ss[2*k])}, {vr(ss[2*k+1])}")
    e("s_nop 1")
    for k in range(3):
        e(f"v_add_f32 {vr(ss[2*k])}, {vr(ss[2*k])}, {vr(ss[2*k+1])}")
    e(f"buffer_store_dword {vr(ss[0])}, {vr(vK)}, {sr(sWS,4)}, 0 offen")
    e(f"buffer_store_dword {vr(ss[2])}, {vr(vK)}, {sr(sWS,4)}, 0 offen offset:256")
    e(f"buffer_store_dword {vr(ss[4])}, {vr(vV)}, {sr(sWS,4)}, 0 offen")
    g.lab("L_exit")
    e("s_endpgm")

    g.lines.append(".p2align 8")
    g.lines.append(".globl final_kernel")
    g.lines.append(".type final_kernel,@function")
    g.lab("final_kernel")
    e("s_cmp_ge_u32 s2, 72")
    e("s_cbranch_scc1 L_exit2")
    e("s_load_dwordx2 s[4:5], s[0:1], 80")
    e("s_load_dwordx2 s[8:9], s[0:1], 96")
    e("s_cmp_ge_u32 s2, 36")
    e("s_cselect_b32 s12, 1, 0")
    e("s_cselect_b32 s13, 36, 0")
    e("s_sub_u32 s13, s2, s13")
    e("s_cmp_ge_u32 s13, 18")
    e("s_cselect_b32 s14, 1, 0")
    e("s_cselect_b32 s15, 18, 0")
    e("s_sub_u32 s15, s13, s15")
    e("s_lshl_b32 s16, s14, 7")
    e("s_lshl_b32 s17, s14, 5")
    e("s_add_u32 s17, s17, 256")
    e("s_cmp_eq_u32 s12, 1")
    e("s_cselect_b32 s16, s16, s17")
    e("s_cselect_b32 s18, 4, 1")
    e("s_cselect_b32 s19, 1, 0")
    e("v_lshrrev_b32 v1, 3, v0")
    e("v_and_b32 v2, 7, v0")
    e("v_mul_lo_u32 v3, v1, s18")
    e("v_add_u32 v3, s16, v3")
    e(f"v_mul_u32_u24 v4, {YROW}, v3")
    e("v_lshl_add_u32 v4, v2, 4, v4")
    e("s_lshl_b32 s20, s15, 7")
    e("v_add_u32 v4, s20, v4")
    e("v_lshlrev_b32 v5, 3, v3")
    e(f"v_add_u32 v5, {ML_OFF}, v5")
    e(f"s_mul_i32 s21, s19, {YROW}")
    e("s_lshl_b32 s22, s19, 3")
    e("s_waitcnt lgkmcnt(0)")
    e(f"s_mov_b32 s10, {WS_BYTES}")
    e("s_mov_b32 s11, 0x00020000")
    e("s_mov_b32 s6, 4608")
    e("s_mov_b32 s7, 0x00020000")
    e("s_mov_b32 s23, 0")
    e("s_mov_b32 s24, 0")
    for i in range(4):
        e(f"buffer_load_dwordx2 v[{8+2*i}:{9+2*i}], v5, s[8:11], s24 offen")
        e(f"buffer_load_dwordx4 v[{16+4*i}:{19+4*i}], v4, s[8:11], s23 offen")
        e("s_add_u32 s23, s23, s21")
        e("s_add_u32 s24, s24, s22")
    e("s_waitcnt vmcnt(0)")
    e("v_max3_f32 v6, v8, v10, v12")
    e("v_max_f32 v6, v6, v14")
    for i in range(4):
        e(f"v_sub_f32 v{8+2*i}, v{8+2*i}, v6")
    for i in range(4):
        e(f"v_exp_f32 v{8+2*i}, v{8+2*i}")
    e("s_nop 0")
    e("v_mul_f32 v7, v8, v9")
    for i in range(1, 4):
        e(f"v_fmac_f32 v7, v{8+2*i}, v{9+2*i}")
    e("v_rcp_f32 v7, v7")
    for k in range(4):
        e(f"v_mul_f32 v{16+k}, v8, v{16+k}")
        for i in range(1, 4):
            e(f"v_fmac_f32 v{16+k}, v{8+2*i}, v{16+4*i+k}")
    for k in range(4):
        e(f"v_mul_f32 v{16+k}, v7, v{16+k}")
    e("s_nop 1")
    for k in range(4):
        e(f"v_add_f32_dpp v{20+k}, v{16+k}, v{16+k} row_ror:8 row_mask:0xf bank_mask:0xf")
    e("s_nop 1")
    e("v_permlane32_swap_b32 v20, v21")
    e("v_permlane32_swap_b32 v22, v23")
    e("s_nop 1")
    e("v_add_f32 v20, v20, v21")
    e("v_add_f32 v22, v22, v23")
    e("s_nop 1")
    e("v_permlane16_swap_b32 v20, v22")
    e("s_nop 1")
    e("v_add_f32 v20, v20, v22")
    e("v_and_b32 v3, 63, v0")
    e("v_lshrrev_b32 v3, 4, v3")
    e("v_and_b32 v4, 1, v3")
    e("v_lshlrev_b32 v4, 1, v4")
    e("v_lshrrev_b32 v3, 1, v3")
    e("v_or_b32 v3, v3, v4")
    e("v_lshl_add_u32 v3, v2, 2, v3")
    e("v_lshrrev_b32 v4, 6, v0")
    e("v_lshl_add_u32 v3, v4, 5, v3")
    e("v_lshlrev_b32 v3, 2, v3")
    e("ds_write_b32 v3, v20")
    e("v_lshlrev_b32 v3, 2, v0")
    e("s_waitcnt lgkmcnt(0)")
    e("s_barrier")
    e("v_cmp_gt_u32 vcc, 32, v0")
    e("s_and_saveexec_b64 s[26:27], vcc")
    e("s_cbranch_execz L_exit2")
    for w in range(4):
        e(f"ds_read_b32 v{8+w}, v3 offset:{128*w}")
    e("s_mul_i32 s14, s14, 1152")
    e("s_mul_i32 s12, s12, 576")
    e("s_add_u32 s14, s14, s12")
    e("s_lshl_b32 s15, s15, 5")
    e("s_add_u32 s14, s14, s15")
    e("v_add_u32 v4, s14, v0")
    e("v_lshlrev_b32 v4, 1, v4")
    e("s_waitcnt lgkmcnt(0)")
    e("v_add_f32 v8, v8, v9")
    e("v_add_f32 v10, v10, v11")
    e("v_add_f32 v8, v8, v10")
    e("v_cvt_pk_bf16_f32 v8, v8, v8")
    e("buffer_store_short v8, v4, s[4:7], 0 offen")
    g.lab("L_exit2")
    e("s_endpgm")

    hdr = HEADER
    hdr += f"; @launch kernel={KN} grid=(320,1,1) block=(256,1,1) lds={LDS_TOTAL}\n"
    hdr += f"; @launch kernel=final_kernel grid=(72,1,1) block=(256,1,1) lds=512\n"
    hdr += '.amdgcn_target "amdgcn-amd-amdhsa--gfx950"\n.text\n'
    hdr += f".globl {KN}\n.p2align 8\n.type {KN},@function\n"
    tail = '.section .rodata,"a"\n'
    for name, nv in ((KN, 256), ("final_kernel", 32)):
        tail += f""".p2align 6
.amdhsa_kernel {name}
  .amdhsa_next_free_vgpr {nv}
  .amdhsa_next_free_sgpr 80
  .amdhsa_accum_offset {nv}
  .amdhsa_group_segment_fixed_size 0
  .amdhsa_kernarg_size 104
  .amdhsa_user_sgpr_count 2
  .amdhsa_user_sgpr_kernarg_segment_ptr 1
  .amdhsa_system_sgpr_workgroup_id_x 1
.end_amdhsa_kernel
"""
    return hdr + g.text() + tail

if __name__ == "__main__":
    out = sys.argv[1]
    opts = {}
    for a in sys.argv[2:]:
        k, v = a.split("=")
        opts[k] = int(v)
    open(out, "w").write(gen(opts))
```

```python
import sys, math, struct

KN = "concat_heads__sliding_block_cached__mha_block_cached__decode_kernel"

def f32bits(x):
    return struct.unpack("<I", struct.pack("<f", x))[0]

class Gen:
    def __init__(self):
        self.lines = []
        self.q = []
    def e(self, s):
        self.lines.append("    " + s)
    def lab(self, s):
        self.lines.append(s + ":")
    def vm(self, s, tag=None):
        self.e(s)
        self.q.append(tag)
    def wait_tag(self, tag):
        idx = max(i for i, t in enumerate(self.q) if t == tag)
        n = len(self.q) - 1 - idx
        assert n <= 63, n
        self.e(f"s_waitcnt vmcnt({n})")
    def text(self):
        return "\n".join(self.lines) + "\n"

def vr(a, n=1):
    return f"v{a}" if n == 1 else f"v[{a}:{a+n-1}]"
def ar(a, n=1):
    return f"a{a}" if n == 1 else f"a[{a}:{a+n-1}]"
def sr(a, n=1):
    return f"s{a}" if n == 1 else f"s[{a}:{a+n-1}]"

HEADER = open("concat_heads__sliding_block_cached__mha_block_cached__decode.s.ref").read().split("; Override launch")[0]

NROWS = 576
YROW = 2304
ML_OFF = NROWS * YROW
WS_BYTES = ML_OFF + NROWS * 8
LDS_OT = 147456
OT_STRIDE = 272
LDS_M = LDS_OT + 16 * OT_STRIDE
LDS_L = LDS_M + 64
LDS_QP = LDS_L + 64
LDS_TOTAL = LDS_QP + 4096
CSCALE = (128 ** -0.5) * math.log2(math.e)

def gen(opts):
    D = 4
    NT = " nt" if opts.get("nt", 1) else ""
    PROF = opts.get("prof", 0)
    ILV = opts.get("ilv", 4)
    g = Gen()
    e = g.e
    sW = 3
    sK, sV, sWQ, sX, sWO, sWS = 36, 40, 44, 48, 52, 56
    sH, sKk, sT0, sT1, sT2, sT3 = 60, 61, 62, 63, 64, 65
    sOff, sIt, sC, sSelLo, sSelHi, sLdsW = 66, 67, 68, 69, 70, 71
    sRem, sR0, sR1, sXa, sXb, sDt, sDoff, sDlds, sWoff = 72, 73, 74, 75, 76, 77, 78, 79, 34
    sRet = 4
    vLane, vG, vCc = 1, 2, 3
    vK, vV, vTR, vWQ, vX = 4, 5, 7, 8, 9
    vT0, vT1 = 10, 11
    vM, vL, vM2, vL2 = 12, 13, 14, 15
    vS, vS2 = 16, 20
    vE, vA, vMn = 24, 28, 29
    vO, vO2 = 32, 40
    vP = 48
    vQ, vQ2 = 64, 80
    vVb = 96
    vWOj = 160
    vScr = 164
    vXa, vXb = 24, 42
    vQacc = 64
    WQWIN = 24
    def wqreg(n): return 160 + 4 * (n % WQWIN)
    def kreg(d, j): return d * 16 + j * 4
    def vreg(d, r): return vVb + d * 16 + r * 4
    aW = 64
    nstamp = [0]
    def stamp(i):
        if PROF:
            e(f"s_memrealtime s[{80+2*i}:{81+2*i}]")

    def srd_tail(s, size):
        e(f"s_mov_b32 {sr(s+2)}, {size}")
        e(f"s_mov_b32 {sr(s+3)}, 0x00020000")
    def add64(s, src, off):
        e(f"s_add_u32 {sr(s)}, {sr(src)}, {off}")
        e(f"s_addc_u32 {sr(s+1)}, {sr(src+1)}, 0")

    def issue_k(d, tag=None):
        for j in range(4):
            g.vm(f"buffer_load_dwordx4 {ar(kreg(d,j),4)}, {vr(vK)}, {sr(sK,4)}, {sr(sOff)} offen offset:{64*j}{NT}", tag)
    def issue_v(d, tag=None):
        for r in range(4):
            g.vm(f"buffer_load_dwordx4 {vr(vreg(d,r),4)}, {vr(vV)}, {sr(sV,4)}, {sr(sOff)} offen offset:{256*r}{NT}", tag)

    g.lab(KN)
    e("s_cmp_ge_u32 s2, 256")
    e("s_cbranch_scc1 L_exit")
    stamp(0)
    e("s_load_dwordx16 s[8:23], s[0:1], 0")
    e("s_load_dwordx8 s[24:31], s[0:1], 64")
    e("s_load_dwordx2 s[32:33], s[0:1], 96")
    e(f"v_lshrrev_b32 {vr(vT0)}, 6, v0")
    e(f"v_and_b32 {vr(vLane)}, 63, v0")
    e(f"v_readfirstlane_b32 {sr(sW)}, {vr(vT0)}")
    e(f"v_lshrrev_b32 {vr(vG)}, 4, {vr(vLane)}")
    e(f"v_and_b32 {vr(vCc)}, 15, {vr(vLane)}")
    e(f"s_mul_i32 {sr(sT0)}, {sr(sW)}, 144")
    e(f"v_mul_u32_u24 {vr(vT0)}, 36, {vr(vG)}")
    e(f"v_add_u32 {vr(vT0)}, {sr(sT0)}, {vr(vT0)}")
    e(f"v_lshlrev_b32 {vr(vX)}, 1, {vr(vT0)}")
    e(f"v_lshlrev_b32 {vr(vWQ)}, 13, {vr(vT0)}")
    e(f"v_lshl_add_u32 {vr(vWQ)}, {vr(vCc)}, 4, {vr(vWQ)}")
    e(f"v_lshlrev_b32 {vr(vK)}, 8, {vr(vCc)}")
    e(f"v_lshl_add_u32 {vr(vK)}, {vr(vG)}, 4, {vr(vK)}")
    e(f"v_lshlrev_b32 {vr(vV)}, 10, {vr(vG)}")
    e(f"v_lshl_add_u32 {vr(vV)}, {vr(vCc)}, 4, {vr(vV)}")
    e(f"s_mov_b32 {sr(sC)}, 0x{f32bits(CSCALE):08x}")
    e(f"s_mov_b32 {sr(sSelLo)}, 0x05040100")
    e(f"s_mov_b32 {sr(sSelHi)}, 0x07060302")
    e(f"s_lshl_b32 {sr(sLdsW)}, {sr(sW)}, 10")
    e(f"v_bfe_u32 {vr(vT0)}, {vr(vLane)}, 3, 2")
    e(f"v_xor_b32 {vr(vT0)}, {sr(sW)}, {vr(vT0)}")
    e(f"v_lshlrev_b32 {vr(vT0)}, 5, {vr(vT0)}")
    e(f"v_lshrrev_b32 {vr(vT1)}, 2, {vr(vLane)}")
    e(f"v_lshl_add_u32 {vr(vT0)}, {vr(vT1)}, 7, {vr(vT0)}")
    e(f"v_and_b32 {vr(vT1)}, 3, {vr(vLane)}")
    e(f"v_lshl_add_u32 {vr(vTR)}, {vr(vT1)}, 3, {vr(vT0)}")
    e(f"s_and_b32 {sr(sT0)}, s2, 7")
    e(f"s_lshr_b32 {sr(sT1)}, s2, 3")
    e(f"s_cmp_ge_u32 {sr(sT1)}, 28")
    e("s_cbranch_scc1 L_A")

    e(f"s_mul_i32 {sr(sT2)}, {sr(sT1)}, 37")
    e(f"s_lshr_b32 {sr(sT2)}, {sr(sT2)}, 8")
    e(f"s_mul_i32 {sr(sT3)}, {sr(sT2)}, 7")
    e(f"s_sub_u32 {sr(sKk)}, {sr(sT1)}, {sr(sT3)}")
    e(f"s_lshl_b32 {sr(sT0)}, {sr(sT0)}, 2")
    e(f"s_add_u32 {sr(sH)}, {sr(sT0)}, {sr(sT2)}")
    e(f"s_lshl_b32 {sr(sT0)}, {sr(sKk)}, 2")
    e(f"s_add_u32 {sr(sT0)}, {sr(sT0)}, {sr(sW)}")
    e(f"s_cmp_ge_u32 {sr(sT0)}, 14")
    e(f"s_cselect_b32 {sr(sT1)}, 14, 0")
    e(f"s_cselect_b32 {sr(sT2)}, 32, 0")
    e(f"s_sub_u32 {sr(sT0)}, {sr(sT0)}, {sr(sT1)}")
    e(f"s_mul_i32 {sr(sT1)}, {sr(sT0)}, 37450")
    e(f"s_add_u32 {sr(sT3)}, {sr(sT1)}, 37450")
    e(f"s_lshr_b32 {sr(sT1)}, {sr(sT1)}, 10")
    e(f"s_lshr_b32 {sr(sT3)}, {sr(sT3)}, 10")
    e(f"s_sub_u32 {sr(sRem)}, {sr(sT3)}, {sr(sT1)}")
    e(f"s_add_u32 {sr(sT2)}, {sr(sT2)}, {sr(sH)}")
    e(f"s_lshl_b32 {sr(sT2)}, {sr(sT2)}, 21")
    e(f"s_lshl_b32 {sr(sT1)}, {sr(sT1)}, 12")
    e(f"s_add_u32 {sr(sT2)}, {sr(sT2)}, {sr(sT1)}")
    e(f"s_mul_i32 {sr(sT0)}, {sr(sH)}, 7")
    e(f"s_lshl_b32 {sr(sT1)}, {sr(sKk)}, 1")
    e(f"s_add_u32 {sr(sR0)}, {sr(sT0)}, {sr(sT1)}")
    e(f"s_add_u32 {sr(sR1)}, {sr(sR0)}, 1")
    e(f"s_cmp_ge_u32 {sr(sT1)}, 7")
    e(f"s_cselect_b32 {sr(sT3)}, 217, 0")
    e(f"s_cselect_b32 {sr(sXa)}, 1152, 0")
    e(f"s_add_u32 {sr(sR0)}, {sr(sR0)}, {sr(sT3)}")
    e(f"s_cmp_ge_u32 {sr(sT1)}, 6")
    e(f"s_cselect_b32 {sr(sT3)}, 217, 0")
    e(f"s_cselect_b32 {sr(sXb)}, 1152, 0")
    e(f"s_add_u32 {sr(sR1)}, {sr(sR1)}, {sr(sT3)}")
    e("s_waitcnt lgkmcnt(0)")
    e(f"s_mov_b32 {sr(sX)}, s18"); e(f"s_mov_b32 {sr(sX+1)}, s19"); srd_tail(sX, 2304)
    e(f"s_lshl_b32 {sr(sT0)}, {sr(sH)}, 8")
    add64(sWQ, 24, sr(sT0)); srd_tail(sWQ, 575*8192+256)
    add64(sK, 20, sr(sT2)); add64(sV, 22, sr(sT2))
    e(f"s_lshl_b32 {sr(sK+2)}, {sr(sRem)}, 12"); e(f"s_mov_b32 {sr(sK+3)}, 0x00020000")
    e(f"s_lshl_b32 {sr(sV+2)}, {sr(sRem)}, 12"); e(f"s_mov_b32 {sr(sV+3)}, 0x00020000")
    e(f"s_mul_i32 {sr(sT0)}, {sr(sH)}, 147456")
    add64(sWO, 26, sr(sT0)); srd_tail(sWO, 147456)

    def load_x(base, soff):
        for i in range(4):
            g.vm(f"buffer_load_dwordx4 {vr(base+4*i,4)}, {vr(vX)}, {sr(sX,4)}, {soff} offen offset:{16*i}", "x")
        g.vm(f"buffer_load_dwordx2 {vr(base+16,2)}, {vr(vX)}, {sr(sX,4)}, {soff} offen offset:64", "x")

    def prologue(isA):
        g.q = []
        load_x(vXa, sr(sXa))
        if not isA:
            load_x(vXb, sr(sXb))
        NL = 72 if isA else 36
        def wq_issue(n):
            if isA:
                p, r = n >> 2, n & 3
                hd, rb = r >> 1, r & 1
                row = 2 * p + rb
                e(f"s_mov_b32 {sr(sWoff)}, {row*8192}")
                g.vm(f"buffer_load_dwordx4 {vr(wqreg(n),4)}, {vr(vWQ)}, {sr(sWQ,4)}, {sr(sWoff)} offen offset:{hd*256}", ("wq", n))
            else:
                e(f"s_mov_b32 {sr(sWoff)}, {n*8192}")
                g.vm(f"buffer_load_dwordx4 {vr(wqreg(n),4)}, {vr(vWQ)}, {sr(sWQ,4)}, {sr(sWoff)} offen", ("wq", n))
        kvseq = []
        for d in range(D):
            kvseq.append(("k", d)); kvseq.append(("v", d))
        e(f"s_mov_b32 {sr(sOff)}, 0")
        def kv_issue():
            if not kvseq: return
            t, d = kvseq.pop(0)
            if t == "k": issue_k(d)
            else:
                issue_v(d)
                e(f"s_add_u32 {sr(sOff)}, {sr(sOff)}, 4096")
        issued = 0
        ilv = ILV * (2 if isA else 1)
        while issued < WQWIN:
            wq_issue(issued); issued += 1
            if issued % ilv == 0: kv_issue()
        for i in range(16):
            e(f"v_mov_b32 {vr(vQacc+i)}, 0")
        stamp(1)
        for pr in range(NL // 2):
            n0, n1 = 2 * pr, 2 * pr + 1
            g.wait_tag(("wq", n1))
            a, b = wqreg(n0), wqreg(n1)
            for d in range(4):
                e(f"v_perm_b32 {vr(vT0)}, {vr(b+d)}, {vr(a+d)}, {sr(sSelLo)}")
                e(f"v_perm_b32 {vr(vT1)}, {vr(b+d)}, {vr(a+d)}, {sr(sSelHi)}")
                if isA:
                    hd = pr & 1; p = pr >> 1
                    e(f"v_dot2c_f32_bf16 {vr(vQacc+8*hd+2*d)}, {vr(vT0)}, {vr(vXa+p)}")
                    e(f"v_dot2c_f32_bf16 {vr(vQacc+8*hd+2*d+1)}, {vr(vT1)}, {vr(vXa+p)}")
                else:
                    e(f"v_dot2c_f32_bf16 {vr(vQacc+2*d)}, {vr(vT0)}, {vr(vXa+pr)}")
                    e(f"v_dot2c_f32_bf16 {vr(vQacc+2*d+1)}, {vr(vT1)}, {vr(vXa+pr)}")
                    e(f"v_dot2c_f32_bf16 {vr(vQacc+8+2*d)}, {vr(vT0)}, {vr(vXb+pr)}")
                    e(f"v_dot2c_f32_bf16 {vr(vQacc+8+2*d+1)}, {vr(vT1)}, {vr(vXb+pr)}")
            for _ in range(2):
                if issued < NL:
                    wq_issue(issued); issued += 1
                    if issued % ilv == 0: kv_issue()
        while kvseq: kv_issue()
        e("s_nop 3")
        for s in range(2):
            for i in range(4):
                e(f"v_permlane32_swap_b32 {vr(vQacc+8*s+i)}, {vr(vQacc+8*s+i+4)}")
        e("s_nop 1")
        for s in range(2):
            for i in range(4):
                e(f"v_add_f32 {vr(vQacc+8*s+i)}, {vr(vQacc+8*s+i)}, {vr(vQacc+8*s+i+4)}")
        e("s_nop 1")
        for s in range(2):
            e(f"v_permlane16_swap_b32 {vr(vQacc+8*s+0)}, {vr(vQacc+8*s+2)}")
            e(f"v_permlane16_swap_b32 {vr(vQacc+8*s+1)}, {vr(vQacc+8*s+3)}")
        e("s_nop 1")
        for s in range(2):
            e(f"v_add_f32 {vr(vQacc+8*s+0)}, {vr(vQacc+8*s+0)}, {vr(vQacc+8*s+2)}")
            e(f"v_add_f32 {vr(vQacc+8*s+1)}, {vr(vQacc+8*s+1)}, {vr(vQacc+8*s+3)}")
        e(f"s_lshl_b32 {sr(sT0)}, {sr(sW)}, 9")
        e(f"s_add_u32 {sr(sT0)}, {sr(sT0)}, {LDS_QP}")
        e(f"v_lshlrev_b32 {vr(vT0)}, 5, {vr(vCc)}")
        e(f"v_lshl_add_u32 {vr(vT0)}, {vr(vG)}, 3, {vr(vT0)}")
        e(f"v_add_u32 {vr(vT0)}, {sr(sT0)}, {vr(vT0)}")
        e(f"ds_write_b64 {vr(vT0)}, {vr(vQacc,2)}")
        e(f"ds_write_b64 {vr(vT0)}, {vr(vQacc+8,2)} offset:2048")
        e(f"v_and_b32 {vr(vT1)}, 3, {vr(vCc)}")
        e(f"v_lshlrev_b32 {vr(vT1)}, 7, {vr(vT1)}")
        e(f"v_lshl_add_u32 {vr(vT1)}, {vr(vG)}, 5, {vr(vT1)}")
        if isA:
            e(f"v_add_u32 {vr(vT1)}, {LDS_QP}, {vr(vT1)}")
        else:
            e(f"s_lshr_b32 {sr(sT0)}, {sr(sW)}, 1")
            e(f"s_lshl_b32 {sr(sT0)}, {sr(sT0)}, 11")
            e(f"s_add_u32 {sr(sT0)}, {sr(sT0)}, {LDS_QP}")
            e(f"v_add_u32 {vr(vT1)}, {sr(sT0)}, {vr(vT1)}")
        e("s_waitcnt lgkmcnt(0)")
        e("s_barrier")
        tq = 168
        for s in range(2 if isA else 1):
            for w in range(4):
                for hh in range(2):
                    e(f"ds_read_b128 {vr(tq+s*32+w*8+hh*4,4)}, {vr(vT1)} offset:{s*2048+w*512+hh*16}")
        e(f"v_bfe_u32 {vr(vT0)}, {vr(vLane)}, 3, 2")
        e(f"v_lshrrev_b32 {vr(vA)}, 5, {vr(vLane)}")
        e(f"v_lshl_add_u32 {vr(vT0)}, {vr(vA)}, 3, {vr(vT0)}")
        e(f"s_and_b32 {sr(sT0)}, {sr(sW)}, 1")
        e(f"s_lshl_b32 {sr(sT0)}, {sr(sT0)}, 4")
        e(f"s_lshr_b32 {sr(sT1)}, {sr(sW)}, 1")
        e(f"s_lshl_b32 {sr(sT1)}, {sr(sT1)}, 2")
        e(f"s_add_u32 {sr(sT0)}, {sr(sT0)}, {sr(sT1)}")
        e(f"v_add_u32 {vr(vT0)}, {sr(sT0)}, {vr(vT0)}")
        e(f"v_mul_u32_u24 {vr(vWOj)}, 1152, {vr(vT0)}")
        e(f"v_lshrrev_b32 {vr(vA)}, 4, {vr(vLane)}")
        e(f"v_lshlrev_b32 {vr(vA)}, 1, {vr(vA)}")
        e(f"v_and_b32 {vr(vT0)}, 7, {vr(vLane)}")
        e(f"v_xor_b32 {vr(vA)}, {vr(vA)}, {vr(vT0)}")
        e(f"v_lshl_add_u32 {vr(vWOj)}, {vr(vA)}, 4, {vr(vWOj)}")
        for j in range(1, 4):
            e(f"v_add_u32 {vr(vWOj+j)}, {36864*j}, {vr(vWOj)}")
        e(f"s_mov_b32 {sr(sWS)}, s32"); e(f"s_mov_b32 {sr(sWS+1)}, s33"); srd_tail(sWS, WS_BYTES)
        e("s_waitcnt lgkmcnt(0)")
        for s in range(2 if isA else 1):
            t = tq + s * 32
            for i in range(8):
                e(f"v_add_f32 {vr(t+i)}, {vr(t+i)}, {vr(t+8+i)}")
                e(f"v_add_f32 {vr(t+16+i)}, {vr(t+16+i)}, {vr(t+24+i)}")
            for i in range(8):
                e(f"v_add_f32 {vr(t+i)}, {vr(t+i)}, {vr(t+16+i)}")
            for d in range(4):
                e(f"v_cvt_pk_bf16_f32 {vr(t+8+d)}, {vr(t+2*d)}, {vr(t+2*d+1)}")
            e("s_nop 1")
            qq = vQ2 if s else vQ
            for j in range(4):
                for d in range(4):
                    e(f"v_mov_b32_dpp {vr(qq+4*j+d)}, {vr(t+8+d)} quad_perm:[{j},{j},{j},{j}] row_mask:0xf bank_mask:0xf")
        for i in range(16 if isA else 8):
            e(f"v_mov_b32 {vr(vO+i)}, 0")
        e(f"v_mov_b32 {vr(vM)}, 0xff800000")
        e(f"v_mov_b32 {vr(vL)}, 0")
        if isA:
            e(f"v_mov_b32 {vr(vM2)}, 0xff800000")
            e(f"v_mov_b32 {vr(vL2)}, 0")
        e(f"s_mov_b32 {sr(sIt)}, 0")
        e(f"s_mov_b32 {sr(sDt)}, 0")
        e(f"s_mov_b32 {sr(sDoff)}, 0")
        e(f"s_mov_b32 {sr(sDlds)}, {sr(sLdsW)}")
        e(f"s_sub_u32 {sr(sRem)}, {sr(sRem)}, 1")
        stamp(2)

    def softmax(S, M, L, O, P):
        e(f"v_max3_f32 {vr(vT0)}, {vr(S)}, {vr(S+1)}, {vr(S+2)}")
        e(f"v_max_f32 {vr(vT0)}, {vr(vT0)}, {vr(S+3)}")
        e(f"v_mul_f32 {vr(vT0)}, {sr(sC)}, {vr(vT0)}")
        e(f"v_max_f32 {vr(vMn)}, {vr(vT0)}, {vr(M)}")
        e(f"v_sub_f32 {vr(vA)}, {vr(M)}, {vr(vMn)}")
        for r in range(4):
            e(f"v_fma_f32 {vr(vE+r)}, {vr(S+r)}, {sr(sC)}, -{vr(vMn)}")
        e(f"v_exp_f32 {vr(vA)}, {vr(vA)}")
        for r in range(4):
            e(f"v_exp_f32 {vr(vE+r)}, {vr(vE+r)}")
        e(f"v_mov_b32 {vr(M)}, {vr(vMn)}")
        for i in range(8):
            e(f"v_mul_f32 {vr(O+i)}, {vr(vA)}, {vr(O+i)}")
        e(f"v_fma_f32 {vr(L)}, {vr(L)}, {vr(vA)}, {vr(vE)}")
        e(f"v_add_f32 {vr(vT0)}, {vr(vE+1)}, {vr(vE+2)}")
        e(f"v_add_f32 {vr(L)}, {vr(L)}, {vr(vE+3)}")
        e(f"v_add_f32 {vr(L)}, {vr(L)}, {vr(vT0)}")
        for r in range(4):
            e(f"v_cvt_pk_bf16_f32 {vr(P+2*r)}, {vr(vE+r)}, 0")
            e(f"v_cvt_pk_bf16_f32 {vr(P+2*r+1)}, 0, {vr(vE+r)}")

    def dma_group(lbl):
        e(f"s_cmp_lt_u32 {sr(sDt)}, 9")
        e(f"s_cbranch_scc0 {lbl}")
        for j in range(4):
            e(f"s_add_u32 m0, {sr(sDlds)}, {4096*j}")
            e("s_nop 0")
            e(f"buffer_load_dwordx4 {vr(vWOj+j)}, {sr(sWO,4)}, {sr(sDoff)} offen lds")
        e(f"s_add_u32 {sr(sDt)}, {sr(sDt)}, 1")
        e(f"s_add_u32 {sr(sDoff)}, {sr(sDoff)}, 128")
        e(f"s_add_u32 {sr(sDlds)}, {sr(sDlds)}, 16384")
        g.lab(lbl)

    W = 8 * D - 4
    def mainloop(isA):
        nm = "A" if isA else "B"
        g.lab(f"L_loop{nm}")
        e(f"s_cmp_eq_u32 {sr(sIt)}, {4 if isA else 6}")
        e(f"s_cbranch_scc0 L_body{nm}")
        stamp(3)
        e(f"s_call_b64 {sr(sRet,2)}, L_T1")
        stamp(4)
        if isA:
            e(f"s_mov_b32 {sr(sDt)}, 0")
            e(f"s_mov_b32 {sr(sDoff)}, 147456")
            e(f"s_mov_b32 {sr(sDlds)}, {sr(sLdsW)}")
        g.lab(f"L_body{nm}")
        for d in range(D):
            e(f"s_waitcnt vmcnt({W})")
            for j in range(4):
                cc = "0" if j == 0 else vr(vS,4)
                e(f"v_mfma_f32_16x16x32_bf16 {vr(vS,4)}, {ar(kreg(d,j),4)}, {vr(vQ+4*j,4)}, {cc}")
            if isA:
                for j in range(4):
                    cc = "0" if j == 0 else vr(vS2,4)
                    e(f"v_mfma_f32_16x16x32_bf16 {vr(vS2,4)}, {ar(kreg(d,j),4)}, {vr(vQ2+4*j,4)}, {cc}")
            issue_k(d)
            e("s_nop 3")
            softmax(vS, vM, vL, vO, vP)
            if isA:
                softmax(vS2, vM2, vL2, vO2, vP + 8)
            e(f"s_waitcnt vmcnt({W})")
            for r in range(4):
                for dd in range(4):
                    e(f"v_dot2c_f32_bf16 {vr(vO+2*dd)}, {vr(vreg(d,r)+dd)}, {vr(vP+2*r)}")
                    e(f"v_dot2c_f32_bf16 {vr(vO+2*dd+1)}, {vr(vreg(d,r)+dd)}, {vr(vP+2*r+1)}")
                    if isA:
                        e(f"v_dot2c_f32_bf16 {vr(vO2+2*dd)}, {vr(vreg(d,r)+dd)}, {vr(vP+8+2*r)}")
                        e(f"v_dot2c_f32_bf16 {vr(vO2+2*dd+1)}, {vr(vreg(d,r)+dd)}, {vr(vP+8+2*r+1)}")
            issue_v(d)
            e(f"s_add_u32 {sr(sOff)}, {sr(sOff)}, 4096")
            if isA or d % 2 == 0:
                dma_group(f"L_dma{nm}{d}")
            e(f"s_sub_u32 {sr(sRem)}, {sr(sRem)}, 1")
            e(f"s_cbranch_scc1 L_end{nm}")
        e(f"s_add_u32 {sr(sIt)}, {sr(sIt)}, 1")
        e(f"s_branch L_loop{nm}")
        g.lab(f"L_end{nm}")

    prologue(False)
    mainloop(False)
    stamp(5)
    e(f"s_call_b64 {sr(sRet,2)}, L_T2")
    e("s_branch L_done")

    g.lab("L_A")
    e(f"s_sub_u32 {sr(sT1)}, {sr(sT1)}, 28")
    e(f"s_lshl_b32 {sr(sT0)}, {sr(sT0)}, 1")
    e(f"s_lshr_b32 {sr(sT2)}, {sr(sT1)}, 1")
    e(f"s_add_u32 {sr(sH)}, {sr(sT0)}, {sr(sT2)}")
    e(f"s_and_b32 {sr(sT1)}, {sr(sT1)}, 1")
    e(f"s_mul_i32 {sr(sXa)}, {sr(sT1)}, 1152")
    e(f"s_lshl_b32 {sr(sT2)}, {sr(sT1)}, 4")
    e(f"s_add_u32 {sr(sT2)}, {sr(sT2)}, {sr(sH)}")
    e(f"s_lshl_b32 {sr(sR0)}, {sr(sT2)}, 2")
    e(f"s_add_u32 {sr(sR0)}, {sr(sR0)}, 448")
    e(f"s_add_u32 {sr(sR1)}, {sr(sR0)}, 1")
    e(f"s_lshl_b32 {sr(sT2)}, {sr(sT2)}, 21")
    e(f"s_lshl_b32 {sr(sT3)}, {sr(sW)}, 17")
    e(f"s_add_u32 {sr(sT2)}, {sr(sT2)}, {sr(sT3)}")
    e(f"s_add_u32 {sr(sT2)}, {sr(sT2)}, 0x180000")
    e(f"s_mov_b32 {sr(sRem)}, 32")
    e("s_waitcnt lgkmcnt(0)")
    e(f"s_mov_b32 {sr(sX)}, s8"); e(f"s_mov_b32 {sr(sX+1)}, s9"); srd_tail(sX, 2304)
    e(f"s_lshl_b32 {sr(sT0)}, {sr(sH)}, 9")
    add64(sWQ, 14, sr(sT0)); srd_tail(sWQ, 575*8192+512)
    add64(sK, 10, sr(sT2)); add64(sV, 12, sr(sT2))
    srd_tail(sK, 131072); srd_tail(sV, 131072)
    e(f"s_mul_i32 {sr(sT0)}, {sr(sH)}, 294912")
    add64(sWO, 16, sr(sT0)); srd_tail(sWO, 294912)
    prologue(True)
    mainloop(True)
    stamp(5)
    e(f"s_call_b64 {sr(sRet,2)}, L_T2")
    e(f"s_call_b64 {sr(sRet,2)}, L_T1")
    for i in range(8):
        e(f"v_mov_b32 {vr(vO+i)}, {vr(vO2+i)}")
    e(f"v_mov_b32 {vr(vM)}, {vr(vM2)}")
    e(f"v_mov_b32 {vr(vL)}, {vr(vL2)}")
    e(f"s_add_u32 {sr(sR0)}, {sr(sR0)}, 2")
    e(f"s_add_u32 {sr(sR1)}, {sr(sR1)}, 2")
    e(f"s_call_b64 {sr(sRet,2)}, L_T2")
    g.lab("L_done")
    if PROF:
        stamp(6)
        e("s_waitcnt vmcnt(0)")
        stamp(7)
        e("s_getreg_b32 s96, hwreg(HW_REG_XCC_ID)")
        e("s_getreg_b32 s97, hwreg(HW_REG_HW_ID)")
        e("s_waitcnt lgkmcnt(0)")
        e(f"s_mov_b32 {sr(sWS+2)}, 0x400000")
        e(f"s_lshl_b32 {sr(sT0)}, s2, 2")
        e(f"s_add_u32 {sr(sT0)}, {sr(sT0)}, {sr(sW)}")
        e(f"s_lshl_b32 {sr(sT0)}, {sr(sT0)}, 6")
        e(f"s_add_u32 {sr(sT0)}, {sr(sT0)}, 0x200000")
        e(f"v_mov_b32 v20, {sr(sT0)}")
        for i in range(8):
            e(f"v_mov_b32 v{24+i}, s{80+2*i}")
        e("v_mov_b32 v32, s96")
        e("v_mov_b32 v33, s97")
        e(f"v_cmp_eq_u32 vcc, 0, {vr(vLane)}")
        e("s_and_saveexec_b64 s[98:99], vcc")
        e(f"buffer_store_dwordx4 v[24:27], v20, {sr(sWS,4)}, 0 offen")
        e(f"buffer_store_dwordx4 v[28:31], v20, {sr(sWS,4)}, 0 offen offset:16")
        e(f"buffer_store_dwordx2 v[32:33], v20, {sr(sWS,4)}, 0 offen offset:32")
    g.lab("L_exit")
    e("s_endpgm")

    g.lab("L_T1")
    e(f"v_add_u32 {vr(vT0)}, 0x10000, {vr(vTR)}")
    e(f"v_add_u32 {vr(vT1)}, 0x20000, {vr(vTR)}")
    e("s_barrier")
    for t in range(9):
        for j in range(4):
            for hf in range(2):
                off = t*16384 + j*4096 + hf*2048
                a = (vTR, vT0, vT1)[off >> 16]
                e(f"ds_read_b64_tr_b16 {ar(aW+(t*4+j)*4+hf*2,2)}, {vr(a)} offset:{off & 0xffff}")
    e("s_waitcnt lgkmcnt(0)")
    e("s_barrier")
    e(f"s_setpc_b64 {sr(sRet,2)}")

    vAcc = 164
    vAop = 200
    vMh = 216
    vMo, vLo = 224, 228
    vPk = 232
    vSt0, vSt1 = 236, 237
    vMM, vLL = 238, 239
    vU0, vU1 = 240, 241
    g.lab("L_T2")
    e("s_nop 2")
    for d in range(4):
        e(f"v_cvt_pk_bf16_f32 {vr(vPk+d)}, {vr(vO+2*d)}, {vr(vO+2*d+1)}")
    e(f"s_lshl_b32 {sr(sT0)}, {sr(sW)}, 2")
    e(f"v_add_u32 {vr(vT0)}, {sr(sT0)}, {vr(vG)}")
    e(f"v_mul_u32_u24 {vr(vT1)}, {OT_STRIDE}, {vr(vT0)}")
    e(f"v_lshl_add_u32 {vr(vT1)}, {vr(vCc)}, 4, {vr(vT1)}")
    e(f"v_add_u32 {vr(vT1)}, {LDS_OT}, {vr(vT1)}")
    e(f"ds_write_b128 {vr(vT1)}, {vr(vPk,4)}")
    e(f"v_lshlrev_b32 {vr(vT0)}, 2, {vr(vT0)}")
    e(f"v_add_u32 {vr(vT0)}, {LDS_M}, {vr(vT0)}")
    e(f"ds_write_b32 {vr(vT0)}, {vr(vM)}")
    e(f"ds_write_b32 {vr(vT0)}, {vr(vL)} offset:64")
    e(f"v_mul_u32_u24 {vr(vT1)}, {OT_STRIDE}, {vr(vCc)}")
    e(f"v_lshl_add_u32 {vr(vT1)}, {vr(vG)}, 4, {vr(vT1)}")
    e(f"v_add_u32 {vr(vT1)}, {LDS_OT}, {vr(vT1)}")
    e(f"v_lshlrev_b32 {vr(vT0)}, 4, {vr(vG)}")
    e(f"v_add_u32 {vr(vT0)}, {LDS_M}, {vr(vT0)}")
    e(f"v_and_b32 {vr(vU0)}, 32, {vr(vLane)}")
    e(f"v_add_u32 {vr(vU0)}, {LDS_M}, {vr(vU0)}")
    e("s_waitcnt lgkmcnt(0)")
    e("s_barrier")
    for j in range(4):
        e(f"ds_read_b128 {vr(vAop+4*j,4)}, {vr(vT1)} offset:{64*j}")
    for i in range(2):
        e(f"ds_read_b128 {vr(vMh+4*i,4)}, {vr(vU0)} offset:{16*i}")
    e(f"ds_read_b128 {vr(vMo,4)}, {vr(vT0)}")
    e(f"ds_read_b128 {vr(vLo,4)}, {vr(vT0)} offset:64")
    for j in range(4):
        e(f"s_waitcnt lgkmcnt({7-j if j < 3 else 0})") if j != 1 and j != 2 else e(f"s_waitcnt lgkmcnt({7-j})")
        for t in range(9):
            cc = "0" if j == 0 else vr(vAcc+4*t,4)
            e(f"v_mfma_f32_16x16x32_bf16 {vr(vAcc+4*t,4)}, {vr(vAop+4*j,4)}, {ar(aW+(t*4+j)*4,4)}, {cc}")
        if j == 0:
            e(f"s_mul_i32 {sr(sT0)}, {sr(sR0)}, {YROW}")
            e(f"s_mul_i32 {sr(sT1)}, {sr(sR1)}, {YROW}")
            e(f"s_lshl_b32 {sr(sT2)}, {sr(sW)}, 6")
            e(f"v_mov_b32 {vr(vSt0)}, {sr(sT0)}")
            e(f"v_mov_b32 {vr(vSt1)}, {sr(sT1)}")
            e(f"v_cmp_lt_u32 vcc, 31, {vr(vLane)}")
            e(f"v_and_b32 {vr(vU0)}, 31, {vr(vLane)}")
            e("s_nop 0")
            e(f"v_cndmask_b32 {vr(vSt0)}, {vr(vSt0)}, {vr(vSt1)}, vcc")
            e(f"v_lshl_add_u32 {vr(vSt0)}, {vr(vCc)}, 2, {vr(vSt0)}")
            e(f"v_and_b32 {vr(vU1)}, 16, {vr(vLane)}")
            e(f"v_lshl_add_u32 {vr(vSt0)}, {vr(vU1)}, 4, {vr(vSt0)}")
            e(f"v_add_u32 {vr(vSt0)}, {sr(sT2)}, {vr(vSt0)}")
            e(f"s_lshl_b32 {sr(sT0)}, {sr(sR0)}, 3")
            e(f"s_lshl_b32 {sr(sT1)}, {sr(sR1)}, 3")
            e(f"s_add_u32 {sr(sT0)}, {sr(sT0)}, {ML_OFF + 4}")
            e(f"s_add_u32 {sr(sT1)}, {sr(sT1)}, {ML_OFF + 4}")
            e(f"s_cmp_eq_u32 {sr(sW)}, 0")
            e(f"s_cselect_b32 {sr(sT0)}, {sr(sT0)}, 0x40000000")
            e(f"s_cselect_b32 {sr(sT1)}, {sr(sT1)}, 0x40000000")
            e(f"v_mov_b32 {vr(vSt1)}, {sr(sT0)}")
            e(f"v_mov_b32 {vr(vU1)}, {sr(sT1)}")
            e(f"v_cndmask_b32 {vr(vSt1)}, {vr(vSt1)}, {vr(vU1)}, vcc")
        if j == 1:
            e(f"v_lshlrev_b32 {vr(vU1)}, 2, {vr(vCc)}")
            e(f"v_sub_u32 {vr(vSt1)}, {vr(vSt1)}, {vr(vU1)}")
            e(f"v_mov_b32 {vr(vU1)}, 0x40000000")
            e(f"v_cmp_lt_u32 vcc, 17, {vr(vU0)}")
            e("s_nop 1")
            e(f"v_cndmask_b32 {vr(vSt1)}, {vr(vSt1)}, {vr(vU1)}, vcc")
            e(f"v_add_u32 {vr(vU1)}, 2048, {vr(vSt0)}")
            e(f"v_cmp_gt_u32 vcc, 16, {vr(vU0)}")
            e("s_nop 1")
            e(f"v_cndmask_b32 {vr(vSt1)}, {vr(vSt1)}, {vr(vU1)}, vcc")
    e(f"v_max3_f32 {vr(vMM)}, {vr(vMh)}, {vr(vMh+1)}, {vr(vMh+2)}")
    e(f"v_max3_f32 {vr(vMM)}, {vr(vMM)}, {vr(vMh+3)}, {vr(vMh+4)}")
    e(f"v_max3_f32 {vr(vMM)}, {vr(vMM)}, {vr(vMh+5)}, {vr(vMh+6)}")
    e(f"v_max_f32 {vr(vMM)}, {vr(vMM)}, {vr(vMh+7)}")
    for r in range(4):
        e(f"v_sub_f32 {vr(vMo+r)}, {vr(vMo+r)}, {vr(vMM)}")
    for r in range(4):
        e(f"v_exp_f32 {vr(vMo+r)}, {vr(vMo+r)}")
    e(f"v_cmp_eq_u32 vcc, 17, {vr(vU0)}")
    e(f"v_mul_f32 {vr(vLL)}, {vr(vMo)}, {vr(vLo)}")
    for r in range(1, 4):
        e(f"v_fmac_f32 {vr(vLL)}, {vr(vMo+r)}, {vr(vLo+r)}")
    for t in range(9):
        a = vAcc + 4*t
        e(f"v_mul_f32 {vr(a)}, {vr(vMo)}, {vr(a)}")
        for r in range(1, 4):
            e(f"v_fmac_f32 {vr(a)}, {vr(vMo+r)}, {vr(a+r)}")
    vals = [vAcc + 4*t for t in range(9)] + [vLL]
    e("s_nop 1")
    for k in range(5):
        e(f"v_permlane16_swap_b32 {vr(vals[2*k])}, {vr(vals[2*k+1])}")
    e("s_nop 1")
    for k in range(5):
        e(f"v_add_f32 {vr(vals[2*k])}, {vr(vals[2*k])}, {vr(vals[2*k+1])}")
    e(f"v_cndmask_b32 {vr(vals[8])}, {vr(vals[8])}, {vr(vMM)}, vcc")
    for k in range(4):
        e(f"buffer_store_dword {vr(vals[2*k])}, {vr(vSt0)}, {sr(sWS,4)}, 0 offen offset:{512*k}")
    e(f"buffer_store_dword {vr(vals[8])}, {vr(vSt1)}, {sr(sWS,4)}, 0 offen")
    e(f"s_setpc_b64 {sr(sRet,2)}")

    g.lines.append(".p2align 8")
    g.lines.append(".globl final_kernel")
    g.lines.append(".type final_kernel,@function")
    g.lab("final_kernel")
    e("s_cmp_ge_u32 s2, 72")
    e("s_cbranch_scc1 L_exit2")
    e("s_load_dwordx2 s[4:5], s[0:1], 80")
    e("s_load_dwordx2 s[8:9], s[0:1], 96")
    e("s_cmp_ge_u32 s2, 36")
    e("s_cselect_b32 s12, 1, 0")
    e("s_cselect_b32 s13, 36, 0")
    e("s_sub_u32 s13, s2, s13")
    e("s_cmp_ge_u32 s13, 18")
    e("s_cselect_b32 s14, 1, 0")
    e("s_cselect_b32 s15, 18, 0")
    e("s_sub_u32 s15, s13, s15")
    e("v_lshrrev_b32 v1, 3, v0")
    e("v_and_b32 v2, 7, v0")
    e("s_lshl_b32 s20, s15, 7")
    e("s_waitcnt lgkmcnt(0)")
    e(f"s_mov_b32 s10, {WS_BYTES}")
    e("s_mov_b32 s11, 0x00020000")
    e("s_mov_b32 s6, 4608")
    e("s_mov_b32 s7, 0x00020000")
    e("s_cmp_eq_u32 s12, 0")
    e("s_cbranch_scc1 L_finA")
    def consumer(ns, row0expr):
        e(f"v_mul_u32_u24 v3, {ns}, v1")
        e("v_add_u32 v3, s16, v3")
        e(f"v_mul_u32_u24 v4, {YROW}, v3")
        e("v_lshl_add_u32 v4, v2, 4, v4")
        e("v_add_u32 v4, s20, v4")
        e("v_lshlrev_b32 v5, 3, v3")
        e(f"v_add_u32 v5, {ML_OFF}, v5")
        for i in range(ns):
            e(f"buffer_load_dwordx2 v[{8+2*i}:{9+2*i}], v5, s[8:11], 0 offen offset:{8*i}")
        for i in range(ns):
            e(f"s_mov_b32 s23, {YROW*i}")
            e(f"buffer_load_dwordx4 v[{24+4*i}:{27+4*i}], v4, s[8:11], s23 offen")
        e(f"s_waitcnt vmcnt({ns})")
        e("v_max_f32 v6, v8, v10")
        for i in range(2, ns):
            e(f"v_max_f32 v6, v6, v{8+2*i}")
        for i in range(ns):
            e(f"v_sub_f32 v{8+2*i}, v{8+2*i}, v6")
        for i in range(ns):
            e(f"v_exp_f32 v{8+2*i}, v{8+2*i}")
        e("s_nop 0")
        e("v_mul_f32 v7, v8, v9")
        for i in range(1, ns):
            e(f"v_fmac_f32 v7, v{8+2*i}, v{9+2*i}")
        e("v_rcp_f32 v7, v7")
        e("s_waitcnt vmcnt(0)")
        for k in range(4):
            e(f"v_mul_f32 v{24+k}, v8, v{24+k}")
            for i in range(1, ns):
                e(f"v_fmac_f32 v{24+k}, v{8+2*i}, v{24+4*i+k}")
        for k in range(4):
            e(f"v_mul_f32 v{16+k}, v7, v{24+k}")
    e("s_mul_i32 s16, s14, 224")
    consumer(7, None)
    e("s_branch L_fin2")
    g.lab("L_finA")
    e("s_lshl_b32 s16, s14, 6")
    e("s_add_u32 s16, s16, 448")
    consumer(2, None)
    g.lab("L_fin2")
    e("s_nop 1")
    for k in range(4):
        e(f"v_add_f32_dpp v{20+k}, v{16+k}, v{16+k} row_ror:8 row_mask:0xf bank_mask:0xf")
    e("s_nop 1")
    e("v_permlane32_swap_b32 v20, v21")
    e("v_permlane32_swap_b32 v22, v23")
    e("s_nop 1")
    e("v_add_f32 v20, v20, v21")
    e("v_add_f32 v22, v22, v23")
    e("s_nop 1")
    e("v_permlane16_swap_b32 v20, v22")
    e("s_nop 1")
    e("v_add_f32 v20, v20, v22")
    e("v_and_b32 v3, 63, v0")
    e("v_lshrrev_b32 v3, 4, v3")
    e("v_and_b32 v4, 1, v3")
    e("v_lshlrev_b32 v4, 1, v4")
    e("v_lshrrev_b32 v3, 1, v3")
    e("v_or_b32 v3, v3, v4")
    e("v_lshl_add_u32 v3, v2, 2, v3")
    e("v_lshrrev_b32 v4, 6, v0")
    e("v_lshl_add_u32 v3, v4, 5, v3")
    e("v_lshlrev_b32 v3, 2, v3")
    e("ds_write_b32 v3, v20")
    e("v_lshlrev_b32 v3, 2, v0")
    e("s_waitcnt lgkmcnt(0)")
    e("s_barrier")
    e("v_cmp_gt_u32 vcc, 32, v0")
    e("s_and_saveexec_b64 s[26:27], vcc")
    e("s_cbranch_execz L_exit2")
    for w in range(4):
        e(f"ds_read_b32 v{8+w}, v3 offset:{128*w}")
    e("s_mul_i32 s14, s14, 1152")
    e("s_mul_i32 s12, s12, 576")
    e("s_add_u32 s14, s14, s12")
    e("s_lshl_b32 s15, s15, 5")
    e("s_add_u32 s14, s14, s15")
    e("v_add_u32 v4, s14, v0")
    e("v_lshlrev_b32 v4, 1, v4")
    e("s_waitcnt lgkmcnt(0)")
    e("v_add_f32 v8, v8, v9")
    e("v_add_f32 v10, v10, v11")
    e("v_add_f32 v8, v8, v10")
    e("v_cvt_pk_bf16_f32 v8, v8, v8")
    e("buffer_store_short v8, v4, s[4:7], 0 offen")
    g.lab("L_exit2")
    e("s_endpgm")

    hdr = HEADER
    hdr += f"; @launch kernel={KN} grid=(256,1,1) block=(256,1,1) lds={LDS_TOTAL}\n"
    hdr += f"; @launch kernel=final_kernel grid=(72,1,1) block=(256,1,1) lds=512\n"
    hdr += '.amdgcn_target "amdgcn-amd-amdhsa--gfx950"\n.text\n'
    hdr += f".globl {KN}\n.p2align 8\n.type {KN},@function\n"
    tail = '.section .rodata,"a"\n'
    for name, nv, ao in ((KN, 512, 256), ("final_kernel", 64, 64)):
        tail += f""".p2align 6
.amdhsa_kernel {name}
  .amdhsa_next_free_vgpr {nv}
  .amdhsa_next_free_sgpr 102
  .amdhsa_accum_offset {ao}
  .amdhsa_group_segment_fixed_size 0
  .amdhsa_kernarg_size 104
  .amdhsa_user_sgpr_count 2
  .amdhsa_user_sgpr_kernarg_segment_ptr 1
  .amdhsa_system_sgpr_workgroup_id_x 1
.end_amdhsa_kernel
"""
    return hdr + g.text() + tail

if __name__ == "__main__":
    out = sys.argv[1]
    opts = {}
    for a in sys.argv[2:]:
        k, v = a.split("=")
        opts[k] = int(v)
    open(out, "w").write(gen(opts))
```

```python
import sys, math, struct

KN = "concat_heads__sliding_block_cached__mha_block_cached__decode_kernel"

def f32bits(x):
    return struct.unpack("<I", struct.pack("<f", x))[0]

class Gen:
    def __init__(self):
        self.lines = []
        self.q = []
    def e(self, s):
        self.lines.append("    " + s)
    def lab(self, s):
        self.lines.append(s + ":")
    def vm(self, s, tag=None):
        self.e(s)
        self.q.append(tag)
    def wait_tag(self, tag):
        idx = max(i for i, t in enumerate(self.q) if t == tag)
        n = len(self.q) - 1 - idx
        assert n <= 63, n
        self.e(f"s_waitcnt vmcnt({n})")
        self.done = idx + 1
    def outstanding(self):
        return len(self.q) - getattr(self, "done", 0)
    def text(self):
        return "\n".join(self.lines) + "\n"

def vr(a, n=1):
    return f"v{a}" if n == 1 else f"v[{a}:{a+n-1}]"
def ar(a, n=1):
    return f"a{a}" if n == 1 else f"a[{a}:{a+n-1}]"
def sr(a, n=1):
    return f"s{a}" if n == 1 else f"s[{a}:{a+n-1}]"

HEADER = open("concat_heads__sliding_block_cached__mha_block_cached__decode.s.ref").read().split("; Override launch")[0]

NROWS = 576
YROW = 2304
ML_OFF = NROWS * YROW
WS_BYTES = ML_OFF + NROWS * 8
LDS_OT = 147456
OT_STRIDE = 272
LDS_M = LDS_OT + 16 * OT_STRIDE
LDS_L = LDS_M + 64
LDS_QP = LDS_L + 64
LDS_TOTAL = LDS_QP + 4096
CSCALE = (128 ** -0.5) * math.log2(math.e)

def gen(opts):
    D = 4
    NT = " nt"
    PROF = opts.get("prof", 0)
    ROT = opts.get("rot", 1)
    EARLY = opts.get("early", 2)
    SLEEP = opts.get("sleep", 16)
    PB = opts.get("pb", 4)
    PA = opts.get("pa", 4)
    g = Gen()
    e = g.e
    sW = 3
    sRet = 4
    sDbg, sOut = 8, 12
    sWoff, sSpin = 34, 35
    sK, sV, sWQ, sX, sWO, sWS = 36, 40, 44, 48, 52, 56
    sH, sKk, sT0, sT1, sT2, sT3 = 60, 61, 62, 63, 64, 65
    sOff, sIt, sC, sSelLo, sSelHi, sLdsW = 66, 67, 68, 69, 70, 71
    sRem, sR0, sR1, sXa, sXb, sDt, sDoff, sDlds = 72, 73, 74, 75, 76, 77, 78, 79
    sBlk = 96
    sRot = 99
    sEx = 100
    vLane, vG, vCc = 1, 2, 3
    vK, vV, vSt0, vSt1, vTR, vU0 = 4, 5, 6, 7, 8, 9
    vT0, vT1 = 10, 11
    vM, vL, vM2, vL2 = 12, 13, 14, 15
    vS, vS2 = 16, 20
    vE, vA, vMn = 24, 28, 29
    vWQ, vX = 30, 31
    vO, vO2 = 32, 40
    vP = 48
    vQ, vQ2 = 64, 80
    vVb = 96
    vWOj = 160
    vXa, vXb = 12, 32
    vQacc = 64
    vTmpW = 52
    def kreg(d, j): return d * 16 + j * 4
    def vreg(d, r): return vVb + d * 16 + r * 4
    aW = 64
    def stamp(i):
        if PROF:
            e(f"s_memrealtime s[{80+2*i}:{81+2*i}]")
    def srd_tail(s, size):
        e(f"s_mov_b32 {sr(s+2)}, {size}")
        e(f"s_mov_b32 {sr(s+3)}, 0x00020000")
    def add64(s, src, off):
        e(f"s_add_u32 {sr(s)}, {sr(src)}, {off}")
        e(f"s_addc_u32 {sr(s+1)}, {sr(src+1)}, 0")
    def issue_k(d, tag=None):
        for j in range(4):
            g.vm(f"buffer_load_dwordx4 {ar(kreg(d,j),4)}, {vr(vK)}, {sr(sK,4)}, {sr(sOff)} offen offset:{64*j}{NT}", tag)
    def issue_v(d, tag=None):
        for r in range(4):
            g.vm(f"buffer_load_dwordx4 {vr(vreg(d,r),4)}, {vr(vV)}, {sr(sV,4)}, {sr(sOff)} offen offset:{256*r}{NT}", tag)

    g.lab(KN)
    e("s_cmp_ge_u32 s2, 256")
    e("s_cbranch_scc1 L_exit")
    stamp(0)
    e("s_load_dwordx16 s[8:23], s[0:1], 0")
    e("s_load_dwordx8 s[24:31], s[0:1], 64")
    e("s_load_dwordx2 s[32:33], s[0:1], 96")
    e(f"v_lshrrev_b32 {vr(vT0)}, 6, v0")
    e(f"v_and_b32 {vr(vLane)}, 63, v0")
    e(f"v_readfirstlane_b32 {sr(sW)}, {vr(vT0)}")
    e(f"v_lshrrev_b32 {vr(vG)}, 4, {vr(vLane)}")
    e(f"v_and_b32 {vr(vCc)}, 15, {vr(vLane)}")
    e(f"s_mul_i32 {sr(sT0)}, {sr(sW)}, 144")
    e(f"v_mul_u32_u24 {vr(vT0)}, 36, {vr(vG)}")
    e(f"v_add_u32 {vr(vT0)}, {sr(sT0)}, {vr(vT0)}")
    e(f"v_lshlrev_b32 {vr(vX)}, 1, {vr(vT0)}")
    e(f"v_lshlrev_b32 {vr(vWQ)}, 13, {vr(vT0)}")
    e(f"v_lshl_add_u32 {vr(vWQ)}, {vr(vCc)}, 4, {vr(vWQ)}")
    e(f"v_lshlrev_b32 {vr(vK)}, 8, {vr(vCc)}")
    e(f"v_lshl_add_u32 {vr(vK)}, {vr(vG)}, 4, {vr(vK)}")
    e(f"v_lshlrev_b32 {vr(vV)}, 10, {vr(vG)}")
    e(f"v_lshl_add_u32 {vr(vV)}, {vr(vCc)}, 4, {vr(vV)}")
    e(f"s_and_b32 {sr(sT0)}, s2, 7")
    e(f"s_lshr_b32 {sr(sT1)}, s2, 3")
    e(f"s_cmp_ge_u32 {sr(sT1)}, 28")
    e("s_cbranch_scc1 L_A")

    e(f"s_mul_i32 {sr(sT2)}, {sr(sT1)}, 37")
    e(f"s_lshr_b32 {sr(sT2)}, {sr(sT2)}, 8")
    e(f"s_mul_i32 {sr(sT3)}, {sr(sT2)}, 7")
    e(f"s_sub_u32 {sr(sKk)}, {sr(sT1)}, {sr(sT3)}")
    e(f"s_lshl_b32 {sr(sT0)}, {sr(sT0)}, 2")
    e(f"s_add_u32 {sr(sH)}, {sr(sT0)}, {sr(sT2)}")
    e(f"s_lshl_b32 {sr(sT0)}, {sr(sKk)}, 2")
    e(f"s_add_u32 {sr(sT0)}, {sr(sT0)}, {sr(sW)}")
    e(f"s_cmp_ge_u32 {sr(sT0)}, 14")
    e(f"s_cselect_b32 {sr(sT1)}, 14, 0")
    e(f"s_cselect_b32 {sr(sT2)}, 32, 0")
    e(f"s_sub_u32 {sr(sT0)}, {sr(sT0)}, {sr(sT1)}")
    e(f"s_mul_i32 {sr(sT1)}, {sr(sT0)}, 37450")
    e(f"s_add_u32 {sr(sT3)}, {sr(sT1)}, 37450")
    e(f"s_lshr_b32 {sr(sT1)}, {sr(sT1)}, 10")
    e(f"s_lshr_b32 {sr(sT3)}, {sr(sT3)}, 10")
    e(f"s_sub_u32 {sr(sRem)}, {sr(sT3)}, {sr(sT1)}")
    e(f"s_add_u32 {sr(sT2)}, {sr(sT2)}, {sr(sH)}")
    e(f"s_lshl_b32 {sr(sT2)}, {sr(sT2)}, 21")
    e(f"s_lshl_b32 {sr(sT1)}, {sr(sT1)}, 12")
    e(f"s_add_u32 {sr(sT2)}, {sr(sT2)}, {sr(sT1)}")
    e(f"s_mul_i32 {sr(sT0)}, {sr(sH)}, 7")
    e(f"s_lshl_b32 {sr(sT1)}, {sr(sKk)}, 1")
    e(f"s_add_u32 {sr(sR0)}, {sr(sT0)}, {sr(sT1)}")
    e(f"s_add_u32 {sr(sR1)}, {sr(sR0)}, 1")
    e(f"s_cmp_ge_u32 {sr(sT1)}, 7")
    e(f"s_cselect_b32 {sr(sT3)}, 217, 0")
    e(f"s_cselect_b32 {sr(sXa)}, 1152, 0")
    e(f"s_add_u32 {sr(sR0)}, {sr(sR0)}, {sr(sT3)}")
    e(f"s_cmp_ge_u32 {sr(sT1)}, 6")
    e(f"s_cselect_b32 {sr(sT3)}, 217, 0")
    e(f"s_cselect_b32 {sr(sXb)}, 1152, 0")
    e(f"s_add_u32 {sr(sR1)}, {sr(sR1)}, {sr(sT3)}")
    e(f"s_mul_i32 {sr(sT0)}, {sr(sKk)}, 11")
    e(f"s_lshr_b32 {sr(sT0)}, {sr(sT0)}, 5")
    e(f"s_mul_i32 {sr(sT0)}, {sr(sT0)}, 3")
    e(f"s_sub_u32 {sr(sRot)}, {sr(sKk)}, {sr(sT0)}")
    e("s_waitcnt lgkmcnt(0)")
    e(f"s_mov_b32 {sr(sX)}, s18"); e(f"s_mov_b32 {sr(sX+1)}, s19"); srd_tail(sX, 2304)
    e(f"s_lshl_b32 {sr(sT0)}, {sr(sH)}, 8")
    add64(sWQ, 24, sr(sT0)); srd_tail(sWQ, 575*8192+256)
    add64(sK, 20, sr(sT2)); add64(sV, 22, sr(sT2))
    e(f"s_lshl_b32 {sr(sK+2)}, {sr(sRem)}, 12"); e(f"s_mov_b32 {sr(sK+3)}, 0x00020000")
    e(f"s_lshl_b32 {sr(sV+2)}, {sr(sRem)}, 12"); e(f"s_mov_b32 {sr(sV+3)}, 0x00020000")
    e(f"s_mul_i32 {sr(sT0)}, {sr(sH)}, 147456")
    add64(sWO, 26, sr(sT0)); srd_tail(sWO, 147456)

    def store_offsets():
        vU1 = vT1
        e(f"s_mul_i32 {sr(sT0)}, {sr(sR0)}, {YROW}")
        e(f"s_mul_i32 {sr(sT1)}, {sr(sR1)}, {YROW}")
        e(f"s_lshl_b32 {sr(sT2)}, {sr(sW)}, 6")
        e(f"v_mov_b32 {vr(vSt0)}, {sr(sT0)}")
        e(f"v_mov_b32 {vr(vSt1)}, {sr(sT1)}")
        e(f"v_cmp_lt_u32 vcc, 31, {vr(vLane)}")
        e(f"v_and_b32 {vr(vU0)}, 31, {vr(vLane)}")
        e("s_nop 0")
        e(f"v_cndmask_b32 {vr(vSt0)}, {vr(vSt0)}, {vr(vSt1)}, vcc")
        e(f"v_lshl_add_u32 {vr(vSt0)}, {vr(vCc)}, 2, {vr(vSt0)}")
        e(f"v_and_b32 {vr(vU1)}, 16, {vr(vLane)}")
        e(f"v_lshl_add_u32 {vr(vSt0)}, {vr(vU1)}, 4, {vr(vSt0)}")
        e(f"v_add_u32 {vr(vSt0)}, {sr(sT2)}, {vr(vSt0)}")
        e(f"s_lshl_b32 {sr(sT0)}, {sr(sR0)}, 3")
        e(f"s_lshl_b32 {sr(sT1)}, {sr(sR1)}, 3")
        e(f"s_add_u32 {sr(sT0)}, {sr(sT0)}, {ML_OFF + 4}")
        e(f"s_add_u32 {sr(sT1)}, {sr(sT1)}, {ML_OFF + 4}")
        e(f"s_cmp_eq_u32 {sr(sW)}, 0")
        e(f"s_cselect_b32 {sr(sT0)}, {sr(sT0)}, 0x40000000")
        e(f"s_cselect_b32 {sr(sT1)}, {sr(sT1)}, 0x40000000")
        e(f"v_mov_b32 {vr(vSt1)}, {sr(sT0)}")
        e(f"v_mov_b32 {vr(vU1)}, {sr(sT1)}")
        e(f"v_cndmask_b32 {vr(vSt1)}, {vr(vSt1)}, {vr(vU1)}, vcc")
        e(f"v_lshlrev_b32 {vr(vU1)}, 2, {vr(vCc)}")
        e(f"v_sub_u32 {vr(vSt1)}, {vr(vSt1)}, {vr(vU1)}")
        e(f"v_mov_b32 {vr(vU1)}, 0x40000000")
        e(f"v_cmp_lt_u32 vcc, 17, {vr(vU0)}")
        e("s_nop 1")
        e(f"v_cndmask_b32 {vr(vSt1)}, {vr(vSt1)}, {vr(vU1)}, vcc")
        e(f"v_add_u32 {vr(vU1)}, 2048, {vr(vSt0)}")
        e(f"v_cmp_gt_u32 vcc, 16, {vr(vU0)}")
        e("s_nop 1")
        e(f"v_cndmask_b32 {vr(vSt1)}, {vr(vSt1)}, {vr(vU1)}, vcc")
    def clear_rows():
        e(f"v_mov_b32 {vr(vT0)}, -1")
        for k in range(4):
            g.vm(f"buffer_store_dword {vr(vT0)}, {vr(vSt0)}, {sr(sWS,4)}, 0 offen offset:{512*k} sc1", "clr")
        g.vm(f"buffer_store_dword {vr(vT0)}, {vr(vSt1)}, {sr(sWS,4)}, 0 offen sc1", "clr")

    def prologue(isA):
        g.q = []; g.done = 0
        P = PA if isA else PB
        if not ROT:
            e(f"s_mov_b32 {sr(sRot)}, 0")
        for i in range(3):
            e(f"s_add_u32 {sr(sBlk+i)}, {sr(sRot)}, {i}")
            e(f"s_cmp_ge_u32 {sr(sBlk+i)}, 3")
            e(f"s_cselect_b32 {sr(sT0)}, 3, 0")
            e(f"s_sub_u32 {sr(sBlk+i)}, {sr(sBlk+i)}, {sr(sT0)}")
        for i in range(3):
            e(f"s_mul_i32 {sr(sT0)}, {sr(sBlk+i)}, 24")
            for (xr, sx) in ((vXa, sXa),) if isA else ((vXa, sXa), (vXb, sXb)):
                e(f"s_add_u32 {sr(sT1)}, {sr(sT0)}, {sr(sx)}")
                g.vm(f"buffer_load_dwordx4 {vr(xr+6*i,4)}, {vr(vX)}, {sr(sX,4)}, {sr(sT1)} offen", "x")
                g.vm(f"buffer_load_dwordx2 {vr(xr+6*i+4,2)}, {vr(vX)}, {sr(sX,4)}, {sr(sT1)} offen offset:16", "x")
            e(f"s_mul_i32 {sr(sBlk+i)}, {sr(sBlk+i)}, 98304")
        NL = 72 if isA else 36
        NSLOT = 36
        def slot(n):
            s = n % NSLOT
            return ("v", 160 + 4 * s) if s < 24 else ("a", aW + 4 * (s - 24))
        def wq_issue(n):
            if isA:
                p, r = n >> 2, n & 3
                hd, rb = r >> 1, r & 1
                row = 2 * p + rb
                imm = hd * 256
            else:
                row, imm = n, 0
            blk, rr = row // 12, row % 12
            e(f"s_add_u32 {sr(sWoff)}, {sr(sBlk+blk)}, {rr*8192}")
            t, b = slot(n)
            dst = vr(b, 4) if t == "v" else ar(b, 4)
            g.vm(f"buffer_load_dwordx4 {dst}, {vr(vWQ)}, {sr(sWQ,4)}, {sr(sWoff)} offen offset:{imm}", ("wq", n))
        kvseq = []
        for d in range(P):
            kvseq.append(("k", d)); kvseq.append(("v", d))
        def kv_issue():
            if not kvseq: return
            t, d = kvseq.pop(0)
            if t == "k": issue_k(d)
            else:
                issue_v(d)
                e(f"s_add_u32 {sr(sOff)}, {sr(sOff)}, 4096")
        e(f"s_mov_b32 {sr(sOff)}, 0")
        issued = 0
        while issued < NSLOT:
            wq_issue(issued); issued += 1
        if not isA:
            while g.outstanding() + 4 <= 62 and kvseq: kv_issue()
        e(f"s_mov_b32 {sr(sC)}, 0x{f32bits(CSCALE):08x}")
        e(f"s_mov_b32 {sr(sSelLo)}, 0x05040100")
        e(f"s_mov_b32 {sr(sSelHi)}, 0x07060302")
        e(f"s_lshl_b32 {sr(sLdsW)}, {sr(sW)}, 10")
        e(f"v_bfe_u32 {vr(vT0)}, {vr(vLane)}, 3, 2")
        e(f"v_xor_b32 {vr(vT0)}, {sr(sW)}, {vr(vT0)}")
        e(f"v_lshlrev_b32 {vr(vT0)}, 5, {vr(vT0)}")
        e(f"v_lshrrev_b32 {vr(vT1)}, 2, {vr(vLane)}")
        e(f"v_lshl_add_u32 {vr(vT0)}, {vr(vT1)}, 7, {vr(vT0)}")
        e(f"v_and_b32 {vr(vT1)}, 3, {vr(vLane)}")
        e(f"v_lshl_add_u32 {vr(vTR)}, {vr(vT1)}, 3, {vr(vT0)}")
        e(f"s_mov_b32 {sr(sWS)}, s32"); e(f"s_mov_b32 {sr(sWS+1)}, s33"); srd_tail(sWS, WS_BYTES)
        e(f"s_mov_b32 {sr(sOut)}, s28"); e(f"s_mov_b32 {sr(sOut+1)}, s29"); srd_tail(sOut, 4608)
        e(f"s_mov_b32 {sr(sDbg)}, s30"); e(f"s_mov_b32 {sr(sDbg+1)}, s31"); srd_tail(sDbg, 256)
        for i in range(16):
            e(f"v_mov_b32 {vr(vQacc+i)}, 0")
        stamp(1)
        for pr in range(NL // 2):
            n0, n1 = 2 * pr, 2 * pr + 1
            g.wait_tag(("wq", n1))
            (ta, a), (tb, b) = slot(n0), slot(n1)
            if ta == "a":
                for d in range(4):
                    e(f"v_accvgpr_read_b32 {vr(vTmpW+d)}, {ar(a+d)}")
                    e(f"v_accvgpr_read_b32 {vr(vTmpW+4+d)}, {ar(b+d)}")
                a, b = vTmpW, vTmpW + 4
            for d in range(4):
                e(f"v_perm_b32 {vr(vT0)}, {vr(b+d)}, {vr(a+d)}, {sr(sSelLo)}")
                e(f"v_perm_b32 {vr(vT1)}, {vr(b+d)}, {vr(a+d)}, {sr(sSelHi)}")
                if isA:
                    hd = pr & 1; p = pr >> 1
                    e(f"v_dot2c_f32_bf16 {vr(vQacc+8*hd+2*d)}, {vr(vT0)}, {vr(vXa+p)}")
                    e(f"v_dot2c_f32_bf16 {vr(vQacc+8*hd+2*d+1)}, {vr(vT1)}, {vr(vXa+p)}")
                else:
                    e(f"v_dot2c_f32_bf16 {vr(vQacc+2*d)}, {vr(vT0)}, {vr(vXa+pr)}")
                    e(f"v_dot2c_f32_bf16 {vr(vQacc+2*d+1)}, {vr(vT1)}, {vr(vXa+pr)}")
                    e(f"v_dot2c_f32_bf16 {vr(vQacc+8+2*d)}, {vr(vT0)}, {vr(vXb+pr)}")
                    e(f"v_dot2c_f32_bf16 {vr(vQacc+8+2*d+1)}, {vr(vT1)}, {vr(vXb+pr)}")
            for _ in range(2):
                if issued < NL:
                    wq_issue(issued); issued += 1
            if issued >= NL and pr % 2 == 1 and g.outstanding() + 4 <= 62:
                kv_issue()
        while kvseq: kv_issue()
        if isA:
            e(f"s_add_u32 {sr(sR0)}, {sr(sR0)}, 2"); e(f"s_add_u32 {sr(sR1)}, {sr(sR1)}, 2")
            store_offsets(); clear_rows()
            e(f"s_sub_u32 {sr(sR0)}, {sr(sR0)}, 2"); e(f"s_sub_u32 {sr(sR1)}, {sr(sR1)}, 2")
        store_offsets(); clear_rows()
        for s in range(2):
            for i in range(4):
                e(f"v_permlane32_swap_b32 {vr(vQacc+8*s+i)}, {vr(vQacc+8*s+i+4)}")
        e("s_nop 1")
        for s in range(2):
            for i in range(4):
                e(f"v_add_f32 {vr(vQacc+8*s+i)}, {vr(vQacc+8*s+i)}, {vr(vQacc+8*s+i+4)}")
        e("s_nop 1")
        for s in range(2):
            e(f"v_permlane16_swap_b32 {vr(vQacc+8*s+0)}, {vr(vQacc+8*s+2)}")
            e(f"v_permlane16_swap_b32 {vr(vQacc+8*s+1)}, {vr(vQacc+8*s+3)}")
        e("s_nop 1")
        for s in range(2):
            e(f"v_add_f32 {vr(vQacc+8*s+0)}, {vr(vQacc+8*s+0)}, {vr(vQacc+8*s+2)}")
            e(f"v_add_f32 {vr(vQacc+8*s+1)}, {vr(vQacc+8*s+1)}, {vr(vQacc+8*s+3)}")
        e(f"s_lshl_b32 {sr(sT0)}, {sr(sW)}, 9")
        e(f"s_add_u32 {sr(sT0)}, {sr(sT0)}, {LDS_QP}")
        e(f"v_lshlrev_b32 {vr(vT0)}, 5, {vr(vCc)}")
        e(f"v_lshl_add_u32 {vr(vT0)}, {vr(vG)}, 3, {vr(vT0)}")
        e(f"v_add_u32 {vr(vT0)}, {sr(sT0)}, {vr(vT0)}")
        e(f"ds_write_b64 {vr(vT0)}, {vr(vQacc,2)}")
        e(f"ds_write_b64 {vr(vT0)}, {vr(vQacc+8,2)} offset:2048")
        e(f"v_and_b32 {vr(vT1)}, 3, {vr(vCc)}")
        e(f"v_lshlrev_b32 {vr(vT1)}, 7, {vr(vT1)}")
        e(f"v_lshl_add_u32 {vr(vT1)}, {vr(vG)}, 5, {vr(vT1)}")
        if isA:
            e(f"v_add_u32 {vr(vT1)}, {LDS_QP}, {vr(vT1)}")
        else:
            e(f"s_lshr_b32 {sr(sT0)}, {sr(sW)}, 1")
            e(f"s_lshl_b32 {sr(sT0)}, {sr(sT0)}, 11")
            e(f"s_add_u32 {sr(sT0)}, {sr(sT0)}, {LDS_QP}")
            e(f"v_add_u32 {vr(vT1)}, {sr(sT0)}, {vr(vT1)}")
        e("s_waitcnt lgkmcnt(0)")
        e("s_barrier")
        tq = 168
        for s in range(2 if isA else 1):
            for w in range(4):
                for hh in range(2):
                    e(f"ds_read_b128 {vr(tq+s*32+w*8+hh*4,4)}, {vr(vT1)} offset:{s*2048+w*512+hh*16}")
        e(f"v_bfe_u32 {vr(vT0)}, {vr(vLane)}, 3, 2")
        e(f"v_lshrrev_b32 {vr(vA)}, 5, {vr(vLane)}")
        e(f"v_lshl_add_u32 {vr(vT0)}, {vr(vA)}, 3, {vr(vT0)}")
        e(f"s_and_b32 {sr(sT0)}, {sr(sW)}, 1")
        e(f"s_lshl_b32 {sr(sT0)}, {sr(sT0)}, 4")
        e(f"s_lshr_b32 {sr(sT1)}, {sr(sW)}, 1")
        e(f"s_lshl_b32 {sr(sT1)}, {sr(sT1)}, 2")
        e(f"s_add_u32 {sr(sT0)}, {sr(sT0)}, {sr(sT1)}")
        e(f"v_add_u32 {vr(vT0)}, {sr(sT0)}, {vr(vT0)}")
        e(f"v_mul_u32_u24 {vr(vWOj)}, 1152, {vr(vT0)}")
        e(f"v_lshrrev_b32 {vr(vA)}, 4, {vr(vLane)}")
        e(f"v_lshlrev_b32 {vr(vA)}, 1, {vr(vA)}")
        e(f"v_and_b32 {vr(vT0)}, 7, {vr(vLane)}")
        e(f"v_xor_b32 {vr(vA)}, {vr(vA)}, {vr(vT0)}")
        e(f"v_lshl_add_u32 {vr(vWOj)}, {vr(vA)}, 4, {vr(vWOj)}")
        for j in range(1, 4):
            e(f"v_add_u32 {vr(vWOj+j)}, {36864*j}, {vr(vWOj)}")
        e("s_waitcnt lgkmcnt(0)")
        for s in range(2 if isA else 1):
            t = tq + s * 32
            for i in range(8):
                e(f"v_add_f32 {vr(t+i)}, {vr(t+i)}, {vr(t+8+i)}")
                e(f"v_add_f32 {vr(t+16+i)}, {vr(t+16+i)}, {vr(t+24+i)}")
            for i in range(8):
                e(f"v_add_f32 {vr(t+i)}, {vr(t+i)}, {vr(t+16+i)}")
            for d in range(4):
                e(f"v_cvt_pk_bf16_f32 {vr(t+8+d)}, {vr(t+2*d)}, {vr(t+2*d+1)}")
            e("s_nop 1")
            qq = vQ2 if s else vQ
            for j in range(4):
                for d in range(4):
                    e(f"v_mov_b32_dpp {vr(qq+4*j+d)}, {vr(t+8+d)} quad_perm:[{j},{j},{j},{j}] row_mask:0xf bank_mask:0xf")
        for i in range(16 if isA else 8):
            e(f"v_mov_b32 {vr(vO+i)}, 0")
        e(f"v_mov_b32 {vr(vM)}, 0xff800000")
        e(f"v_mov_b32 {vr(vL)}, 0")
        if isA:
            e(f"v_mov_b32 {vr(vM2)}, 0xff800000")
            e(f"v_mov_b32 {vr(vL2)}, 0")
        e(f"s_mov_b32 {sr(sIt)}, 0")
        e(f"s_mov_b32 {sr(sDt)}, 0")
        e(f"s_mov_b32 {sr(sDoff)}, 0")
        e(f"s_mov_b32 {sr(sDlds)}, {sr(sLdsW)}")
        e(f"s_sub_u32 {sr(sRem)}, {sr(sRem)}, 1")
        e(f"s_cmp_eq_u32 {sr(sW)}, 0")
        e(f"s_cselect_b32 {sr(sSpin)}, {EARLY}, 1000")
        stamp(2)

    def softmax(S, M, L, O, P):
        e(f"v_max3_f32 {vr(vT0)}, {vr(S)}, {vr(S+1)}, {vr(S+2)}")
        e(f"v_max_f32 {vr(vT0)}, {vr(vT0)}, {vr(S+3)}")
        e(f"v_mul_f32 {vr(vT0)}, {sr(sC)}, {vr(vT0)}")
        e(f"v_max_f32 {vr(vMn)}, {vr(vT0)}, {vr(M)}")
        e(f"v_sub_f32 {vr(vA)}, {vr(M)}, {vr(vMn)}")
        for r in range(4):
            e(f"v_fma_f32 {vr(vE+r)}, {vr(S+r)}, {sr(sC)}, -{vr(vMn)}")
        e(f"v_exp_f32 {vr(vA)}, {vr(vA)}")
        for r in range(4):
            e(f"v_exp_f32 {vr(vE+r)}, {vr(vE+r)}")
        e(f"v_mov_b32 {vr(M)}, {vr(vMn)}")
        for i in range(8):
            e(f"v_mul_f32 {vr(O+i)}, {vr(vA)}, {vr(O+i)}")
        e(f"v_fma_f32 {vr(L)}, {vr(L)}, {vr(vA)}, {vr(vE)}")
        e(f"v_add_f32 {vr(vT0)}, {vr(vE+1)}, {vr(vE+2)}")
        e(f"v_add_f32 {vr(L)}, {vr(L)}, {vr(vE+3)}")
        e(f"v_add_f32 {vr(L)}, {vr(L)}, {vr(vT0)}")
        for r in range(4):
            e(f"v_cvt_pk_bf16_f32 {vr(P+2*r)}, {vr(vE+r)}, 0")
            e(f"v_cvt_pk_bf16_f32 {vr(P+2*r+1)}, 0, {vr(vE+r)}")

    def dma_group(lbl):
        e(f"s_cmp_lt_u32 {sr(sDt)}, 9")
        e(f"s_cbranch_scc0 {lbl}")
        for j in range(4):
            e(f"s_add_u32 m0, {sr(sDlds)}, {4096*j}")
            e("s_nop 0")
            e(f"buffer_load_dwordx4 {vr(vWOj+j)}, {sr(sWO,4)}, {sr(sDoff)} offen lds")
        e(f"s_add_u32 {sr(sDt)}, {sr(sDt)}, 1")
        e(f"s_add_u32 {sr(sDoff)}, {sr(sDoff)}, 128")
        e(f"s_add_u32 {sr(sDlds)}, {sr(sDlds)}, 16384")
        g.lab(lbl)

    def mainloop(isA):
        nm = "A" if isA else "B"
        P = PA if isA else PB
        W = 8 * P - 4
        g.lab(f"L_loop{nm}")
        e(f"s_cmp_eq_u32 {sr(sIt)}, {4 if isA else 6}")
        e(f"s_cbranch_scc0 L_body{nm}")
        stamp(3)
        e(f"s_call_b64 {sr(sRet,2)}, L_T1")
        stamp(4)
        if isA:
            e(f"s_mov_b32 {sr(sDt)}, 0")
            e(f"s_mov_b32 {sr(sDoff)}, 147456")
            e(f"s_mov_b32 {sr(sDlds)}, {sr(sLdsW)}")
        g.lab(f"L_body{nm}")
        for d in range(D):
            dn = (d + P) % D
            e(f"s_waitcnt vmcnt({W})")
            for j in range(4):
                cc = "0" if j == 0 else vr(vS,4)
                e(f"v_mfma_f32_16x16x32_bf16 {vr(vS,4)}, {ar(kreg(d,j),4)}, {vr(vQ+4*j,4)}, {cc}")
            if isA:
                for j in range(4):
                    cc = "0" if j == 0 else vr(vS2,4)
                    e(f"v_mfma_f32_16x16x32_bf16 {vr(vS2,4)}, {ar(kreg(d,j),4)}, {vr(vQ2+4*j,4)}, {cc}")
            issue_k(dn)
            e("s_nop 3")
            softmax(vS, vM, vL, vO, vP)
            if isA:
                softmax(vS2, vM2, vL2, vO2, vP + 8)
            e(f"s_waitcnt vmcnt({W})")
            for r in range(4):
                for dd in range(4):
                    e(f"v_dot2c_f32_bf16 {vr(vO+2*dd)}, {vr(vreg(d,r)+dd)}, {vr(vP+2*r)}")
                    e(f"v_dot2c_f32_bf16 {vr(vO+2*dd+1)}, {vr(vreg(d,r)+dd)}, {vr(vP+2*r+1)}")
                    if isA:
                        e(f"v_dot2c_f32_bf16 {vr(vO2+2*dd)}, {vr(vreg(d,r)+dd)}, {vr(vP+8+2*r)}")
                        e(f"v_dot2c_f32_bf16 {vr(vO2+2*dd+1)}, {vr(vreg(d,r)+dd)}, {vr(vP+8+2*r+1)}")
            issue_v(dn)
            e(f"s_add_u32 {sr(sOff)}, {sr(sOff)}, 4096")
            if isA or d % 2 == 0:
                dma_group(f"L_dma{nm}{d}")
            e(f"s_cmp_lg_u32 {sr(sRem)}, {sr(sSpin)}")
            e(f"s_cbranch_scc1 L_ns{nm}{d}")
            e(f"s_call_b64 {sr(sRet,2)}, L_sig")
            g.lab(f"L_ns{nm}{d}")
            e(f"s_sub_u32 {sr(sRem)}, {sr(sRem)}, 1")
            e(f"s_cbranch_scc1 L_end{nm}")
        e(f"s_add_u32 {sr(sIt)}, {sr(sIt)}, 1")
        e(f"s_branch L_loop{nm}")
        g.lab(f"L_end{nm}")

    prologue(False)
    mainloop(False)
    stamp(5)
    e(f"s_call_b64 {sr(sRet,2)}, L_T2")
    stamp(6)
    e("s_cmp_ge_u32 s2, 72")
    e("s_cbranch_scc1 L_done")

    sP, sCb, sSl, sRow = sT0, sT1, sT2, sT3
    e("s_cmp_ge_u32 s2, 36")
    e(f"s_cselect_b32 {sr(sP)}, 1, 0")
    e(f"s_cselect_b32 {sr(sSl)}, 36, 0")
    e(f"s_sub_u32 {sr(sSl)}, s2, {sr(sSl)}")
    e(f"s_cmp_ge_u32 {sr(sSl)}, 18")
    e(f"s_cselect_b32 {sr(sCb)}, 1, 0")
    e(f"s_cselect_b32 {sr(sRow)}, 18, 0")
    e(f"s_sub_u32 {sr(sSl)}, {sr(sSl)}, {sr(sRow)}")
    vHd, vCh, vYo, vMlo, vMx, vRes = 16, 17, 18, 19, 20, 24
    vML, vY = 32, 64
    e(f"v_lshrrev_b32 {vr(vHd)}, 3, v0")
    e(f"v_and_b32 {vr(vCh)}, 7, v0")
    e(f"s_lshl_b32 {sr(sOff)}, {sr(sSl)}, 7")
    e(f"s_cmp_lg_u32 {sr(sW)}, 0")
    e("s_cbranch_scc1 L_pollc_done")
    e(f"s_mov_b32 {sr(sSpin)}, 0x100000")
    e(f"v_lshlrev_b32 {vr(vYo)}, 2, {vr(vLane)}")
    e(f"s_mov_b32 {sr(sRem)}, 0x01010101")
    g.lab("L_pollc")
    e(f"buffer_load_dword {vr(vMx)}, {vr(vYo)}, {sr(sDbg,4)}, 0 offen sc1")
    e(f"s_sub_u32 {sr(sSpin)}, {sr(sSpin)}, 1")
    e("s_cbranch_scc1 L_pollc_done")
    e("s_waitcnt vmcnt(0)")
    e(f"v_cmp_ne_u32 vcc, {sr(sRem)}, {vr(vMx)}")
    e("s_cbranch_vccz L_pollc_done")
    e(f"s_sleep {SLEEP}")
    e("s_branch L_pollc")
    g.lab("L_pollc_done")
    e("s_barrier")
    e(f"s_mov_b32 {sr(sSpin)}, 0x100000")
    e(f"s_cmp_eq_u32 {sr(sP)}, 0")
    e("s_cbranch_scc1 L_finA")
    def consumer(ns, nm):
        e(f"v_mul_u32_u24 {vr(vMx)}, {ns}, {vr(vHd)}")
        e(f"v_add_u32 {vr(vMx)}, {sr(sRow)}, {vr(vMx)}")
        e(f"v_mul_u32_u24 {vr(vYo)}, {YROW}, {vr(vMx)}")
        e(f"v_lshl_add_u32 {vr(vYo)}, {vr(vCh)}, 4, {vr(vYo)}")
        e(f"v_add_u32 {vr(vYo)}, {sr(sOff)}, {vr(vYo)}")
        e(f"v_lshlrev_b32 {vr(vMlo)}, 3, {vr(vMx)}")
        e(f"v_add_u32 {vr(vMlo)}, {ML_OFF}, {vr(vMlo)}")
        g.lab(f"L_polld{nm}")
        for i in range(ns):
            e(f"s_mov_b32 {sr(sWoff)}, {YROW*i}")
            e(f"buffer_load_dwordx4 {vr(vY+4*i,4)}, {vr(vYo)}, {sr(sWS,4)}, {sr(sWoff)} offen sc1")
        for i in range(ns):
            e(f"buffer_load_dwordx2 {vr(vML+2*i,2)}, {vr(vMlo)}, {sr(sWS,4)}, 0 offen offset:{8*i} sc1")
        e("s_waitcnt vmcnt(0)")
        words = [vY + i for i in range(4*ns)] + [vML + i for i in range(2*ns)]
        e(f"v_max_u32 {vr(vMx)}, {vr(words[0])}, {vr(words[1])}")
        for i in range(2, len(words), 2):
            e(f"v_max3_u32 {vr(vMx)}, {vr(vMx)}, {vr(words[i])}, {vr(words[i+1])}")
        e(f"s_sub_u32 {sr(sSpin)}, {sr(sSpin)}, 1")
        e(f"s_cbranch_scc1 L_polld{nm}_done")
        e(f"v_cmp_eq_u32 vcc, -1, {vr(vMx)}")
        e("s_and_b64 exec, exec, vcc")
        e(f"s_cbranch_execnz L_polld{nm}")
        g.lab(f"L_polld{nm}_done")
        e("s_mov_b64 exec, -1")
        e(f"v_max_f32 {vr(vMx)}, {vr(vML)}, {vr(vML+2)}")
        for i in range(2, ns):
            e(f"v_max_f32 {vr(vMx)}, {vr(vMx)}, {vr(vML+2*i)}")
        for i in range(ns):
            e(f"v_sub_f32 {vr(vML+2*i)}, {vr(vML+2*i)}, {vr(vMx)}")
        for i in range(ns):
            e(f"v_exp_f32 {vr(vML+2*i)}, {vr(vML+2*i)}")
        e("s_nop 0")
        e(f"v_mul_f32 {vr(vMx)}, {vr(vML)}, {vr(vML+1)}")
        for i in range(1, ns):
            e(f"v_fmac_f32 {vr(vMx)}, {vr(vML+2*i)}, {vr(vML+2*i+1)}")
        e(f"v_rcp_f32 {vr(vMx)}, {vr(vMx)}")
        for k in range(4):
            e(f"v_mul_f32 {vr(vY+k)}, {vr(vML)}, {vr(vY+k)}")
            for i in range(1, ns):
                e(f"v_fmac_f32 {vr(vY+k)}, {vr(vML+2*i)}, {vr(vY+4*i+k)}")
        for k in range(4):
            e(f"v_mul_f32 {vr(vY+k)}, {vr(vMx)}, {vr(vY+k)}")
    e(f"s_mul_i32 {sr(sRow)}, {sr(sCb)}, 224")
    consumer(7, "B")
    e("s_branch L_fin2")
    g.lab("L_finA")
    e(f"s_lshl_b32 {sr(sRow)}, {sr(sCb)}, 6")
    e(f"s_add_u32 {sr(sRow)}, {sr(sRow)}, 448")
    consumer(2, "A")
    g.lab("L_fin2")
    e("s_nop 1")
    for k in range(4):
        e(f"v_add_f32_dpp {vr(vRes+k)}, {vr(vY+k)}, {vr(vY+k)} row_ror:8 row_mask:0xf bank_mask:0xf")
    e("s_nop 1")
    e(f"v_permlane32_swap_b32 {vr(vRes)}, {vr(vRes+1)}")
    e(f"v_permlane32_swap_b32 {vr(vRes+2)}, {vr(vRes+3)}")
    e("s_nop 1")
    e(f"v_add_f32 {vr(vRes)}, {vr(vRes)}, {vr(vRes+1)}")
    e(f"v_add_f32 {vr(vRes+2)}, {vr(vRes+2)}, {vr(vRes+3)}")
    e("s_nop 1")
    e(f"v_permlane16_swap_b32 {vr(vRes)}, {vr(vRes+2)}")
    e(f"v_and_b32 {vr(vT0)}, 1, {vr(vG)}")
    e(f"v_lshlrev_b32 {vr(vT0)}, 1, {vr(vT0)}")
    e(f"v_add_f32 {vr(vRes)}, {vr(vRes)}, {vr(vRes+2)}")
    e(f"v_lshrrev_b32 {vr(vT1)}, 1, {vr(vG)}")
    e(f"v_or_b32 {vr(vT0)}, {vr(vT0)}, {vr(vT1)}")
    e(f"v_lshl_add_u32 {vr(vT0)}, {vr(vCh)}, 2, {vr(vT0)}")
    e(f"v_lshlrev_b32 {vr(vT0)}, 2, {vr(vT0)}")
    e(f"s_lshl_b32 {sr(sRem)}, {sr(sW)}, 7")
    e(f"s_add_u32 {sr(sRem)}, {sr(sRem)}, {LDS_QP}")
    e(f"v_add_u32 {vr(vT0)}, {sr(sRem)}, {vr(vT0)}")
    e(f"ds_write_b32 {vr(vT0)}, {vr(vRes)}")
    e(f"v_lshlrev_b32 {vr(vT1)}, 2, v0")
    e(f"v_add_u32 {vr(vT1)}, {LDS_QP}, {vr(vT1)}")
    e(f"s_mul_i32 {sr(sCb)}, {sr(sCb)}, 1152")
    e(f"s_mul_i32 {sr(sP)}, {sr(sP)}, 576")
    e(f"s_add_u32 {sr(sCb)}, {sr(sCb)}, {sr(sP)}")
    e(f"s_lshl_b32 {sr(sSl)}, {sr(sSl)}, 5")
    e(f"s_add_u32 {sr(sCb)}, {sr(sCb)}, {sr(sSl)}")
    e(f"v_add_u32 {vr(vYo)}, {sr(sCb)}, v0")
    e(f"v_lshlrev_b32 {vr(vYo)}, 1, {vr(vYo)}")
    e("s_waitcnt lgkmcnt(0)")
    e("s_barrier")
    e(f"s_cmp_lg_u32 {sr(sW)}, 0")
    e("s_cbranch_scc1 L_done")
    e("v_cmp_gt_u32 vcc, 32, v0")
    e(f"s_and_saveexec_b64 {sr(sEx,2)}, vcc")
    for w in range(4):
        e(f"ds_read_b32 {vr(vRes+w)}, {vr(vT1)} offset:{128*w}")
    e("s_waitcnt lgkmcnt(0)")
    e(f"v_add_f32 {vr(vRes)}, {vr(vRes)}, {vr(vRes+1)}")
    e(f"v_add_f32 {vr(vRes+2)}, {vr(vRes+2)}, {vr(vRes+3)}")
    e(f"v_add_f32 {vr(vRes)}, {vr(vRes)}, {vr(vRes+2)}")
    e(f"v_cvt_pk_bf16_f32 {vr(vRes)}, {vr(vRes)}, {vr(vRes)}")
    e(f"buffer_store_short {vr(vRes)}, {vr(vYo)}, {sr(sOut,4)}, 0 offen")
    e("s_mov_b64 exec, -1")
    e("s_branch L_done")

    g.lab("L_A")
    e(f"s_sub_u32 {sr(sT1)}, {sr(sT1)}, 28")
    e(f"s_lshl_b32 {sr(sT0)}, {sr(sT0)}, 1")
    e(f"s_lshr_b32 {sr(sT2)}, {sr(sT1)}, 1")
    e(f"s_add_u32 {sr(sH)}, {sr(sT0)}, {sr(sT2)}")
    e(f"s_and_b32 {sr(sT1)}, {sr(sT1)}, 1")
    e(f"s_mov_b32 {sr(sRot)}, {sr(sT1)}")
    e(f"s_mul_i32 {sr(sXa)}, {sr(sT1)}, 1152")
    e(f"s_lshl_b32 {sr(sT2)}, {sr(sT1)}, 4")
    e(f"s_add_u32 {sr(sT2)}, {sr(sT2)}, {sr(sH)}")
    e(f"s_lshl_b32 {sr(sR0)}, {sr(sT2)}, 2")
    e(f"s_add_u32 {sr(sR0)}, {sr(sR0)}, 448")
    e(f"s_add_u32 {sr(sR1)}, {sr(sR0)}, 1")
    e(f"s_lshl_b32 {sr(sT2)}, {sr(sT2)}, 21")
    e(f"s_lshl_b32 {sr(sT3)}, {sr(sW)}, 17")
    e(f"s_add_u32 {sr(sT2)}, {sr(sT2)}, {sr(sT3)}")
    e(f"s_add_u32 {sr(sT2)}, {sr(sT2)}, 0x180000")
    e(f"s_mov_b32 {sr(sRem)}, 32")
    e("s_waitcnt lgkmcnt(0)")
    e(f"s_mov_b32 {sr(sX)}, s8"); e(f"s_mov_b32 {sr(sX+1)}, s9"); srd_tail(sX, 2304)
    e(f"s_lshl_b32 {sr(sT0)}, {sr(sH)}, 9")
    add64(sWQ, 14, sr(sT0)); srd_tail(sWQ, 575*8192+512)
    add64(sK, 10, sr(sT2)); add64(sV, 12, sr(sT2))
    srd_tail(sK, 131072); srd_tail(sV, 131072)
    e(f"s_mul_i32 {sr(sT0)}, {sr(sH)}, 294912")
    add64(sWO, 16, sr(sT0)); srd_tail(sWO, 294912)
    prologue(True)
    mainloop(True)
    stamp(5)
    e(f"s_call_b64 {sr(sRet,2)}, L_T2")
    e(f"s_call_b64 {sr(sRet,2)}, L_T1")
    for i in range(8):
        e(f"v_mov_b32 {vr(vO+i)}, {vr(vO2+i)}")
    e(f"v_mov_b32 {vr(vM)}, {vr(vM2)}")
    e(f"v_mov_b32 {vr(vL)}, {vr(vL2)}")
    e(f"s_add_u32 {sr(sR0)}, {sr(sR0)}, 2"); e(f"s_add_u32 {sr(sR1)}, {sr(sR1)}, 2")
    store_offsets()
    e(f"s_call_b64 {sr(sRet,2)}, L_T2")
    stamp(6)
    g.lab("L_done")
    if PROF:
        e("s_waitcnt vmcnt(0)")
        stamp(7)
        e("s_getreg_b32 s96, hwreg(HW_REG_XCC_ID)")
        e("s_getreg_b32 s97, hwreg(HW_REG_HW_ID)")
        e("s_waitcnt lgkmcnt(0)")
        e(f"s_mov_b32 {sr(sWS+2)}, 0x400000")
        e(f"s_lshl_b32 {sr(sT0)}, s2, 2")
        e(f"s_add_u32 {sr(sT0)}, {sr(sT0)}, {sr(sW)}")
        e(f"s_lshl_b32 {sr(sT0)}, {sr(sT0)}, 6")
        e(f"s_add_u32 {sr(sT0)}, {sr(sT0)}, 0x200000")
        e(f"v_mov_b32 v20, {sr(sT0)}")
        for i in range(8):
            e(f"v_mov_b32 v{24+i}, s{80+2*i}")
        e("v_mov_b32 v32, s96")
        e("v_mov_b32 v33, s97")
        e(f"v_cmp_eq_u32 vcc, 0, {vr(vLane)}")
        e("s_and_saveexec_b64 s[98:99], vcc")
        e(f"buffer_store_dwordx4 v[24:27], v20, {sr(sWS,4)}, 0 offen")
        e(f"buffer_store_dwordx4 v[28:31], v20, {sr(sWS,4)}, 0 offen offset:16")
        e(f"buffer_store_dwordx2 v[32:33], v20, {sr(sWS,4)}, 0 offen offset:32")
    g.lab("L_exit")
    e("s_endpgm")

    g.lab("L_sig")
    e(f"s_mov_b64 exec, 1")
    e(f"v_mov_b32 {vr(vT0)}, 1")
    e(f"buffer_store_byte {vr(vT0)}, off, {sr(sDbg,4)}, s2 sc1")
    e(f"s_mov_b64 exec, -1")
    e(f"s_setpc_b64 {sr(sRet,2)}")

    g.lab("L_T1")
    e(f"v_add_u32 {vr(vT0)}, 0x10000, {vr(vTR)}")
    e(f"v_add_u32 {vr(vT1)}, 0x20000, {vr(vTR)}")
    e("s_barrier")
    for t in range(9):
        for j in range(4):
            for hf in range(2):
                off = t*16384 + j*4096 + hf*2048
                a = (vTR, vT0, vT1)[off >> 16]
                e(f"ds_read_b64_tr_b16 {ar(aW+(t*4+j)*4+hf*2,2)}, {vr(a)} offset:{off & 0xffff}")
    e("s_waitcnt lgkmcnt(0)")
    e("s_barrier")
    e(f"s_setpc_b64 {sr(sRet,2)}")

    vAcc, vAop, vMh, vMo, vLo, vPk = 164, 200, 216, 224, 228, 232
    vMM, vLL, vU1 = 238, 239, 240
    g.lab("L_T2")
    e("s_nop 2")
    for d in range(4):
        e(f"v_cvt_pk_bf16_f32 {vr(vPk+d)}, {vr(vO+2*d)}, {vr(vO+2*d+1)}")
    e(f"s_lshl_b32 {sr(sT0)}, {sr(sW)}, 2")
    e(f"v_add_u32 {vr(vT0)}, {sr(sT0)}, {vr(vG)}")
    e(f"v_mul_u32_u24 {vr(vT1)}, {OT_STRIDE}, {vr(vT0)}")
    e(f"v_lshl_add_u32 {vr(vT1)}, {vr(vCc)}, 4, {vr(vT1)}")
    e(f"v_add_u32 {vr(vT1)}, {LDS_OT}, {vr(vT1)}")
    e(f"ds_write_b128 {vr(vT1)}, {vr(vPk,4)}")
    e(f"v_lshlrev_b32 {vr(vT0)}, 2, {vr(vT0)}")
    e(f"v_add_u32 {vr(vT0)}, {LDS_M}, {vr(vT0)}")
    e(f"ds_write_b32 {vr(vT0)}, {vr(vM)}")
    e(f"ds_write_b32 {vr(vT0)}, {vr(vL)} offset:64")
    e(f"v_mul_u32_u24 {vr(vT1)}, {OT_STRIDE}, {vr(vCc)}")
    e(f"v_lshl_add_u32 {vr(vT1)}, {vr(vG)}, 4, {vr(vT1)}")
    e(f"v_add_u32 {vr(vT1)}, {LDS_OT}, {vr(vT1)}")
    e(f"v_lshlrev_b32 {vr(vT0)}, 4, {vr(vG)}")
    e(f"v_add_u32 {vr(vT0)}, {LDS_M}, {vr(vT0)}")
    e(f"v_and_b32 {vr(vU1)}, 32, {vr(vLane)}")
    e(f"v_add_u32 {vr(vU1)}, {LDS_M}, {vr(vU1)}")
    e("s_waitcnt lgkmcnt(0)")
    e("s_barrier")
    for j in range(4):
        e(f"ds_read_b128 {vr(vAop+4*j,4)}, {vr(vT1)} offset:{64*j}")
    for i in range(2):
        e(f"ds_read_b128 {vr(vMh+4*i,4)}, {vr(vU1)} offset:{16*i}")
    e(f"ds_read_b128 {vr(vMo,4)}, {vr(vT0)}")
    e(f"ds_read_b128 {vr(vLo,4)}, {vr(vT0)} offset:64")
    for j in range(4):
        e(f"s_waitcnt lgkmcnt({(7, 0, 0, 0)[j]})") if j < 2 else None
        for t in range(9):
            cc = "0" if j == 0 else vr(vAcc+4*t,4)
            e(f"v_mfma_f32_16x16x32_bf16 {vr(vAcc+4*t,4)}, {vr(vAop+4*j,4)}, {ar(aW+(t*4+j)*4,4)}, {cc}")
            if j == 1 and t == 0:
                e(f"v_max3_f32 {vr(vMM)}, {vr(vMh)}, {vr(vMh+1)}, {vr(vMh+2)}")
                e(f"v_max3_f32 {vr(vMM)}, {vr(vMM)}, {vr(vMh+3)}, {vr(vMh+4)}")
            if j == 1 and t == 1:
                e(f"v_max3_f32 {vr(vMM)}, {vr(vMM)}, {vr(vMh+5)}, {vr(vMh+6)}")
                e(f"v_max_f32 {vr(vMM)}, {vr(vMM)}, {vr(vMh+7)}")
            if j == 1 and 2 <= t < 6:
                r = t - 2
                e(f"v_sub_f32 {vr(vMo+r)}, {vr(vMo+r)}, {vr(vMM)}")
                e(f"v_exp_f32 {vr(vMo+r)}, {vr(vMo+r)}")
            if j == 1 and t == 7:
                e(f"v_mul_f32 {vr(vLL)}, {vr(vMo)}, {vr(vLo)}")
                e(f"v_fmac_f32 {vr(vLL)}, {vr(vMo+1)}, {vr(vLo+1)}")
            if j == 1 and t == 8:
                e(f"v_fmac_f32 {vr(vLL)}, {vr(vMo+2)}, {vr(vLo+2)}")
                e(f"v_fmac_f32 {vr(vLL)}, {vr(vMo+3)}, {vr(vLo+3)}")
                e(f"v_cmp_eq_u32 vcc, 17, {vr(vU0)}")
    for t in range(9):
        a = vAcc + 4*t
        e(f"v_mul_f32 {vr(a)}, {vr(vMo)}, {vr(a)}")
        for r in range(1, 4):
            e(f"v_fmac_f32 {vr(a)}, {vr(vMo+r)}, {vr(a+r)}")
    vals = [vAcc + 4*t for t in range(9)] + [vLL]
    e("s_nop 1")
    for k in range(5):
        e(f"v_permlane16_swap_b32 {vr(vals[2*k])}, {vr(vals[2*k+1])}")
    e("s_nop 1")
    for k in range(5):
        e(f"v_add_f32 {vr(vals[2*k])}, {vr(vals[2*k])}, {vr(vals[2*k+1])}")
    e(f"v_cndmask_b32 {vr(vals[8])}, {vr(vals[8])}, {vr(vMM)}, vcc")
    for k in range(5):
        e(f"v_min_u32 {vr(vals[2*k])}, -2, {vr(vals[2*k])}")
    for k in range(4):
        e(f"buffer_store_dword {vr(vals[2*k])}, {vr(vSt0)}, {sr(sWS,4)}, 0 offen offset:{512*k} sc1")
    e(f"buffer_store_dword {vr(vals[8])}, {vr(vSt1)}, {sr(sWS,4)}, 0 offen sc1")
    e(f"s_setpc_b64 {sr(sRet,2)}")

    hdr = HEADER
    hdr += f"; @launch grid=(256,1,1) block=(256,1,1) lds={LDS_TOTAL}\n"
    hdr += '.amdgcn_target "amdgcn-amd-amdhsa--gfx950"\n.text\n'
    hdr += f".globl {KN}\n.p2align 8\n.type {KN},@function\n"
    tail = f""".section .rodata,"a"
.p2align 6
.amdhsa_kernel {KN}
  .amdhsa_next_free_vgpr 512
  .amdhsa_next_free_sgpr 102
  .amdhsa_accum_offset 256
  .amdhsa_group_segment_fixed_size 0
  .amdhsa_kernarg_size 104
  .amdhsa_user_sgpr_count 2
  .amdhsa_user_sgpr_kernarg_segment_ptr 1
  .amdhsa_system_sgpr_workgroup_id_x 1
.end_amdhsa_kernel
"""
    return hdr + g.text() + tail

if __name__ == "__main__":
    out = sys.argv[1]
    opts = {}
    for a in sys.argv[2:]:
        k, v = a.split("=")
        opts[k] = int(v)
    open(out, "w").write(gen(opts))
```

```python
import sys, math, struct

KN = "concat_heads__sliding_block_cached__mha_block_cached__decode_kernel"

def f32bits(x):
    return struct.unpack("<I", struct.pack("<f", x))[0]

class Gen:
    def __init__(self):
        self.lines = []
        self.q = []
    def e(self, s):
        self.lines.append("    " + s)
    def lab(self, s):
        self.lines.append(s + ":")
    def vm(self, s, tag=None):
        self.e(s)
        self.q.append(tag)
    def wait_tag(self, tag):
        idx = max(i for i, t in enumerate(self.q) if t == tag)
        n = len(self.q) - 1 - idx
        assert n <= 63, n
        self.e(f"s_waitcnt vmcnt({n})")
    def text(self):
        return "\n".join(self.lines) + "\n"

def vr(a, n=1):
    return f"v{a}" if n == 1 else f"v[{a}:{a+n-1}]"
def ar(a, n=1):
    return f"a{a}" if n == 1 else f"a[{a}:{a+n-1}]"
def sr(a, n=1):
    return f"s{a}" if n == 1 else f"s[{a}:{a+n-1}]"

HEADER = open("concat_heads__sliding_block_cached__mha_block_cached__decode.s.ref").read().split("; Override launch")[0]

NROWS = 576
YROW = 2304
Q_OFF = 256
Y_OFF = Q_OFF + 8 * 32768
ML_OFF = Y_OFF + NROWS * YROW
LDS_OT = 147456
OT_STRIDE = 272
OT_BYTES = 16 * OT_STRIDE
LDS_M = LDS_OT + 2 * OT_BYTES
LDS_TK = LDS_M + 256
LDS_CNT = LDS_TK + 16
LDS_QP = LDS_TK + 64
LDS_TOTAL = LDS_QP + 2048
CSCALE = (128 ** -0.5) * math.log2(math.e)
OOB = 0x40000000

def gen(opts):
    D = 4
    NT = " nt"
    PROF = opts.get("prof", 0)
    EARLY = opts.get("early", 2)
    SLEEP = opts.get("sleep", 16)
    DSLEEP = opts.get("dsleep", 2)
    PB = opts.get("pb", 4)
    PA = opts.get("pa", 4)
    QPOS = opts.get("qpos", 3)
    T0N = opts.get("t0n", 1)
    T1B = opts.get("t1b", 6)
    SB = opts.get("sb", 30)
    WS_BYTES = 0x400000 if PROF else ML_OFF + NROWS * 16
    TK0 = opts.get("tk0", 184)
    ILV = 1
    RM = opts.get("rm", 0)
    RMA = opts.get("rma", 0)
    AM = opts.get("am", 0)
    AMA = opts.get("ama", AM)
    GR = opts.get("gr", 2)
    SA = opts.get("sa", 24)
    g = Gen()
    e = g.e
    sW = 3
    sRet = 4
    sE, sNon = 6, 7
    sDbg, sOut = 8, 12
    sWoff, sSpin = 34, 35
    sK, sV, sWQ, sX, sWO, sWS = 36, 40, 44, 48, 52, 56
    sH, sKk, sT0, sT1, sT2, sT3 = 60, 61, 62, 63, 64, 65
    sOff, sIt, sC, sSelLo, sSelHi, sLdsW = 66, 67, 68, 69, 70, 71
    sRem, sR0, sR1, sQo, sIsA, sDt, sDoff, sDlds = 72, 73, 74, 75, 76, 77, 78, 79
    sKVo, sWoO, sWoS, sPq = 96, 97, 98, 99
    sEx = 100
    sSt, sCnt, sTrig, sCl = 44, 45, 46, 47
    sDyn, sLim, sHas = 48, 49, 50
    sInc, sRot, sMask = 61, 60, 100
    sL, sA = 101, 5
    sA = 99
    def phys(src):
        e(f"s_lshr_b32 {sr(sOff)}, {sr(src)}, {GR}")
        e(f"s_mul_i32 {sr(sOff)}, {sr(sOff)}, {sr(sA)}")
        e(f"s_add_u32 {sr(sOff)}, {sr(sOff)}, {sr(sRot)}")
        e(f"s_lshl_b32 {sr(sOff)}, {sr(sOff)}, {12+GR}")
        if GR:
            e(f"s_and_b32 {sr(sWoff)}, {sr(src)}, {(1<<GR)-1}")
            e(f"s_lshl_b32 {sr(sWoff)}, {sr(sWoff)}, 12")
            e(f"s_or_b32 {sr(sOff)}, {sr(sOff)}, {sr(sWoff)}")
        e(f"s_and_b32 {sr(sOff)}, {sr(sOff)}, {sr(sMask)}")
    def adv():
        e(f"s_add_u32 {sr(sL)}, {sr(sL)}, {sr(sInc)}")
        phys(sL)
    vLane, vG, vCc = 1, 2, 3
    vK, vV, vSt0, vSt1, vTR, vU0 = 4, 5, 6, 7, 8, 9
    vT0, vT1 = 10, 11
    vM, vL, vM2, vL2 = 12, 13, 14, 15
    vS, vS2 = 16, 20
    vE, vA, vMn = 24, 28, 29
    vTk, vSt1b = 30, 31
    vO, vO2 = 32, 40
    vP = 48
    vQ, vQ2 = 64, 80
    vVb = 96
    vWOj = 160
    vXa, vXb, vXs = 12, 16, 20
    vWQ, vWQ1, vX, vX1 = 24, 25, 26, 27
    vQa, vQs = 28, 29
    vQacc = 64
    vW = 168
    vQl = 208
    vTmp = 224
    def kreg(d, j): return d * 16 + j * 4
    def vreg(d, r): return vVb + d * 16 + r * 4
    aW = 64
    def wo_reg(hd, idx):
        if hd == 0: return ("a", aW + 4 * idx)
        return ("a", 208 + 4 * idx) if idx < 12 else ("v", 160 + 4 * (idx - 12))
    def rr(t, n): return (ar if t[0] == "a" else vr)(t[1], n)
    def stamp(i):
        if PROF == 1 or (PROF == 2 and i in (0, 1, 2, 7)) or (PROF == 3 and i in (0, 1, 2, 5, 6, 7)):
            e(f"s_memrealtime s[{80+2*i}:{81+2*i}]")
    def stamp2(i):
        if PROF == 2:
            e(f"s_memrealtime s[{80+2*i}:{81+2*i}]")
    def srd_tail(s, size):
        e(f"s_mov_b32 {sr(s+2)}, {size}")
        e(f"s_mov_b32 {sr(s+3)}, 0x00020000")
    def add64(s, off):
        e(f"s_add_u32 {sr(s)}, {sr(s)}, {off}")
        e(f"s_addc_u32 {sr(s+1)}, {sr(s+1)}, 0")
    def issue_k(d, tag=None):
        for j in range(4):
            g.vm(f"buffer_load_dwordx4 {ar(kreg(d,j),4)}, {vr(vK)}, {sr(sK,4)}, {sr(sOff)} offen offset:{64*j}{NT}", tag)
    def issue_v(d, tag=None):
        for r in range(4):
            g.vm(f"buffer_load_dwordx4 {vr(vreg(d,r),4)}, {vr(vV)}, {sr(sV,4)}, {sr(sOff)} offen offset:{256*r}{NT}", tag)
    def issue_tile(d):
        issue_k(d, ("k", d)); issue_v(d, ("v", d))
        adv()

    g.lab(KN)
    e("s_cmp_ge_u32 s2, 256")
    e("s_cbranch_scc1 L_exit")
    stamp(0)
    e("s_load_dwordx16 s[8:23], s[0:1], 0")
    e("s_load_dwordx8 s[24:31], s[0:1], 64")
    e("s_load_dwordx2 s[32:33], s[0:1], 96")
    e(f"v_lshrrev_b32 {vr(vT0)}, 6, v0")
    e(f"v_and_b32 {vr(vLane)}, 63, v0")
    e(f"v_readfirstlane_b32 {sr(sW)}, {vr(vT0)}")
    e(f"v_lshrrev_b32 {vr(vG)}, 4, {vr(vLane)}")
    e(f"v_and_b32 {vr(vCc)}, 15, {vr(vLane)}")
    e(f"s_and_b32 {sr(sT0)}, s2, 1")
    e(f"s_mul_i32 {sr(sT0)}, {sr(sT0)}, 288")
    e(f"s_mul_i32 {sr(sT1)}, {sr(sW)}, 72")
    e(f"s_add_u32 {sr(sT0)}, {sr(sT0)}, {sr(sT1)}")
    e(f"s_bfe_u32 {sr(sT1)}, s2, 0x60001")
    e(f"s_lshl_b32 {sr(sT2)}, {sr(sT1)}, 7")
    e(f"v_lshrrev_b32 {vr(vT0)}, 3, {vr(vLane)}")
    e(f"v_and_b32 {vr(vT1)}, 7, {vr(vLane)}")
    e(f"v_lshl_add_u32 {vr(vT1)}, {vr(vT1)}, 4, {sr(sT2)}")
    e(f"v_lshl_add_u32 {vr(vX)}, {vr(vT0)}, 3, {sr(sT0)}")
    e(f"v_add3_u32 {vr(vX1)}, {vr(vT0)}, {sr(sT0)}, 64")
    e(f"v_lshl_add_u32 {vr(vWQ)}, {vr(vX)}, 13, {vr(vT1)}")
    e(f"v_lshl_add_u32 {vr(vWQ1)}, {vr(vX1)}, 13, {vr(vT1)}")
    e(f"v_lshlrev_b32 {vr(vX)}, 1, {vr(vX)}")
    e(f"v_lshlrev_b32 {vr(vX1)}, 1, {vr(vX1)}")
    e(f"s_lshr_b32 {sr(sPq)}, s2, 7")
    e(f"s_lshl_b32 {sr(sT0)}, {sr(sPq)}, 2")
    e(f"s_and_b32 {sr(sT2)}, {sr(sW)}, 2")
    e(f"s_add_u32 {sr(sT0)}, {sr(sT0)}, {sr(sT2)}")
    e(f"s_and_b32 {sr(sT2)}, s2, 1")
    e(f"s_add_u32 {sr(sT0)}, {sr(sT0)}, {sr(sT2)}")
    e(f"s_lshl_b32 {sr(sT0)}, {sr(sT0)}, 15")
    e(f"s_lshl_b32 {sr(sT1)}, {sr(sT1)}, 9")
    e(f"s_add_u32 {sr(sT0)}, {sr(sT0)}, {sr(sT1)}")
    e(f"s_and_b32 {sr(sT2)}, {sr(sW)}, 1")
    e(f"s_lshl_b32 {sr(sT2)}, {sr(sT2)}, 8")
    e(f"s_add_u32 {sr(sT0)}, {sr(sT0)}, {sr(sT2)}")
    e(f"s_add_u32 {sr(sT0)}, {sr(sT0)}, {Q_OFF}")
    e(f"v_and_b32 {vr(vT1)}, 7, {vr(vLane)}")
    e(f"v_lshl_add_u32 {vr(vQs)}, {vr(vT1)}, 5, {sr(sT0)}")
    e(f"v_lshl_add_u32 {vr(vQs)}, {vr(vT0)}, 4, {vr(vQs)}")
    e(f"v_cmp_gt_u32 vcc, 16, {vr(vLane)}")
    e(f"v_mov_b32 {vr(vT1)}, {OOB}")
    e(f"v_lshlrev_b32 {vr(vK)}, 8, {vr(vCc)}")
    e(f"v_cndmask_b32 {vr(vQs)}, {vr(vT1)}, {vr(vQs)}, vcc")
    e(f"v_lshl_add_u32 {vr(vK)}, {vr(vG)}, 4, {vr(vK)}")
    e(f"v_lshlrev_b32 {vr(vV)}, 10, {vr(vG)}")
    e(f"v_lshl_add_u32 {vr(vV)}, {vr(vCc)}, 4, {vr(vV)}")
    e(f"s_and_b32 {sr(sT0)}, s2, 7")
    e(f"s_lshr_b32 {sr(sT1)}, s2, 3")
    e(f"s_cmp_ge_u32 {sr(sT1)}, 28")
    e("s_cbranch_scc1 L_setA")
    e(f"s_mov_b32 {sr(sIsA)}, 0")
    if opts.get("xmap", 0):
        e(f"s_mul_i32 {sr(sH)}, s2, 9363")
        e(f"s_lshr_b32 {sr(sH)}, {sr(sH)}, 16")
        e(f"s_mul_i32 {sr(sT3)}, {sr(sH)}, 7")
        e(f"s_sub_u32 {sr(sKk)}, s2, {sr(sT3)}")
    else:
        e(f"s_mul_i32 {sr(sT2)}, {sr(sT1)}, 37")
        e(f"s_lshr_b32 {sr(sT2)}, {sr(sT2)}, 8")
        e(f"s_mul_i32 {sr(sT3)}, {sr(sT2)}, 7")
        e(f"s_sub_u32 {sr(sKk)}, {sr(sT1)}, {sr(sT3)}")
        e(f"s_lshl_b32 {sr(sT0)}, {sr(sT0)}, 2")
        e(f"s_add_u32 {sr(sH)}, {sr(sT0)}, {sr(sT2)}")
    e(f"s_lshl_b32 {sr(sT0)}, {sr(sKk)}, 2")
    e(f"s_add_u32 {sr(sT0)}, {sr(sT0)}, {sr(sW)}")
    e(f"s_cmp_ge_u32 {sr(sT0)}, 14")
    e(f"s_cselect_b32 {sr(sT1)}, 14, 0")
    e(f"s_cselect_b32 {sr(sT2)}, 32, 0")
    e(f"s_cselect_b32 {sr(sQo)}, {Q_OFF + 6*32768}, 0")
    e(f"s_cselect_b32 {sr(sT3)}, 0, {Q_OFF + 4*32768}")
    e(f"s_add_u32 {sr(sQo)}, {sr(sQo)}, {sr(sT3)}")
    e(f"s_lshl_b32 {sr(sT3)}, {sr(sH)}, 10")
    e(f"s_add_u32 {sr(sQo)}, {sr(sQo)}, {sr(sT3)}")
    e(f"s_sub_u32 {sr(sT0)}, {sr(sT0)}, {sr(sT1)}")
    if True:
        e(f"s_cmp_eq_u32 {sr(sKk)}, 3")
        e(f"s_cselect_b32 {sr(sT1)}, 1, 3")
        e(f"s_cselect_b32 {sr(sT3)}, 2, 0")
        e(f"s_and_b32 {sr(sT3)}, {sr(sT3)}, {sr(sW)}")
        e(f"s_lshl_b32 {sr(sDlds)}, {sr(sT3)}, 1")
        e(f"s_and_b32 {sr(sT3)}, {sr(sT1)}, {sr(sW)}")
        e(f"s_sub_u32 {sr(sT0)}, {sr(sT0)}, {sr(sT3)}")
        e(f"s_add_u32 {sr(sT1)}, {sr(sT1)}, 1")
        e(f"s_add_u32 {sr(sDoff)}, {sr(sT0)}, {sr(sT1)}")
        e(f"s_mul_i32 {sr(sDoff)}, {sr(sDoff)}, 37450")
        e(f"s_lshr_b32 {sr(sDoff)}, {sr(sDoff)}, 10")
        e(f"s_mul_i32 {sr(sT0)}, {sr(sT0)}, 37450")
        e(f"s_lshr_b32 {sr(sT0)}, {sr(sT0)}, 10")
        if not ILV:
            e(f"s_mul_i32 {sr(sT3)}, {sr(sT3)}, {SB}")
        e(f"s_add_u32 {sr(sT3)}, {sr(sT3)}, {sr(sT0)}")
        e(f"s_mov_b32 {sr(sL)}, {sr(sT3)}")
        e(f"s_mov_b32 {sr(sMask)}, {sr(sT1)}")
        e(f"s_mul_i32 {sr(sT1)}, {sr(sT1)}, {SB}")
        e(f"s_add_u32 {sr(sIt)}, {sr(sT1)}, {sr(sT0)}")
    e(f"s_mov_b32 {sr(sRem)}, 512")
    e(f"s_add_u32 {sr(sT2)}, {sr(sT2)}, {sr(sH)}")
    e(f"s_lshl_b32 {sr(sKVo)}, {sr(sT2)}, 21")
    e(f"s_mul_i32 {sr(sT0)}, {sr(sH)}, 7")
    e(f"s_lshl_b32 {sr(sT1)}, {sr(sKk)}, 1")
    e(f"s_add_u32 {sr(sR0)}, {sr(sT0)}, {sr(sT1)}")
    e(f"s_add_u32 {sr(sR1)}, {sr(sR0)}, 1")
    e(f"s_cmp_ge_u32 {sr(sT1)}, 7")
    e(f"s_cselect_b32 {sr(sT3)}, 217, 0")
    e(f"s_add_u32 {sr(sR0)}, {sr(sR0)}, {sr(sT3)}")
    e(f"s_cmp_ge_u32 {sr(sT1)}, 6")
    e(f"s_cselect_b32 {sr(sT3)}, 217, 0")
    e(f"s_add_u32 {sr(sR1)}, {sr(sR1)}, {sr(sT3)}")
    e(f"s_mul_i32 {sr(sWoO)}, {sr(sH)}, 147456")
    e(f"s_mov_b32 {sr(sWoS)}, 147456")
    e(f"s_mov_b32 {sr(sInc)}, {sr(sMask) if ILV else 1}")
    e(f"s_mul_i32 {sr(sRot)}, {sr(sT2)}, {RM}")
    e(f"s_mul_i32 {sr(sOff)}, {sr(sT2)}, {2*AM}")
    e("s_branch L_common")
    g.lab("L_setA")
    e(f"s_mov_b32 {sr(sIsA)}, 1")
    e(f"s_sub_u32 {sr(sT1)}, {sr(sT1)}, 28")
    e(f"s_lshl_b32 {sr(sT0)}, {sr(sT0)}, 1")
    e(f"s_lshr_b32 {sr(sT2)}, {sr(sT1)}, 1")
    e(f"s_add_u32 {sr(sH)}, {sr(sT0)}, {sr(sT2)}")
    e(f"s_and_b32 {sr(sT1)}, {sr(sT1)}, 1")
    e(f"s_lshl_b32 {sr(sQo)}, {sr(sT1)}, 16")
    e(f"s_lshl_b32 {sr(sT3)}, {sr(sH)}, 11")
    e(f"s_add_u32 {sr(sQo)}, {sr(sQo)}, {sr(sT3)}")
    e(f"s_add_u32 {sr(sQo)}, {sr(sQo)}, {Q_OFF}")
    e(f"s_lshl_b32 {sr(sT2)}, {sr(sT1)}, 4")
    e(f"s_add_u32 {sr(sT2)}, {sr(sT2)}, {sr(sH)}")
    e(f"s_lshl_b32 {sr(sR0)}, {sr(sT2)}, 2")
    e(f"s_add_u32 {sr(sR0)}, {sr(sR0)}, 448")
    e(f"s_add_u32 {sr(sR1)}, {sr(sR0)}, 1")
    e(f"s_mul_i32 {sr(sT3)}, {sr(sT2)}, {RMA}")
    e(f"s_mul_i32 {sr(sOff)}, {sr(sT2)}, {2*AMA}")
    e(f"s_lshl_b32 {sr(sT2)}, {sr(sT2)}, 21")
    e(f"s_mul_i32 {sr(sL)}, {sr(sW)}, {1 if ILV else SA}")
    e(f"s_mov_b32 {sr(sDlds)}, 0")
    e(f"s_mov_b32 {sr(sDoff)}, 128")
    e(f"s_mov_b32 {sr(sIt)}, {4*SA}")
    e(f"s_add_u32 {sr(sKVo)}, {sr(sT2)}, 0x180000")
    e(f"s_mov_b32 {sr(sRem)}, 128")
    e(f"s_mul_i32 {sr(sWoO)}, {sr(sH)}, 294912")
    e(f"s_mov_b32 {sr(sWoS)}, 294912")
    e(f"s_mov_b32 {sr(sInc)}, {4 if ILV else 1}")
    e(f"s_mov_b32 {sr(sRot)}, {sr(sT3)}")
    g.lab("L_common")
    srd_tail(sWQ, 576 * 8192)
    srd_tail(sX, 2304)
    e(f"s_lshl_b32 {sr(sK+2)}, {sr(sRem)}, 12"); e(f"s_mov_b32 {sr(sK+3)}, 0x00020000")
    e(f"s_lshl_b32 {sr(sV+2)}, {sr(sRem)}, 12"); e(f"s_mov_b32 {sr(sV+3)}, 0x00020000")
    srd_tail(sWS, WS_BYTES)
    e(f"s_sub_u32 {sr(sMask)}, {sr(sK+2)}, 1")
    e(f"s_cmp_eq_u32 {sr(sPq)}, 0")
    e("s_waitcnt lgkmcnt(0)")
    stamp2(3)
    e(f"s_cselect_b64 {sr(sWQ,2)}, s[14:15], s[24:25]")
    e(f"s_cselect_b64 {sr(sX,2)}, s[8:9], s[18:19]")
    e(f"s_load_dword {sr(sE)}, s[32:33], 0")
    g.q = []
    for n in range(8):
        so = "0" if n == 0 else sr(sWoff)
        if n: e(f"s_mov_b32 {sr(sWoff)}, {n*8192}")
        g.vm(f"buffer_load_dwordx4 {vr(vW+4*n,4)}, {vr(vWQ)}, {sr(sWQ,4)}, {so} offen", "wq")
    g.vm(f"buffer_load_dwordx4 {vr(vW+32,4)}, {vr(vWQ1)}, {sr(sWQ,4)}, 0 offen", "wq")
    g.vm(f"buffer_load_dwordx4 {vr(vXa,4)}, {vr(vX)}, {sr(sX,4)}, 0 offen", "wq")
    g.vm(f"buffer_load_dwordx4 {vr(vXb,4)}, {vr(vX)}, {sr(sX,4)}, 0 offen offset:1152", "wq")
    g.vm(f"buffer_load_ushort {vr(vXs)}, {vr(vX1)}, {sr(sX,4)}, 0 offen", "wq")
    g.vm(f"buffer_load_ushort {vr(vXs+2)}, {vr(vX1)}, {sr(sX,4)}, 0 offen offset:1152", "wq")
    e(f"s_mov_b32 {sr(sWS)}, s32"); e(f"s_mov_b32 {sr(sWS+1)}, s33")
    e(f"s_cmp_eq_u32 {sr(sIsA)}, 1")
    e(f"s_cselect_b64 {sr(sK,2)}, s[10:11], s[20:21]")
    e(f"s_cselect_b64 {sr(sV,2)}, s[12:13], s[22:23]")
    e(f"s_cselect_b64 {sr(sWO,2)}, s[16:17], s[26:27]")
    add64(sK, sr(sKVo)); add64(sV, sr(sKVo))
    e(f"s_add_u32 {sr(sA)}, {sr(sOff)}, 1")
    phys(sL)
    for d in range(T0N): issue_tile(d)
    stamp2(4)
    add64(sWO, sr(sWoO))
    e(f"s_mov_b32 {sr(sWO+2)}, {sr(sWoS)}"); e(f"s_mov_b32 {sr(sWO+3)}, 0x00020000")
    e(f"s_mov_b32 {sr(sC)}, 0x{f32bits(CSCALE):08x}")
    e(f"s_mov_b32 {sr(sSelLo)}, 0x05040100")
    e(f"s_mov_b32 {sr(sSelHi)}, 0x07060302")
    e(f"s_lshl_b32 {sr(sLdsW)}, {sr(sW)}, 10")
    e(f"v_bfe_u32 {vr(vT0)}, {vr(vLane)}, 3, 2")
    e(f"v_xor_b32 {vr(vT0)}, {sr(sW)}, {vr(vT0)}")
    e(f"v_lshlrev_b32 {vr(vT0)}, 5, {vr(vT0)}")
    e(f"v_lshrrev_b32 {vr(vT1)}, 2, {vr(vLane)}")
    e(f"v_lshl_add_u32 {vr(vT0)}, {vr(vT1)}, 7, {vr(vT0)}")
    e(f"v_and_b32 {vr(vT1)}, 3, {vr(vLane)}")
    e(f"v_lshl_add_u32 {vr(vTR)}, {vr(vT1)}, 3, {vr(vT0)}")
    e(f"s_mov_b32 {sr(sOut)}, s28"); e(f"s_mov_b32 {sr(sOut+1)}, s29"); srd_tail(sOut, 4608)
    e(f"s_mov_b32 {sr(sDbg)}, s30"); e(f"s_mov_b32 {sr(sDbg+1)}, s31"); srd_tail(sDbg, 256)
    for i in range(16):
        e(f"v_mov_b32 {vr(vQacc+i)}, 0")
    e(f"v_and_b32 {vr(vT0)}, 3, {vr(vCc)}")
    e(f"v_lshlrev_b32 {vr(vT0)}, 8, {vr(vT0)}")
    e(f"v_lshl_add_u32 {vr(vT0)}, {vr(vG)}, 6, {vr(vT0)}")
    e(f"v_bfe_u32 {vr(vT1)}, {vr(vCc)}, 2, 1")
    e(f"v_lshl_add_u32 {vr(vT0)}, {vr(vT1)}, 5, {vr(vT0)}")
    e(f"v_lshrrev_b32 {vr(vT1)}, 3, {vr(vCc)}")
    e(f"v_lshl_add_u32 {vr(vT0)}, {vr(vT1)}, 15, {vr(vT0)}")
    e(f"v_add_u32 {vr(vQa)}, {sr(sQo)}, {vr(vT0)}")
    e(f"v_bfe_u32 {vr(vT0)}, {vr(vLane)}, 3, 2")
    e(f"v_lshrrev_b32 {vr(vT1)}, 5, {vr(vLane)}")
    e(f"v_lshl_add_u32 {vr(vT0)}, {vr(vT1)}, 3, {vr(vT0)}")
    e(f"s_and_b32 {sr(sT0)}, {sr(sW)}, 1")
    e(f"s_lshl_b32 {sr(sT0)}, {sr(sT0)}, 4")
    e(f"s_lshr_b32 {sr(sT1)}, {sr(sW)}, 1")
    e(f"s_lshl_b32 {sr(sT1)}, {sr(sT1)}, 2")
    e(f"s_add_u32 {sr(sT0)}, {sr(sT0)}, {sr(sT1)}")
    e(f"v_add_u32 {vr(vT0)}, {sr(sT0)}, {vr(vT0)}")
    e(f"v_mul_u32_u24 {vr(vWOj)}, 1152, {vr(vT0)}")
    e(f"v_lshlrev_b32 {vr(vT1)}, 1, {vr(vG)}")
    e(f"v_and_b32 {vr(vT0)}, 7, {vr(vLane)}")
    e(f"v_xor_b32 {vr(vT1)}, {vr(vT1)}, {vr(vT0)}")
    e(f"v_lshl_add_u32 {vr(vWOj)}, {vr(vT1)}, 4, {vr(vWOj)}")
    for j in range(1, 4):
        e(f"v_add_u32 {vr(vWOj+j)}, {36864*j}, {vr(vWOj)}")
    vLw, vLr = vTmp + 14, vTmp + 15
    e(f"s_lshl_b32 {sr(sT0)}, {sr(sW)}, 9")
    e(f"s_add_u32 {sr(sT0)}, {sr(sT0)}, {LDS_QP}")
    e(f"v_and_b32 {vr(vT0)}, 7, {vr(vLane)}")
    e(f"v_lshl_add_u32 {vr(vLw)}, {vr(vT0)}, 5, {sr(sT0)}")
    e(f"v_and_b32 {vr(vT1)}, 1, {vr(vG)}")
    e(f"v_lshl_add_u32 {vr(vLw)}, {vr(vT1)}, 4, {vr(vLw)}")
    e(f"v_lshrrev_b32 {vr(vT1)}, 1, {vr(vG)}")
    e(f"v_lshl_add_u32 {vr(vLw)}, {vr(vT1)}, 8, {vr(vLw)}")
    e(f"s_lshl_b32 {sr(sT0)}, {sr(sW)}, 7")
    e(f"s_add_u32 {sr(sT0)}, {sr(sT0)}, {LDS_QP}")
    e(f"v_lshl_add_u32 {vr(vLr)}, {vr(vT0)}, 4, {sr(sT0)}")
    e(f"v_bfe_u32 {vr(vT0)}, {vr(vLane)}, 3, 1")
    e(f"v_cmp_eq_u32 vcc, 1, {vr(vT0)}")
    e("s_waitcnt lgkmcnt(0)")
    e(f"s_add_u32 {sr(sE)}, {sr(sE)}, 1")
    e(f"s_mul_i32 {sr(sNon)}, {sr(sE)}, 0x9E3779B1")
    e(f"s_or_b32 {sr(sNon)}, {sr(sNon)}, 1")
    e(f"v_mov_b32 {vr(vT1)}, {sr(sNon)}")
    vXm = vTmp + 13
    e(f"v_cndmask_b32 {vr(vXm)}, 0, {vr(vT1)}, vcc")
    vZ = vTmp + 8
    for i in range(4):
        e(f"v_mov_b32 {vr(vZ+i)}, 0")
    e(f"v_mov_b32 {vr(vT0)}, {LDS_CNT}")
    stamp2(5)
    g.wait_tag("wq")
    stamp2(6)
    e(f"v_lshlrev_b32 {vr(vXs+1)}, 16, {vr(vXs)}")
    e(f"v_lshlrev_b32 {vr(vXs+3)}, 16, {vr(vXs+2)}")
    for p in range(4):
        a, b = vW + 8 * p, vW + 8 * p + 4
        for d in range(4):
            t0, t1 = vTmp + 2 * (d & 1), vTmp + 2 * (d & 1) + 1
            e(f"v_perm_b32 {vr(t0)}, {vr(b+d)}, {vr(a+d)}, {sr(sSelLo)}")
            e(f"v_perm_b32 {vr(t1)}, {vr(b+d)}, {vr(a+d)}, {sr(sSelHi)}")
            e(f"v_dot2c_f32_bf16 {vr(vQacc+2*d)}, {vr(t0)}, {vr(vXa+p)}")
            e(f"v_dot2c_f32_bf16 {vr(vQacc+2*d+1)}, {vr(t1)}, {vr(vXa+p)}")
            e(f"v_dot2c_f32_bf16 {vr(vQacc+8+2*d)}, {vr(t0)}, {vr(vXb+p)}")
            e(f"v_dot2c_f32_bf16 {vr(vQacc+8+2*d+1)}, {vr(t1)}, {vr(vXb+p)}")
    for d in range(4):
        e(f"v_dot2c_f32_bf16 {vr(vQacc+2*d)}, {vr(vW+32+d)}, {vr(vXs)}")
        e(f"v_dot2c_f32_bf16 {vr(vQacc+2*d+1)}, {vr(vW+32+d)}, {vr(vXs+1)}")
        e(f"v_dot2c_f32_bf16 {vr(vQacc+8+2*d)}, {vr(vW+32+d)}, {vr(vXs+2)}")
        e(f"v_dot2c_f32_bf16 {vr(vQacc+8+2*d+1)}, {vr(vW+32+d)}, {vr(vXs+3)}")
    e("s_nop 2")
    for i in range(8):
        e(f"v_permlane32_swap_b32 {vr(vQacc+i)}, {vr(vQacc+i+8)}")
    e("s_nop 1")
    for i in range(8):
        e(f"v_add_f32 {vr(vQacc+i)}, {vr(vQacc+i)}, {vr(vQacc+i+8)}")
    e("s_nop 1")
    for i in range(4):
        e(f"v_permlane16_swap_b32 {vr(vQacc+i)}, {vr(vQacc+i+4)}")
    e("s_nop 1")
    for i in range(4):
        e(f"v_add_f32 {vr(vQacc+i)}, {vr(vQacc+i)}, {vr(vQacc+i+4)}")
    e("s_nop 1")
    for i in range(4):
        e(f"v_add_f32_dpp {vr(vQacc+4+i)}, {vr(vQacc+i)}, {vr(vQacc+i)} row_ror:8 row_mask:0xf bank_mask:0xf")
    e(f"ds_write_b128 {vr(vLw)}, {vr(vQacc+4,4)}")
    e(f"ds_write_b128 {vr(vT0)}, {vr(vZ,4)}")
    e(f"ds_write_b128 {vr(vT0)}, {vr(vZ,4)} offset:16")
    e("s_waitcnt lgkmcnt(0)")
    e("s_barrier")
    for w in range(4):
        e(f"ds_read_b128 {vr(vQacc+4*w,4)}, {vr(vLr)} offset:{512*w}")
    e("s_waitcnt lgkmcnt(2)")
    for i in range(4):
        e(f"v_add_f32 {vr(vQacc+i)}, {vr(vQacc+i)}, {vr(vQacc+4+i)}")
    e("s_waitcnt lgkmcnt(0)")
    for i in range(4):
        e(f"v_add_f32 {vr(vQacc+8+i)}, {vr(vQacc+8+i)}, {vr(vQacc+12+i)}")
    for i in range(4):
        e(f"v_add_f32 {vr(vQacc+i)}, {vr(vQacc+i)}, {vr(vQacc+8+i)}")
    for i in range(4):
        e(f"v_xor_b32 {vr(vQacc+i)}, {vr(vXm)}, {vr(vQacc+i)}")
    g.vm(f"buffer_store_dwordx4 {vr(vQacc,4)}, {vr(vQs)}, {sr(sWS,4)}, 0 offen sc1", "qs")
    stamp(1)
    for d in range(T0N, QPOS): issue_tile(d)
    e(f"s_cmp_eq_u32 {sr(sIsA)}, 1")
    e("s_cbranch_scc1 L_A")
    q_common = list(g.q)

    def store_offsets():
        vU1 = vT1
        e(f"s_mul_i32 {sr(sT0)}, {sr(sR0)}, {YROW}")
        e(f"s_mul_i32 {sr(sT1)}, {sr(sR1)}, {YROW}")
        e(f"v_mov_b32 {vr(vSt0)}, {sr(sT0)}")
        e(f"v_mov_b32 {vr(vSt1)}, {sr(sT1)}")
        e(f"v_cmp_lt_u32 vcc, 31, {vr(vLane)}")
        e(f"v_and_b32 {vr(vU0)}, 31, {vr(vLane)}")
        e(f"s_lshl_b32 {sr(sT2)}, {sr(sW)}, 6")
        e(f"v_cndmask_b32 {vr(vSt0)}, {vr(vSt0)}, {vr(vSt1)}, vcc")
        e(f"s_add_u32 {sr(sT2)}, {sr(sT2)}, {2048 + Y_OFF}")
        e(f"v_lshl_add_u32 {vr(vSt1)}, {vr(vCc)}, 2, {vr(vSt0)}")
        e(f"v_add_u32 {vr(vSt1)}, {sr(sT2)}, {vr(vSt1)}")
        e(f"s_lshl_b32 {sr(sT2)}, {sr(sW)}, 9")
        e(f"s_add_u32 {sr(sT2)}, {sr(sT2)}, {Y_OFF}")
        e(f"v_lshl_add_u32 {vr(vSt0)}, {vr(vU0)}, 4, {vr(vSt0)}")
        e(f"v_add_u32 {vr(vSt0)}, {sr(sT2)}, {vr(vSt0)}")
        e(f"s_lshl_b32 {sr(sT0)}, {sr(sR0)}, 4")
        e(f"s_lshl_b32 {sr(sT1)}, {sr(sR1)}, 4")
        e(f"s_add_u32 {sr(sT0)}, {sr(sT0)}, {ML_OFF}")
        e(f"s_add_u32 {sr(sT1)}, {sr(sT1)}, {ML_OFF}")
        e(f"s_cmp_eq_u32 {sr(sW)}, 0")
        e(f"s_cselect_b32 {sr(sT0)}, {sr(sT0)}, {OOB}")
        e(f"s_cselect_b32 {sr(sT1)}, {sr(sT1)}, {OOB}")
        e(f"v_mov_b32 {vr(vT0)}, {sr(sT0)}")
        e(f"v_mov_b32 {vr(vU1)}, {sr(sT1)}")
        e(f"v_cndmask_b32 {vr(vT0)}, {vr(vT0)}, {vr(vU1)}, vcc")
        e(f"v_and_b32 {vr(vU1)}, 19, {vr(vLane)}")
        e(f"v_cmp_eq_u32 vcc, 0, {vr(vU1)}")
        e(f"v_mov_b32 {vr(vU1)}, {OOB}")
        e("s_nop 0")
        e(f"v_cndmask_b32 {vr(vSt1)}, {vr(vU1)}, {vr(vSt1)}, vcc")
        e(f"v_cmp_eq_u32 vcc, 16, {vr(vU0)}")
        e("s_nop 1")
        e(f"v_cndmask_b32 {vr(vSt1)}, {vr(vSt1)}, {vr(vT0)}, vcc")
    def clear_rows():
        g.vm(f"buffer_store_dwordx4 {vr(vTmp,4)}, {vr(vSt0)}, {sr(sWS,4)}, 0 offen sc1", "clr")
        g.vm(f"buffer_store_dwordx4 {vr(vTmp,4)}, {vr(vSt1)}, {sr(sWS,4)}, 0 offen sc1", "clr")

    def prologue2(isA):
        nm = "A" if isA else "B"
        nh = 2 if isA else 1
        g.q = list(q_common)
        def qloads(tag):
            for i in range(2 * nh):
                g.vm(f"buffer_load_dwordx4 {vr(vQl+4*i,4)}, {vr(vQa)}, {sr(sWS,4)}, 0 offen offset:{(i>>1)*1024+(i&1)*16} sc1", tag)
        def qcheck():
            for hd in range(nh):
                for i in range(4):
                    e(f"v_bitop3_b32 {vr(vTmp+4+4*hd+i)}, {vr(vQl+8*hd+i)}, {vr(vQl+8*hd+4+i)}, {sr(sNon)} bitop3:0x96")
            e(f"v_or3_b32 {vr(vT0)}, {vr(vTmp+4)}, {vr(vTmp+5)}, {vr(vTmp+6)}")
            if isA:
                e(f"v_or3_b32 {vr(vT0)}, {vr(vT0)}, {vr(vTmp+7)}, {vr(vTmp+8)}")
                e(f"v_or3_b32 {vr(vT0)}, {vr(vT0)}, {vr(vTmp+9)}, {vr(vTmp+10)}")
                e(f"v_or_b32 {vr(vT0)}, {vr(vT0)}, {vr(vTmp+11)}")
            else:
                e(f"v_or_b32 {vr(vT0)}, {vr(vT0)}, {vr(vTmp+7)}")
            e(f"v_cmp_ne_u32 vcc, 0, {vr(vT0)}")
        qloads("ql")
        for d in range(QPOS, D): issue_tile(d)
        for i in range(4):
            e(f"v_mov_b32 {vr(vTmp+i)}, -1")
        if isA:
            e(f"s_add_u32 {sr(sR0)}, {sr(sR0)}, 2"); e(f"s_add_u32 {sr(sR1)}, {sr(sR1)}, 2")
            store_offsets(); clear_rows()
            e(f"v_mov_b32 {vr(vSt1b)}, {vr(vSt1)}")
            e(f"s_sub_u32 {sr(sR0)}, {sr(sR0)}, 2"); e(f"s_sub_u32 {sr(sR1)}, {sr(sR1)}, 2")
        store_offsets(); clear_rows()
        for i in range(8 * nh):
            e(f"v_mov_b32 {vr(vO+i)}, 0")
        e(f"v_mov_b32 {vr(vM)}, 0xff800000")
        e(f"v_mov_b32 {vr(vL)}, 0")
        if isA:
            e(f"v_mov_b32 {vr(vM2)}, 0xff800000")
            e(f"v_mov_b32 {vr(vL2)}, 0")
        if PROF == 3:
            e(f"v_mov_b32 {vr(vTk)}, 0")
        e(f"s_mov_b32 {sr(sDyn)}, {sr(sIt)}")
        e(f"s_mov_b32 {sr(sLim)}, {sr(sDoff)}")
        e(f"s_add_u32 {sr(sCnt)}, {sr(sDlds)}, {LDS_CNT + 12}")
        e(f"s_mul_i32 {sr(sTrig)}, {sr(sInc)}, {EARLY}")
        e(f"s_sub_u32 {sr(sTrig)}, {sr(sLim)}, {sr(sTrig)}")
        e(f"s_cmp_eq_u32 {sr(sDlds)}, 0")
        e(f"s_cselect_b32 {sr(sTrig)}, {sr(sTrig)}, -1")
        e(f"s_mov_b32 {sr(sHas)}, 0")
        e(f"s_mov_b32 {sr(sIt)}, 0")
        e(f"s_mov_b32 {sr(sSt)}, {(SA if isA else SB) - D}")
        e(f"s_mov_b32 {sr(sDt)}, 0")
        e(f"s_mov_b32 {sr(sDoff)}, 0")
        e(f"s_mov_b32 {sr(sDlds)}, {sr(sLdsW)}")
        e(f"s_mov_b32 {sr(sRem)}, {62 if PROF == 3 else 900}")
        e(f"s_mov_b32 {sr(sSpin)}, 0x40000")
        g.wait_tag("ql")
        qcheck()
        e(f"s_cbranch_vccz L_qok{nm}")
        g.lab(f"L_qretry{nm}")
        sv = list(g.q)
        qloads(None)
        g.q = sv
        e(f"s_sub_u32 {sr(sSpin)}, {sr(sSpin)}, 1")
        e(f"s_cbranch_scc1 L_qok{nm}")
        e("s_waitcnt vmcnt(0)")
        qcheck()
        e(f"s_cbranch_vccnz L_qretry{nm}")
        g.lab(f"L_qok{nm}")
        for hd in range(nh):
            for i in range(4):
                e(f"v_add_f32_dpp {vr(vTmp+4*hd+i)}, {vr(vQl+8*hd+i)}, {vr(vQl+8*hd+i)} row_ror:8 row_mask:0xf bank_mask:0xf")
        for hd in range(nh):
            e(f"v_cvt_pk_bf16_f32 {vr(vTmp+8+2*hd)}, {vr(vTmp+4*hd)}, {vr(vTmp+4*hd+1)}")
            e(f"v_cvt_pk_bf16_f32 {vr(vTmp+8+2*hd+1)}, {vr(vTmp+4*hd+2)}, {vr(vTmp+4*hd+3)}")
        e("s_nop 1")
        for hd in range(nh):
            qq = vQ2 if hd else vQ
            for j in range(4):
                for dd in range(4):
                    e(f"v_mov_b32_dpp {vr(qq+4*j+dd)}, {vr(vTmp+8+2*hd+(dd&1))} row_newbcast:{j+4*(dd>>1)} row_mask:0xf bank_mask:0xf")
        stamp(2)

    def softmax(S, M, L, O, P):
        e(f"v_max3_f32 {vr(vT0)}, {vr(S)}, {vr(S+1)}, {vr(S+2)}")
        e(f"v_max_f32 {vr(vT0)}, {vr(vT0)}, {vr(S+3)}")
        e(f"v_mul_f32 {vr(vT0)}, {sr(sC)}, {vr(vT0)}")
        e(f"v_max_f32 {vr(vMn)}, {vr(vT0)}, {vr(M)}")
        e(f"v_sub_f32 {vr(vA)}, {vr(M)}, {vr(vMn)}")
        for r in range(4):
            e(f"v_fma_f32 {vr(vE+r)}, {vr(S+r)}, {sr(sC)}, -{vr(vMn)}")
        e(f"v_exp_f32 {vr(vA)}, {vr(vA)}")
        for r in range(4):
            e(f"v_exp_f32 {vr(vE+r)}, {vr(vE+r)}")
        e(f"v_mov_b32 {vr(M)}, {vr(vMn)}")
        for i in range(8):
            e(f"v_mul_f32 {vr(O+i)}, {vr(vA)}, {vr(O+i)}")
        e(f"v_fma_f32 {vr(L)}, {vr(L)}, {vr(vA)}, {vr(vE)}")
        e(f"v_add_f32 {vr(vT0)}, {vr(vE+1)}, {vr(vE+2)}")
        e(f"v_add_f32 {vr(L)}, {vr(L)}, {vr(vE+3)}")
        e(f"v_add_f32 {vr(L)}, {vr(L)}, {vr(vT0)}")
        for r in range(4):
            e(f"v_cvt_pk_bf16_f32 {vr(P+2*r)}, {vr(vE+r)}, 0")
            e(f"v_cvt_pk_bf16_f32 {vr(P+2*r+1)}, 0, {vr(vE+r)}")

    def dma_group(lbl):
        e(f"s_cmp_lt_u32 {sr(sDt)}, 9")
        e(f"s_cbranch_scc0 {lbl}")
        for j in range(4):
            e(f"s_add_u32 m0, {sr(sDlds)}, {4096*j}")
            e("s_nop 0")
            e(f"buffer_load_dwordx4 {vr(vWOj+j)}, {sr(sWO,4)}, {sr(sDoff)} offen lds")
        e(f"s_add_u32 {sr(sDt)}, {sr(sDt)}, 1")
        e(f"s_add_u32 {sr(sDoff)}, {sr(sDoff)}, 128")
        e(f"s_add_u32 {sr(sDlds)}, {sr(sDlds)}, 16384")
        g.lab(lbl)

    def step(isA, d, dn, wk, wv, uid, dma, nm, cidx=0):
        P = PA if isA else PB
        LC = True
        if LC and dn is not None:
            e(f"s_cmp_gt_i32 {sr(sSt)}, 0")
            e(f"s_cbranch_scc1 L_c1{uid}")
            e(f"v_mov_b32 {vr(vT0)}, {sr(sCnt)}")
            e(f"v_mov_b32 {vr(vT1)}, 1")
            e("s_mov_b64 exec, 1")
            e(f"ds_add_rtn_u32 {vr(vT1)}, {vr(vT0)}, {vr(vT1)}")
            e("s_mov_b64 exec, -1")
            g.lab(f"L_c1{uid}")
        e(f"s_waitcnt vmcnt({wk})")
        for j in range(4):
            cc = "0" if j == 0 else vr(vS,4)
            e(f"v_mfma_f32_16x16x32_bf16 {vr(vS,4)}, {ar(kreg(d,j),4)}, {vr(vQ+4*j,4)}, {cc}")
        if isA:
            for j in range(4):
                cc = "0" if j == 0 else vr(vS2,4)
                e(f"v_mfma_f32_16x16x32_bf16 {vr(vS2,4)}, {ar(kreg(d,j),4)}, {vr(vQ2+4*j,4)}, {cc}")
        if dn is not None:
            if LC:
                e(f"s_cmp_gt_i32 {sr(sSt)}, 0")
                e(f"s_cbranch_scc1 L_c2{uid}")
                e("s_waitcnt lgkmcnt(0)")
                e(f"v_readfirstlane_b32 {sr(sCl)}, {vr(vT1)}")
                e(f"s_min_u32 {sr(sT0)}, {sr(sRem)}, {P-1}")
                e(f"s_add_u32 {sr(sCl)}, {sr(sCl)}, {sr(sDyn)}")
                phys(sCl)
                e(f"s_cmp_ge_u32 {sr(sCl)}, {sr(sLim)}")
                e(f"s_cselect_b32 {sr(sRem)}, {sr(sT0)}, {sr(sRem)}")
                e(f"s_cselect_b32 {sr(sOff)}, {OOB}, {sr(sOff)}")
                e(f"s_cmp_lg_u32 {sr(sCl)}, {sr(sTrig)}")
                e(f"s_cbranch_scc1 L_c2{uid}")
                e(f"s_call_b64 {sr(sRet,2)}, L_sig")
                g.lab(f"L_c2{uid}")
            e(f"s_sub_u32 {sr(sSt)}, {sr(sSt)}, 1")
            issue_k(dn)
            e("s_nop 3")
        else:
            e("s_nop 7")
        softmax(vS, vM, vL, vO, vP)
        if isA:
            softmax(vS2, vM2, vL2, vO2, vP + 8)
        e(f"s_waitcnt vmcnt({wv})")
        if PROF == 3:
            e("s_memrealtime s[86:87]")
        for r in range(4):
            for dd in range(4):
                e(f"v_dot2c_f32_bf16 {vr(vO+2*dd)}, {vr(vreg(d,r)+dd)}, {vr(vP+2*r)}")
                e(f"v_dot2c_f32_bf16 {vr(vO+2*dd+1)}, {vr(vreg(d,r)+dd)}, {vr(vP+2*r+1)}")
                if isA:
                    e(f"v_dot2c_f32_bf16 {vr(vO2+2*dd)}, {vr(vreg(d,r)+dd)}, {vr(vP+8+2*r)}")
                    e(f"v_dot2c_f32_bf16 {vr(vO2+2*dd+1)}, {vr(vreg(d,r)+dd)}, {vr(vP+8+2*r+1)}")
        if PROF == 3:
            e(f"s_add_u32 m0, {sr(sRem)}, 1")
            e("s_waitcnt lgkmcnt(0)")
            e(f"v_writelane_b32 {vr(vTk)}, s86, m0")
        e(f"s_sub_u32 {sr(sRem)}, {sr(sRem)}, 1")
        if dn is None: return
        e(f"s_cbranch_scc1 L_end{nm}")
        issue_v(dn)
        adv()
        for x in range(dma):
            dma_group(f"L_dma{uid}_{x}")

    def mainloop(isA):
        nm = "A" if isA else "B"
        P = PA if isA else PB
        WK = WV = 8 * P - 4
        nclr = 4 if isA else 2
        for s in range(D - P):
            step(isA, s, None, 8 * (D - s) - 4 + nclr, 8 * (D - s) - 8 + nclr, f"{nm}p{s}", 0, nm)
        d0 = D - P
        def arrive(k):
            e(f"v_mov_b32 {vr(vT0)}, {LDS_CNT}")
            e(f"v_mov_b32 {vr(vT1)}, 1")
            e("s_mov_b64 exec, 1")
            e(f"ds_add_u32 {vr(vT0)}, {vr(vT1)} offset:{4*k}")
            e("s_mov_b64 exec, -1")
        def wait_all(k):
            e(f"v_mov_b32 {vr(vT0)}, {LDS_CNT}")
            g.lab(f"L_w{nm}{k}")
            e(f"ds_read_b32 {vr(vT1)}, {vr(vT0)} offset:{4*k}")
            e("s_waitcnt lgkmcnt(0)")
            e(f"v_readfirstlane_b32 {sr(sT0)}, {vr(vT1)}")
            e("s_nop 3")
            e(f"s_cmp_lt_u32 {sr(sT0)}, 4")
            e(f"s_cbranch_scc1 L_w{nm}{k}")
        def h_arr0():
            e(f"s_waitcnt vmcnt({8 if isA else 24})")
            arrive(0)
        def h_t1():
            stamp(3)
            wait_all(0)
            e(f"s_call_b64 {sr(sRet,2)}, L_T1")
            if isA: arrive(1)
            stamp(4)
            e(f"s_cmp_lg_u32 {sr(sW)}, 0")
            e(f"s_cbranch_scc1 L_body{nm}")
            e(f"s_mov_b64 exec, 1")
            e(f"v_mov_b32 {vr(vT0)}, 0x10000")
            e(f"buffer_atomic_add {vr(vT0)}, off, {sr(sDbg,4)}, 0 sc1")
            e(f"s_mov_b64 exec, -1")
        def h_dma2():
            wait_all(1)
            e(f"s_mov_b32 {sr(sDt)}, 0")
            e(f"s_mov_b32 {sr(sDoff)}, 147456")
            e(f"s_mov_b32 {sr(sDlds)}, {sr(sLdsW)}")
        def h_arr2():
            e("s_waitcnt vmcnt(8)")
            arrive(2)
        def h_t1b():
            wait_all(2)
            e(f"s_call_b64 {sr(sRet,2)}, L_T1b")
        hooks = {1: h_arr0, 2: h_t1, 3: h_dma2, 4: h_arr2, 5: h_t1b} if isA else {5: h_arr0, T1B: h_t1}
        assert EARLY * 2 <= 73 - 2 * SB and EARLY >= 1 and EARLY * 4 <= 128 - 4 * SA
        assert (SA if isA else SB) - (D - P) > 4 * max(hooks)
        g.lab(f"L_loop{nm}")
        e(f"s_bitcmp1_b32 {sum(1 << k for k in hooks)}, {sr(sIt)}")
        e(f"s_cbranch_scc0 L_body{nm}")
        ks = sorted(hooks)
        for n, k in enumerate(ks):
            if n < len(ks) - 1:
                e(f"s_cmp_lg_u32 {sr(sIt)}, {k}")
                e(f"s_cbranch_scc1 L_hk{nm}{n+1}")
            hooks[k]()
            if n < len(ks) - 1:
                e(f"s_branch L_body{nm}")
                g.lab(f"L_hk{nm}{n+1}")
        g.lab(f"L_body{nm}")
        for i in range(D):
            d = (d0 + i) % D
            step(isA, d, (d + P) % D, WK, WV, f"{nm}{i}", 3 if isA else 1 - i % 2, nm, i)
        e(f"s_add_u32 {sr(sIt)}, {sr(sIt)}, 1")
        e(f"s_branch L_loop{nm}")
        g.lab(f"L_end{nm}")

    def T2(nh, nm):
        vAcc = [64, 100]
        aAop = [0, 16]
        vMh = [136, 144]; vMo = [152, 156]; vLo = [48, 52]; vPk = [56, 60]
        vMM = [12, 14]; vLL = [13, 15]
        vOut = [16, 24]
        vU1 = vK
        Os = [vO, vO2]; Ms = [vM, vM2]; Ls = [vL, vL2]
        e(f"s_lshl_b32 {sr(sT0)}, {sr(sW)}, 2")
        e(f"v_add_u32 {vr(vT0)}, {sr(sT0)}, {vr(vG)}")
        e(f"v_mul_u32_u24 {vr(vT1)}, {OT_STRIDE}, {vr(vT0)}")
        for hd in range(nh):
            for d in range(4):
                e(f"v_cvt_pk_bf16_f32 {vr(vPk[hd]+d)}, {vr(Os[hd]+2*d)}, {vr(Os[hd]+2*d+1)}")
        e(f"v_lshl_add_u32 {vr(vT1)}, {vr(vCc)}, 4, {vr(vT1)}")
        e(f"v_add_u32 {vr(vT1)}, {LDS_OT}, {vr(vT1)}")
        e(f"v_lshlrev_b32 {vr(vT0)}, 2, {vr(vT0)}")
        e(f"v_add_u32 {vr(vT0)}, {LDS_M}, {vr(vT0)}")
        for hd in range(nh):
            e(f"ds_write_b128 {vr(vT1)}, {vr(vPk[hd],4)} offset:{hd*OT_BYTES}")
            e(f"ds_write_b32 {vr(vT0)}, {vr(Ms[hd])} offset:{hd*128}")
            e(f"ds_write_b32 {vr(vT0)}, {vr(Ls[hd])} offset:{hd*128+64}")
        e(f"v_mul_u32_u24 {vr(vT1)}, {OT_STRIDE}, {vr(vCc)}")
        e(f"v_lshl_add_u32 {vr(vT1)}, {vr(vG)}, 4, {vr(vT1)}")
        e(f"v_add_u32 {vr(vT1)}, {LDS_OT}, {vr(vT1)}")
        e(f"v_lshlrev_b32 {vr(vT0)}, 4, {vr(vG)}")
        e(f"v_add_u32 {vr(vT0)}, {LDS_M}, {vr(vT0)}")
        e(f"v_and_b32 {vr(vU1)}, 32, {vr(vLane)}")
        e(f"v_add_u32 {vr(vU1)}, {LDS_M}, {vr(vU1)}")
        e("s_waitcnt vmcnt(0)")
        if PROF == 3:
            e(f"s_lshl_b32 s88, s2, 10")
            e(f"s_add_u32 s88, s88, 0x300000")
            e(f"v_lshlrev_b32 {vr(vV)}, 2, v0")
            e(f"buffer_store_dword {vr(vTk)}, {vr(vV)}, {sr(sWS,4)}, s88 offen")
        e(f"s_cmp_eq_u32 {sr(sHas)}, 0")
        e(f"s_cbranch_scc1 L_T2b{nm}")
        e(f"v_mov_b32 {vr(vV)}, {LDS_TK}")
        e("s_mov_b64 exec, 1")
        e(f"ds_write_b32 {vr(vV)}, {vr(vTk)}")
        e("s_mov_b64 exec, -1")
        g.lab(f"L_T2b{nm}")
        e("s_waitcnt lgkmcnt(0)")
        e("s_barrier")
        for hd in range(nh):
            for j in range(4):
                e(f"ds_read_b128 {ar(aAop[hd]+4*j,4)}, {vr(vT1)} offset:{hd*OT_BYTES+64*j}")
            for i in range(2):
                e(f"ds_read_b128 {vr(vMh[hd]+4*i,4)}, {vr(vU1)} offset:{hd*128+16*i}")
            e(f"ds_read_b128 {vr(vMo[hd],4)}, {vr(vT0)} offset:{hd*128}")
            e(f"ds_read_b128 {vr(vLo[hd],4)}, {vr(vT0)} offset:{hd*128+64}")
        e(f"v_cmp_eq_u32 vcc, 16, {vr(vU0)}")
        def side(hd):
            Mh, Mo, Lo, MM, LL = vMh[hd], vMo[hd], vLo[hd], vMM[hd], vLL[hd]
            ops = [[f"v_max3_f32 {vr(MM)}, {vr(Mh)}, {vr(Mh+1)}, {vr(Mh+2)}", f"v_max3_f32 {vr(MM)}, {vr(MM)}, {vr(Mh+3)}, {vr(Mh+4)}"],
                   [f"v_max3_f32 {vr(MM)}, {vr(MM)}, {vr(Mh+5)}, {vr(Mh+6)}", f"v_max_f32 {vr(MM)}, {vr(MM)}, {vr(Mh+7)}"]]
            for r in range(4):
                ops.append([f"v_sub_f32 {vr(Mo+r)}, {vr(Mo+r)}, {vr(MM)}", f"v_exp_f32 {vr(Mo+r)}, {vr(Mo+r)}"])
            ops.append([])
            ops.append([f"v_mul_f32 {vr(LL)}, {vr(Mo)}, {vr(Lo)}", f"v_fmac_f32 {vr(LL)}, {vr(Mo+1)}, {vr(Lo+1)}"])
            ops.append([f"v_fmac_f32 {vr(LL)}, {vr(Mo+2)}, {vr(Lo+2)}", f"v_fmac_f32 {vr(LL)}, {vr(Mo+3)}, {vr(Lo+3)}"])
            return ops
        def finish(hd):
            A, Mo, MM, LL, Out = vAcc[hd], vMo[hd], vMM[hd], vLL[hd], vOut[hd]
            ops = []
            for t in range(9):
                a = A + 4*t
                ops.append(f"v_mul_f32 {vr(a)}, {vr(Mo)}, {vr(a)}")
                for r in range(1, 4):
                    ops.append(f"v_fmac_f32 {vr(a)}, {vr(Mo+r)}, {vr(a+r)}")
            vals = [A + 4*t for t in range(9)] + [LL]
            ops.append("s_nop 1")
            for k in range(5):
                ops.append(f"v_permlane16_swap_b32 {vr(vals[2*k])}, {vr(vals[2*k+1])}")
            ops.append("s_nop 1")
            ops.append(f"v_add_f32 {vr(Out+4)}, {vr(vals[8])}, {vr(vals[9])}")
            for k in range(4):
                ops.append(f"v_add_f32 {vr(Out+k)}, {vr(vals[2*k])}, {vr(vals[2*k+1])}")
            ops.append(f"v_min_u32 {vr(Out+4)}, -2, {vr(Out+4)}")
            ops.append(f"v_min_u32 {vr(MM)}, -2, {vr(MM)}")
            for k in range(4):
                ops.append(f"v_min_u32 {vr(Out+k)}, -2, {vr(Out+k)}")
            so = sr(sWoff) if hd else "0"
            ops.append(f"buffer_store_dwordx4 {vr(Out,4)}, {vr(vSt0)}, {sr(sWS,4)}, {so} offen sc1")
            for k in range(1, 4):
                ops.append(f"v_mov_b32_dpp {vr(Out+4+k)}, {vr(Out+4)} quad_perm:[{k},{k},{k},{k}] row_mask:0xf bank_mask:0xf")
            ops.append(f"v_cndmask_b32 {vr(Out+4)}, {vr(Out+4)}, {vr(MM)}, vcc")
            ops.append(f"buffer_store_dwordx4 {vr(Out+4,4)}, {vr(vSt1b if hd else vSt1)}, {sr(sWS,4)}, 0 offen sc1")
            return ops
        if nh == 2:
            e(f"v_mov_b32 {vr(vV)}, {vr(vSt1b)}")
            e(f"s_mov_b32 {sr(sWoff)}, {2*YROW}")
        pend = []
        for hd in range(nh):
            sd = side(hd)
            for j in range(4):
                if j == 0: e(f"s_waitcnt lgkmcnt({8*(nh-hd)-1})")
                if j == 1: e(f"s_waitcnt lgkmcnt({8*(nh-hd-1)})")
                for t in range(9):
                    cc = "0" if j == 0 else vr(vAcc[hd]+4*t,4)
                    e(f"v_mfma_f32_16x16x32_bf16 {vr(vAcc[hd]+4*t,4)}, {ar(aAop[hd]+4*j,4)}, {rr(wo_reg(hd,t*4+j),4)}, {cc}")
                    if j == 1:
                        for o in sd[t]: e(o)
                    elif pend and not (j == 0 and t < 1):
                        for o in pend[:3]: e(o)
                        pend = pend[3:]
            for o in pend: e(o)
            pend = finish(hd)
            if hd == 1:
                pend = [o.replace(f", {vr(vSt1b)}, ", f", {vr(vV)}, ") for o in pend]
        for o in pend: e(o)

    prologue2(False)
    mainloop(False)
    stamp(5)
    T2(1, "B")
    stamp(6)

    g.lab("L_cons")
    sP, sCb, sSl, sRow = sT0, sT1, sT2, sT3
    e(f"v_mov_b32 {vr(vT0)}, {LDS_TK}")
    e(f"ds_read_b32 {vr(vT0)}, {vr(vT0)}")
    e("s_waitcnt lgkmcnt(0)")
    e(f"v_readfirstlane_b32 {sr(sRem)}, {vr(vT0)}")
    e("s_nop 3")
    e(f"s_and_b32 {sr(sSl)}, {sr(sRem)}, 0xffff")
    vHd, vCh, vYo, vMlo, vMx, vRes = 16, 17, 18, 19, 20, 24
    vML, vY = 32, 64
    e(f"s_add_u32 {sr(sP)}, {sr(sSl)}, {sr(sW)}")
    e(f"s_cmp_lg_u32 {sr(sP)}, 258")
    e("s_cbranch_scc1 L_noep")
    e(f"v_mov_b32 {vr(vMx)}, {sr(sE)}")
    e("s_mov_b64 exec, 1")
    e(f"buffer_store_dword {vr(vMx)}, off, {sr(sWS,4)}, 0 sc1")
    e("s_mov_b64 exec, -1")
    g.lab("L_noep")
    e(f"s_sub_u32 {sr(sSl)}, {sr(sSl)}, {TK0}")
    e(f"s_cmp_ge_u32 {sr(sSl)}, 72")
    e("s_cbranch_scc1 L_done")
    e(f"s_cmp_lt_u32 {sr(sSl)}, 36")
    e(f"s_cselect_b32 {sr(sP)}, 1, 0")
    e(f"s_cselect_b32 {sr(sRow)}, 0, 36")
    e(f"s_sub_u32 {sr(sSl)}, {sr(sSl)}, {sr(sRow)}")
    e(f"s_cmp_ge_u32 {sr(sSl)}, 18")
    e(f"s_cselect_b32 {sr(sCb)}, 1, 0")
    e(f"s_cselect_b32 {sr(sRow)}, 18, 0")
    e(f"s_sub_u32 {sr(sSl)}, {sr(sSl)}, {sr(sRow)}")
    e(f"v_lshrrev_b32 {vr(vHd)}, 3, v0")
    e(f"v_and_b32 {vr(vCh)}, 7, v0")
    e(f"s_lshl_b32 {sr(sOff)}, {sr(sSl)}, 7")
    e(f"s_add_u32 {sr(sOff)}, {sr(sOff)}, {Y_OFF}")
    e(f"s_mov_b32 {sr(sSpin)}, 0x100000")
    g.lab("L_pollc")
    e(f"s_cmp_ge_u32 {sr(sRem)}, 0x1000000")
    e("s_cbranch_scc1 L_pollc_done")
    e(f"s_sleep {SLEEP}")
    e("s_mov_b64 exec, 1")
    e(f"buffer_load_dword {vr(vMx)}, off, {sr(sDbg,4)}, 0 sc1")
    e("s_mov_b64 exec, -1")
    e(f"s_sub_u32 {sr(sSpin)}, {sr(sSpin)}, 1")
    e("s_cbranch_scc1 L_pollc_done")
    e("s_waitcnt vmcnt(0)")
    e(f"v_readfirstlane_b32 {sr(sRem)}, {vr(vMx)}")
    e("s_nop 3")
    e("s_branch L_pollc")
    g.lab("L_pollc_done")
    e(f"s_mov_b32 {sr(sSpin)}, 0x100000")
    e(f"s_cmp_eq_u32 {sr(sP)}, 0")
    e("s_cbranch_scc1 L_finA")
    def consumer(ns, nm):
        e(f"v_mul_u32_u24 {vr(vMx)}, {ns}, {vr(vHd)}")
        e(f"v_add_u32 {vr(vMx)}, {sr(sRow)}, {vr(vMx)}")
        e(f"v_mul_u32_u24 {vr(vYo)}, {YROW}, {vr(vMx)}")
        e(f"v_lshl_add_u32 {vr(vYo)}, {vr(vCh)}, 4, {vr(vYo)}")
        e(f"v_add_u32 {vr(vYo)}, {sr(sOff)}, {vr(vYo)}")
        e(f"v_lshlrev_b32 {vr(vMlo)}, 4, {vr(vMx)}")
        e(f"v_add_u32 {vr(vMlo)}, {ML_OFF}, {vr(vMlo)}")
        sMask = 16
        for i in range(ns):
            e(f"s_mov_b64 {sr(sMask+2*i,2)}, -1")
        g.lab(f"L_polld{nm}")
        for i in range(ns):
            e(f"s_mov_b64 exec, {sr(sMask+2*i,2)}")
            e(f"s_cbranch_execz L_pd{nm}{i}")
            e(f"s_mov_b32 {sr(sWoff)}, {YROW*i}")
            e(f"buffer_load_dwordx4 {vr(vY+4*i,4)}, {vr(vYo)}, {sr(sWS,4)}, {sr(sWoff)} offen sc1")
            e(f"buffer_load_dwordx2 {vr(vML+2*i,2)}, {vr(vMlo)}, {sr(sWS,4)}, 0 offen offset:{16*i} sc1")
            g.lab(f"L_pd{nm}{i}")
        e("s_mov_b64 exec, -1")
        e(f"s_mov_b64 {sr(sEx,2)}, 0")
        e("s_waitcnt vmcnt(0)")
        for i in range(ns):
            e(f"v_max3_u32 {vr(vMx)}, {vr(vY+4*i)}, {vr(vY+4*i+1)}, {vr(vY+4*i+2)}")
            e(f"v_max3_u32 {vr(vMx)}, {vr(vMx)}, {vr(vY+4*i+3)}, {vr(vML+2*i)}")
            e(f"v_max_u32 {vr(vMx)}, {vr(vMx)}, {vr(vML+2*i+1)}")
            e(f"v_cmp_eq_u32 {sr(sMask+2*i,2)}, -1, {vr(vMx)}")
            e(f"s_or_b64 {sr(sEx,2)}, {sr(sEx,2)}, {sr(sMask+2*i,2)}")
        e(f"s_cbranch_scc0 L_polld{nm}_done")
        e(f"s_sub_u32 {sr(sSpin)}, {sr(sSpin)}, 1")
        e(f"s_cbranch_scc1 L_polld{nm}_done")
        if DSLEEP:
            e(f"s_sleep {DSLEEP}")
        e(f"s_branch L_polld{nm}")
        g.lab(f"L_polld{nm}_done")
        e("s_mov_b64 exec, -1")
        e(f"v_max_f32 {vr(vMx)}, {vr(vML)}, {vr(vML+2)}")
        for i in range(2, ns):
            e(f"v_max_f32 {vr(vMx)}, {vr(vMx)}, {vr(vML+2*i)}")
        for i in range(ns):
            e(f"v_sub_f32 {vr(vML+2*i)}, {vr(vML+2*i)}, {vr(vMx)}")
        for i in range(ns):
            e(f"v_exp_f32 {vr(vML+2*i)}, {vr(vML+2*i)}")
        e("s_nop 0")
        e(f"v_mul_f32 {vr(vMx)}, {vr(vML)}, {vr(vML+1)}")
        for i in range(1, ns):
            e(f"v_fmac_f32 {vr(vMx)}, {vr(vML+2*i)}, {vr(vML+2*i+1)}")
        e(f"v_rcp_f32 {vr(vMx)}, {vr(vMx)}")
        for k in range(4):
            e(f"v_mul_f32 {vr(vY+k)}, {vr(vML)}, {vr(vY+k)}")
            for i in range(1, ns):
                e(f"v_fmac_f32 {vr(vY+k)}, {vr(vML+2*i)}, {vr(vY+4*i+k)}")
        for k in range(4):
            e(f"v_mul_f32 {vr(vY+k)}, {vr(vMx)}, {vr(vY+k)}")
    e(f"s_mul_i32 {sr(sRow)}, {sr(sCb)}, 224")
    consumer(7, "B")
    e("s_branch L_fin2")
    g.lab("L_finA")
    e(f"s_lshl_b32 {sr(sRow)}, {sr(sCb)}, 6")
    e(f"s_add_u32 {sr(sRow)}, {sr(sRow)}, 448")
    consumer(2, "A")
    g.lab("L_fin2")
    e("s_nop 1")
    for k in range(4):
        e(f"v_add_f32_dpp {vr(vRes+k)}, {vr(vY+k)}, {vr(vY+k)} row_ror:8 row_mask:0xf bank_mask:0xf")
    e("s_nop 1")
    e(f"v_permlane32_swap_b32 {vr(vRes)}, {vr(vRes+1)}")
    e(f"v_permlane32_swap_b32 {vr(vRes+2)}, {vr(vRes+3)}")
    e("s_nop 1")
    e(f"v_add_f32 {vr(vRes)}, {vr(vRes)}, {vr(vRes+1)}")
    e(f"v_add_f32 {vr(vRes+2)}, {vr(vRes+2)}, {vr(vRes+3)}")
    e("s_nop 1")
    e(f"v_permlane16_swap_b32 {vr(vRes)}, {vr(vRes+2)}")
    e(f"v_and_b32 {vr(vT0)}, 1, {vr(vG)}")
    e(f"v_lshlrev_b32 {vr(vT0)}, 1, {vr(vT0)}")
    e(f"v_add_f32 {vr(vRes)}, {vr(vRes)}, {vr(vRes+2)}")
    e(f"v_lshrrev_b32 {vr(vT1)}, 1, {vr(vG)}")
    e(f"v_or_b32 {vr(vT0)}, {vr(vT0)}, {vr(vT1)}")
    e(f"v_lshl_add_u32 {vr(vT0)}, {vr(vCh)}, 2, {vr(vT0)}")
    e(f"v_lshlrev_b32 {vr(vT0)}, 2, {vr(vT0)}")
    e(f"s_lshl_b32 {sr(sRem)}, {sr(sW)}, 7")
    e(f"s_add_u32 {sr(sRem)}, {sr(sRem)}, {LDS_QP}")
    e(f"v_add_u32 {vr(vT0)}, {sr(sRem)}, {vr(vT0)}")
    e(f"ds_write_b32 {vr(vT0)}, {vr(vRes)}")
    e(f"v_lshlrev_b32 {vr(vT1)}, 2, v0")
    e(f"v_add_u32 {vr(vT1)}, {LDS_QP}, {vr(vT1)}")
    e(f"s_mul_i32 {sr(sCb)}, {sr(sCb)}, 1152")
    e(f"s_mul_i32 {sr(sP)}, {sr(sP)}, 576")
    e(f"s_add_u32 {sr(sCb)}, {sr(sCb)}, {sr(sP)}")
    e(f"s_lshr_b32 {sr(sP)}, {sr(sSl)}, 2")
    e(f"s_lshl_b32 {sr(sP)}, {sr(sP)}, 4")
    e(f"s_and_b32 {sr(sRow)}, {sr(sSl)}, 2")
    e(f"s_lshl_b32 {sr(sRow)}, {sr(sRow)}, 5")
    e(f"s_add_u32 {sr(sP)}, {sr(sP)}, {sr(sRow)}")
    e(f"s_and_b32 {sr(sRow)}, {sr(sSl)}, 1")
    e(f"s_lshl_b32 {sr(sRow)}, {sr(sRow)}, 3")
    e(f"s_add_u32 {sr(sP)}, {sr(sP)}, {sr(sRow)}")
    e(f"s_lshl_b32 {sr(sRow)}, {sr(sSl)}, 5")
    e(f"v_and_b32 {vr(vYo)}, 3, v0")
    e(f"v_lshlrev_b32 {vr(vYo)}, 7, {vr(vYo)}")
    e(f"v_lshrrev_b32 {vr(vMlo)}, 2, v0")
    e(f"v_add_u32 {vr(vYo)}, {vr(vYo)}, {vr(vMlo)}")
    e(f"s_cmp_lt_u32 {sr(sSl)}, 16")
    e(f"s_cselect_b32 {sr(sP)}, {sr(sP)}, {sr(sRow)}")
    e(f"s_cselect_b64 vcc, -1, 0")
    e(f"s_add_u32 {sr(sCb)}, {sr(sCb)}, {sr(sP)}")
    e(f"v_cndmask_b32 {vr(vYo)}, v0, {vr(vYo)}, vcc")
    e(f"v_add_u32 {vr(vYo)}, {sr(sCb)}, {vr(vYo)}")
    e(f"v_lshlrev_b32 {vr(vYo)}, 1, {vr(vYo)}")
    e("s_waitcnt lgkmcnt(0)")
    e("s_barrier")
    e(f"s_cmp_lg_u32 {sr(sW)}, 0")
    e("s_cbranch_scc1 L_done")
    e("v_cmp_gt_u32 vcc, 32, v0")
    e(f"s_and_saveexec_b64 {sr(sEx,2)}, vcc")
    for w in range(4):
        e(f"ds_read_b32 {vr(vRes+w)}, {vr(vT1)} offset:{128*w}")
    e("s_waitcnt lgkmcnt(0)")
    e(f"v_add_f32 {vr(vRes)}, {vr(vRes)}, {vr(vRes+1)}")
    e(f"v_add_f32 {vr(vRes+2)}, {vr(vRes+2)}, {vr(vRes+3)}")
    e(f"v_add_f32 {vr(vRes)}, {vr(vRes)}, {vr(vRes+2)}")
    e(f"v_cvt_pk_bf16_f32 {vr(vRes)}, {vr(vRes)}, {vr(vRes)}")
    e(f"buffer_store_short {vr(vRes)}, {vr(vYo)}, {sr(sOut,4)}, 0 offen")
    e("s_mov_b64 exec, -1")
    e("s_branch L_done")

    g.lab("L_A")
    prologue2(True)
    mainloop(True)
    stamp(5)
    T2(2, "A")
    stamp(6)
    e("s_branch L_cons")
    g.lab("L_done")
    if PROF:
        e("s_waitcnt vmcnt(0)")
        stamp(7)
        e("s_getreg_b32 s96, hwreg(HW_REG_XCC_ID)")
        e("s_getreg_b32 s97, hwreg(HW_REG_HW_ID)")
        e("s_waitcnt lgkmcnt(0)")
        e(f"s_lshl_b32 {sr(sT0)}, s2, 2")
        e(f"s_add_u32 {sr(sT0)}, {sr(sT0)}, {sr(sW)}")
        e(f"s_lshl_b32 {sr(sT0)}, {sr(sT0)}, 6")
        e(f"s_add_u32 {sr(sT0)}, {sr(sT0)}, 0x200000")
        e(f"v_mov_b32 v20, {sr(sT0)}")
        for i in range(8):
            e(f"v_mov_b32 v{24+i}, s{80+2*i}")
        e("v_mov_b32 v32, s96")
        e("v_mov_b32 v33, s97")
        e(f"v_cmp_eq_u32 vcc, 0, {vr(vLane)}")
        e("s_and_saveexec_b64 s[98:99], vcc")
        e(f"buffer_store_dwordx4 v[24:27], v20, {sr(sWS,4)}, 0 offen")
        e(f"buffer_store_dwordx4 v[28:31], v20, {sr(sWS,4)}, 0 offen offset:16")
        e(f"buffer_store_dwordx2 v[32:33], v20, {sr(sWS,4)}, 0 offen offset:32")
    g.lab("L_exit")
    e("s_endpgm")

    g.lab("L_sig")
    e(f"s_mov_b32 {sr(sHas)}, 1")
    e(f"s_mov_b64 exec, 1")
    e(f"v_mov_b32 {vr(vTk)}, 1")
    e(f"buffer_atomic_add {vr(vTk)}, off, {sr(sDbg,4)}, 0 sc0 sc1")
    e(f"s_mov_b64 exec, -1")
    e(f"s_setpc_b64 {sr(sRet,2)}")

    for hd, lb in ((0, "L_T1"), (1, "L_T1b")):
        g.lab(lb)
        e(f"v_add_u32 {vr(vT0)}, 0x10000, {vr(vTR)}")
        e(f"v_add_u32 {vr(vT1)}, 0x20000, {vr(vTR)}")
        for t in range(9):
            for j in range(4):
                for hf in range(2):
                    off = t*16384 + j*4096 + hf*2048
                    a = (vTR, vT0, vT1)[off >> 16]
                    ty, rg = wo_reg(hd, t*4+j)
                    e(f"ds_read_b64_tr_b16 {rr((ty, rg+hf*2),2)}, {vr(a)} offset:{off & 0xffff}")
        e("s_waitcnt lgkmcnt(0)")
        e(f"s_setpc_b64 {sr(sRet,2)}")

    hdr = HEADER
    hdr += f"; @launch grid=(256,1,1) block=(256,1,1) lds={LDS_TOTAL}\n"
    hdr += '.amdgcn_target "amdgcn-amd-amdhsa--gfx950"\n.text\n'
    hdr += f".globl {KN}\n.p2align 8\n.type {KN},@function\n"
    tail = f""".section .rodata,"a"
.p2align 6
.amdhsa_kernel {KN}
  .amdhsa_next_free_vgpr 512
  .amdhsa_next_free_sgpr 102
  .amdhsa_accum_offset 256
  .amdhsa_group_segment_fixed_size 0
  .amdhsa_kernarg_size 104
  .amdhsa_user_sgpr_count 2
  .amdhsa_user_sgpr_kernarg_segment_ptr 1
  .amdhsa_system_sgpr_workgroup_id_x 1
.end_amdhsa_kernel
"""
    return hdr + g.text() + tail

if __name__ == "__main__":
    out = sys.argv[1]
    opts = {}
    for a in sys.argv[2:]:
        k, v = a.split("=")
        opts[k] = int(v)
    open(out, "w").write(gen(opts))
```

```python
import sys, math, struct

KN = "concat_heads__sliding_block_cached__mha_block_cached__decode_kernel"

def f32bits(x):
    return struct.unpack("<I", struct.pack("<f", x))[0]

class Gen:
    def __init__(self):
        self.lines = []
        self.q = []
    def e(self, s):
        self.lines.append("    " + s)
    def lab(self, s):
        self.lines.append(s + ":")
    def vm(self, s, tag=None):
        self.e(s)
        self.q.append(tag)
    def wait_tag(self, tag):
        idx = max(i for i, t in enumerate(self.q) if t == tag)
        n = len(self.q) - 1 - idx
        assert n <= 63, n
        self.e(f"s_waitcnt vmcnt({n})")
    def text(self):
        return "\n".join(self.lines) + "\n"

def vr(a, n=1):
    return f"v{a}" if n == 1 else f"v[{a}:{a+n-1}]"
def ar(a, n=1):
    return f"a{a}" if n == 1 else f"a[{a}:{a+n-1}]"
def sr(a, n=1):
    return f"s{a}" if n == 1 else f"s[{a}:{a+n-1}]"

HEADER = open("concat_heads__sliding_block_cached__mha_block_cached__decode.s.ref").read().split("; Override launch")[0]

NROWS = 576
YROW = 2304
Q_OFF = 256
Y_OFF = Q_OFF + 8 * 32768
ML_OFF = Y_OFF + NROWS * YROW
LDS_OT = 147456
OT_STRIDE = 272
OT_BYTES = 16 * OT_STRIDE
LDS_M = LDS_OT + 2 * OT_BYTES
LDS_TK = LDS_M + 256
LDS_CNT = LDS_TK + 16
LDS_QP = LDS_TK + 64
LDS_TOTAL = LDS_QP + 2048
CSCALE = (128 ** -0.5) * math.log2(math.e)
OOB = 0x40000000

def gen(opts):
    NX = opts.get("nx", 4)
    D = 2 + NX
    NT = " nt"
    PROF = opts.get("prof", 0)
    EARLY = opts.get("early", 2)
    SLEEP = opts.get("sleep", 16)
    DSLEEP = opts.get("dsleep", 2)
    PB = PA = 2
    QPOS = opts.get("qpos", 4)
    T0N = opts.get("t0n", 2)
    T1B = opts.get("t1b", 12)
    SB = opts.get("sb", 31)
    WS_BYTES = 0x400000 if PROF else ML_OFF + NROWS * 16
    TK0 = opts.get("tk0", 60)
    FIX = opts.get("fix", 2)
    H3 = opts.get("h3", 72)
    NE = opts.get("ne", 6)
    NO = 18 - NE
    NS, NB = min(NE, NO), max(NE, NO)
    assert NE % 2 == 0 and NB <= 16
    ILV = 1
    RM = opts.get("rm", 0)
    RMA = opts.get("rma", 0)
    AM = opts.get("am", 0)
    AMA = opts.get("ama", AM)
    GR = opts.get("gr", 2)
    SA = opts.get("sa", 27)
    g = Gen()
    e = g.e
    sW = 3
    sRet = 4
    sE, sNon = 6, 7
    sDbg, sOut = 8, 12
    sWoff, sSpin = 34, 35
    sK, sV, sWQ, sX, sWO, sWS = 36, 40, 44, 48, 52, 56
    sH, sKk, sT0, sT1, sT2, sT3 = 60, 61, 62, 63, 64, 65
    sOff, sIt, sC, sSelLo, sSelHi, sLdsW = 66, 67, 68, 69, 70, 71
    sRem, sR0, sR1, sQo, sIsA, sDt, sDoff, sDlds = 72, 73, 74, 75, 76, 77, 78, 79
    sKVo, sWoO, sWoS, sPq = 96, 97, 98, 99
    sEx = 100
    sSt, sCnt, sTrig, sCl = 44, 45, 46, 47
    sDyn, sLim, sHas, sCi = 48, 49, 50, 51
    sInc, sRot, sMask = 61, 60, 100
    sL, sA = 101, 5
    sA = 99
    def phys(src):
        e(f"s_lshr_b32 {sr(sOff)}, {sr(src)}, {GR}")
        e(f"s_mul_i32 {sr(sOff)}, {sr(sOff)}, {sr(sA)}")
        e(f"s_add_u32 {sr(sOff)}, {sr(sOff)}, {sr(sRot)}")
        e(f"s_lshl_b32 {sr(sOff)}, {sr(sOff)}, {12+GR}")
        if GR:
            e(f"s_and_b32 {sr(sWoff)}, {sr(src)}, {(1<<GR)-1}")
            e(f"s_lshl_b32 {sr(sWoff)}, {sr(sWoff)}, 12")
            e(f"s_or_b32 {sr(sOff)}, {sr(sOff)}, {sr(sWoff)}")
        e(f"s_and_b32 {sr(sOff)}, {sr(sOff)}, {sr(sMask)}")
    def adv():
        e(f"s_add_u32 {sr(sL)}, {sr(sL)}, {sr(sInc)}")
        phys(sL)
    vLane, vG, vCc = 1, 2, 3
    vK, vV, vSt0, vSt1, vTR, vU0 = 4, 5, 6, 7, 8, 9
    vT0, vT1 = 10, 11
    vM, vL, vM2, vL2 = 12, 13, 14, 15
    vS, vS2 = 16, 20
    vE, vA, vMn = 24, 28, 29
    vTk, vSt1b = 30, 31
    vO, vO2 = 32, 40
    vP = 48
    vQ, vQ2 = 64, 80
    vVb = 96
    vWOj = 160
    vXa, vXb = 32, 40
    vWQ, vX = 24, 26
    vQa, vQs = 28, 29
    vQacc = 64
    vW = 164
    vQl = 216
    vTmp = 232
    def kreg(d, j): return d * 16 + j * 4
    def vreg(d, r): return (vVb + d * 16 if d < 4 else 164 + (d - 4) * 16) + r * 4
    aW = 64
    def wo_reg(hd, idx):
        if hd == 0: return ("a", aW + 4 * idx)
        return ("a", 208 + 4 * idx) if idx < 12 else ("v", 160 + 4 * (idx - 12))
    def rr(t, n): return (ar if t[0] == "a" else vr)(t[1], n)
    def stamp(i):
        if PROF == 1 or (PROF == 6 and i in (0, 7)) or (PROF == 5 and i != 4) or (PROF == 2 and i in (0, 1, 2, 7)) or (PROF == 3 and i in (0, 1, 2, 5, 6, 7)):
            e(f"s_memrealtime s[{80+2*i}:{81+2*i}]")
    def stamp2(i):
        if PROF == 2:
            e(f"s_memrealtime s[{80+2*i}:{81+2*i}]")
    def srd_tail(s, size):
        e(f"s_mov_b32 {sr(s+2)}, {size}")
        e(f"s_mov_b32 {sr(s+3)}, 0x00020000")
    def add64(s, off):
        e(f"s_add_u32 {sr(s)}, {sr(s)}, {off}")
        e(f"s_addc_u32 {sr(s+1)}, {sr(s+1)}, 0")
    def issue_k(d, tag=None):
        for j in range(4):
            g.vm(f"buffer_load_dwordx4 {ar(kreg(d,j),4)}, {vr(vK)}, {sr(sK,4)}, {sr(sOff)} offen offset:{64*j}{NT}", tag)
    def issue_v(d, tag=None):
        for r in range(4):
            g.vm(f"buffer_load_dwordx4 {vr(vreg(d,r),4)}, {vr(vV)}, {sr(sV,4)}, {sr(sOff)} offen offset:{256*r}{NT}", tag)
    def issue_tile(d):
        issue_k(d, ("k", d)); issue_v(d, ("v", d))
        adv()
        if PROF == 6 and d < 6:
            e(f"s_memrealtime s[{82+2*d}:{83+2*d}]")

    g.lab(KN)
    e("s_cmp_ge_u32 s2, 256")
    e("s_cbranch_scc1 L_exit")
    stamp(0)
    e("s_load_dwordx16 s[8:23], s[0:1], 0")
    e("s_load_dwordx8 s[24:31], s[0:1], 64")
    e("s_load_dwordx2 s[32:33], s[0:1], 96")
    e(f"v_lshrrev_b32 {vr(vT0)}, 6, v0")
    e(f"v_and_b32 {vr(vLane)}, 63, v0")
    e(f"v_readfirstlane_b32 {sr(sW)}, {vr(vT0)}")
    e(f"v_lshrrev_b32 {vr(vG)}, 4, {vr(vLane)}")
    e(f"v_and_b32 {vr(vCc)}, 15, {vr(vLane)}")
    e(f"s_bitcmp1_b32 s2, 0")
    e(f"s_cselect_b32 {sr(sT0)}, {32*NE}, 0")
    e(f"s_cselect_b32 {sr(sT3)}, {NO}, {NE}")
    e(f"s_bfe_u32 {sr(sT1)}, s2, 0x60001")
    e(f"s_lshl_b32 {sr(sT2)}, {sr(sT1)}, 7")
    e(f"v_lshrrev_b32 {vr(vX)}, 3, v0")
    e(f"v_mul_lo_u32 {vr(vX)}, {vr(vX)}, {sr(sT3)}")
    e(f"v_lshrrev_b32 {vr(vT0)}, 3, {vr(vLane)}")
    e(f"v_and_b32 {vr(vT1)}, 7, {vr(vLane)}")
    e(f"v_lshl_add_u32 {vr(vT1)}, {vr(vT1)}, 4, {sr(sT2)}")
    e(f"v_add_u32 {vr(vX)}, {sr(sT0)}, {vr(vX)}")
    e(f"v_lshl_add_u32 {vr(vWQ)}, {vr(vX)}, 13, {vr(vT1)}")
    e(f"v_lshlrev_b32 {vr(vX)}, 1, {vr(vX)}")
    e(f"s_lshr_b32 {sr(sPq)}, s2, 7")
    e(f"s_lshl_b32 {sr(sT0)}, {sr(sPq)}, 2")
    e(f"s_and_b32 {sr(sT2)}, {sr(sW)}, 2")
    e(f"s_add_u32 {sr(sT0)}, {sr(sT0)}, {sr(sT2)}")
    e(f"s_and_b32 {sr(sT2)}, s2, 1")
    e(f"s_add_u32 {sr(sT0)}, {sr(sT0)}, {sr(sT2)}")
    e(f"s_lshl_b32 {sr(sT0)}, {sr(sT0)}, 15")
    e(f"s_lshl_b32 {sr(sT1)}, {sr(sT1)}, 9")
    e(f"s_add_u32 {sr(sT0)}, {sr(sT0)}, {sr(sT1)}")
    e(f"s_and_b32 {sr(sT2)}, {sr(sW)}, 1")
    e(f"s_lshl_b32 {sr(sT2)}, {sr(sT2)}, 8")
    e(f"s_add_u32 {sr(sT0)}, {sr(sT0)}, {sr(sT2)}")
    e(f"s_add_u32 {sr(sT0)}, {sr(sT0)}, {Q_OFF}")
    e(f"v_and_b32 {vr(vT1)}, 7, {vr(vLane)}")
    e(f"v_lshl_add_u32 {vr(vQs)}, {vr(vT1)}, 5, {sr(sT0)}")
    e(f"v_lshl_add_u32 {vr(vQs)}, {vr(vT0)}, 4, {vr(vQs)}")
    e(f"v_cmp_gt_u32 vcc, 16, {vr(vLane)}")
    e(f"v_mov_b32 {vr(vT1)}, {OOB}")
    e(f"v_lshlrev_b32 {vr(vK)}, 8, {vr(vCc)}")
    e(f"v_cndmask_b32 {vr(vQs)}, {vr(vT1)}, {vr(vQs)}, vcc")
    e(f"v_lshl_add_u32 {vr(vK)}, {vr(vG)}, 4, {vr(vK)}")
    e(f"v_lshlrev_b32 {vr(vV)}, 10, {vr(vG)}")
    e(f"v_lshl_add_u32 {vr(vV)}, {vr(vCc)}, 4, {vr(vV)}")
    e(f"s_and_b32 {sr(sT0)}, s2, 7")
    e(f"s_lshr_b32 {sr(sT1)}, s2, 3")
    e(f"s_cmp_ge_u32 {sr(sT1)}, 28")
    e("s_cbranch_scc1 L_setA")
    e(f"s_mov_b32 {sr(sIsA)}, 0")
    if opts.get("xmap", 0):
        e(f"s_mul_i32 {sr(sH)}, s2, 9363")
        e(f"s_lshr_b32 {sr(sH)}, {sr(sH)}, 16")
        e(f"s_mul_i32 {sr(sT3)}, {sr(sH)}, 7")
        e(f"s_sub_u32 {sr(sKk)}, s2, {sr(sT3)}")
    else:
        e(f"s_mul_i32 {sr(sT2)}, {sr(sT1)}, 37")
        e(f"s_lshr_b32 {sr(sT2)}, {sr(sT2)}, 8")
        e(f"s_mul_i32 {sr(sT3)}, {sr(sT2)}, 7")
        e(f"s_sub_u32 {sr(sKk)}, {sr(sT1)}, {sr(sT3)}")
        e(f"s_lshl_b32 {sr(sT0)}, {sr(sT0)}, 2")
        e(f"s_add_u32 {sr(sH)}, {sr(sT0)}, {sr(sT2)}")
    e(f"s_lshl_b32 {sr(sT0)}, {sr(sKk)}, 2")
    e(f"s_add_u32 {sr(sT0)}, {sr(sT0)}, {sr(sW)}")
    e(f"s_cmp_ge_u32 {sr(sT0)}, 14")
    e(f"s_cselect_b32 {sr(sT1)}, 14, 0")
    e(f"s_cselect_b32 {sr(sT2)}, 32, 0")
    e(f"s_cselect_b32 {sr(sQo)}, {Q_OFF + 6*32768}, 0")
    e(f"s_cselect_b32 {sr(sT3)}, 0, {Q_OFF + 4*32768}")
    e(f"s_add_u32 {sr(sQo)}, {sr(sQo)}, {sr(sT3)}")
    e(f"s_lshl_b32 {sr(sT3)}, {sr(sH)}, 10")
    e(f"s_add_u32 {sr(sQo)}, {sr(sQo)}, {sr(sT3)}")
    e(f"s_sub_u32 {sr(sT0)}, {sr(sT0)}, {sr(sT1)}")
    if True:
        e(f"s_cmp_eq_u32 {sr(sKk)}, 3")
        e(f"s_cselect_b32 {sr(sT1)}, 1, 3")
        e(f"s_cselect_b32 {sr(sT3)}, 2, 0")
        e(f"s_and_b32 {sr(sT3)}, {sr(sT3)}, {sr(sW)}")
        e(f"s_lshl_b32 {sr(sDlds)}, {sr(sT3)}, 1")
        e(f"s_and_b32 {sr(sT3)}, {sr(sT1)}, {sr(sW)}")
        e(f"s_sub_u32 {sr(sT0)}, {sr(sT0)}, {sr(sT3)}")
        e(f"s_add_u32 {sr(sT1)}, {sr(sT1)}, 1")
        e(f"s_add_u32 {sr(sDoff)}, {sr(sT0)}, {sr(sT1)}")
        FQ = -(-(512 - H3) * 1024 // 12)
        OFFQ = 512 * 1024 - 14 * FQ
        assert OFFQ <= 0
        e(f"s_cmp_lg_u32 {sr(sT2)}, 0")
        e(f"s_cselect_b32 {sr(sDt)}, {OFFQ}, 0")
        for r in (sDoff, sT0):
            e(f"s_mul_i32 {sr(r)}, {sr(r)}, {FQ}")
            e(f"s_add_i32 {sr(r)}, {sr(r)}, {sr(sDt)}")
            e(f"s_max_i32 {sr(r)}, {sr(r)}, 0")
            e(f"s_lshr_b32 {sr(r)}, {sr(r)}, 10")
            e(f"s_min_u32 {sr(r)}, {sr(r)}, 512")
        stf = lambda u, b: min(512, max(0, u * FQ + (OFFQ if b else 0)) >> 10)
        sys.stderr.write(f"ranges b0 {[stf(u,0) for u in (0,4,8,12,14)]} b1 {[stf(u,1) for u in (0,2,6,10,14)]}\n")
        if not ILV:
            e(f"s_mul_i32 {sr(sT3)}, {sr(sT3)}, {SB}")
        e(f"s_add_u32 {sr(sT3)}, {sr(sT3)}, {sr(sT0)}")
        e(f"s_mov_b32 {sr(sL)}, {sr(sT3)}")
        e(f"s_mov_b32 {sr(sMask)}, {sr(sT1)}")
        e(f"s_mul_i32 {sr(sT1)}, {sr(sT1)}, {SB}")
        e(f"s_add_u32 {sr(sIt)}, {sr(sT1)}, {sr(sT0)}")
    e(f"s_mov_b32 {sr(sRem)}, 512")
    e(f"s_add_u32 {sr(sT2)}, {sr(sT2)}, {sr(sH)}")
    e(f"s_lshl_b32 {sr(sKVo)}, {sr(sT2)}, 21")
    e(f"s_mul_i32 {sr(sT0)}, {sr(sH)}, 7")
    e(f"s_lshl_b32 {sr(sT1)}, {sr(sKk)}, 1")
    e(f"s_add_u32 {sr(sR0)}, {sr(sT0)}, {sr(sT1)}")
    e(f"s_add_u32 {sr(sR1)}, {sr(sR0)}, 1")
    e(f"s_cmp_ge_u32 {sr(sT1)}, 7")
    e(f"s_cselect_b32 {sr(sT3)}, 217, 0")
    e(f"s_add_u32 {sr(sR0)}, {sr(sR0)}, {sr(sT3)}")
    e(f"s_cmp_ge_u32 {sr(sT1)}, 6")
    e(f"s_cselect_b32 {sr(sT3)}, 217, 0")
    e(f"s_add_u32 {sr(sR1)}, {sr(sR1)}, {sr(sT3)}")
    e(f"s_mul_i32 {sr(sWoO)}, {sr(sH)}, 147456")
    e(f"s_mov_b32 {sr(sWoS)}, 147456")
    e(f"s_mov_b32 {sr(sInc)}, {sr(sMask) if ILV else 1}")
    e(f"s_mul_i32 {sr(sRot)}, {sr(sT2)}, {RM}")
    e(f"s_mul_i32 {sr(sOff)}, {sr(sT2)}, {2*AM}")
    e("s_branch L_common")
    g.lab("L_setA")
    e(f"s_mov_b32 {sr(sIsA)}, 1")
    e(f"s_sub_u32 {sr(sT1)}, {sr(sT1)}, 28")
    e(f"s_lshl_b32 {sr(sT0)}, {sr(sT0)}, 1")
    e(f"s_lshr_b32 {sr(sT2)}, {sr(sT1)}, 1")
    e(f"s_add_u32 {sr(sH)}, {sr(sT0)}, {sr(sT2)}")
    e(f"s_and_b32 {sr(sT1)}, {sr(sT1)}, 1")
    e(f"s_lshl_b32 {sr(sQo)}, {sr(sT1)}, 16")
    e(f"s_lshl_b32 {sr(sT3)}, {sr(sH)}, 11")
    e(f"s_add_u32 {sr(sQo)}, {sr(sQo)}, {sr(sT3)}")
    e(f"s_add_u32 {sr(sQo)}, {sr(sQo)}, {Q_OFF}")
    e(f"s_lshl_b32 {sr(sT2)}, {sr(sT1)}, 4")
    e(f"s_add_u32 {sr(sT2)}, {sr(sT2)}, {sr(sH)}")
    e(f"s_lshl_b32 {sr(sR0)}, {sr(sT2)}, 2")
    e(f"s_add_u32 {sr(sR0)}, {sr(sR0)}, 448")
    e(f"s_add_u32 {sr(sR1)}, {sr(sR0)}, 1")
    e(f"s_mul_i32 {sr(sT3)}, {sr(sT2)}, {RMA}")
    e(f"s_mul_i32 {sr(sOff)}, {sr(sT2)}, {2*AMA}")
    e(f"s_lshl_b32 {sr(sT2)}, {sr(sT2)}, 21")
    e(f"s_mul_i32 {sr(sL)}, {sr(sW)}, {1 if ILV else SA}")
    e(f"s_mov_b32 {sr(sDlds)}, 0")
    e(f"s_mov_b32 {sr(sDoff)}, 128")
    e(f"s_mov_b32 {sr(sIt)}, {4*SA}")
    e(f"s_add_u32 {sr(sKVo)}, {sr(sT2)}, 0x180000")
    e(f"s_mov_b32 {sr(sRem)}, 128")
    e(f"s_mul_i32 {sr(sWoO)}, {sr(sH)}, 294912")
    e(f"s_mov_b32 {sr(sWoS)}, 294912")
    e(f"s_mov_b32 {sr(sInc)}, {4 if ILV else 1}")
    e(f"s_mov_b32 {sr(sRot)}, {sr(sT3)}")
    g.lab("L_common")
    srd_tail(sWQ, 576 * 8192)
    srd_tail(sX, 2304)
    e(f"s_lshl_b32 {sr(sK+2)}, {sr(sRem)}, 12"); e(f"s_mov_b32 {sr(sK+3)}, 0x00020000")
    e(f"s_lshl_b32 {sr(sV+2)}, {sr(sRem)}, 12"); e(f"s_mov_b32 {sr(sV+3)}, 0x00020000")
    srd_tail(sWS, WS_BYTES)
    e(f"s_sub_u32 {sr(sMask)}, {sr(sK+2)}, 1")
    e(f"s_cmp_eq_u32 {sr(sPq)}, 0")
    e("s_waitcnt lgkmcnt(0)")
    stamp2(3)
    e(f"s_cselect_b64 {sr(sWQ,2)}, s[14:15], s[24:25]")
    e(f"s_cselect_b64 {sr(sX,2)}, s[8:9], s[18:19]")
    e(f"s_load_dword {sr(sE)}, s[32:33], 0")
    g.q = []
    def wq_load(n):
        so = "0" if n == 0 else sr(sWoff)
        if n: e(f"s_mov_b32 {sr(sWoff)}, {n*8192}")
        g.vm(f"buffer_load_dwordx4 {vr(vW+4*n,4)}, {vr(vWQ)}, {sr(sWQ,4)}, {so} offen", ("wq", n))
    bigbit = 1 if NO > NE else 0
    e(f"s_bitcmp{bigbit}_b32 s2, 0")
    e("s_cbranch_scc0 L_wq1")
    for n in range(NS, NB): wq_load(n)
    g.lab("L_wq1")
    for n in range(NS): wq_load(n)
    for xr, off in ((vXa, 0), (vXb, 1152)):
        g.vm(f"buffer_load_dwordx4 {vr(xr,4)}, {vr(vX)}, {sr(sX,4)}, 0 offen offset:{off}", "x")
        g.vm(f"buffer_load_dwordx4 {vr(xr+4,4)}, {vr(vX)}, {sr(sX,4)}, 0 offen offset:{off+16}", "x")
    e(f"s_mov_b32 {sr(sWS)}, s32"); e(f"s_mov_b32 {sr(sWS+1)}, s33")
    e(f"s_cmp_eq_u32 {sr(sIsA)}, 1")
    e(f"s_cselect_b64 {sr(sK,2)}, s[10:11], s[20:21]")
    e(f"s_cselect_b64 {sr(sV,2)}, s[12:13], s[22:23]")
    e(f"s_cselect_b64 {sr(sWO,2)}, s[16:17], s[26:27]")
    add64(sK, sr(sKVo)); add64(sV, sr(sKVo))
    e(f"s_add_u32 {sr(sA)}, {sr(sOff)}, 1")
    phys(sL)
    for d in range(T0N): issue_tile(d)
    stamp2(4)
    add64(sWO, sr(sWoO))
    e(f"s_mov_b32 {sr(sWO+2)}, {sr(sWoS)}"); e(f"s_mov_b32 {sr(sWO+3)}, 0x00020000")
    e(f"s_mov_b32 {sr(sC)}, 0x{f32bits(CSCALE):08x}")
    e(f"s_mov_b32 {sr(sSelLo)}, 0x05040100")
    e(f"s_mov_b32 {sr(sSelHi)}, 0x07060302")
    e(f"s_lshl_b32 {sr(sLdsW)}, {sr(sW)}, 10")
    e(f"v_bfe_u32 {vr(vT0)}, {vr(vLane)}, 3, 2")
    e(f"v_xor_b32 {vr(vT0)}, {sr(sW)}, {vr(vT0)}")
    e(f"v_lshlrev_b32 {vr(vT0)}, 5, {vr(vT0)}")
    e(f"v_lshrrev_b32 {vr(vT1)}, 2, {vr(vLane)}")
    e(f"v_lshl_add_u32 {vr(vT0)}, {vr(vT1)}, 7, {vr(vT0)}")
    e(f"v_and_b32 {vr(vT1)}, 3, {vr(vLane)}")
    e(f"v_lshl_add_u32 {vr(vTR)}, {vr(vT1)}, 3, {vr(vT0)}")
    e(f"s_mov_b32 {sr(sOut)}, s28"); e(f"s_mov_b32 {sr(sOut+1)}, s29"); srd_tail(sOut, 4608)
    e(f"s_mov_b32 {sr(sDbg)}, s30"); e(f"s_mov_b32 {sr(sDbg+1)}, s31"); srd_tail(sDbg, 256)
    for i in range(16):
        e(f"v_mov_b32 {vr(vQacc+i)}, 0")
    e(f"v_and_b32 {vr(vT0)}, 3, {vr(vCc)}")
    e(f"v_lshlrev_b32 {vr(vT0)}, 8, {vr(vT0)}")
    e(f"v_lshl_add_u32 {vr(vT0)}, {vr(vG)}, 6, {vr(vT0)}")
    e(f"v_bfe_u32 {vr(vT1)}, {vr(vCc)}, 2, 1")
    e(f"v_lshl_add_u32 {vr(vT0)}, {vr(vT1)}, 5, {vr(vT0)}")
    e(f"v_lshrrev_b32 {vr(vT1)}, 3, {vr(vCc)}")
    e(f"v_lshl_add_u32 {vr(vT0)}, {vr(vT1)}, 15, {vr(vT0)}")
    e(f"v_add_u32 {vr(vQa)}, {sr(sQo)}, {vr(vT0)}")
    e(f"v_bfe_u32 {vr(vT0)}, {vr(vLane)}, 3, 2")
    e(f"v_lshrrev_b32 {vr(vT1)}, 5, {vr(vLane)}")
    e(f"v_lshl_add_u32 {vr(vT0)}, {vr(vT1)}, 3, {vr(vT0)}")
    e(f"s_and_b32 {sr(sT0)}, {sr(sW)}, 1")
    e(f"s_lshl_b32 {sr(sT0)}, {sr(sT0)}, 4")
    e(f"s_lshr_b32 {sr(sT1)}, {sr(sW)}, 1")
    e(f"s_lshl_b32 {sr(sT1)}, {sr(sT1)}, 2")
    e(f"s_add_u32 {sr(sT0)}, {sr(sT0)}, {sr(sT1)}")
    e(f"v_add_u32 {vr(vT0)}, {sr(sT0)}, {vr(vT0)}")
    e(f"v_mul_u32_u24 {vr(vWOj)}, 1152, {vr(vT0)}")
    e(f"v_lshlrev_b32 {vr(vT1)}, 1, {vr(vG)}")
    e(f"v_and_b32 {vr(vT0)}, 7, {vr(vLane)}")
    e(f"v_xor_b32 {vr(vT1)}, {vr(vT1)}, {vr(vT0)}")
    e(f"v_lshl_add_u32 {vr(vWOj)}, {vr(vT1)}, 4, {vr(vWOj)}")
    for j in range(1, 4):
        e(f"v_add_u32 {vr(vWOj+j)}, {36864*j}, {vr(vWOj)}")
    vLw, vLr = vTmp + 14, vTmp + 15
    e(f"s_lshl_b32 {sr(sT0)}, {sr(sW)}, 9")
    e(f"s_add_u32 {sr(sT0)}, {sr(sT0)}, {LDS_QP}")
    e(f"v_and_b32 {vr(vT0)}, 7, {vr(vLane)}")
    e(f"v_lshl_add_u32 {vr(vLw)}, {vr(vT0)}, 5, {sr(sT0)}")
    e(f"v_and_b32 {vr(vT1)}, 1, {vr(vG)}")
    e(f"v_lshl_add_u32 {vr(vLw)}, {vr(vT1)}, 4, {vr(vLw)}")
    e(f"v_lshrrev_b32 {vr(vT1)}, 1, {vr(vG)}")
    e(f"v_lshl_add_u32 {vr(vLw)}, {vr(vT1)}, 8, {vr(vLw)}")
    e(f"s_lshl_b32 {sr(sT0)}, {sr(sW)}, 7")
    e(f"s_add_u32 {sr(sT0)}, {sr(sT0)}, {LDS_QP}")
    e(f"v_lshl_add_u32 {vr(vLr)}, {vr(vT0)}, 4, {sr(sT0)}")
    e(f"v_bfe_u32 {vr(vT0)}, {vr(vLane)}, 3, 1")
    e(f"v_cmp_eq_u32 vcc, 1, {vr(vT0)}")
    e("s_waitcnt lgkmcnt(0)")
    e(f"s_add_u32 {sr(sE)}, {sr(sE)}, 1")
    e(f"s_mul_i32 {sr(sNon)}, {sr(sE)}, 0x9E3779B1")
    e(f"s_or_b32 {sr(sNon)}, {sr(sNon)}, 1")
    e(f"v_mov_b32 {vr(vT1)}, {sr(sNon)}")
    vXm = vTmp + 13
    e(f"v_cndmask_b32 {vr(vXm)}, 0, {vr(vT1)}, vcc")
    vZ = vTmp + 8
    for i in range(4):
        e(f"v_mov_b32 {vr(vZ+i)}, 0")
    e(f"v_mov_b32 {vr(vT0)}, {LDS_CNT}")
    stamp2(5)
    g.wait_tag("x")
    stamp2(6)
    def wq_pair(p):
        a, b = vW + 8 * p, vW + 8 * p + 4
        for d in range(4):
            t0, t1 = vTmp + 2 * (d & 1), vTmp + 2 * (d & 1) + 1
            e(f"v_perm_b32 {vr(t0)}, {vr(b+d)}, {vr(a+d)}, {sr(sSelLo)}")
            e(f"v_perm_b32 {vr(t1)}, {vr(b+d)}, {vr(a+d)}, {sr(sSelHi)}")
            e(f"v_dot2c_f32_bf16 {vr(vQacc+2*d)}, {vr(t0)}, {vr(vXa+p)}")
            e(f"v_dot2c_f32_bf16 {vr(vQacc+2*d+1)}, {vr(t1)}, {vr(vXa+p)}")
            e(f"v_dot2c_f32_bf16 {vr(vQacc+8+2*d)}, {vr(t0)}, {vr(vXb+p)}")
            e(f"v_dot2c_f32_bf16 {vr(vQacc+8+2*d+1)}, {vr(t1)}, {vr(vXb+p)}")
    e(f"s_bitcmp{bigbit}_b32 s2, 0")
    e("s_cbranch_scc0 L_wq2")
    for p in range(NS // 2, NB // 2): wq_pair(p)
    g.lab("L_wq2")
    MID = opts.get("mid", 0)
    if MID == 1: issue_tile(T0N)
    for p in range(NS // 2):
        wq_pair(p)
        if MID == 2 and p == 0: issue_k(T0N, ("k", T0N))
        if MID == 2 and p == 1: issue_v(T0N, ("v", T0N)); adv()
    if MID == 3: issue_tile(T0N)
    e("s_nop 2")
    for i in range(8):
        e(f"v_permlane32_swap_b32 {vr(vQacc+i)}, {vr(vQacc+i+8)}")
    e("s_nop 1")
    for i in range(8):
        e(f"v_add_f32 {vr(vQacc+i)}, {vr(vQacc+i)}, {vr(vQacc+i+8)}")
    e("s_nop 1")
    for i in range(4):
        e(f"v_permlane16_swap_b32 {vr(vQacc+i)}, {vr(vQacc+i+4)}")
    e("s_nop 1")
    for i in range(4):
        e(f"v_add_f32 {vr(vQacc+i)}, {vr(vQacc+i)}, {vr(vQacc+i+4)}")
    e("s_nop 1")
    for i in range(4):
        e(f"v_add_f32_dpp {vr(vQacc+4+i)}, {vr(vQacc+i)}, {vr(vQacc+i)} row_ror:8 row_mask:0xf bank_mask:0xf")
    e(f"ds_write_b128 {vr(vLw)}, {vr(vQacc+4,4)}")
    e(f"ds_write_b128 {vr(vT0)}, {vr(vZ,4)}")
    e(f"ds_write_b128 {vr(vT0)}, {vr(vZ,4)} offset:16")
    e("s_waitcnt lgkmcnt(0)")
    e("s_barrier")
    for w in range(4):
        e(f"ds_read_b128 {vr(vQacc+4*w,4)}, {vr(vLr)} offset:{512*w}")
    e("s_waitcnt lgkmcnt(2)")
    for i in range(4):
        e(f"v_add_f32 {vr(vQacc+i)}, {vr(vQacc+i)}, {vr(vQacc+4+i)}")
    e("s_waitcnt lgkmcnt(0)")
    for i in range(4):
        e(f"v_add_f32 {vr(vQacc+8+i)}, {vr(vQacc+8+i)}, {vr(vQacc+12+i)}")
    for i in range(4):
        e(f"v_add_f32 {vr(vQacc+i)}, {vr(vQacc+i)}, {vr(vQacc+8+i)}")
    for i in range(4):
        e(f"v_xor_b32 {vr(vQacc+i)}, {vr(vXm)}, {vr(vQacc+i)}")
    g.vm(f"buffer_store_dwordx4 {vr(vQacc,4)}, {vr(vQs)}, {sr(sWS,4)}, 0 offen sc1", "qs")
    stamp(1)
    for d in range(T0N + (1 if MID else 0), QPOS): issue_tile(d)
    e(f"s_cmp_eq_u32 {sr(sIsA)}, 1")
    e("s_cbranch_scc1 L_A")
    q_common = list(g.q)

    def store_offsets():
        vU1 = vT1
        e(f"s_mul_i32 {sr(sT0)}, {sr(sR0)}, {YROW}")
        e(f"s_mul_i32 {sr(sT1)}, {sr(sR1)}, {YROW}")
        e(f"v_mov_b32 {vr(vSt0)}, {sr(sT0)}")
        e(f"v_mov_b32 {vr(vSt1)}, {sr(sT1)}")
        e(f"v_cmp_lt_u32 vcc, 31, {vr(vLane)}")
        e(f"v_and_b32 {vr(vU0)}, 31, {vr(vLane)}")
        e(f"s_lshl_b32 {sr(sT2)}, {sr(sW)}, 6")
        e(f"v_cndmask_b32 {vr(vSt0)}, {vr(vSt0)}, {vr(vSt1)}, vcc")
        e(f"s_add_u32 {sr(sT2)}, {sr(sT2)}, {2048 + Y_OFF}")
        e(f"v_lshl_add_u32 {vr(vSt1)}, {vr(vCc)}, 2, {vr(vSt0)}")
        e(f"v_add_u32 {vr(vSt1)}, {sr(sT2)}, {vr(vSt1)}")
        e(f"s_lshl_b32 {sr(sT2)}, {sr(sW)}, 9")
        e(f"s_add_u32 {sr(sT2)}, {sr(sT2)}, {Y_OFF}")
        e(f"v_lshl_add_u32 {vr(vSt0)}, {vr(vU0)}, 4, {vr(vSt0)}")
        e(f"v_add_u32 {vr(vSt0)}, {sr(sT2)}, {vr(vSt0)}")
        e(f"s_lshl_b32 {sr(sT0)}, {sr(sR0)}, 4")
        e(f"s_lshl_b32 {sr(sT1)}, {sr(sR1)}, 4")
        e(f"s_add_u32 {sr(sT0)}, {sr(sT0)}, {ML_OFF}")
        e(f"s_add_u32 {sr(sT1)}, {sr(sT1)}, {ML_OFF}")
        e(f"s_cmp_eq_u32 {sr(sW)}, 0")
        e(f"s_cselect_b32 {sr(sT0)}, {sr(sT0)}, {OOB}")
        e(f"s_cselect_b32 {sr(sT1)}, {sr(sT1)}, {OOB}")
        e(f"v_mov_b32 {vr(vT0)}, {sr(sT0)}")
        e(f"v_mov_b32 {vr(vU1)}, {sr(sT1)}")
        e(f"v_cndmask_b32 {vr(vT0)}, {vr(vT0)}, {vr(vU1)}, vcc")
        e(f"v_and_b32 {vr(vU1)}, 19, {vr(vLane)}")
        e(f"v_cmp_eq_u32 vcc, 0, {vr(vU1)}")
        e(f"v_mov_b32 {vr(vU1)}, {OOB}")
        e("s_nop 0")
        e(f"v_cndmask_b32 {vr(vSt1)}, {vr(vU1)}, {vr(vSt1)}, vcc")
        e(f"v_cmp_eq_u32 vcc, 16, {vr(vU0)}")
        e("s_nop 1")
        e(f"v_cndmask_b32 {vr(vSt1)}, {vr(vSt1)}, {vr(vT0)}, vcc")
    def clear_rows():
        g.vm(f"buffer_store_dwordx4 {vr(vTmp,4)}, {vr(vSt0)}, {sr(sWS,4)}, 0 offen sc1", "clr")
        g.vm(f"buffer_store_dwordx4 {vr(vTmp,4)}, {vr(vSt1)}, {sr(sWS,4)}, 0 offen sc1", "clr")

    def prologue2(isA):
        nm = "A" if isA else "B"
        nh = 2 if isA else 1
        g.q = list(q_common)
        QS = [vQl, 200, 80]
        def qloads(tag, R=vQl):
            for i in range(2 * nh):
                g.vm(f"buffer_load_dwordx4 {vr(R+4*i,4)}, {vr(vQa)}, {sr(sWS,4)}, 0 offen offset:{(i>>1)*1024+(i&1)*16} sc1", tag)
        def qcheck(R=vQl):
            for hd in range(nh):
                for i in range(4):
                    e(f"v_bitop3_b32 {vr(vTmp+4+4*hd+i)}, {vr(R+8*hd+i)}, {vr(R+8*hd+4+i)}, {sr(sNon)} bitop3:0x96")
            e(f"v_or3_b32 {vr(vT0)}, {vr(vTmp+4)}, {vr(vTmp+5)}, {vr(vTmp+6)}")
            if isA:
                e(f"v_or3_b32 {vr(vT0)}, {vr(vT0)}, {vr(vTmp+7)}, {vr(vTmp+8)}")
                e(f"v_or3_b32 {vr(vT0)}, {vr(vT0)}, {vr(vTmp+9)}, {vr(vTmp+10)}")
                e(f"v_or_b32 {vr(vT0)}, {vr(vT0)}, {vr(vTmp+11)}")
            else:
                e(f"v_or_b32 {vr(vT0)}, {vr(vT0)}, {vr(vTmp+7)}")
            e(f"v_cmp_ne_u32 vcc, 0, {vr(vT0)}")
        NP = min(opts.get("np", 1), D - QPOS + 1, 2 if isA else 3)
        assert NX <= 4 or NP < 2
        QB = opts.get("qb", 0)
        qloads(("ql", 0))
        def mid_tiles(hi):
            for d in range(QPOS, hi):
                issue_tile(d)
                k = d - QPOS + 1
                if k < NP: qloads(("ql", k), QS[k])
        if QB: NP = min(NP, QB - QPOS + 1)
        else: mid_tiles(D)
        for i in range(4):
            e(f"v_mov_b32 {vr(vTmp+i)}, -1")
        if isA:
            e(f"s_add_u32 {sr(sR0)}, {sr(sR0)}, 2"); e(f"s_add_u32 {sr(sR1)}, {sr(sR1)}, 2")
            store_offsets(); clear_rows()
            e(f"v_mov_b32 {vr(vSt1b)}, {vr(vSt1)}")
            e(f"s_sub_u32 {sr(sR0)}, {sr(sR0)}, 2"); e(f"s_sub_u32 {sr(sR1)}, {sr(sR1)}, 2")
        store_offsets(); clear_rows()
        for i in range(8 * nh):
            e(f"v_mov_b32 {vr(vO+i)}, 0")
        e(f"v_mov_b32 {vr(vM)}, 0xff800000")
        e(f"v_mov_b32 {vr(vL)}, 0")
        if isA:
            e(f"v_mov_b32 {vr(vM2)}, 0xff800000")
            e(f"v_mov_b32 {vr(vL2)}, 0")
        if PROF == 3:
            e(f"v_mov_b32 {vr(vTk)}, 0")
        e(f"s_mov_b32 {sr(sDyn)}, {sr(sIt)}")
        e(f"s_mov_b32 {sr(sLim)}, {sr(sDoff)}")
        e(f"s_add_u32 {sr(sCnt)}, {sr(sDlds)}, {LDS_CNT + 12}")
        e(f"s_mul_i32 {sr(sTrig)}, {sr(sInc)}, {EARLY}")
        e(f"s_sub_u32 {sr(sTrig)}, {sr(sLim)}, {sr(sTrig)}")
        e(f"s_cmp_eq_u32 {sr(sDlds)}, 0")
        e(f"s_cselect_b32 {sr(sTrig)}, {sr(sTrig)}, -1")
        e(f"s_mov_b32 {sr(sHas)}, 0")
        if FIX:
            if FIX == 1:
                e(f"s_lshr_b32 {sr(sCi)}, s2, 1")
                e(f"s_bitcmp1_b32 s2, 0")
                e(f"s_cselect_b32 {sr(sCi)}, {sr(sCi)}, 1000")
            elif FIX == 2:
                e(f"s_mov_b32 {sr(sCi)}, s2")
            elif FIX == 3:
                e(f"s_sub_u32 {sr(sCi)}, 255, s2")
                e(f"s_lshr_b32 {sr(sCi)}, {sr(sCi)}, 1")
                e(f"s_bitcmp1_b32 s2, 0")
                e(f"s_cselect_b32 {sr(sCi)}, {sr(sCi)}, 1000")
            elif FIX == 4:
                e(f"s_lshr_b32 {sr(sCi)}, s2, 3")
                e(f"s_and_b32 {sr(sT0)}, s2, 7")
                e(f"s_cmp_eq_u32 {sr(sT0)}, 1")
                e(f"s_cselect_b32 {sr(sT1)}, 0, 1000")
                e(f"s_cmp_eq_u32 {sr(sT0)}, 3")
                e(f"s_cselect_b32 {sr(sT1)}, 32, {sr(sT1)}")
                e(f"s_cmp_eq_u32 {sr(sT0)}, 7")
                e(f"s_cselect_b32 {sr(sT1)}, 64, {sr(sT1)}")
                e(f"s_add_u32 {sr(sCi)}, {sr(sCi)}, {sr(sT1)}")
            e(f"s_cmp_lt_u32 {sr(sCi)}, 72")
            e(f"s_cselect_b32 {sr(sTrig)}, {sr(sTrig)}, -1")
        e(f"s_mov_b32 {sr(sIt)}, 0")
        e(f"s_mov_b32 {sr(sSt)}, {(SA if isA else SB) - D}")
        e(f"s_mov_b32 {sr(sDt)}, 0")
        e(f"s_mov_b32 {sr(sDoff)}, 0")
        e(f"s_mov_b32 {sr(sDlds)}, {sr(sLdsW)}")
        e(f"s_mov_b32 {sr(sRem)}, {62 if PROF == 3 else 900}")
        e(f"s_mov_b32 {sr(sSpin)}, 0x40000")
        if QB: mid_tiles(QB)
        g.wait_tag(("ql", 0))
        qcheck()
        e(f"s_cbranch_vccz L_qok{nm}")
        for k in range(1, NP):
            e(f"s_sub_u32 {sr(sSpin)}, {sr(sSpin)}, 1")
            g.wait_tag(("ql", k))
            qcheck(QS[k])
            for hd in range(nh):
                for i in range(4):
                    e(f"v_mov_b32 {vr(vQl+8*hd+i)}, {vr(QS[k]+8*hd+i)}")
            e(f"s_cbranch_vccz L_qok{nm}")
        g.lab(f"L_qretry{nm}")
        sv = list(g.q)
        qloads(None)
        g.q = sv
        e(f"s_sub_u32 {sr(sSpin)}, {sr(sSpin)}, 1")
        e(f"s_cbranch_scc1 L_qok{nm}")
        e("s_waitcnt vmcnt(0)")
        qcheck()
        e(f"s_cbranch_vccnz L_qretry{nm}")
        g.lab(f"L_qok{nm}")
        if PROF == 5:
            e(f"s_sub_u32 s88, 0x40000, {sr(sSpin)}")
        e("s_nop 0")
        for hd in range(nh):
            for i in range(4):
                e(f"v_add_f32_dpp {vr(vTmp+4*hd+i)}, {vr(vQl+8*hd+i)}, {vr(vQl+8*hd+i)} row_ror:8 row_mask:0xf bank_mask:0xf")
        for hd in range(nh):
            e(f"v_cvt_pk_bf16_f32 {vr(vTmp+8+2*hd)}, {vr(vTmp+4*hd)}, {vr(vTmp+4*hd+1)}")
            e(f"v_cvt_pk_bf16_f32 {vr(vTmp+8+2*hd+1)}, {vr(vTmp+4*hd+2)}, {vr(vTmp+4*hd+3)}")
        e("s_nop 1")
        for hd in range(nh):
            qq = vQ2 if hd else vQ
            for j in range(4):
                for dd in range(4):
                    e(f"v_mov_b32_dpp {vr(qq+4*j+dd)}, {vr(vTmp+8+2*hd+(dd&1))} row_newbcast:{j+4*(dd>>1)} row_mask:0xf bank_mask:0xf")
        stamp(2)
        if QB:
            for d in range(QB, D): issue_tile(d)

    def softmax(S, M, L, O, P):
        e(f"v_max3_f32 {vr(vT0)}, {vr(S)}, {vr(S+1)}, {vr(S+2)}")
        e(f"v_max_f32 {vr(vT0)}, {vr(vT0)}, {vr(S+3)}")
        e(f"v_mul_f32 {vr(vT0)}, {sr(sC)}, {vr(vT0)}")
        e(f"v_max_f32 {vr(vMn)}, {vr(vT0)}, {vr(M)}")
        e(f"v_sub_f32 {vr(vA)}, {vr(M)}, {vr(vMn)}")
        for r in range(4):
            e(f"v_fma_f32 {vr(vE+r)}, {vr(S+r)}, {sr(sC)}, -{vr(vMn)}")
        e(f"v_exp_f32 {vr(vA)}, {vr(vA)}")
        for r in range(4):
            e(f"v_exp_f32 {vr(vE+r)}, {vr(vE+r)}")
        e(f"v_mov_b32 {vr(M)}, {vr(vMn)}")
        for i in range(8):
            e(f"v_mul_f32 {vr(O+i)}, {vr(vA)}, {vr(O+i)}")
        e(f"v_fma_f32 {vr(L)}, {vr(L)}, {vr(vA)}, {vr(vE)}")
        e(f"v_add_f32 {vr(vT0)}, {vr(vE+1)}, {vr(vE+2)}")
        e(f"v_add_f32 {vr(L)}, {vr(L)}, {vr(vE+3)}")
        e(f"v_add_f32 {vr(L)}, {vr(L)}, {vr(vT0)}")
        for r in range(4):
            e(f"v_cvt_pk_bf16_f32 {vr(P+2*r)}, {vr(vE+r)}, 0")
            e(f"v_cvt_pk_bf16_f32 {vr(P+2*r+1)}, 0, {vr(vE+r)}")

    def dma_group(lbl):
        e(f"s_cmp_lt_u32 {sr(sDt)}, 9")
        e(f"s_cbranch_scc0 {lbl}")
        for j in range(4):
            e(f"s_add_u32 m0, {sr(sDlds)}, {4096*j}")
            e("s_nop 0")
            e(f"buffer_load_dwordx4 {vr(vWOj+j)}, {sr(sWO,4)}, {sr(sDoff)} offen lds")
        e(f"s_add_u32 {sr(sDt)}, {sr(sDt)}, 1")
        e(f"s_add_u32 {sr(sDoff)}, {sr(sDoff)}, 128")
        e(f"s_add_u32 {sr(sDlds)}, {sr(sDlds)}, 16384")
        g.lab(lbl)

    def step(isA, d, dn, wk, wv, uid, dma, nm, cidx=0):
        P = PA if isA else PB
        LC = True
        if LC and dn is not None:
            e(f"s_cmp_gt_i32 {sr(sSt)}, 0")
            e(f"s_cbranch_scc1 L_c1{uid}")
            e(f"v_mov_b32 {vr(vT0)}, {sr(sCnt)}")
            e(f"v_mov_b32 {vr(vT1)}, 1")
            e("s_mov_b64 exec, 1")
            e(f"ds_add_rtn_u32 {vr(vT1)}, {vr(vT0)}, {vr(vT1)}")
            e("s_mov_b64 exec, -1")
            g.lab(f"L_c1{uid}")
        e(f"s_waitcnt vmcnt({wk})")
        for j in range(4):
            cc = "0" if j == 0 else vr(vS,4)
            e(f"v_mfma_f32_16x16x32_bf16 {vr(vS,4)}, {ar(kreg(d,j),4)}, {vr(vQ+4*j,4)}, {cc}")
        if isA:
            for j in range(4):
                cc = "0" if j == 0 else vr(vS2,4)
                e(f"v_mfma_f32_16x16x32_bf16 {vr(vS2,4)}, {ar(kreg(d,j),4)}, {vr(vQ2+4*j,4)}, {cc}")
        if dn is not None:
            if LC:
                e(f"s_cmp_gt_i32 {sr(sSt)}, 0")
                e(f"s_cbranch_scc1 L_c2{uid}")
                e("s_waitcnt lgkmcnt(0)")
                e(f"v_readfirstlane_b32 {sr(sCl)}, {vr(vT1)}")
                e(f"s_min_u32 {sr(sT0)}, {sr(sRem)}, {P-1}")
                e(f"s_add_u32 {sr(sCl)}, {sr(sCl)}, {sr(sDyn)}")
                phys(sCl)
                e(f"s_cmp_ge_u32 {sr(sCl)}, {sr(sLim)}")
                e(f"s_cselect_b32 {sr(sRem)}, {sr(sT0)}, {sr(sRem)}")
                e(f"s_cselect_b32 {sr(sOff)}, {OOB}, {sr(sOff)}")
                e(f"s_cmp_lg_u32 {sr(sCl)}, {sr(sTrig)}")
                e(f"s_cbranch_scc1 L_c2{uid}")
                e(f"s_call_b64 {sr(sRet,2)}, L_sig")
                g.lab(f"L_c2{uid}")
            e(f"s_sub_u32 {sr(sSt)}, {sr(sSt)}, 1")
            issue_k(dn)
            e("s_nop 3")
        else:
            e("s_nop 7")
        softmax(vS, vM, vL, vO, vP)
        if isA:
            softmax(vS2, vM2, vL2, vO2, vP + 8)
        e(f"s_waitcnt vmcnt({wv})")
        if PROF == 3:
            e("s_memrealtime s[86:87]")
        for r in range(4):
            for dd in range(4):
                e(f"v_dot2c_f32_bf16 {vr(vO+2*dd)}, {vr(vreg(d,r)+dd)}, {vr(vP+2*r)}")
                e(f"v_dot2c_f32_bf16 {vr(vO+2*dd+1)}, {vr(vreg(d,r)+dd)}, {vr(vP+2*r+1)}")
                if isA:
                    e(f"v_dot2c_f32_bf16 {vr(vO2+2*dd)}, {vr(vreg(d,r)+dd)}, {vr(vP+8+2*r)}")
                    e(f"v_dot2c_f32_bf16 {vr(vO2+2*dd+1)}, {vr(vreg(d,r)+dd)}, {vr(vP+8+2*r+1)}")
        if PROF == 3:
            e(f"s_add_u32 m0, {sr(sRem)}, 1")
            e("s_waitcnt lgkmcnt(0)")
            e(f"v_writelane_b32 {vr(vTk)}, s86, m0")
        e(f"s_sub_u32 {sr(sRem)}, {sr(sRem)}, 1")
        if dn is None: return
        e(f"s_cbranch_scc1 L_end{nm}")
        issue_v(dn)
        adv()
        for x in range(dma):
            dma_group(f"L_dma{uid}_{x}")

    def mainloop(isA):
        nm = "A" if isA else "B"
        P = PA if isA else PB
        WK = WV = 8 * P - 4
        def arrive(k):
            e(f"v_mov_b32 {vr(vT0)}, {LDS_CNT}")
            e(f"v_mov_b32 {vr(vT1)}, 1")
            e("s_mov_b64 exec, 1")
            e(f"ds_add_u32 {vr(vT0)}, {vr(vT1)} offset:{4*k}")
            e("s_mov_b64 exec, -1")
        def wait_all(k):
            e(f"v_mov_b32 {vr(vT0)}, {LDS_CNT}")
            g.lab(f"L_w{nm}{k}")
            e(f"ds_read_b32 {vr(vT1)}, {vr(vT0)} offset:{4*k}")
            e("s_waitcnt lgkmcnt(0)")
            e(f"v_readfirstlane_b32 {sr(sT0)}, {vr(vT1)}")
            e("s_nop 3")
            e(f"s_cmp_lt_u32 {sr(sT0)}, 4")
            e(f"s_cbranch_scc1 L_w{nm}{k}")
        def h_arr0():
            e(f"s_waitcnt vmcnt(24)")
            arrive(0)
        def h_t1():
            stamp(3)
            wait_all(0)
            e(f"s_call_b64 {sr(sRet,2)}, L_T1")
            if isA: arrive(1)
            stamp(4)
            e(f"s_cmp_lg_u32 {sr(sW)}, 0")
            e(f"s_cbranch_scc1 L_body{nm}")
            e(f"s_mov_b64 exec, 1")
            e(f"v_mov_b32 {vr(vT0)}, 0x10000")
            e(f"buffer_atomic_add {vr(vT0)}, off, {sr(sDbg,4)}, 0 sc1")
            e(f"s_mov_b64 exec, -1")
        def h_dma2():
            wait_all(1)
            e(f"s_mov_b32 {sr(sDt)}, 0")
            e(f"s_mov_b32 {sr(sDoff)}, 147456")
            e(f"s_mov_b32 {sr(sDlds)}, {sr(sLdsW)}")
        def h_arr2():
            e("s_waitcnt vmcnt(24)")
            arrive(2)
        def h_t1b():
            wait_all(2)
            e(f"s_call_b64 {sr(sRet,2)}, L_T1b")
        def h_extra():
            for x in range(2, D):
                step(isA, x, None, 16, 16, f"{nm}x{x}", 0, nm)
        hooks = {4: h_arr0, 5: h_t1, 6: h_dma2, 10: h_arr2, 11: h_t1b} if isA else {10: h_arr0, T1B: h_t1}
        XI = opts.get("xi", 1)
        def mk(xs, then):
            def f():
                for x in xs:
                    step(isA, x, None, 16, 16, f"{nm}x{x}", 0, nm)
                if then: then()
            return f
        xl = list(range(2, D))
        it = 1
        while xl:
            hooks[it] = mk(xl[:XI], hooks.get(it)); xl = xl[XI:]; it += 1
        assert EARLY * 2 <= H3 - 1 - 2 * SB and EARLY >= 1 and EARLY * 4 <= 128 - 4 * SA
        assert (SA if isA else SB) - NX > 2 * max(hooks)
        g.lab(f"L_loop{nm}")
        e(f"s_bitcmp1_b32 {sum(1 << k for k in hooks)}, {sr(sIt)}")
        e(f"s_cbranch_scc0 L_body{nm}")
        ks = sorted(hooks)
        for n, k in enumerate(ks):
            if n < len(ks) - 1:
                e(f"s_cmp_lg_u32 {sr(sIt)}, {k}")
                e(f"s_cbranch_scc1 L_hk{nm}{n+1}")
            hooks[k]()
            if n < len(ks) - 1:
                e(f"s_branch L_body{nm}")
                g.lab(f"L_hk{nm}{n+1}")
        g.lab(f"L_body{nm}")
        for i in range(2):
            step(isA, i, i, WK, WV, f"{nm}{i}", 2 if isA else 1 - i, nm, i)
        e(f"s_add_u32 {sr(sIt)}, {sr(sIt)}, 1")
        e(f"s_branch L_loop{nm}")
        g.lab(f"L_end{nm}")

    def T2(nh, nm):
        vAcc = [64, 100]
        aAop = [0, 16]
        vMh = [136, 144]; vMo = [152, 156]; vLo = [48, 52]; vPk = [56, 60]
        vMM = [12, 14]; vLL = [13, 15]
        vOut = [16, 24]
        vU1 = vK
        Os = [vO, vO2]; Ms = [vM, vM2]; Ls = [vL, vL2]
        e(f"s_lshl_b32 {sr(sT0)}, {sr(sW)}, 2")
        e(f"v_add_u32 {vr(vT0)}, {sr(sT0)}, {vr(vG)}")
        e(f"v_mul_u32_u24 {vr(vT1)}, {OT_STRIDE}, {vr(vT0)}")
        for hd in range(nh):
            for d in range(4):
                e(f"v_cvt_pk_bf16_f32 {vr(vPk[hd]+d)}, {vr(Os[hd]+2*d)}, {vr(Os[hd]+2*d+1)}")
        e(f"v_lshl_add_u32 {vr(vT1)}, {vr(vCc)}, 4, {vr(vT1)}")
        e(f"v_add_u32 {vr(vT1)}, {LDS_OT}, {vr(vT1)}")
        e(f"v_lshlrev_b32 {vr(vT0)}, 2, {vr(vT0)}")
        e(f"v_add_u32 {vr(vT0)}, {LDS_M}, {vr(vT0)}")
        for hd in range(nh):
            e(f"ds_write_b128 {vr(vT1)}, {vr(vPk[hd],4)} offset:{hd*OT_BYTES}")
            e(f"ds_write_b32 {vr(vT0)}, {vr(Ms[hd])} offset:{hd*128}")
            e(f"ds_write_b32 {vr(vT0)}, {vr(Ls[hd])} offset:{hd*128+64}")
        e(f"v_mul_u32_u24 {vr(vT1)}, {OT_STRIDE}, {vr(vCc)}")
        e(f"v_lshl_add_u32 {vr(vT1)}, {vr(vG)}, 4, {vr(vT1)}")
        e(f"v_add_u32 {vr(vT1)}, {LDS_OT}, {vr(vT1)}")
        e(f"v_lshlrev_b32 {vr(vT0)}, 4, {vr(vG)}")
        e(f"v_add_u32 {vr(vT0)}, {LDS_M}, {vr(vT0)}")
        e(f"v_and_b32 {vr(vU1)}, 32, {vr(vLane)}")
        e(f"v_add_u32 {vr(vU1)}, {LDS_M}, {vr(vU1)}")
        e("s_waitcnt vmcnt(0)")
        if PROF == 3:
            e(f"s_lshl_b32 s88, s2, 10")
            e(f"s_add_u32 s88, s88, 0x300000")
            e(f"v_lshlrev_b32 {vr(vV)}, 2, v0")
            e(f"buffer_store_dword {vr(vTk)}, {vr(vV)}, {sr(sWS,4)}, s88 offen")
        e(f"s_cmp_eq_u32 {sr(sHas)}, 0")
        e(f"s_cbranch_scc1 L_T2b{nm}")
        e(f"v_mov_b32 {vr(vV)}, {LDS_TK}")
        e("s_mov_b64 exec, 1")
        e(f"ds_write_b32 {vr(vV)}, {vr(vTk)}")
        e("s_mov_b64 exec, -1")
        g.lab(f"L_T2b{nm}")
        e("s_waitcnt lgkmcnt(0)")
        e("s_barrier")
        for hd in range(nh):
            for j in range(4):
                e(f"ds_read_b128 {ar(aAop[hd]+4*j,4)}, {vr(vT1)} offset:{hd*OT_BYTES+64*j}")
            for i in range(2):
                e(f"ds_read_b128 {vr(vMh[hd]+4*i,4)}, {vr(vU1)} offset:{hd*128+16*i}")
            e(f"ds_read_b128 {vr(vMo[hd],4)}, {vr(vT0)} offset:{hd*128}")
            e(f"ds_read_b128 {vr(vLo[hd],4)}, {vr(vT0)} offset:{hd*128+64}")
        e(f"v_cmp_eq_u32 vcc, 16, {vr(vU0)}")
        def side(hd):
            Mh, Mo, Lo, MM, LL = vMh[hd], vMo[hd], vLo[hd], vMM[hd], vLL[hd]
            ops = [[f"v_max3_f32 {vr(MM)}, {vr(Mh)}, {vr(Mh+1)}, {vr(Mh+2)}", f"v_max3_f32 {vr(MM)}, {vr(MM)}, {vr(Mh+3)}, {vr(Mh+4)}"],
                   [f"v_max3_f32 {vr(MM)}, {vr(MM)}, {vr(Mh+5)}, {vr(Mh+6)}", f"v_max_f32 {vr(MM)}, {vr(MM)}, {vr(Mh+7)}"]]
            for r in range(4):
                ops.append([f"v_sub_f32 {vr(Mo+r)}, {vr(Mo+r)}, {vr(MM)}", f"v_exp_f32 {vr(Mo+r)}, {vr(Mo+r)}"])
            ops.append([])
            ops.append([f"v_mul_f32 {vr(LL)}, {vr(Mo)}, {vr(Lo)}", f"v_fmac_f32 {vr(LL)}, {vr(Mo+1)}, {vr(Lo+1)}"])
            ops.append([f"v_fmac_f32 {vr(LL)}, {vr(Mo+2)}, {vr(Lo+2)}", f"v_fmac_f32 {vr(LL)}, {vr(Mo+3)}, {vr(Lo+3)}"])
            return ops
        def finish(hd):
            A, Mo, MM, LL, Out = vAcc[hd], vMo[hd], vMM[hd], vLL[hd], vOut[hd]
            ops = []
            for t in range(9):
                a = A + 4*t
                ops.append(f"v_mul_f32 {vr(a)}, {vr(Mo)}, {vr(a)}")
                for r in range(1, 4):
                    ops.append(f"v_fmac_f32 {vr(a)}, {vr(Mo+r)}, {vr(a+r)}")
            vals = [A + 4*t for t in range(9)] + [LL]
            ops.append("s_nop 1")
            for k in range(5):
                ops.append(f"v_permlane16_swap_b32 {vr(vals[2*k])}, {vr(vals[2*k+1])}")
            ops.append("s_nop 1")
            ops.append(f"v_add_f32 {vr(Out+4)}, {vr(vals[8])}, {vr(vals[9])}")
            for k in range(4):
                ops.append(f"v_add_f32 {vr(Out+k)}, {vr(vals[2*k])}, {vr(vals[2*k+1])}")
            ops.append(f"v_min_u32 {vr(Out+4)}, -2, {vr(Out+4)}")
            ops.append(f"v_min_u32 {vr(MM)}, -2, {vr(MM)}")
            for k in range(4):
                ops.append(f"v_min_u32 {vr(Out+k)}, -2, {vr(Out+k)}")
            so = sr(sWoff) if hd else "0"
            ops.append(f"buffer_store_dwordx4 {vr(Out,4)}, {vr(vSt0)}, {sr(sWS,4)}, {so} offen sc1")
            for k in range(1, 4):
                ops.append(f"v_mov_b32_dpp {vr(Out+4+k)}, {vr(Out+4)} quad_perm:[{k},{k},{k},{k}] row_mask:0xf bank_mask:0xf")
            ops.append(f"v_cndmask_b32 {vr(Out+4)}, {vr(Out+4)}, {vr(MM)}, vcc")
            ops.append(f"buffer_store_dwordx4 {vr(Out+4,4)}, {vr(vSt1b if hd else vSt1)}, {sr(sWS,4)}, 0 offen sc1")
            return ops
        if nh == 2:
            e(f"v_mov_b32 {vr(vV)}, {vr(vSt1b)}")
            e(f"s_mov_b32 {sr(sWoff)}, {2*YROW}")
        pend = []
        for hd in range(nh):
            sd = side(hd)
            for j in range(4):
                if j == 0: e(f"s_waitcnt lgkmcnt({8*(nh-hd)-1})")
                if j == 1: e(f"s_waitcnt lgkmcnt({8*(nh-hd-1)})")
                for t in range(9):
                    cc = "0" if j == 0 else vr(vAcc[hd]+4*t,4)
                    e(f"v_mfma_f32_16x16x32_bf16 {vr(vAcc[hd]+4*t,4)}, {ar(aAop[hd]+4*j,4)}, {rr(wo_reg(hd,t*4+j),4)}, {cc}")
                    if j == 1:
                        for o in sd[t]: e(o)
                    elif pend and not (j == 0 and t < 1):
                        for o in pend[:3]: e(o)
                        pend = pend[3:]
            for o in pend: e(o)
            pend = finish(hd)
            if hd == 1:
                pend = [o.replace(f", {vr(vSt1b)}, ", f", {vr(vV)}, ") for o in pend]
        for o in pend: e(o)

    prologue2(False)
    mainloop(False)
    stamp(5)
    T2(1, "B")
    stamp(6)

    g.lab("L_cons")
    sP, sCb, sSl, sRow = sT0, sT1, sT2, sT3
    if FIX:
        e(f"s_cmp_ge_u32 {sr(sCi)}, 72")
        e("s_cbranch_scc1 L_done")
    e(f"v_mov_b32 {vr(vT0)}, {LDS_TK}")
    e(f"ds_read_b32 {vr(vT0)}, {vr(vT0)}")
    e("s_waitcnt lgkmcnt(0)")
    e(f"v_readfirstlane_b32 {sr(sRem)}, {vr(vT0)}")
    e("s_nop 3")
    e(f"s_and_b32 {sr(sSl)}, {sr(sRem)}, 0xffff")
    vHd, vCh, vYo, vMlo, vMx, vRes = 16, 17, 18, 19, 20, 24
    vML, vY = 32, 64
    def epoch(val):
        e(f"s_cmp_lg_u32 {sr(sP)}, {val}")
        e("s_cbranch_scc1 L_noep")
        e(f"v_mov_b32 {vr(vMx)}, {sr(sE)}")
        e("s_mov_b64 exec, 1")
        e(f"buffer_store_dword {vr(vMx)}, off, {sr(sWS,4)}, 0 sc1")
        e("s_mov_b64 exec, -1")
        g.lab("L_noep")
    if FIX:
        e(f"s_mov_b32 {sr(sSl)}, {sr(sCi)}")
    else:
        e(f"s_add_u32 {sr(sP)}, {sr(sSl)}, {sr(sW)}")
        epoch(258)
        e(f"s_sub_u32 {sr(sSl)}, {sr(sSl)}, {TK0}")
        e(f"s_cmp_ge_u32 {sr(sSl)}, 72")
        e("s_cbranch_scc1 L_done")
    e(f"s_cmp_lt_u32 {sr(sSl)}, 36")
    e(f"s_cselect_b32 {sr(sP)}, 1, 0")
    e(f"s_cselect_b32 {sr(sRow)}, 0, 36")
    e(f"s_sub_u32 {sr(sSl)}, {sr(sSl)}, {sr(sRow)}")
    e(f"s_cmp_ge_u32 {sr(sSl)}, 18")
    e(f"s_cselect_b32 {sr(sCb)}, 1, 0")
    e(f"s_cselect_b32 {sr(sRow)}, 18, 0")
    e(f"s_sub_u32 {sr(sSl)}, {sr(sSl)}, {sr(sRow)}")
    e(f"v_lshrrev_b32 {vr(vHd)}, 3, v0")
    e(f"v_and_b32 {vr(vCh)}, 7, v0")
    e(f"s_lshl_b32 {sr(sOff)}, {sr(sSl)}, 7")
    e(f"s_add_u32 {sr(sOff)}, {sr(sOff)}, {Y_OFF}")
    e(f"s_mov_b32 {sr(sSpin)}, 0x100000")
    g.lab("L_pollc")
    e(f"s_cmp_ge_u32 {sr(sRem)}, 0x1000000")
    e("s_cbranch_scc1 L_pollc_done")
    e(f"s_sleep {SLEEP}")
    e("s_mov_b64 exec, 1")
    e(f"buffer_load_dword {vr(vMx)}, off, {sr(sDbg,4)}, 0 sc1")
    e("s_mov_b64 exec, -1")
    e(f"s_sub_u32 {sr(sSpin)}, {sr(sSpin)}, 1")
    e("s_cbranch_scc1 L_pollc_done")
    e("s_waitcnt vmcnt(0)")
    e(f"v_readfirstlane_b32 {sr(sRem)}, {vr(vMx)}")
    e("s_nop 3")
    e("s_branch L_pollc")
    g.lab("L_pollc_done")
    if FIX:
        e(f"s_mov_b32 {sr(sSpin)}, {sr(sP)}")
        e(f"s_add_u32 {sr(sP)}, {sr(sCi)}, {sr(sW)}")
        epoch(74)
        e(f"s_mov_b32 {sr(sP)}, {sr(sSpin)}")
    e(f"s_mov_b32 {sr(sSpin)}, 0x100000")
    e(f"s_cmp_eq_u32 {sr(sP)}, 0")
    e("s_cbranch_scc1 L_finA")
    def consumer(ns, nm):
        e(f"v_mul_u32_u24 {vr(vMx)}, {ns}, {vr(vHd)}")
        e(f"v_add_u32 {vr(vMx)}, {sr(sRow)}, {vr(vMx)}")
        e(f"v_mul_u32_u24 {vr(vYo)}, {YROW}, {vr(vMx)}")
        e(f"v_lshl_add_u32 {vr(vYo)}, {vr(vCh)}, 4, {vr(vYo)}")
        e(f"v_add_u32 {vr(vYo)}, {sr(sOff)}, {vr(vYo)}")
        e(f"v_lshlrev_b32 {vr(vMlo)}, 4, {vr(vMx)}")
        e(f"v_add_u32 {vr(vMlo)}, {ML_OFF}, {vr(vMlo)}")
        sMask = 16
        for i in range(ns):
            e(f"s_mov_b64 {sr(sMask+2*i,2)}, -1")
        g.lab(f"L_polld{nm}")
        for i in range(ns):
            e(f"s_mov_b64 exec, {sr(sMask+2*i,2)}")
            e(f"s_cbranch_execz L_pd{nm}{i}")
            e(f"s_mov_b32 {sr(sWoff)}, {YROW*i}")
            e(f"buffer_load_dwordx4 {vr(vY+4*i,4)}, {vr(vYo)}, {sr(sWS,4)}, {sr(sWoff)} offen sc1")
            e(f"buffer_load_dwordx2 {vr(vML+2*i,2)}, {vr(vMlo)}, {sr(sWS,4)}, 0 offen offset:{16*i} sc1")
            g.lab(f"L_pd{nm}{i}")
        e("s_mov_b64 exec, -1")
        e(f"s_mov_b64 {sr(sEx,2)}, 0")
        e("s_waitcnt vmcnt(0)")
        for i in range(ns):
            e(f"v_max3_u32 {vr(vMx)}, {vr(vY+4*i)}, {vr(vY+4*i+1)}, {vr(vY+4*i+2)}")
            e(f"v_max3_u32 {vr(vMx)}, {vr(vMx)}, {vr(vY+4*i+3)}, {vr(vML+2*i)}")
            e(f"v_max_u32 {vr(vMx)}, {vr(vMx)}, {vr(vML+2*i+1)}")
            e(f"v_cmp_eq_u32 {sr(sMask+2*i,2)}, -1, {vr(vMx)}")
            e(f"s_or_b64 {sr(sEx,2)}, {sr(sEx,2)}, {sr(sMask+2*i,2)}")
        e(f"s_cbranch_scc0 L_polld{nm}_done")
        e(f"s_sub_u32 {sr(sSpin)}, {sr(sSpin)}, 1")
        e(f"s_cbranch_scc1 L_polld{nm}_done")
        if DSLEEP:
            e(f"s_sleep {DSLEEP}")
        e(f"s_branch L_polld{nm}")
        g.lab(f"L_polld{nm}_done")
        e("s_mov_b64 exec, -1")
        e(f"v_max_f32 {vr(vMx)}, {vr(vML)}, {vr(vML+2)}")
        for i in range(2, ns):
            e(f"v_max_f32 {vr(vMx)}, {vr(vMx)}, {vr(vML+2*i)}")
        for i in range(ns):
            e(f"v_sub_f32 {vr(vML+2*i)}, {vr(vML+2*i)}, {vr(vMx)}")
        for i in range(ns):
            e(f"v_exp_f32 {vr(vML+2*i)}, {vr(vML+2*i)}")
        e("s_nop 0")
        e(f"v_mul_f32 {vr(vMx)}, {vr(vML)}, {vr(vML+1)}")
        for i in range(1, ns):
            e(f"v_fmac_f32 {vr(vMx)}, {vr(vML+2*i)}, {vr(vML+2*i+1)}")
        e(f"v_rcp_f32 {vr(vMx)}, {vr(vMx)}")
        for k in range(4):
            e(f"v_mul_f32 {vr(vY+k)}, {vr(vML)}, {vr(vY+k)}")
            for i in range(1, ns):
                e(f"v_fmac_f32 {vr(vY+k)}, {vr(vML+2*i)}, {vr(vY+4*i+k)}")
        for k in range(4):
            e(f"v_mul_f32 {vr(vY+k)}, {vr(vMx)}, {vr(vY+k)}")
    e(f"s_mul_i32 {sr(sRow)}, {sr(sCb)}, 224")
    consumer(7, "B")
    e("s_branch L_fin2")
    g.lab("L_finA")
    e(f"s_lshl_b32 {sr(sRow)}, {sr(sCb)}, 6")
    e(f"s_add_u32 {sr(sRow)}, {sr(sRow)}, 448")
    consumer(2, "A")
    g.lab("L_fin2")
    e("s_nop 1")
    for k in range(4):
        e(f"v_add_f32_dpp {vr(vRes+k)}, {vr(vY+k)}, {vr(vY+k)} row_ror:8 row_mask:0xf bank_mask:0xf")
    e("s_nop 1")
    e(f"v_permlane32_swap_b32 {vr(vRes)}, {vr(vRes+1)}")
    e(f"v_permlane32_swap_b32 {vr(vRes+2)}, {vr(vRes+3)}")
    e("s_nop 1")
    e(f"v_add_f32 {vr(vRes)}, {vr(vRes)}, {vr(vRes+1)}")
    e(f"v_add_f32 {vr(vRes+2)}, {vr(vRes+2)}, {vr(vRes+3)}")
    e("s_nop 1")
    e(f"v_permlane16_swap_b32 {vr(vRes)}, {vr(vRes+2)}")
    e(f"v_and_b32 {vr(vT0)}, 1, {vr(vG)}")
    e(f"v_lshlrev_b32 {vr(vT0)}, 1, {vr(vT0)}")
    e(f"v_add_f32 {vr(vRes)}, {vr(vRes)}, {vr(vRes+2)}")
    e(f"v_lshrrev_b32 {vr(vT1)}, 1, {vr(vG)}")
    e(f"v_or_b32 {vr(vT0)}, {vr(vT0)}, {vr(vT1)}")
    e(f"v_lshl_add_u32 {vr(vT0)}, {vr(vCh)}, 2, {vr(vT0)}")
    e(f"v_lshlrev_b32 {vr(vT0)}, 2, {vr(vT0)}")
    e(f"s_lshl_b32 {sr(sRem)}, {sr(sW)}, 7")
    e(f"s_add_u32 {sr(sRem)}, {sr(sRem)}, {LDS_QP}")
    e(f"v_add_u32 {vr(vT0)}, {sr(sRem)}, {vr(vT0)}")
    e(f"ds_write_b32 {vr(vT0)}, {vr(vRes)}")
    e(f"v_lshlrev_b32 {vr(vT1)}, 2, v0")
    e(f"v_add_u32 {vr(vT1)}, {LDS_QP}, {vr(vT1)}")
    e(f"s_mul_i32 {sr(sCb)}, {sr(sCb)}, 1152")
    e(f"s_mul_i32 {sr(sP)}, {sr(sP)}, 576")
    e(f"s_add_u32 {sr(sCb)}, {sr(sCb)}, {sr(sP)}")
    e(f"s_lshr_b32 {sr(sP)}, {sr(sSl)}, 2")
    e(f"s_lshl_b32 {sr(sP)}, {sr(sP)}, 4")
    e(f"s_and_b32 {sr(sRow)}, {sr(sSl)}, 2")
    e(f"s_lshl_b32 {sr(sRow)}, {sr(sRow)}, 5")
    e(f"s_add_u32 {sr(sP)}, {sr(sP)}, {sr(sRow)}")
    e(f"s_and_b32 {sr(sRow)}, {sr(sSl)}, 1")
    e(f"s_lshl_b32 {sr(sRow)}, {sr(sRow)}, 3")
    e(f"s_add_u32 {sr(sP)}, {sr(sP)}, {sr(sRow)}")
    e(f"s_lshl_b32 {sr(sRow)}, {sr(sSl)}, 5")
    e(f"v_and_b32 {vr(vYo)}, 3, v0")
    e(f"v_lshlrev_b32 {vr(vYo)}, 7, {vr(vYo)}")
    e(f"v_lshrrev_b32 {vr(vMlo)}, 2, v0")
    e(f"v_add_u32 {vr(vYo)}, {vr(vYo)}, {vr(vMlo)}")
    e(f"s_cmp_lt_u32 {sr(sSl)}, 16")
    e(f"s_cselect_b32 {sr(sP)}, {sr(sP)}, {sr(sRow)}")
    e(f"s_cselect_b64 vcc, -1, 0")
    e(f"s_add_u32 {sr(sCb)}, {sr(sCb)}, {sr(sP)}")
    e(f"v_cndmask_b32 {vr(vYo)}, v0, {vr(vYo)}, vcc")
    e(f"v_add_u32 {vr(vYo)}, {sr(sCb)}, {vr(vYo)}")
    e(f"v_lshlrev_b32 {vr(vYo)}, 1, {vr(vYo)}")
    e("s_waitcnt lgkmcnt(0)")
    e("s_barrier")
    e(f"s_cmp_lg_u32 {sr(sW)}, 0")
    e("s_cbranch_scc1 L_done")
    e("v_cmp_gt_u32 vcc, 32, v0")
    e(f"s_and_saveexec_b64 {sr(sEx,2)}, vcc")
    for w in range(4):
        e(f"ds_read_b32 {vr(vRes+w)}, {vr(vT1)} offset:{128*w}")
    e("s_waitcnt lgkmcnt(0)")
    e(f"v_add_f32 {vr(vRes)}, {vr(vRes)}, {vr(vRes+1)}")
    e(f"v_add_f32 {vr(vRes+2)}, {vr(vRes+2)}, {vr(vRes+3)}")
    e(f"v_add_f32 {vr(vRes)}, {vr(vRes)}, {vr(vRes+2)}")
    e(f"v_cvt_pk_bf16_f32 {vr(vRes)}, {vr(vRes)}, {vr(vRes)}")
    e(f"buffer_store_short {vr(vRes)}, {vr(vYo)}, {sr(sOut,4)}, 0 offen")
    e("s_mov_b64 exec, -1")
    e("s_branch L_done")

    g.lab("L_A")
    prologue2(True)
    mainloop(True)
    stamp(5)
    T2(2, "A")
    stamp(6)
    e("s_branch L_cons")
    g.lab("L_done")
    if PROF:
        e("s_waitcnt vmcnt(0)")
        stamp(7)
        e("s_getreg_b32 s96, hwreg(HW_REG_XCC_ID)")
        e("s_getreg_b32 s97, hwreg(HW_REG_HW_ID)")
        e("s_waitcnt lgkmcnt(0)")
        e(f"s_lshl_b32 {sr(sT0)}, s2, 2")
        e(f"s_add_u32 {sr(sT0)}, {sr(sT0)}, {sr(sW)}")
        e(f"s_lshl_b32 {sr(sT0)}, {sr(sT0)}, 6")
        e(f"s_add_u32 {sr(sT0)}, {sr(sT0)}, 0x200000")
        e(f"v_mov_b32 v20, {sr(sT0)}")
        for i in range(8):
            e(f"v_mov_b32 v{24+i}, s{80+2*i}")
        e("v_mov_b32 v32, s96")
        e("v_mov_b32 v33, s97")
        e(f"v_cmp_eq_u32 vcc, 0, {vr(vLane)}")
        e("s_and_saveexec_b64 s[98:99], vcc")
        e(f"buffer_store_dwordx4 v[24:27], v20, {sr(sWS,4)}, 0 offen")
        e(f"buffer_store_dwordx4 v[28:31], v20, {sr(sWS,4)}, 0 offen offset:16")
        e(f"buffer_store_dwordx2 v[32:33], v20, {sr(sWS,4)}, 0 offen offset:32")
    g.lab("L_exit")
    e("s_endpgm")

    g.lab("L_sig")
    e(f"s_mov_b32 {sr(sHas)}, 1")
    e(f"s_mov_b64 exec, 1")
    if FIX:
        e(f"buffer_load_dword {vr(vTk)}, off, {sr(sDbg,4)}, 0 sc1")
    else:
        e(f"v_mov_b32 {vr(vTk)}, 1")
        e(f"buffer_atomic_add {vr(vTk)}, off, {sr(sDbg,4)}, 0 sc0 sc1")
    e(f"s_mov_b64 exec, -1")
    e(f"s_setpc_b64 {sr(sRet,2)}")

    for hd, lb in ((0, "L_T1"), (1, "L_T1b")):
        g.lab(lb)
        e(f"v_add_u32 {vr(vT0)}, 0x10000, {vr(vTR)}")
        e(f"v_add_u32 {vr(vT1)}, 0x20000, {vr(vTR)}")
        for t in range(9):
            for j in range(4):
                for hf in range(2):
                    off = t*16384 + j*4096 + hf*2048
                    a = (vTR, vT0, vT1)[off >> 16]
                    ty, rg = wo_reg(hd, t*4+j)
                    e(f"ds_read_b64_tr_b16 {rr((ty, rg+hf*2),2)}, {vr(a)} offset:{off & 0xffff}")
        e("s_waitcnt lgkmcnt(0)")
        e(f"s_setpc_b64 {sr(sRet,2)}")

    hdr = HEADER
    hdr += f"; @launch grid=(256,1,1) block=(256,1,1) lds={LDS_TOTAL}\n"
    hdr += '.amdgcn_target "amdgcn-amd-amdhsa--gfx950"\n.text\n'
    hdr += f".globl {KN}\n.p2align 8\n.type {KN},@function\n"
    tail = f""".section .rodata,"a"
.p2align 6
.amdhsa_kernel {KN}
  .amdhsa_next_free_vgpr 512
  .amdhsa_next_free_sgpr 102
  .amdhsa_accum_offset 256
  .amdhsa_group_segment_fixed_size 0
  .amdhsa_kernarg_size 104
  .amdhsa_user_sgpr_count 2
  .amdhsa_user_sgpr_kernarg_segment_ptr 1
  .amdhsa_system_sgpr_workgroup_id_x 1
.end_amdhsa_kernel
"""
    return hdr + g.text() + tail

if __name__ == "__main__":
    out = sys.argv[1]
    opts = {}
    for a in sys.argv[2:]:
        k, v = a.split("=")
        opts[k] = int(v)
    open(out, "w").write(gen(opts))
```

```python
import sys, math, struct

KN = "concat_heads__sliding_block_cached__mha_block_cached__decode_kernel"

def f32bits(x):
    return struct.unpack("<I", struct.pack("<f", x))[0]

class Gen:
    def __init__(self):
        self.lines = []
        self.q = []
    def e(self, s):
        self.lines.append("    " + s)
    def lab(self, s):
        self.lines.append(s + ":")
    def vm(self, s, tag=None):
        self.e(s)
        self.q.append(tag)
    def wait_tag(self, tag):
        idx = max(i for i, t in enumerate(self.q) if t == tag)
        n = len(self.q) - 1 - idx
        assert n <= 63, n
        self.e(f"s_waitcnt vmcnt({n})")
    def text(self):
        return "\n".join(self.lines) + "\n"

def vr(a, n=1):
    return f"v{a}" if n == 1 else f"v[{a}:{a+n-1}]"
def ar(a, n=1):
    return f"a{a}" if n == 1 else f"a[{a}:{a+n-1}]"
def sr(a, n=1):
    return f"s{a}" if n == 1 else f"s[{a}:{a+n-1}]"

HEADER = open("concat_heads__sliding_block_cached__mha_block_cached__decode.s.ref").read().split("; Override launch")[0]

NROWS = 320
YROW = 2304
Q_OFF = 256
Y_OFF = Q_OFF + 8 * 32768
ML_OFF = Y_OFF + NROWS * YROW
ORG_OFF = ML_OFF + NROWS * 16
BADROW = 0x40000
LDS_OT = 147456
OT_STRIDE = 272
OT_BYTES = 16 * OT_STRIDE
LDS_M = LDS_OT + 2 * OT_BYTES
LDS_TK = LDS_M + 256
LDS_CNT = LDS_TK + 16
LDS_QP = LDS_TK + 64
LDS_TOTAL = LDS_QP + 2048
CSCALE = (128 ** -0.5) * math.log2(math.e)
OOB = 0x40000000

def gen(opts):
    NX = opts.get("nx", 4)
    D = 2 + NX
    NT = " nt"
    PROF = opts.get("prof", 0)
    EARLY = opts.get("early", 2)
    SLEEP = opts.get("sleep", 16)
    DSLEEP = opts.get("dsleep", 2)
    PB = PA = 2
    QPOS = opts.get("qpos", 4)
    T0N = opts.get("t0n", 2)
    T1B = opts.get("t1b", 12)
    SB = opts.get("sb", 31)
    WS_BYTES = 0x400000 if PROF else ORG_OFF + 2048
    TK0 = opts.get("tk0", 60)
    FIX = opts.get("fix", 2)
    H3 = opts.get("h3", 72)
    NE = opts.get("ne", 6)
    NO = 18 - NE
    NS, NB = min(NE, NO), max(NE, NO)
    assert NE % 2 == 0 and NB <= 16
    ILV = 1
    RM = opts.get("rm", 0)
    RMA = opts.get("rma", 0)
    AM = opts.get("am", 0)
    AMA = opts.get("ama", AM)
    GR = opts.get("gr", 2)
    SA = opts.get("sa", 27)
    g = Gen()
    e = g.e
    sW = 3
    sRet = 4
    sE, sNon = 6, 7
    sDbg, sOut = 8, 12
    sWoff, sSpin = 34, 35
    sK, sV, sWQ, sX, sWO, sWS = 36, 40, 44, 48, 52, 56
    sH, sKk, sT0, sT1, sT2, sT3 = 60, 61, 62, 63, 64, 65
    sOff, sIt, sC, sSelLo, sSelHi, sLdsW = 66, 67, 68, 69, 70, 71
    sRem, sR0, sR1, sQo, sIsA, sDt, sDoff, sDlds = 72, 73, 74, 75, 76, 77, 78, 79
    sKVo, sWoO, sWoS, sPq = 96, 97, 98, 99
    sEx = 100
    sSt, sCnt, sTrig, sCl = 44, 45, 46, 47
    sDyn, sLim, sHas, sCi = 48, 49, 50, 51
    sInc, sRot, sMask = 61, 60, 100
    sD1 = 74
    sL, sA = 101, 5
    sA = 99
    sHist = 16
    HW = opts.get("hw", 0)
    def vwait(n, uid, isA):
        if not HW:
            e(f"s_waitcnt vmcnt({n})"); return
        if isA:
            e(f"s_waitcnt vmcnt({n+16})")
            e(f"s_cmp_eq_u32 {sr(sHist)}, 3")
            e(f"s_cbranch_scc1 L_vw{uid}")
        e(f"s_waitcnt vmcnt({n+(8 if isA else 4)})")
        e(f"s_cmp_lg_u32 {sr(sHist)}, 0")
        e(f"s_cbranch_scc1 L_vw{uid}")
        e(f"s_waitcnt vmcnt({n})")
        g.lab(f"L_vw{uid}")
    def phys(src):
        e(f"s_lshr_b32 {sr(sOff)}, {sr(src)}, {GR}")
        e(f"s_mul_i32 {sr(sOff)}, {sr(sOff)}, {sr(sA)}")
        e(f"s_add_u32 {sr(sOff)}, {sr(sOff)}, {sr(sRot)}")
        if opts.get("hs", 0):
            HB = opts.get("hs")
            e(f"s_lshl_b32 {sr(sOff)}, {sr(sOff)}, {12+GR}")
            e(f"s_and_b32 {sr(sOff)}, {sr(sOff)}, {sr(sMask)}")
            e(f"s_lshr_b32 {sr(sWoff)}, {sr(sOff)}, {HB}")
            e(f"s_xor_b32 {sr(sOff)}, {sr(sOff)}, {sr(sWoff)}")
            e(f"s_lshr_b32 {sr(sOff)}, {sr(sOff)}, {12+GR}")
            e(f"s_mul_i32 {sr(sOff)}, {sr(sOff)}, {opts.get('hm', 37)}")
        e(f"s_lshl_b32 {sr(sOff)}, {sr(sOff)}, {12+GR}")
        if GR:
            e(f"s_and_b32 {sr(sWoff)}, {sr(src)}, {(1<<GR)-1}")
            e(f"s_lshl_b32 {sr(sWoff)}, {sr(sWoff)}, 12")
            e(f"s_or_b32 {sr(sOff)}, {sr(sOff)}, {sr(sWoff)}")
        e(f"s_and_b32 {sr(sOff)}, {sr(sOff)}, {sr(sMask)}")
    def adv():
        e(f"s_add_u32 {sr(sL)}, {sr(sL)}, {sr(sInc)}")
        phys(sL)
    vLane, vG, vCc = 1, 2, 3
    vK, vV, vSt0, vSt1, vTR, vU0 = 4, 5, 6, 7, 8, 9
    vT0, vT1 = 10, 11
    vM, vL, vM2, vL2 = 12, 13, 14, 15
    vS, vS2 = 16, 20
    vE, vA, vMn = 24, 28, 29
    vTk = 30
    vFl = 88
    vO, vO2 = 32, 40
    vP = 48
    vQ, vQ2 = 64, 80
    vVb = 96
    vWOj = 160
    vXa, vXb = 32, 40
    vWQ, vX = 24, 26
    vQa, vQs = 28, 29
    vQacc = 64
    vW = 164
    vQl = 216
    vTmp = 232
    def kreg(d, j): return d * 16 + j * 4
    def vreg(d, r): return (vVb + d * 16 if d < 4 else 164 + (d - 4) * 16) + r * 4
    aW = 64
    def wo_reg(hd, idx):
        if hd == 0: return ("a", aW + 4 * idx)
        return ("a", 208 + 4 * idx) if idx < 12 else ("v", 160 + 4 * (idx - 12))
    def rr(t, n): return (ar if t[0] == "a" else vr)(t[1], n)
    def stamp(i):
        if (PROF == 1 and i != 4) or (PROF == 6 and i in (0, 7)) or (PROF == 5 and i != 4) or (PROF == 2 and i in (0, 1, 2, 7)) or (PROF == 3 and i in (0, 1, 2, 5, 6, 7)):
            e(f"s_memrealtime s[{80+2*i}:{81+2*i}]")
    def stamp2(i):
        if PROF == 2:
            e(f"s_memrealtime s[{80+2*i}:{81+2*i}]")
    def srd_tail(s, size):
        e(f"s_mov_b32 {sr(s+2)}, {size}")
        e(f"s_mov_b32 {sr(s+3)}, 0x00020000")
    def add64(s, off):
        e(f"s_add_u32 {sr(s)}, {sr(s)}, {off}")
        e(f"s_addc_u32 {sr(s+1)}, {sr(s+1)}, 0")
    KO = [0, 128, 2048, 2176]
    VO = [0, 256, 2048, 2304]
    sLev, sSch, sNow = 17, 18, 20
    sMh, sMf = 22, 24
    FIXL = opts.get("fixl", -1)
    ORG = opts.get("org", 1) if FIXL < 0 else 0
    PSPL = opts.get("pspl", 0)
    def issue_k(d, tag=None, split=True):
        for j in range(4):
            ld = f"buffer_load_dwordx4 {ar(kreg(d,j),4)}, {vr(vK)}, {sr(sK,4)}, {sr(sOff)} offen offset:{KO[j]}{NT}"
            if split is True:
                if FIXL >= 0:
                    e(f"s_mov_b64 exec, {sr(sMf if FIXL > j else sMh,2)}")
                else:
                    e(f"s_cmp_gt_i32 {sr(sLev)}, {j}")
                    e(f"s_cselect_b64 exec, {sr(sMf,2)}, {sr(sMh,2)}")
                g.vm(ld, tag)
                e("s_not_b64 exec, exec")
                g.vm(ld, tag)
            elif j < split:
                e("s_mov_b32 exec_lo, 0x55555555"); e("s_mov_b32 exec_hi, 0x55555555")
                g.vm(ld, tag)
                e("s_not_b64 exec, exec")
                g.vm(ld, tag)
                e("s_mov_b64 exec, -1")
            else:
                g.vm(ld, tag)
        if split is True: e("s_mov_b64 exec, -1")
    def issue_v(d, tag=None):
        for r in range(4):
            g.vm(f"buffer_load_dwordx4 {vr(vreg(d,r),4)}, {vr(vV)}, {sr(sV,4)}, {sr(sOff)} offen offset:{VO[r]}{NT}", tag)
    def issue_tile(d):
        issue_k(d, ("k", d), PSPL); issue_v(d, ("v", d))
        adv()
        if PROF == 6 and d < 6:
            e(f"s_memrealtime s[{82+2*d}:{83+2*d}]")

    g.lab(KN)
    e("s_cmp_ge_u32 s2, 256")
    e("s_cbranch_scc1 L_exit")
    stamp(0)
    if opts.get("fixl", -1) < 0: e("s_memrealtime s[94:95]")
    e("s_load_dwordx16 s[8:23], s[0:1], 0")
    e("s_load_dwordx8 s[24:31], s[0:1], 64")
    e("s_load_dwordx2 s[32:33], s[0:1], 96")
    e(f"v_lshrrev_b32 {vr(vT0)}, 6, v0")
    e(f"v_and_b32 {vr(vLane)}, 63, v0")
    e(f"v_readfirstlane_b32 {sr(sW)}, {vr(vT0)}")
    e(f"v_lshrrev_b32 {vr(vG)}, 4, {vr(vLane)}")
    e(f"v_and_b32 {vr(vCc)}, 15, {vr(vLane)}")
    e(f"s_bitcmp1_b32 s2, 0")
    e(f"s_cselect_b32 {sr(sT0)}, {32*NE}, 0")
    e(f"s_cselect_b32 {sr(sT3)}, {NO}, {NE}")
    e(f"s_bfe_u32 {sr(sT1)}, s2, 0x60001")
    e(f"s_lshl_b32 {sr(sT2)}, {sr(sT1)}, 7")
    e(f"v_lshrrev_b32 {vr(vX)}, 3, v0")
    e(f"v_mul_lo_u32 {vr(vX)}, {vr(vX)}, {sr(sT3)}")
    e(f"v_lshrrev_b32 {vr(vT0)}, 3, {vr(vLane)}")
    e(f"v_and_b32 {vr(vT1)}, 7, {vr(vLane)}")
    e(f"v_lshl_add_u32 {vr(vT1)}, {vr(vT1)}, 4, {sr(sT2)}")
    e(f"v_add_u32 {vr(vX)}, {sr(sT0)}, {vr(vX)}")
    e(f"v_lshl_add_u32 {vr(vWQ)}, {vr(vX)}, 13, {vr(vT1)}")
    e(f"v_lshlrev_b32 {vr(vX)}, 1, {vr(vX)}")
    e(f"s_lshr_b32 {sr(sPq)}, s2, 7")
    e(f"s_lshl_b32 {sr(sT0)}, {sr(sPq)}, 2")
    e(f"s_and_b32 {sr(sT2)}, {sr(sW)}, 2")
    e(f"s_add_u32 {sr(sT0)}, {sr(sT0)}, {sr(sT2)}")
    e(f"s_and_b32 {sr(sT2)}, s2, 1")
    e(f"s_add_u32 {sr(sT0)}, {sr(sT0)}, {sr(sT2)}")
    e(f"s_lshl_b32 {sr(sT0)}, {sr(sT0)}, 15")
    e(f"s_lshl_b32 {sr(sT1)}, {sr(sT1)}, 9")
    e(f"s_add_u32 {sr(sT0)}, {sr(sT0)}, {sr(sT1)}")
    e(f"s_and_b32 {sr(sT2)}, {sr(sW)}, 1")
    e(f"s_lshl_b32 {sr(sT2)}, {sr(sT2)}, 8")
    e(f"s_add_u32 {sr(sT0)}, {sr(sT0)}, {sr(sT2)}")
    e(f"s_add_u32 {sr(sT0)}, {sr(sT0)}, {Q_OFF}")
    e(f"v_and_b32 {vr(vT1)}, 7, {vr(vLane)}")
    e(f"v_lshl_add_u32 {vr(vQs)}, {vr(vT1)}, 5, {sr(sT0)}")
    e(f"v_lshl_add_u32 {vr(vQs)}, {vr(vT0)}, 4, {vr(vQs)}")
    e(f"v_cmp_gt_u32 vcc, 16, {vr(vLane)}")
    e(f"v_mov_b32 {vr(vT1)}, {OOB}")
    e(f"v_lshrrev_b32 {vr(vK)}, 1, {vr(vCc)}")
    e(f"v_and_b32 {vr(vV)}, 1, {vr(vCc)}")
    e(f"v_cndmask_b32 {vr(vQs)}, {vr(vT1)}, {vr(vQs)}, vcc")
    e(f"v_lshlrev_b32 {vr(vK)}, 8, {vr(vK)}")
    e(f"v_lshl_add_u32 {vr(vK)}, {vr(vV)}, 6, {vr(vK)}")
    e(f"v_lshl_add_u32 {vr(vK)}, {vr(vG)}, 4, {vr(vK)}")
    e(f"v_lshlrev_b32 {vr(vV)}, 9, {vr(vG)}")
    e(f"v_lshl_add_u32 {vr(vV)}, {vr(vCc)}, 4, {vr(vV)}")
    e(f"s_and_b32 {sr(sT0)}, s2, 7")
    e(f"s_lshr_b32 {sr(sT1)}, s2, 3")
    e(f"s_cmp_ge_u32 {sr(sT1)}, 28")
    e("s_cbranch_scc1 L_setA")
    e(f"s_mov_b32 {sr(sIsA)}, 0")
    if opts.get("xmap", 0):
        e(f"s_mul_i32 {sr(sH)}, s2, 9363")
        e(f"s_lshr_b32 {sr(sH)}, {sr(sH)}, 16")
        e(f"s_mul_i32 {sr(sT3)}, {sr(sH)}, 7")
        e(f"s_sub_u32 {sr(sKk)}, s2, {sr(sT3)}")
    else:
        e(f"s_mul_i32 {sr(sT2)}, {sr(sT1)}, 37")
        e(f"s_lshr_b32 {sr(sT2)}, {sr(sT2)}, 8")
        e(f"s_mul_i32 {sr(sT3)}, {sr(sT2)}, 7")
        e(f"s_sub_u32 {sr(sKk)}, {sr(sT1)}, {sr(sT3)}")
        e(f"s_lshl_b32 {sr(sT0)}, {sr(sT0)}, 2")
        e(f"s_add_u32 {sr(sH)}, {sr(sT0)}, {sr(sT2)}")
    e(f"s_lshl_b32 {sr(sT0)}, {sr(sKk)}, 2")
    e(f"s_add_u32 {sr(sT0)}, {sr(sT0)}, {sr(sW)}")
    e(f"s_cmp_ge_u32 {sr(sT0)}, 14")
    e(f"s_cselect_b32 {sr(sT1)}, 14, 0")
    e(f"s_cselect_b32 {sr(sT2)}, 32, 0")
    e(f"s_cselect_b32 {sr(sQo)}, {Q_OFF + 6*32768}, 0")
    e(f"s_cselect_b32 {sr(sT3)}, 0, {Q_OFF + 4*32768}")
    e(f"s_add_u32 {sr(sQo)}, {sr(sQo)}, {sr(sT3)}")
    e(f"s_lshl_b32 {sr(sT3)}, {sr(sH)}, 10")
    e(f"s_add_u32 {sr(sQo)}, {sr(sQo)}, {sr(sT3)}")
    e(f"s_sub_u32 {sr(sT0)}, {sr(sT0)}, {sr(sT1)}")
    if True:
        e(f"s_cmp_eq_u32 {sr(sKk)}, 3")
        e(f"s_cselect_b32 {sr(sT1)}, 1, 3")
        e(f"s_cselect_b32 {sr(sT3)}, 2, 0")
        e(f"s_and_b32 {sr(sT3)}, {sr(sT3)}, {sr(sW)}")
        e(f"s_lshl_b32 {sr(sDlds)}, {sr(sT3)}, 1")
        e(f"s_and_b32 {sr(sT3)}, {sr(sT1)}, {sr(sW)}")
        e(f"s_sub_u32 {sr(sT0)}, {sr(sT0)}, {sr(sT3)}")
        e(f"s_add_u32 {sr(sT1)}, {sr(sT1)}, 1")
        e(f"s_add_u32 {sr(sDoff)}, {sr(sT0)}, {sr(sT1)}")
        FQ = -(-(512 - H3) * 1024 // 12)
        OFFQ = 512 * 1024 - 14 * FQ
        assert OFFQ <= 0
        e(f"s_cmp_lg_u32 {sr(sT2)}, 0")
        e(f"s_cselect_b32 {sr(sDt)}, {OFFQ}, 0")
        for r in (sDoff, sT0):
            e(f"s_mul_i32 {sr(r)}, {sr(r)}, {FQ}")
            e(f"s_add_i32 {sr(r)}, {sr(r)}, {sr(sDt)}")
            e(f"s_max_i32 {sr(r)}, {sr(r)}, 0")
            e(f"s_lshr_b32 {sr(r)}, {sr(r)}, 10")
            e(f"s_min_u32 {sr(r)}, {sr(r)}, 512")
        stf = lambda u, b: min(512, max(0, u * FQ + (OFFQ if b else 0)) >> 10)
        sys.stderr.write(f"ranges b0 {[stf(u,0) for u in (0,4,8,12,14)]} b1 {[stf(u,1) for u in (0,2,6,10,14)]}\n")
        if not ILV:
            e(f"s_mul_i32 {sr(sT3)}, {sr(sT3)}, {SB}")
        e(f"s_add_u32 {sr(sT3)}, {sr(sT3)}, {sr(sT0)}")
        e(f"s_mov_b32 {sr(sL)}, {sr(sT3)}")
        e(f"s_mov_b32 {sr(sMask)}, {sr(sT1)}")
        e(f"s_mul_i32 {sr(sT1)}, {sr(sT1)}, {SB}")
        e(f"s_add_u32 {sr(sIt)}, {sr(sT1)}, {sr(sT0)}")
    e(f"s_mov_b32 {sr(sRem)}, 512")
    e(f"s_add_u32 {sr(sT2)}, {sr(sT2)}, {sr(sH)}")
    e(f"s_lshl_b32 {sr(sKVo)}, {sr(sT2)}, 21")
    e(f"s_lshl_b32 {sr(sT0)}, {sr(sH)}, 2")
    e(f"s_add_u32 {sr(sR0)}, {sr(sT0)}, {sr(sKk)}")
    e(f"s_add_u32 {sr(sR1)}, {sr(sT0)}, 128")
    e(f"s_cmp_gt_u32 {sr(sKk)}, 3")
    e(f"s_cselect_b32 {sr(sT3)}, 125, 0")
    e(f"s_add_u32 {sr(sR0)}, {sr(sR0)}, {sr(sT3)}")
    e(f"s_cmp_eq_u32 {sr(sKk)}, 3")
    e(f"s_cselect_b32 {sr(sR1)}, {sr(sR1)}, {BADROW}")
    e(f"s_mul_i32 {sr(sWoO)}, {sr(sH)}, 147456")
    e(f"s_mov_b32 {sr(sWoS)}, 147456")
    e(f"s_mov_b32 {sr(sInc)}, {sr(sMask) if ILV else 1}")
    e(f"s_mul_i32 {sr(sRot)}, {sr(sT2)}, {RM}")
    e(f"s_mul_i32 {sr(sOff)}, {sr(sT2)}, {2*AM}")
    SM = opts.get("sm", 0)
    if SM == 1:
        e(f"s_and_b32 {sr(sOff)}, {sr(sT2)}, 15")
        e(f"s_lshl_b32 {sr(sOff)}, {sr(sOff)}, 1")
        e(f"s_and_b32 {sr(sT3)}, {sr(sT2)}, 16")
        e(f"s_lshl_b32 {sr(sT3)}, {sr(sT3)}, 2")
        e(f"s_add_u32 {sr(sOff)}, {sr(sOff)}, {sr(sT3)}")
        e(f"s_add_u32 {sr(sOff)}, {sr(sOff)}, 16")
    if SM == 2:
        e(f"s_and_b32 {sr(sT3)}, {sr(sT2)}, 31")
        e(f"s_lshl_b32 {sr(sT3)}, 1, {sr(sT3)}")
        e(f"s_and_b32 {sr(sT0)}, {sr(sT3)}, {(1<<2)|(1<<4)}")
        e(f"s_cselect_b32 {sr(sT0)}, 20, 0")
        e(f"s_add_u32 {sr(sOff)}, {sr(sOff)}, {sr(sT0)}")
        e(f"s_and_b32 {sr(sT0)}, {sr(sT3)}, {(1<<27)|(1<<29)}")
        e(f"s_cselect_b32 {sr(sT0)}, 20, 0")
        e(f"s_sub_u32 {sr(sOff)}, {sr(sOff)}, {sr(sT0)}")
    if SM == 3:
        e(f"s_mov_b32 {sr(sOff)}, {opts.get('ca', 27) - 1}")
    e("s_branch L_common")
    g.lab("L_setA")
    e(f"s_mov_b32 {sr(sIsA)}, 1")
    e(f"s_sub_u32 {sr(sT1)}, {sr(sT1)}, 28")
    e(f"s_lshl_b32 {sr(sT0)}, {sr(sT0)}, 1")
    e(f"s_lshr_b32 {sr(sT2)}, {sr(sT1)}, 1")
    e(f"s_add_u32 {sr(sH)}, {sr(sT0)}, {sr(sT2)}")
    e(f"s_and_b32 {sr(sT1)}, {sr(sT1)}, 1")
    e(f"s_lshl_b32 {sr(sQo)}, {sr(sT1)}, 16")
    e(f"s_lshl_b32 {sr(sT3)}, {sr(sH)}, 11")
    e(f"s_add_u32 {sr(sQo)}, {sr(sQo)}, {sr(sT3)}")
    e(f"s_add_u32 {sr(sQo)}, {sr(sQo)}, {Q_OFF}")
    e(f"s_lshl_b32 {sr(sT2)}, {sr(sT1)}, 4")
    e(f"s_add_u32 {sr(sT2)}, {sr(sT2)}, {sr(sH)}")
    e(f"s_lshl_b32 {sr(sR0)}, {sr(sT2)}, 1")
    e(f"s_add_u32 {sr(sR0)}, {sr(sR0)}, 256")
    e(f"s_add_u32 {sr(sR1)}, {sr(sR0)}, 1")
    e(f"s_mul_i32 {sr(sT3)}, {sr(sT2)}, {RMA}")
    e(f"s_mul_i32 {sr(sOff)}, {sr(sT2)}, {2*AMA}")
    e(f"s_lshl_b32 {sr(sT2)}, {sr(sT2)}, 21")
    e(f"s_mul_i32 {sr(sL)}, {sr(sW)}, {1 if ILV else SA}")
    e(f"s_mov_b32 {sr(sDlds)}, 0")
    e(f"s_mov_b32 {sr(sDoff)}, 128")
    e(f"s_mov_b32 {sr(sIt)}, {4*SA}")
    e(f"s_add_u32 {sr(sKVo)}, {sr(sT2)}, 0x180000")
    e(f"s_mov_b32 {sr(sRem)}, 128")
    e(f"s_mul_i32 {sr(sWoO)}, {sr(sH)}, 294912")
    e(f"s_mov_b32 {sr(sWoS)}, 294912")
    e(f"s_mov_b32 {sr(sInc)}, {4 if ILV else 1}")
    e(f"s_mov_b32 {sr(sRot)}, {sr(sT3)}")
    g.lab("L_common")
    srd_tail(sWQ, 576 * 8192)
    srd_tail(sX, 2304)
    e(f"s_lshl_b32 {sr(sK+2)}, {sr(sRem)}, 12"); e(f"s_mov_b32 {sr(sK+3)}, 0x00020000")
    e(f"s_lshl_b32 {sr(sV+2)}, {sr(sRem)}, 12"); e(f"s_mov_b32 {sr(sV+3)}, 0x00020000")
    srd_tail(sWS, WS_BYTES)
    e(f"s_sub_u32 {sr(sMask)}, {sr(sK+2)}, 1")
    e(f"s_cmp_eq_u32 {sr(sPq)}, 0")
    e("s_waitcnt lgkmcnt(0)")
    stamp2(3)
    e(f"s_cselect_b64 {sr(sWQ,2)}, s[14:15], s[24:25]")
    e(f"s_cselect_b64 {sr(sX,2)}, s[8:9], s[18:19]")
    e(f"s_load_dword {sr(sE)}, s[32:33], 0")
    g.q = []
    def wq_load(n):
        so = "0" if n == 0 else sr(sWoff)
        if n: e(f"s_mov_b32 {sr(sWoff)}, {n*8192}")
        g.vm(f"buffer_load_dwordx4 {vr(vW+4*n,4)}, {vr(vWQ)}, {sr(sWQ,4)}, {so} offen", ("wq", n))
    bigbit = 1 if NO > NE else 0
    e(f"s_bitcmp{bigbit}_b32 s2, 0")
    e("s_cbranch_scc0 L_wq1")
    for n in range(NS, NB): wq_load(n)
    g.lab("L_wq1")
    for n in range(NS): wq_load(n)
    e(f"s_mov_b32 {sr(sWS)}, s32"); e(f"s_mov_b32 {sr(sWS+1)}, s33")
    vU1 = vT1
    e(f"s_mul_i32 {sr(sT0)}, {sr(sR0)}, {YROW}")
    e(f"s_mul_i32 {sr(sT1)}, {sr(sR1)}, {YROW}")
    e(f"v_mov_b32 {vr(vSt0)}, {sr(sT0)}")
    e(f"v_mov_b32 {vr(vSt1)}, {sr(sT1)}")
    e(f"v_cmp_lt_u32 vcc, 31, {vr(vLane)}")
    e(f"v_and_b32 {vr(vU0)}, 31, {vr(vLane)}")
    e(f"s_lshl_b32 {sr(sT2)}, {sr(sW)}, 6")
    e(f"v_cndmask_b32 {vr(vSt1)}, {vr(vSt0)}, {vr(vSt1)}, vcc")
    e(f"s_add_u32 {sr(sT2)}, {sr(sT2)}, {2048 + Y_OFF}")
    e(f"v_lshl_add_u32 {vr(vSt1)}, {vr(vCc)}, 2, {vr(vSt1)}")
    e(f"v_add_u32 {vr(vSt1)}, {sr(sT2)}, {vr(vSt1)}")
    e(f"s_lshl_b32 {sr(sT2)}, {sr(sW)}, 9")
    e(f"s_add_u32 {sr(sT2)}, {sr(sT2)}, {Y_OFF}")
    e(f"s_add_u32 {sr(sT2)}, {sr(sT2)}, {sr(sT0)}")
    e(f"v_lshl_add_u32 {vr(vSt0)}, {vr(vLane)}, 3, {sr(sT2)}")
    e(f"s_lshl_b32 {sr(sT3)}, {sr(sR1)}, 4")
    e(f"s_sub_u32 {sr(sD1)}, {sr(sT1)}, {sr(sT0)}")
    for i in range(4):
        e(f"v_mov_b32 {vr(vTmp+i)}, -1")
    g.vm(f"buffer_store_dwordx2 {vr(vTmp,2)}, {vr(vSt0)}, {sr(sWS,4)}, 0 offen sc1", "clr")
    g.vm(f"buffer_store_dwordx2 {vr(vTmp,2)}, {vr(vSt0)}, {sr(sWS,4)}, {sr(sD1)} offen sc1", "clr")
    e(f"s_lshl_b32 {sr(sT0)}, {sr(sR0)}, 4")
    e(f"s_add_u32 {sr(sT0)}, {sr(sT0)}, {ML_OFF}")
    e(f"s_add_u32 {sr(sT1)}, {sr(sT3)}, {ML_OFF}")
    e(f"s_cmp_eq_u32 {sr(sW)}, 0")
    e(f"s_cselect_b32 {sr(sT0)}, {sr(sT0)}, {OOB}")
    e(f"s_cselect_b32 {sr(sT1)}, {sr(sT1)}, {OOB}")
    e(f"v_mov_b32 {vr(vT0)}, {sr(sT0)}")
    e(f"v_mov_b32 {vr(vU1)}, {sr(sT1)}")
    e(f"v_cndmask_b32 {vr(vT0)}, {vr(vT0)}, {vr(vU1)}, vcc")
    e(f"v_and_b32 {vr(vU1)}, 19, {vr(vLane)}")
    e(f"v_cmp_eq_u32 vcc, 0, {vr(vU1)}")
    e(f"v_mov_b32 {vr(vU1)}, {OOB}")
    e("s_nop 0")
    e(f"v_cndmask_b32 {vr(vSt1)}, {vr(vU1)}, {vr(vSt1)}, vcc")
    g.vm(f"buffer_store_dwordx4 {vr(vTmp,4)}, {vr(vSt1)}, {sr(sWS,4)}, 0 offen sc1", "clr")
    e(f"v_cmp_eq_u32 vcc, 16, {vr(vU0)}")
    e("s_nop 1")
    e(f"v_cndmask_b32 {vr(vSt1)}, {vr(vSt1)}, {vr(vT0)}, vcc")
    e(f"v_cndmask_b32 {vr(vQs)}, {vr(vQs)}, {vr(vT0)}, vcc")
    for xr, off in ((vXa, 0), (vXb, 1152)):
        g.vm(f"buffer_load_dwordx4 {vr(xr,4)}, {vr(vX)}, {sr(sX,4)}, 0 offen offset:{off}", "x")
        g.vm(f"buffer_load_dwordx4 {vr(xr+4,4)}, {vr(vX)}, {sr(sX,4)}, 0 offen offset:{off+16}", "x")
    e(f"s_cmp_eq_u32 {sr(sIsA)}, 1")
    e(f"s_cselect_b64 {sr(sK,2)}, s[10:11], s[20:21]")
    e(f"s_cselect_b64 {sr(sV,2)}, s[12:13], s[22:23]")
    e(f"s_cselect_b64 {sr(sWO,2)}, s[16:17], s[26:27]")
    add64(sK, sr(sKVo)); add64(sV, sr(sKVo))
    e(f"s_add_u32 {sr(sA)}, {sr(sOff)}, 1")
    phys(sL)
    for d in range(T0N): issue_tile(d)
    stamp2(4)
    add64(sWO, sr(sWoO))
    e(f"s_mov_b32 {sr(sWO+2)}, {sr(sWoS)}"); e(f"s_mov_b32 {sr(sWO+3)}, 0x00020000")
    e(f"s_mov_b32 {sr(sC)}, 0x{f32bits(CSCALE):08x}")
    e(f"s_mov_b32 {sr(sSelLo)}, 0x05040100")
    e(f"s_mov_b32 {sr(sSelHi)}, 0x07060302")
    e(f"s_lshl_b32 {sr(sLdsW)}, {sr(sW)}, 10")
    e(f"v_bfe_u32 {vr(vT0)}, {vr(vLane)}, 3, 2")
    e(f"v_xor_b32 {vr(vT0)}, {sr(sW)}, {vr(vT0)}")
    e(f"v_lshlrev_b32 {vr(vT0)}, 5, {vr(vT0)}")
    e(f"v_lshrrev_b32 {vr(vT1)}, 2, {vr(vLane)}")
    e(f"v_lshl_add_u32 {vr(vT0)}, {vr(vT1)}, 7, {vr(vT0)}")
    e(f"v_and_b32 {vr(vT1)}, 3, {vr(vLane)}")
    e(f"v_lshl_add_u32 {vr(vTR)}, {vr(vT1)}, 3, {vr(vT0)}")
    e(f"s_mov_b32 {sr(sOut)}, s28"); e(f"s_mov_b32 {sr(sOut+1)}, s29"); srd_tail(sOut, 4608)
    e(f"s_mov_b32 {sr(sDbg)}, s30"); e(f"s_mov_b32 {sr(sDbg+1)}, s31"); srd_tail(sDbg, 256)
    for i in range(16):
        e(f"v_mov_b32 {vr(vQacc+i)}, 0")
    e(f"v_and_b32 {vr(vT0)}, 3, {vr(vCc)}")
    e(f"v_lshlrev_b32 {vr(vT0)}, 8, {vr(vT0)}")
    e(f"v_lshl_add_u32 {vr(vT0)}, {vr(vG)}, 6, {vr(vT0)}")
    e(f"v_bfe_u32 {vr(vT1)}, {vr(vCc)}, 2, 1")
    e(f"v_lshl_add_u32 {vr(vT0)}, {vr(vT1)}, 5, {vr(vT0)}")
    e(f"v_lshrrev_b32 {vr(vT1)}, 3, {vr(vCc)}")
    e(f"v_lshl_add_u32 {vr(vT0)}, {vr(vT1)}, 15, {vr(vT0)}")
    e(f"v_add_u32 {vr(vQa)}, {sr(sQo)}, {vr(vT0)}")
    e(f"v_bfe_u32 {vr(vT0)}, {vr(vLane)}, 3, 2")
    e(f"v_lshrrev_b32 {vr(vT1)}, 5, {vr(vLane)}")
    e(f"v_lshl_add_u32 {vr(vT0)}, {vr(vT1)}, 3, {vr(vT0)}")
    e(f"s_and_b32 {sr(sT0)}, {sr(sW)}, 1")
    e(f"s_lshl_b32 {sr(sT0)}, {sr(sT0)}, 4")
    e(f"s_lshr_b32 {sr(sT1)}, {sr(sW)}, 1")
    e(f"s_lshl_b32 {sr(sT1)}, {sr(sT1)}, 2")
    e(f"s_add_u32 {sr(sT0)}, {sr(sT0)}, {sr(sT1)}")
    e(f"v_add_u32 {vr(vT0)}, {sr(sT0)}, {vr(vT0)}")
    e(f"v_mul_u32_u24 {vr(vWOj)}, 1152, {vr(vT0)}")
    e(f"v_lshlrev_b32 {vr(vT1)}, 1, {vr(vG)}")
    e(f"v_and_b32 {vr(vT0)}, 7, {vr(vLane)}")
    e(f"v_xor_b32 {vr(vT1)}, {vr(vT1)}, {vr(vT0)}")
    e(f"v_lshl_add_u32 {vr(vWOj)}, {vr(vT1)}, 4, {vr(vWOj)}")
    for j in range(1, 4):
        e(f"v_add_u32 {vr(vWOj+j)}, {36864*j}, {vr(vWOj)}")
    vLw, vLr = vTmp + 14, vTmp + 15
    e(f"s_lshl_b32 {sr(sT0)}, {sr(sW)}, 9")
    e(f"s_add_u32 {sr(sT0)}, {sr(sT0)}, {LDS_QP}")
    e(f"v_and_b32 {vr(vT0)}, 7, {vr(vLane)}")
    e(f"v_lshl_add_u32 {vr(vLw)}, {vr(vT0)}, 5, {sr(sT0)}")
    e(f"v_and_b32 {vr(vT1)}, 1, {vr(vG)}")
    e(f"v_lshl_add_u32 {vr(vLw)}, {vr(vT1)}, 4, {vr(vLw)}")
    e(f"v_lshrrev_b32 {vr(vT1)}, 1, {vr(vG)}")
    e(f"v_lshl_add_u32 {vr(vLw)}, {vr(vT1)}, 8, {vr(vLw)}")
    e(f"s_lshl_b32 {sr(sT0)}, {sr(sW)}, 7")
    e(f"s_add_u32 {sr(sT0)}, {sr(sT0)}, {LDS_QP}")
    e(f"v_lshl_add_u32 {vr(vLr)}, {vr(vT0)}, 4, {sr(sT0)}")
    e(f"v_bfe_u32 {vr(vT0)}, {vr(vLane)}, 3, 1")
    e(f"v_cmp_eq_u32 vcc, 1, {vr(vT0)}")
    e("s_waitcnt lgkmcnt(0)")
    e(f"s_add_u32 {sr(sE)}, {sr(sE)}, 1")
    e(f"s_mul_i32 {sr(sNon)}, {sr(sE)}, 0x9E3779B1")
    e(f"s_or_b32 {sr(sNon)}, {sr(sNon)}, 1")
    e(f"v_mov_b32 {vr(vT1)}, {sr(sNon)}")
    vXm = vTmp + 13
    e(f"v_cndmask_b32 {vr(vXm)}, 0, {vr(vT1)}, vcc")
    vZ = vTmp + 8
    for i in range(4):
        e(f"v_mov_b32 {vr(vZ+i)}, 0")
    vPl = vTmp + 4
    e(f"v_mov_b32 {vr(vPl)}, -1")
    e(f"v_mov_b32 {vr(vPl+1)}, -1")
    if ORG:
        e(f"s_add_u32 {sr(sT0)}, s2, {sr(sW)}")
        e(f"s_cmp_eq_u32 {sr(sT0)}, 0")
        e(f"s_cselect_b32 exec_hi, 0xffff, 0")
        e(f"s_mov_b32 exec_lo, 0")
        e(f"s_xor_b32 {sr(sT0)}, s94, {sr(sNon)}")
        e(f"v_mov_b32 {vr(vPl)}, s94")
        e(f"v_mov_b32 {vr(vPl+1)}, {sr(sT0)}")
        e(f"v_lshlrev_b32 {vr(vQs)}, 7, {vr(vCc)}")
        e(f"v_add_u32 {vr(vQs)}, {ORG_OFF}, {vr(vQs)}")
        e(f"s_mov_b64 exec, -1")
    e(f"v_mov_b32 {vr(vT0)}, {LDS_CNT}")
    stamp2(5)
    g.wait_tag("x")
    stamp2(6)
    def wq_pair(p):
        a, b = vW + 8 * p, vW + 8 * p + 4
        for d in range(4):
            t0, t1 = vTmp + 2 * (d & 1), vTmp + 2 * (d & 1) + 1
            e(f"v_perm_b32 {vr(t0)}, {vr(b+d)}, {vr(a+d)}, {sr(sSelLo)}")
            e(f"v_perm_b32 {vr(t1)}, {vr(b+d)}, {vr(a+d)}, {sr(sSelHi)}")
            e(f"v_dot2c_f32_bf16 {vr(vQacc+2*d)}, {vr(t0)}, {vr(vXa+p)}")
            e(f"v_dot2c_f32_bf16 {vr(vQacc+2*d+1)}, {vr(t1)}, {vr(vXa+p)}")
            e(f"v_dot2c_f32_bf16 {vr(vQacc+8+2*d)}, {vr(t0)}, {vr(vXb+p)}")
            e(f"v_dot2c_f32_bf16 {vr(vQacc+8+2*d+1)}, {vr(t1)}, {vr(vXb+p)}")
    e(f"s_bitcmp{bigbit}_b32 s2, 0")
    e("s_cbranch_scc0 L_wq2")
    for p in range(NS // 2, NB // 2): wq_pair(p)
    g.lab("L_wq2")
    MID = opts.get("mid", 0)
    if MID == 1: issue_tile(T0N)
    for p in range(NS // 2):
        wq_pair(p)
        if MID == 2 and p == 0: issue_k(T0N, ("k", T0N))
        if MID == 2 and p == 1: issue_v(T0N, ("v", T0N)); adv()
    if MID == 3: issue_tile(T0N)
    e("s_nop 2")
    for i in range(8):
        e(f"v_permlane32_swap_b32 {vr(vQacc+i)}, {vr(vQacc+i+8)}")
    e("s_nop 1")
    for i in range(8):
        e(f"v_add_f32 {vr(vQacc+i)}, {vr(vQacc+i)}, {vr(vQacc+i+8)}")
    e("s_nop 1")
    for i in range(4):
        e(f"v_permlane16_swap_b32 {vr(vQacc+i)}, {vr(vQacc+i+4)}")
    e("s_nop 1")
    for i in range(4):
        e(f"v_add_f32 {vr(vQacc+i)}, {vr(vQacc+i)}, {vr(vQacc+i+4)}")
    e("s_nop 1")
    for i in range(4):
        e(f"v_add_f32_dpp {vr(vQacc+4+i)}, {vr(vQacc+i)}, {vr(vQacc+i)} row_ror:8 row_mask:0xf bank_mask:0xf")
    e(f"ds_write_b128 {vr(vLw)}, {vr(vQacc+4,4)}")
    e(f"ds_write_b128 {vr(vT0)}, {vr(vZ,4)}")
    e(f"ds_write_b128 {vr(vT0)}, {vr(vZ,4)} offset:16")
    e("s_waitcnt lgkmcnt(0)")
    e("s_barrier")
    for w in range(4):
        e(f"ds_read_b128 {vr(vQacc+4*w,4)}, {vr(vLr)} offset:{512*w}")
    e("s_waitcnt lgkmcnt(2)")
    for i in range(4):
        e(f"v_add_f32 {vr(vQacc+i)}, {vr(vQacc+i)}, {vr(vQacc+4+i)}")
    e("s_waitcnt lgkmcnt(0)")
    for i in range(4):
        e(f"v_add_f32 {vr(vQacc+8+i)}, {vr(vQacc+8+i)}, {vr(vQacc+12+i)}")
    for i in range(4):
        e(f"v_add_f32 {vr(vQacc+i)}, {vr(vQacc+i)}, {vr(vQacc+8+i)}")
    for i in range(4):
        e(f"v_xor_b32 {vr(vQacc+i)}, {vr(vXm)}, {vr(vQacc+i)}")
    e(f"s_mov_b32 exec_lo, 0xffff0000")
    e(f"v_mov_b32 {vr(vQacc)}, {vr(vPl)}")
    e(f"v_mov_b32 {vr(vQacc+1)}, {vr(vPl+1)}")
    e(f"v_mov_b32 {vr(vQacc+2)}, {sr(sNon)}")
    e(f"s_mov_b32 exec_lo, -1")
    g.vm(f"buffer_store_dwordx4 {vr(vQacc,4)}, {vr(vQs)}, {sr(sWS,4)}, 0 offen sc1", "qs")
    stamp(1)
    for d in range(T0N + (1 if MID else 0), QPOS): issue_tile(d)
    e(f"s_cmp_eq_u32 {sr(sIsA)}, 1")
    e("s_cbranch_scc1 L_A")
    q_common = list(g.q)

    def prologue2(isA):
        nm = "A" if isA else "B"
        nh = 2 if isA else 1
        g.q = list(q_common)
        QS = [vQl, 200, 80]
        def qloads(tag, R=vQl):
            for i in range(2 * nh):
                g.vm(f"buffer_load_dwordx4 {vr(R+4*i,4)}, {vr(vQa)}, {sr(sWS,4)}, 0 offen offset:{(i>>1)*1024+(i&1)*16} sc1", tag)
        def qcheck(R=vQl):
            for hd in range(nh):
                for i in range(4):
                    e(f"v_bitop3_b32 {vr(vTmp+4+4*hd+i)}, {vr(R+8*hd+i)}, {vr(R+8*hd+4+i)}, {sr(sNon)} bitop3:0x96")
            e(f"v_or3_b32 {vr(vT0)}, {vr(vTmp+4)}, {vr(vTmp+5)}, {vr(vTmp+6)}")
            if isA:
                e(f"v_or3_b32 {vr(vT0)}, {vr(vT0)}, {vr(vTmp+7)}, {vr(vTmp+8)}")
                e(f"v_or3_b32 {vr(vT0)}, {vr(vT0)}, {vr(vTmp+9)}, {vr(vTmp+10)}")
                e(f"v_or_b32 {vr(vT0)}, {vr(vT0)}, {vr(vTmp+11)}")
            else:
                e(f"v_or_b32 {vr(vT0)}, {vr(vT0)}, {vr(vTmp+7)}")
            e(f"v_cmp_ne_u32 vcc, 0, {vr(vT0)}")
        NP = min(opts.get("np", 1), D - QPOS + 1, 2 if isA else 3)
        assert NX <= 4 or NP < 2
        QB = opts.get("qb", 0)
        if ORG:
            e(f"s_and_b32 {sr(sT0)}, s2, 15")
            e(f"s_lshl_b32 {sr(sT0)}, {sr(sT0)}, 7")
            e(f"s_add_u32 {sr(sT0)}, {sr(sT0)}, {ORG_OFF}")
            e("s_mov_b64 exec, 1")
            g.vm(f"buffer_load_dwordx2 {vr(vS,2)}, off, {sr(sWS,4)}, {sr(sT0)} sc1", "org")
            e("s_mov_b64 exec, -1")
        qloads(("ql", 0))
        def mid_tiles(hi):
            for d in range(QPOS, hi):
                issue_tile(d)
                k = d - QPOS + 1
                if k < NP: qloads(("ql", k), QS[k])
        if QB: NP = min(NP, QB - QPOS + 1)
        else: mid_tiles(D)
        for i in range(8 * nh):
            e(f"v_mov_b32 {vr(vO+i)}, 0")
        e(f"v_mov_b32 {vr(vM)}, 0xff800000")
        e(f"v_mov_b32 {vr(vL)}, 0")
        if isA:
            e(f"v_mov_b32 {vr(vM2)}, 0xff800000")
            e(f"v_mov_b32 {vr(vL2)}, 0")
        if PROF == 3:
            e(f"v_mov_b32 {vr(vTk)}, 0")
        e(f"s_mov_b32 {sr(sDyn)}, {sr(sIt)}")
        e(f"s_mov_b32 {sr(sLim)}, {sr(sDoff)}")
        e(f"s_add_u32 {sr(sCnt)}, {sr(sDlds)}, {LDS_CNT + 12}")
        e(f"s_mul_i32 {sr(sTrig)}, {sr(sInc)}, {EARLY}")
        e(f"s_sub_u32 {sr(sTrig)}, {sr(sLim)}, {sr(sTrig)}")
        e(f"s_cmp_eq_u32 {sr(sDlds)}, 0")
        e(f"s_cselect_b32 {sr(sTrig)}, {sr(sTrig)}, -1")
        e(f"s_mov_b32 {sr(sHas)}, 0")
        if FIX:
            if FIX == 1:
                e(f"s_lshr_b32 {sr(sCi)}, s2, 1")
                e(f"s_bitcmp1_b32 s2, 0")
                e(f"s_cselect_b32 {sr(sCi)}, {sr(sCi)}, 1000")
            elif FIX == 2:
                e(f"s_mov_b32 {sr(sCi)}, s2")
            elif FIX == 3:
                e(f"s_sub_u32 {sr(sCi)}, 255, s2")
                e(f"s_lshr_b32 {sr(sCi)}, {sr(sCi)}, 1")
                e(f"s_bitcmp1_b32 s2, 0")
                e(f"s_cselect_b32 {sr(sCi)}, {sr(sCi)}, 1000")
            elif FIX == 4:
                e(f"s_lshr_b32 {sr(sCi)}, s2, 3")
                e(f"s_and_b32 {sr(sT0)}, s2, 7")
                e(f"s_cmp_eq_u32 {sr(sT0)}, 1")
                e(f"s_cselect_b32 {sr(sT1)}, 0, 1000")
                e(f"s_cmp_eq_u32 {sr(sT0)}, 3")
                e(f"s_cselect_b32 {sr(sT1)}, 32, {sr(sT1)}")
                e(f"s_cmp_eq_u32 {sr(sT0)}, 7")
                e(f"s_cselect_b32 {sr(sT1)}, 64, {sr(sT1)}")
                e(f"s_add_u32 {sr(sCi)}, {sr(sCi)}, {sr(sT1)}")
            e(f"s_cmp_lt_u32 {sr(sCi)}, 72")
            e(f"s_cselect_b32 {sr(sTrig)}, {sr(sTrig)}, -1")
        e(f"s_mov_b32 {sr(sIt)}, 0")
        e(f"s_mov_b32 {sr(sHist)}, 0")
        e(f"s_mov_b32 {sr(sMh)}, 0x55555555"); e(f"s_mov_b32 {sr(sMh+1)}, 0x55555555")
        e(f"s_mov_b32 {sr(sMf)}, 0x00ff00ff"); e(f"s_mov_b32 {sr(sMf+1)}, 0x00ff00ff")
        e(f"s_mov_b32 {sr(sLev)}, {opts.get('lev0', 1)}")
        if PROF == 1: e("s_mov_b32 s88, 0")
        e(f"s_mov_b32 {sr(sSt)}, {(SA if isA else SB) - D}")
        e(f"s_mov_b32 {sr(sDt)}, {opts.get('nodma', 0) if not isA else opts.get('nodmaa', 0)}")
        e(f"s_mov_b32 {sr(sDoff)}, 0")
        e(f"s_mov_b32 {sr(sDlds)}, {sr(sLdsW)}")
        e(f"s_mov_b32 {sr(sRem)}, {62 if PROF == 3 else 900}")
        e(f"s_mov_b32 {sr(sSpin)}, 0x40000")
        if QB: mid_tiles(QB)
        g.wait_tag(("ql", 0))
        qcheck()
        e(f"s_cbranch_vccz L_qok{nm}")
        for k in range(1, NP):
            e(f"s_sub_u32 {sr(sSpin)}, {sr(sSpin)}, 1")
            g.wait_tag(("ql", k))
            qcheck(QS[k])
            for hd in range(nh):
                for i in range(4):
                    e(f"v_mov_b32 {vr(vQl+8*hd+i)}, {vr(QS[k]+8*hd+i)}")
            e(f"s_cbranch_vccz L_qok{nm}")
        g.lab(f"L_qretry{nm}")
        sv = list(g.q)
        qloads(None)
        g.q = sv
        e(f"s_sub_u32 {sr(sSpin)}, {sr(sSpin)}, 1")
        e(f"s_cbranch_scc1 L_qok{nm}")
        e("s_waitcnt vmcnt(0)")
        qcheck()
        e(f"s_cbranch_vccnz L_qretry{nm}")
        g.lab(f"L_qok{nm}")
        if ORG:
            e(f"v_readfirstlane_b32 {sr(sT0)}, {vr(vS)}")
            e(f"v_readfirstlane_b32 {sr(sT1)}, {vr(vS+1)}")
            e(f"s_xor_b32 {sr(sT1)}, {sr(sT1)}, {sr(sT0)}")
            e(f"s_cmp_eq_u32 {sr(sT1)}, {sr(sNon)}")
            e(f"s_cselect_b32 s94, {sr(sT0)}, s94")
        if FIXL < 0:
            e(f"s_lshl_b32 {sr(sSch)}, s94, 4")
            e(f"s_add_u32 {sr(sSch)}, {sr(sSch)}, {(opts.get('t0', 7000) + (opts.get('t0a', 200) if isA else 0))*16//10}")
            if not isA and opts.get("t0c", 0):
                e(f"s_cmp_lt_u32 s2, 72")
                e(f"s_cselect_b32 {sr(sT0)}, {opts.get('t0c')*16//10}, 0")
                e(f"s_sub_u32 {sr(sSch)}, {sr(sSch)}, {sr(sT0)}")
        if PROF == 5:
            e(f"s_sub_u32 s88, 0x40000, {sr(sSpin)}")
        e("s_nop 0")
        for hd in range(nh):
            for i in range(4):
                e(f"v_add_f32_dpp {vr(vTmp+4*hd+i)}, {vr(vQl+8*hd+i)}, {vr(vQl+8*hd+i)} row_ror:8 row_mask:0xf bank_mask:0xf")
        for hd in range(nh):
            e(f"v_cvt_pk_bf16_f32 {vr(vTmp+8+2*hd)}, {vr(vTmp+4*hd)}, {vr(vTmp+4*hd+1)}")
            e(f"v_cvt_pk_bf16_f32 {vr(vTmp+8+2*hd+1)}, {vr(vTmp+4*hd+2)}, {vr(vTmp+4*hd+3)}")
        e("s_nop 1")
        for hd in range(nh):
            qq = vQ2 if hd else vQ
            for j in range(4):
                for dd in range(4):
                    e(f"v_mov_b32_dpp {vr(qq+4*(j>>1)+dd)}, {vr(vTmp+8+2*hd+(dd&1))} row_newbcast:{j+4*(dd>>1)} row_mask:0xf bank_mask:{0xc if j & 1 else 0x3}")
        stamp(2)
        if QB:
            for d in range(QB, D): issue_tile(d)

    def softmax(S, M, L, O, P):
        e(f"v_max3_f32 {vr(vT0)}, {vr(S)}, {vr(S+1)}, {vr(S+2)}")
        e(f"v_max_f32 {vr(vT0)}, {vr(vT0)}, {vr(S+3)}")
        e(f"v_mul_f32 {vr(vT0)}, {sr(sC)}, {vr(vT0)}")
        e(f"v_max_f32 {vr(vMn)}, {vr(vT0)}, {vr(M)}")
        e(f"v_sub_f32 {vr(vA)}, {vr(M)}, {vr(vMn)}")
        for r in range(4):
            e(f"v_fma_f32 {vr(vE+r)}, {vr(S+r)}, {sr(sC)}, -{vr(vMn)}")
        e(f"v_exp_f32 {vr(vA)}, {vr(vA)}")
        for r in range(4):
            e(f"v_exp_f32 {vr(vE+r)}, {vr(vE+r)}")
        e(f"v_mov_b32 {vr(M)}, {vr(vMn)}")
        for i in range(8):
            e(f"v_mul_f32 {vr(O+i)}, {vr(vA)}, {vr(O+i)}")
        e(f"v_fma_f32 {vr(L)}, {vr(L)}, {vr(vA)}, {vr(vE)}")
        e(f"v_add_f32 {vr(vT0)}, {vr(vE+1)}, {vr(vE+2)}")
        e(f"v_add_f32 {vr(L)}, {vr(L)}, {vr(vE+3)}")
        e(f"v_add_f32 {vr(L)}, {vr(L)}, {vr(vT0)}")
        for r in range(4):
            e(f"v_cvt_pk_bf16_f32 {vr(P+2*r)}, {vr(vE+r)}, 0")
            e(f"v_cvt_pk_bf16_f32 {vr(P+2*r+1)}, 0, {vr(vE+r)}")

    def dma_group(lbl, mark, isA):
        e(f"s_cmp_lt_u32 {sr(sDt)}, 9")
        e(f"s_cbranch_scc0 {lbl}")
        if mark and HW: e(f"s_or_b32 {sr(sHist)}, {sr(sHist)}, 2")
        for j in range(4):
            e(f"s_add_u32 m0, {sr(sDlds)}, {4096*j}")
            e("s_nop 0")
            e(f"buffer_load_dwordx4 {vr(vWOj+j)}, {sr(sWO,4)}, {sr(sDoff)} offen lds")
        e(f"s_add_u32 {sr(sDt)}, {sr(sDt)}, 1")
        if FIXL < 0: e(f"s_add_u32 {sr(sSch)}, {sr(sSch)}, {opts.get('tauda' if isA else 'taud', 370 if isA else 260)*16//10}")
        e(f"s_add_u32 {sr(sDoff)}, {sr(sDoff)}, 128")
        e(f"s_add_u32 {sr(sDlds)}, {sr(sDlds)}, 16384")
        g.lab(lbl)

    def step(isA, d, dn, wk, wv, uid, dma, nm, cidx=0):
        P = PA if isA else PB
        LC = True
        if LC and dn is not None:
            e(f"s_cmp_gt_i32 {sr(sSt)}, 0")
            e(f"s_cbranch_scc1 L_c1{uid}")
            e(f"v_mov_b32 {vr(vT0)}, {sr(sCnt)}")
            e(f"v_mov_b32 {vr(vT1)}, 1")
            e("s_mov_b64 exec, 1")
            e(f"ds_add_rtn_u32 {vr(vT1)}, {vr(vT0)}, {vr(vT1)}")
            e("s_mov_b64 exec, -1")
            g.lab(f"L_c1{uid}")
        vwait(wk, "k" + uid, isA)
        if dn is not None and FIXL < 0:
            e(f"s_memrealtime {sr(sNow,2)}")
        for qq in ((vQ, vQ2) if isA else (vQ,)):
            for j in (0, 2, 1, 3):
                dst = vr(qq + 8 + 4 * (j >> 1), 4)
                cc = "0" if j & 1 == 0 else dst
                e(f"v_mfma_f32_16x16x32_bf16 {dst}, {ar(kreg(d,j),4)}, {vr(qq+4*(j&1),4)}, {cc}")
        if dn is not None:
            if LC:
                e(f"s_cmp_gt_i32 {sr(sSt)}, 0")
                e(f"s_cbranch_scc1 L_c2{uid}")
                e("s_waitcnt lgkmcnt(0)")
                e(f"v_readfirstlane_b32 {sr(sCl)}, {vr(vT1)}")
                e(f"s_min_u32 {sr(sT0)}, {sr(sRem)}, {P-1}")
                e(f"s_add_u32 {sr(sCl)}, {sr(sCl)}, {sr(sDyn)}")
                phys(sCl)
                e(f"s_cmp_ge_u32 {sr(sCl)}, {sr(sLim)}")
                e(f"s_cselect_b32 {sr(sRem)}, {sr(sT0)}, {sr(sRem)}")
                e(f"s_cselect_b32 {sr(sOff)}, {OOB}, {sr(sOff)}")
                e(f"s_cmp_lg_u32 {sr(sCl)}, {sr(sTrig)}")
                e(f"s_cbranch_scc1 L_c2{uid}")
                e(f"s_call_b64 {sr(sRet,2)}, L_sig")
                g.lab(f"L_c2{uid}")
            e(f"s_sub_u32 {sr(sSt)}, {sr(sSt)}, 1")
            issue_k(dn)
            e("s_nop 3")
        else:
            e("s_nop 7")
        for qq, S in (((vQ, vS), (vQ2, vS2)) if isA else ((vQ, vS),)):
            for r in range(4):
                a, b = qq + 8 + 2 * r, qq + 9 + 2 * r
                e(f"v_add_f32_dpp {vr(S+r)}, {vr(b)}, {vr(a)} row_ror:8 row_mask:0xf bank_mask:0x3")
                e(f"v_add_f32_dpp {vr(S+r)}, {vr(a)}, {vr(b)} row_ror:8 row_mask:0xf bank_mask:0xc")
        softmax(vS, vM, vL, vO, vP)
        if isA:
            softmax(vS2, vM2, vL2, vO2, vP + 8)
        vwait(wv, "v" + uid, isA)
        if PROF == 3:
            e("s_memrealtime s[86:87]")
        for r in range(4):
            for dd in range(4):
                e(f"v_dot2c_f32_bf16 {vr(vO+2*dd)}, {vr(vreg(d,r)+dd)}, {vr(vP+2*r)}")
                e(f"v_dot2c_f32_bf16 {vr(vO+2*dd+1)}, {vr(vreg(d,r)+dd)}, {vr(vP+2*r+1)}")
                if isA:
                    e(f"v_dot2c_f32_bf16 {vr(vO2+2*dd)}, {vr(vreg(d,r)+dd)}, {vr(vP+8+2*r)}")
                    e(f"v_dot2c_f32_bf16 {vr(vO2+2*dd+1)}, {vr(vreg(d,r)+dd)}, {vr(vP+8+2*r+1)}")
        if PROF == 3:
            e(f"s_add_u32 m0, {sr(sRem)}, 1")
            e("s_waitcnt lgkmcnt(0)")
            e(f"v_writelane_b32 {vr(vTk)}, s86, m0")
        e(f"s_sub_u32 {sr(sRem)}, {sr(sRem)}, 1")
        if dn is None: return
        e(f"s_cbranch_scc1 L_end{nm}")
        issue_v(dn)
        adv()
        if FIXL < 0:
            e("s_waitcnt lgkmcnt(0)")
            e(f"s_add_u32 {sr(sSch)}, {sr(sSch)}, {opts.get('tau', 1100)*16//10}")
            e(f"s_lshl_b32 {sr(sNow)}, {sr(sNow)}, 4")
            e(f"s_sub_i32 {sr(sLev)}, {sr(sNow)}, {sr(sSch)}")
            e(f"s_ashr_i32 {sr(sLev)}, {sr(sLev)}, {opts.get('bsh', 5)+4}")
            e(f"s_min_i32 {sr(sLev)}, {sr(sLev)}, {opts.get('maxl', 4)}")
            if PROF == 1:
                e(f"s_max_i32 {sr(sNow)}, {sr(sLev)}, 0")
                e(f"s_add_u32 s88, s88, {sr(sNow)}")
        if HW: e(f"s_lshr_b32 {sr(sHist)}, {sr(sHist)}, 1")
        for x in range(dma):
            dma_group(f"L_dma{uid}_{x}", x == dma - 1, isA)

    def mainloop(isA):
        nm = "A" if isA else "B"
        P = PA if isA else PB
        WK, WV = 16, 20
        def arrive(k):
            e(f"v_mov_b32 {vr(vT0)}, {LDS_CNT}")
            e(f"v_mov_b32 {vr(vT1)}, 1")
            e("s_mov_b64 exec, 1")
            e(f"ds_add_u32 {vr(vT0)}, {vr(vT1)} offset:{4*k}")
            e("s_mov_b64 exec, -1")
        def wait_all(k):
            e(f"v_mov_b32 {vr(vT0)}, {LDS_CNT}")
            g.lab(f"L_w{nm}{k}")
            e(f"ds_read_b32 {vr(vT1)}, {vr(vT0)} offset:{4*k}")
            e("s_waitcnt lgkmcnt(0)")
            e(f"v_readfirstlane_b32 {sr(sT0)}, {vr(vT1)}")
            e("s_nop 3")
            e(f"s_cmp_lt_u32 {sr(sT0)}, 4")
            e(f"s_cbranch_scc1 L_w{nm}{k}")
        def h_arr0():
            e(f"s_waitcnt vmcnt(36)")
            arrive(0)
        def h_t1():
            stamp(3)
            wait_all(0)
            e(f"s_call_b64 {sr(sRet,2)}, L_T1")
            if isA: arrive(1)
            stamp(4)
        def h_dma2():
            wait_all(1)
            e(f"s_mov_b32 {sr(sDt)}, {opts.get('nodmaa', 0)}")
            e(f"s_mov_b32 {sr(sDoff)}, 147456")
            e(f"s_mov_b32 {sr(sDlds)}, {sr(sLdsW)}")
        def h_arr2():
            e("s_waitcnt vmcnt(36)")
            arrive(2)
        def h_t1b():
            wait_all(2)
            e(f"s_call_b64 {sr(sRet,2)}, L_T1b")
        def h_extra():
            for x in range(2, D):
                step(isA, x, None, 24, 24, f"{nm}x{x}", 0, nm)
        hooks = {4: h_arr0, 5: h_t1, 6: h_dma2, 10: h_arr2, 11: h_t1b} if isA else {10: h_arr0, T1B: h_t1}
        XI = opts.get("xi", 1)
        def mk(xs, then):
            def f():
                for x in xs:
                    step(isA, x, None, 24, 24, f"{nm}x{x}", 0, nm)
                if then: then()
            return f
        xl = list(range(2, D))
        it = 1
        while xl:
            hooks[it] = mk(xl[:XI], hooks.get(it)); xl = xl[XI:]; it += 1
        assert EARLY * 2 <= H3 - 1 - 2 * SB and EARLY >= 1 and EARLY * 4 <= 128 - 4 * SA
        assert (SA if isA else SB) - NX > 2 * max(hooks)
        g.lab(f"L_loop{nm}")
        e(f"s_bitcmp1_b32 {sum(1 << k for k in hooks)}, {sr(sIt)}")
        e(f"s_cbranch_scc0 L_body{nm}")
        ks = sorted(hooks)
        for n, k in enumerate(ks):
            if n < len(ks) - 1:
                e(f"s_cmp_lg_u32 {sr(sIt)}, {k}")
                e(f"s_cbranch_scc1 L_hk{nm}{n+1}")
            hooks[k]()
            if n < len(ks) - 1:
                e(f"s_branch L_body{nm}")
                g.lab(f"L_hk{nm}{n+1}")
        g.lab(f"L_body{nm}")
        for i in range(2):
            step(isA, i, i, WK, WV, f"{nm}{i}", 2 if isA else 1 - i, nm, i)
        e(f"s_add_u32 {sr(sIt)}, {sr(sIt)}, 1")
        if opts.get("pst", 0):
            e(f"s_cmp_lg_u32 {sr(sW)}, 0")
            e(f"s_cbranch_scc1 L_loop{nm}")
            e(f"s_lshl_b32 {sr(sT0)}, s2, 8")
            e(f"s_add_u32 {sr(sT0)}, {sr(sT0)}, 0x1e0000")
            e(f"s_mov_b64 exec, 1")
            e(f"v_mov_b32 {vr(vT0)}, {sr(sIt)}")
            e(f"buffer_store_dword {vr(vT0)}, off, {sr(sWS,4)}, {sr(sT0)} sc1")
            if opts.get("pst") == 2:
                e(f"s_mov_b64 exec, 0xff")
                e(f"s_andn2_b32 {sr(sT0)}, {sr(sT0)}, 0x7ff")
                e(f"buffer_load_dword {vr(vA)}, {vr(vK)}, {sr(sWS,4)}, {sr(sT0)} offen sc1")
            e(f"s_mov_b64 exec, -1")
        e(f"s_branch L_loop{nm}")
        g.lab(f"L_end{nm}")

    def T2(nh, nm):
        vAcc = [64, 100]
        aAop = [0, 16]
        vMh = [136, 144]; vMo = [152, 156]; vLo = [48, 52]; vPk = [56, 60]
        vMM = [12, 14]; vLL = [13, 15]
        vOut = [16, 24]
        vU1, vU2 = vK, vTR
        vMh2 = [32, 40]
        Os = [vO, vO2]; Ms = [vM, vM2]; Ls = [vL, vL2]
        e(f"s_lshl_b32 {sr(sT0)}, {sr(sW)}, 2")
        e(f"v_add_u32 {vr(vT0)}, {sr(sT0)}, {vr(vG)}")
        e(f"v_mul_u32_u24 {vr(vT1)}, {OT_STRIDE}, {vr(vT0)}")
        for hd in range(nh):
            for d in range(4):
                e(f"v_cvt_pk_bf16_f32 {vr(vPk[hd]+d)}, {vr(Os[hd]+2*d)}, {vr(Os[hd]+2*d+1)}")
        e(f"v_lshl_add_u32 {vr(vT1)}, {vr(vCc)}, 4, {vr(vT1)}")
        e(f"v_add_u32 {vr(vT1)}, {LDS_OT}, {vr(vT1)}")
        e(f"v_lshlrev_b32 {vr(vT0)}, 2, {vr(vT0)}")
        e(f"v_add_u32 {vr(vT0)}, {LDS_M}, {vr(vT0)}")
        for hd in range(nh):
            e(f"ds_write_b128 {vr(vT1)}, {vr(vPk[hd],4)} offset:{hd*OT_BYTES}")
            e(f"ds_write_b32 {vr(vT0)}, {vr(Ms[hd])} offset:{hd*128}")
            e(f"ds_write_b32 {vr(vT0)}, {vr(Ls[hd])} offset:{hd*128+64}")
        e(f"v_mul_u32_u24 {vr(vT1)}, {OT_STRIDE}, {vr(vCc)}")
        e(f"v_lshl_add_u32 {vr(vT1)}, {vr(vG)}, 4, {vr(vT1)}")
        e(f"v_add_u32 {vr(vT1)}, {LDS_OT}, {vr(vT1)}")
        e(f"v_lshlrev_b32 {vr(vT0)}, 4, {vr(vG)}")
        e(f"v_add_u32 {vr(vT0)}, {LDS_M}, {vr(vT0)}")
        e(f"v_and_b32 {vr(vU1)}, 32, {vr(vLane)}")
        if nh == 1:
            e(f"s_cmp_gt_u32 {sr(sD1)}, 0x10000000")
            e(f"s_cselect_b32 {sr(sT1)}, 32, 0")
            e(f"v_xor_b32 {vr(vU2)}, {sr(sT1)}, {vr(vU1)}")
        else:
            e(f"v_xor_b32 {vr(vU2)}, 32, {vr(vU1)}")
        e(f"v_add_u32 {vr(vU1)}, {LDS_M}, {vr(vU1)}")
        e(f"v_add_u32 {vr(vU2)}, {LDS_M}, {vr(vU2)}")
        e("s_waitcnt vmcnt(0)")
        if PROF == 3:
            e(f"s_lshl_b32 s88, s2, 10")
            e(f"s_add_u32 s88, s88, 0x300000")
            e(f"v_lshlrev_b32 {vr(vV)}, 2, v0")
            e(f"buffer_store_dword {vr(vTk)}, {vr(vV)}, {sr(sWS,4)}, s88 offen")
        if nh == 1:
            e(f"s_cmp_eq_u32 {sr(sHas)}, 0")
            e(f"s_cbranch_scc1 L_T2b{nm}")
            e(f"v_cmp_ne_u32 vcc, {sr(sNon)}, {vr(vFl)}")
            e(f"v_cmp_ne_u32 {sr(sT2,2)}, {sr(sNon)}, {vr(vFl+1)}")
            e(f"v_mov_b32 {vr(vV)}, {LDS_TK}")
            e(f"s_or_b64 vcc, vcc, {sr(sT2,2)}")
            e(f"s_cselect_b32 {sr(sT2)}, 0, 1")
            e(f"v_mov_b32 {vr(vFl)}, {sr(sT2)}")
            e("s_mov_b64 exec, 1")
            e(f"ds_write_b32 {vr(vV)}, {vr(vFl)}")
            e("s_mov_b64 exec, -1")
            g.lab(f"L_T2b{nm}")
        e("s_waitcnt lgkmcnt(0)")
        e("s_barrier")
        for hd in range(nh):
            for j in range(4):
                e(f"ds_read_b128 {ar(aAop[hd]+4*j,4)}, {vr(vT1)} offset:{hd*OT_BYTES+64*j}")
            for i in range(2):
                e(f"ds_read_b128 {vr(vMh[hd]+4*i,4)}, {vr(vU1)} offset:{hd*128+16*i}")
                e(f"ds_read_b128 {vr(vMh2[hd]+4*i,4)}, {vr(vU2)} offset:{hd*128+16*i}")
            e(f"ds_read_b128 {vr(vMo[hd],4)}, {vr(vT0)} offset:{hd*128}")
            e(f"ds_read_b128 {vr(vLo[hd],4)}, {vr(vT0)} offset:{hd*128+64}")
        e(f"v_cmp_eq_u32 vcc, 16, {vr(vU0)}")
        def side(hd):
            Mh, Mo, Lo, MM, LL = vMh[hd], vMo[hd], vLo[hd], vMM[hd], vLL[hd]
            M2 = vMh2[hd]
            ops = [[f"v_max3_f32 {vr(MM)}, {vr(Mh)}, {vr(Mh+1)}, {vr(Mh+2)}", f"v_max3_f32 {vr(LL)}, {vr(M2)}, {vr(M2+1)}, {vr(M2+2)}",
                    f"v_max3_f32 {vr(MM)}, {vr(MM)}, {vr(Mh+3)}, {vr(Mh+4)}"],
                   [f"v_max3_f32 {vr(LL)}, {vr(LL)}, {vr(M2+3)}, {vr(M2+4)}", f"v_max3_f32 {vr(MM)}, {vr(MM)}, {vr(Mh+5)}, {vr(Mh+6)}",
                    f"v_max3_f32 {vr(LL)}, {vr(LL)}, {vr(M2+5)}, {vr(M2+6)}"],
                   [f"v_max3_f32 {vr(MM)}, {vr(MM)}, {vr(Mh+7)}, {vr(M2+7)}", f"v_max_f32 {vr(MM)}, {vr(MM)}, {vr(LL)}"]]
            for r in range(4):
                ops.append([f"v_sub_f32 {vr(Mo+r)}, {vr(Mo+r)}, {vr(MM)}", f"v_exp_f32 {vr(Mo+r)}, {vr(Mo+r)}"])
            ops.append([f"v_mul_f32 {vr(LL)}, {vr(Mo)}, {vr(Lo)}", f"v_fmac_f32 {vr(LL)}, {vr(Mo+1)}, {vr(Lo+1)}"])
            ops.append([f"v_fmac_f32 {vr(LL)}, {vr(Mo+2)}, {vr(Lo+2)}", f"v_fmac_f32 {vr(LL)}, {vr(Mo+3)}, {vr(Lo+3)}"])
            return ops
        def finish(hd):
            A, Mo, MM, LL, Out = vAcc[hd], vMo[hd], vMM[hd], vLL[hd], vOut[hd]
            ops = []
            for t in range(9):
                a = A + 4*t
                ops.append(f"v_mul_f32 {vr(a)}, {vr(Mo)}, {vr(a)}")
                for r in range(1, 4):
                    ops.append(f"v_fmac_f32 {vr(a)}, {vr(Mo+r)}, {vr(a+r)}")
            vals = [A + 4*t for t in range(9)] + [LL]
            ops.append("s_nop 1")
            for k in range(5):
                ops.append(f"v_permlane16_swap_b32 {vr(vals[2*k])}, {vr(vals[2*k+1])}")
            ops.append("s_nop 1")
            ops.append(f"v_add_f32 {vr(Out+4)}, {vr(vals[8])}, {vr(vals[9])}")
            ops.append(f"v_add_f32 {vr(Out+5)}, {vr(vals[8])}, {vr(vals[9])}")
            ops.append(f"v_add_f32 {vr(Out+6)}, {vr(vals[8])}, {vr(vals[9])}")
            for k in range(4):
                ops.append(f"v_add_f32 {vr(Out+k)}, {vr(vals[2*k])}, {vr(vals[2*k+1])}")
            ops.append(f"v_min_u32 {vr(MM)}, -2, {vr(MM)}")
            ops.append(f"v_permlane32_swap_b32 {vr(Out+5)}, {vr(Out+6)}")
            ops.append(f"v_permlane32_swap_b32 {vr(Out)}, {vr(Out+2)}")
            ops.append(f"v_permlane32_swap_b32 {vr(Out+1)}, {vr(Out+3)}")
            if nh == 1:
                ops.append(f"s_cmp_eq_u32 {sr(sT1)}, 0")
                ops.append(f"s_cbranch_scc0 L_full")
                for k in (2, 3):
                    ops.append(f"v_min_u32 {vr(Out+k)}, -2, {vr(Out+k)}")
                ops.append(f"buffer_store_dwordx2 {vr(Out+2,2)}, {vr(vSt0)}, {sr(sWS,4)}, {sr(sD1)} offen sc1")
                ops.append(f"s_branch L_half")
                ops.append("L_full:")
            else:
                ops.append("s_nop 0")
            ops.append(f"v_add_f32 {vr(Out+4)}, {vr(Out+5)}, {vr(Out+6)}")
            for k in range(2):
                ops.append(f"v_add_f32 {vr(Out+k)}, {vr(Out+k)}, {vr(Out+k+2)}")
            if nh == 1: ops.append("L_half:")
            ops.append(f"v_min_u32 {vr(Out+4)}, -2, {vr(Out+4)}")
            for k in range(2):
                ops.append(f"v_min_u32 {vr(Out+k)}, -2, {vr(Out+k)}")
            so = sr(sD1) if hd else "0"
            ops.append(f"buffer_store_dwordx2 {vr(Out,2)}, {vr(vSt0)}, {sr(sWS,4)}, {so} offen sc1")
            for k in range(1, 4):
                ops.append(f"v_mov_b32_dpp {vr(Out+4+k)}, {vr(Out+4)} quad_perm:[{k},{k},{k},{k}] row_mask:0xf bank_mask:0xf")
            ops.append(f"v_cndmask_b32 {vr(Out+4)}, {vr(Out+4)}, {vr(MM)}, vcc")
            ops.append(f"v_cndmask_b32 {vr(Out+6)}, {vr(Out+6)}, {vr(vV)}, vcc")
            st = f"buffer_store_dwordx4 {vr(Out+4,4)}, {vr(vSt1)}, {sr(sWS,4)}, 0 offen sc1"
            if nh == 2:
                x = "exec_lo" if hd else "exec_hi"
                st = f"s_mov_b32 {x}, 0\n    {st}\n    s_mov_b32 {x}, -1"
            ops.append(st)
            return ops
        e(f"v_mov_b32 {vr(vV)}, {sr(sNon)}")
        pend = []
        for hd in range(nh):
            sd = side(hd)
            for j in range(4):
                if j == 0: e(f"s_waitcnt lgkmcnt({min(15, 10*(nh-hd)-1)})")
                if j == 1: e(f"s_waitcnt lgkmcnt({10*(nh-hd-1)})")
                for t in range(9):
                    cc = "0" if j == 0 else vr(vAcc[hd]+4*t,4)
                    e(f"v_mfma_f32_16x16x32_bf16 {vr(vAcc[hd]+4*t,4)}, {ar(aAop[hd]+4*j,4)}, {rr(wo_reg(hd,t*4+j),4)}, {cc}")
                    if j == 1:
                        for o in sd[t]: e(o)
                    elif pend and not (j == 0 and t < 1):
                        for o in pend[:3]: e(o)
                        pend = pend[3:]
            for o in pend: e(o)
            pend = finish(hd)
        for o in pend: e(o)

    prologue2(False)
    mainloop(False)
    stamp(5)
    T2(1, "B")
    stamp(6)

    g.lab("L_cons")
    sP, sCb, sSl, sRow = sT0, sT1, sT2, sT3
    e(f"s_cmp_ge_u32 {sr(sCi)}, 72")
    e("s_cbranch_scc1 L_done")
    e(f"v_mov_b32 {vr(vT0)}, {LDS_TK}")
    e(f"ds_read_b32 {vr(vT0)}, {vr(vT0)}")
    vHd, vCh, vYo, vMlo, vMx, vRes = 48, 49, 50, 51, 52, 24
    vML, vY, vWt = 32, 64, 53
    e(f"v_lshrrev_b32 {vr(vHd)}, 3, v0")
    e(f"v_and_b32 {vr(vCh)}, 7, v0")
    e(f"s_mov_b32 {sr(sSpin)}, 0x100000")
    e("s_waitcnt lgkmcnt(0)")
    e(f"v_readfirstlane_b32 {sr(sRem)}, {vr(vT0)}")
    e("s_nop 3")
    e(f"s_cmp_eq_u32 {sr(sRem)}, 1")
    e("s_cbranch_scc1 L_pollc_done")
    g.lab("L_pollc")
    e(f"s_sleep {SLEEP}")
    e(f"s_call_b64 {sr(sRet,2)}, L_sig")
    e(f"s_sub_u32 {sr(sSpin)}, {sr(sSpin)}, 1")
    e("s_cbranch_scc1 L_pollc_done")
    e("s_waitcnt vmcnt(0)")
    e(f"v_cmp_ne_u32 vcc, {sr(sNon)}, {vr(vFl)}")
    e(f"v_cmp_ne_u32 {sr(sT2,2)}, {sr(sNon)}, {vr(vFl+1)}")
    e(f"s_or_b64 vcc, vcc, {sr(sT2,2)}")
    e("s_cbranch_scc1 L_pollc")
    g.lab("L_pollc_done")
    e(f"s_cmp_lt_u32 {sr(sCi)}, 36")
    e(f"s_cselect_b32 {sr(sP)}, 1, 0")
    e(f"s_cselect_b32 {sr(sRow)}, 0, 36")
    e(f"s_sub_u32 {sr(sSl)}, {sr(sCi)}, {sr(sRow)}")
    e(f"s_cmp_ge_u32 {sr(sSl)}, 18")
    e(f"s_cselect_b32 {sr(sCb)}, 1, 0")
    e(f"s_cselect_b32 {sr(sRow)}, 18, 0")
    e(f"s_sub_u32 {sr(sSl)}, {sr(sSl)}, {sr(sRow)}")
    e(f"s_lshl_b32 {sr(sOff)}, {sr(sSl)}, 7")
    e(f"s_add_u32 {sr(sOff)}, {sr(sOff)}, {Y_OFF}")
    e(f"s_mov_b32 {sr(sSpin)}, 0x100000")
    e(f"s_cmp_eq_u32 {sr(sP)}, 0")
    e("s_cbranch_scc1 L_finA")
    DP = "row_mask:0xf bank_mask:0xf"
    def consumer(ns, nm):
        if ns == 4: e(f"v_lshl_add_u32 {vr(vMx)}, {vr(vHd)}, 2, {sr(sRow)}")
        else: e(f"v_add_u32 {vr(vMx)}, {sr(sRow)}, {vr(vHd)}")
        e(f"v_mul_u32_u24 {vr(vYo)}, {YROW}, {vr(vMx)}")
        e(f"v_lshl_add_u32 {vr(vYo)}, {vr(vCh)}, 4, {vr(vYo)}")
        e(f"v_add_u32 {vr(vYo)}, {sr(sOff)}, {vr(vYo)}")
        if ns == 4:
            e(f"v_and_b32 {vr(vMlo)}, 3, {vr(vCh)}")
            e(f"v_add_u32 {vr(vMx)}, {vr(vMx)}, {vr(vMlo)}")
        e(f"v_lshlrev_b32 {vr(vMlo)}, 4, {vr(vMx)}")
        e(f"v_add_u32 {vr(vMlo)}, {ML_OFF}, {vr(vMlo)}")
        sMask = 16
        for i in range(ns + 1):
            e(f"s_mov_b64 {sr(sMask+2*i,2)}, -1")
        g.lab(f"L_polld{nm}")
        for i in range(ns + 1):
            e(f"s_mov_b64 exec, {sr(sMask+2*i,2)}")
            e(f"s_cbranch_execz L_pd{nm}{i}")
            if i == ns:
                e(f"buffer_load_dwordx2 {vr(vML,2)}, {vr(vMlo)}, {sr(sWS,4)}, 0 offen sc1")
            elif i < 2:
                e(f"buffer_load_dwordx4 {vr(vY+4*i,4)}, {vr(vYo)}, {sr(sWS,4)}, 0 offen offset:{YROW*i} sc1")
            else:
                e(f"s_movk_i32 {sr(sWoff)}, {YROW*2}")
                e(f"buffer_load_dwordx4 {vr(vY+4*i,4)}, {vr(vYo)}, {sr(sWS,4)}, {sr(sWoff)} offen offset:{YROW*(i-2)} sc1")
            g.lab(f"L_pd{nm}{i}")
        e("s_mov_b64 exec, -1")
        e("s_waitcnt vmcnt(0)")
        e(f"v_max_u32 {vr(vMx)}, {vr(vML)}, {vr(vML+1)}")
        e(f"v_cmp_eq_u32 {sr(sMask+2*ns,2)}, -1, {vr(vMx)}")
        for i in range(ns):
            e(f"v_max3_u32 {vr(vMx)}, {vr(vY+4*i)}, {vr(vY+4*i+1)}, {vr(vY+4*i+2)}")
            e(f"v_max_u32 {vr(vMx)}, {vr(vMx)}, {vr(vY+4*i+3)}")
            e(f"v_cmp_eq_u32 {sr(sMask+2*i,2)}, -1, {vr(vMx)}")
            e(f"s_or_b64 {sr(sEx,2)}, {sr(sEx,2) if i else sr(sMask+2*ns,2)}, {sr(sMask+2*i,2)}")
        e(f"s_cbranch_scc0 L_polld{nm}_done")
        e(f"s_sub_u32 {sr(sSpin)}, {sr(sSpin)}, 1")
        e(f"s_cbranch_scc1 L_polld{nm}_done")
        if DSLEEP:
            e(f"s_sleep {DSLEEP}")
        e(f"s_branch L_polld{nm}")
        g.lab(f"L_polld{nm}_done")
        if ns == 1:
            e(f"v_rcp_f32 {vr(vMx)}, {vr(vML+1)}")
            e("s_nop 0")
            for k in range(4):
                e(f"v_mul_f32 {vr(vY+k)}, {vr(vMx)}, {vr(vY+k)}")
            return
        e(f"v_max_f32_dpp {vr(vMx)}, {vr(vML)}, {vr(vML)} quad_perm:[1,0,3,2] {DP}")
        e("s_nop 1")
        e(f"v_max_f32_dpp {vr(vWt)}, {vr(vMx)}, {vr(vMx)} quad_perm:[2,3,0,1] {DP}")
        e(f"v_sub_f32 {vr(vML)}, {vr(vML)}, {vr(vWt)}")
        e(f"v_exp_f32 {vr(vML)}, {vr(vML)}")
        e("s_nop 0")
        e(f"v_mul_f32 {vr(vML+1)}, {vr(vML)}, {vr(vML+1)}")
        for k in range(2):
            e(f"v_mul_f32_dpp {vr(vY+k)}, {vr(vML)}, {vr(vY+k)} quad_perm:[0,0,0,0] {DP}")
        e(f"v_add_f32_dpp {vr(vMx)}, {vr(vML+1)}, {vr(vML+1)} quad_perm:[1,0,3,2] {DP}")
        for k in range(2, 4):
            e(f"v_mul_f32_dpp {vr(vY+k)}, {vr(vML)}, {vr(vY+k)} quad_perm:[0,0,0,0] {DP}")
        e(f"v_add_f32_dpp {vr(vWt)}, {vr(vMx)}, {vr(vMx)} quad_perm:[2,3,0,1] {DP}")
        e(f"v_rcp_f32 {vr(vWt)}, {vr(vWt)}")
        for i in range(1, ns):
            for k in range(4):
                e(f"v_fmac_f32_dpp {vr(vY+k)}, {vr(vML)}, {vr(vY+4*i+k)} quad_perm:[{i},{i},{i},{i}] {DP}")
        for k in range(4):
            e(f"v_mul_f32 {vr(vY+k)}, {vr(vWt)}, {vr(vY+k)}")
    e(f"s_lshl_b32 {sr(sRow)}, {sr(sCb)}, 7")
    consumer(4, "B")
    e("s_branch L_fin2")
    g.lab("L_finA")
    e(f"s_lshl_b32 {sr(sRow)}, {sr(sCb)}, 5")
    e(f"s_add_u32 {sr(sRow)}, {sr(sRow)}, 256")
    consumer(1, "A")
    g.lab("L_fin2")
    e("s_nop 1")
    for k in range(4):
        e(f"v_add_f32_dpp {vr(vRes+k)}, {vr(vY+k)}, {vr(vY+k)} row_ror:8 row_mask:0xf bank_mask:0xf")
    e("s_nop 1")
    e(f"v_permlane32_swap_b32 {vr(vRes)}, {vr(vRes+1)}")
    e(f"v_permlane32_swap_b32 {vr(vRes+2)}, {vr(vRes+3)}")
    e("s_nop 1")
    e(f"v_add_f32 {vr(vRes)}, {vr(vRes)}, {vr(vRes+1)}")
    e(f"v_add_f32 {vr(vRes+2)}, {vr(vRes+2)}, {vr(vRes+3)}")
    e("s_nop 1")
    e(f"v_permlane16_swap_b32 {vr(vRes)}, {vr(vRes+2)}")
    e(f"v_and_b32 {vr(vT0)}, 1, {vr(vG)}")
    e(f"v_lshlrev_b32 {vr(vT0)}, 1, {vr(vT0)}")
    e(f"v_add_f32 {vr(vRes)}, {vr(vRes)}, {vr(vRes+2)}")
    e(f"v_lshrrev_b32 {vr(vT1)}, 1, {vr(vG)}")
    e(f"v_or_b32 {vr(vT0)}, {vr(vT0)}, {vr(vT1)}")
    e(f"v_lshl_add_u32 {vr(vT0)}, {vr(vCh)}, 2, {vr(vT0)}")
    e(f"v_lshlrev_b32 {vr(vT0)}, 2, {vr(vT0)}")
    e(f"s_lshl_b32 {sr(sRem)}, {sr(sW)}, 7")
    e(f"s_add_u32 {sr(sRem)}, {sr(sRem)}, {LDS_QP}")
    e(f"v_add_u32 {vr(vT0)}, {sr(sRem)}, {vr(vT0)}")
    e(f"ds_write_b32 {vr(vT0)}, {vr(vRes)}")
    e(f"v_lshlrev_b32 {vr(vT1)}, 2, v0")
    e(f"v_add_u32 {vr(vT1)}, {LDS_QP}, {vr(vT1)}")
    e(f"s_mul_i32 {sr(sCb)}, {sr(sCb)}, 1152")
    e(f"s_mul_i32 {sr(sP)}, {sr(sP)}, 576")
    e(f"s_add_u32 {sr(sCb)}, {sr(sCb)}, {sr(sP)}")
    e(f"s_lshr_b32 {sr(sP)}, {sr(sSl)}, 2")
    e(f"s_lshl_b32 {sr(sP)}, {sr(sP)}, 4")
    e(f"s_and_b32 {sr(sRow)}, {sr(sSl)}, 2")
    e(f"s_lshl_b32 {sr(sRow)}, {sr(sRow)}, 7")
    e(f"s_add_u32 {sr(sP)}, {sr(sP)}, {sr(sRow)}")
    e(f"s_and_b32 {sr(sRow)}, {sr(sSl)}, 1")
    e(f"s_lshl_b32 {sr(sRow)}, {sr(sRow)}, 6")
    e(f"s_add_u32 {sr(sP)}, {sr(sP)}, {sr(sRow)}")
    e(f"s_lshl_b32 {sr(sRow)}, {sr(sSl)}, 5")
    e(f"v_and_b32 {vr(vYo)}, 1, v0")
    e(f"v_lshlrev_b32 {vr(vYo)}, 7, {vr(vYo)}")
    e(f"v_lshrrev_b32 {vr(vMlo)}, 1, v0")
    e(f"v_add_u32 {vr(vYo)}, {vr(vYo)}, {vr(vMlo)}")
    e(f"s_cmp_lt_u32 {sr(sSl)}, 16")
    e(f"s_cselect_b32 {sr(sP)}, {sr(sP)}, {sr(sRow)}")
    e(f"s_cselect_b64 vcc, -1, 0")
    e(f"s_add_u32 {sr(sCb)}, {sr(sCb)}, {sr(sP)}")
    e(f"v_cndmask_b32 {vr(vYo)}, v0, {vr(vYo)}, vcc")
    e(f"v_add_u32 {vr(vYo)}, {sr(sCb)}, {vr(vYo)}")
    e(f"v_lshlrev_b32 {vr(vYo)}, 1, {vr(vYo)}")
    e("s_waitcnt lgkmcnt(0)")
    e("s_barrier")
    e(f"s_cmp_lg_u32 {sr(sW)}, 0")
    e("s_cbranch_scc1 L_done")
    e("v_cmp_gt_u32 vcc, 32, v0")
    e(f"s_and_saveexec_b64 {sr(sEx,2)}, vcc")
    for w in range(4):
        e(f"ds_read_b32 {vr(vRes+w)}, {vr(vT1)} offset:{128*w}")
    e("s_waitcnt lgkmcnt(0)")
    e(f"v_add_f32 {vr(vRes)}, {vr(vRes)}, {vr(vRes+1)}")
    e(f"v_add_f32 {vr(vRes+2)}, {vr(vRes+2)}, {vr(vRes+3)}")
    e(f"v_add_f32 {vr(vRes)}, {vr(vRes)}, {vr(vRes+2)}")
    e(f"v_cvt_pk_bf16_f32 {vr(vRes)}, {vr(vRes)}, {vr(vRes)}")
    e(f"buffer_store_short {vr(vRes)}, {vr(vYo)}, {sr(sOut,4)}, 0 offen")
    e("s_mov_b64 exec, -1")
    e("s_branch L_done")

    g.lab("L_A")
    prologue2(True)
    mainloop(True)
    stamp(5)
    T2(2, "A")
    stamp(6)
    e(f"s_add_u32 {sr(sT0)}, s2, {sr(sW)}")
    e(f"s_cmp_lg_u32 {sr(sT0)}, 258")
    e("s_cbranch_scc1 L_done")
    e(f"v_lshlrev_b32 {vr(vT0)}, 4, {vr(vLane)}")
    e(f"v_add_u32 {vr(vT0)}, {ML_OFF + 8}, {vr(vT0)}")
    e(f"v_add_u32 {vr(vT1)}, 4096, {vr(vT0)}")
    e(f"s_mov_b32 {sr(sSpin)}, 0x100000")
    g.lab("L_ep")
    for i in range(5):
        e(f"buffer_load_dword {vr(64+i)}, {vr(vT1 if i == 4 else vT0)}, {sr(sWS,4)}, 0 offen offset:{(1024*i)&4095} sc1")
    e(f"s_sub_u32 {sr(sSpin)}, {sr(sSpin)}, 1")
    e("s_cbranch_scc1 L_done")
    e("s_waitcnt vmcnt(0)")
    for i in range(5):
        e(f"v_xor_b32 {vr(64+i)}, {sr(sNon)}, {vr(64+i)}")
    e(f"v_or3_b32 v64, v64, v65, v66")
    e(f"v_or3_b32 v64, v64, v67, v68")
    e(f"v_cmp_ne_u32 vcc, 0, v64")
    e("s_cbranch_vccnz L_ep")
    e(f"v_mov_b32 v64, {sr(sE)}")
    e("s_mov_b64 exec, 1")
    e(f"buffer_store_dword v64, off, {sr(sWS,4)}, 0 sc1")
    e("s_mov_b64 exec, -1")
    g.lab("L_done")
    if PROF:
        e("s_waitcnt vmcnt(0)")
        stamp(7)
        e("s_getreg_b32 s96, hwreg(HW_REG_XCC_ID)")
        e("s_getreg_b32 s97, hwreg(HW_REG_HW_ID)")
        e("s_waitcnt lgkmcnt(0)")
        e(f"s_lshl_b32 {sr(sT0)}, s2, 2")
        e(f"s_add_u32 {sr(sT0)}, {sr(sT0)}, {sr(sW)}")
        e(f"s_lshl_b32 {sr(sT0)}, {sr(sT0)}, 6")
        e(f"s_add_u32 {sr(sT0)}, {sr(sT0)}, 0x200000")
        e(f"v_mov_b32 v20, {sr(sT0)}")
        for i in range(8):
            e(f"v_mov_b32 v{24+i}, s{80+2*i}")
        e("v_mov_b32 v32, s96")
        e("v_mov_b32 v33, s97")
        e(f"v_cmp_eq_u32 vcc, 0, {vr(vLane)}")
        e("s_and_saveexec_b64 s[98:99], vcc")
        e(f"buffer_store_dwordx4 v[24:27], v20, {sr(sWS,4)}, 0 offen")
        e(f"buffer_store_dwordx4 v[28:31], v20, {sr(sWS,4)}, 0 offen offset:16")
        e(f"buffer_store_dwordx2 v[32:33], v20, {sr(sWS,4)}, 0 offen offset:32")
    g.lab("L_exit")
    e("s_endpgm")

    g.lab("L_sig")
    e(f"s_mov_b32 {sr(sHas)}, 1")
    e(f"s_cmp_ge_u32 {sr(sCi)}, 18")
    e(f"s_cselect_b32 {sr(sT0)}, 2048, 0")
    e(f"s_add_u32 {sr(sT0)}, {sr(sT0)}, {ML_OFF + 8}")
    e(f"s_add_u32 {sr(sT1)}, {sr(sT0)}, 1024")
    e(f"s_cmp_ge_u32 {sr(sCi)}, 36")
    e(f"s_cselect_b32 {sr(sT0)}, {ML_OFF + 8 + 4096}, {sr(sT0)}")
    e(f"s_cselect_b32 {sr(sT1)}, {sr(sT0)}, {sr(sT1)}")
    e(f"v_lshlrev_b32 {vr(vT0)}, 4, {vr(vLane)}")
    e(f"buffer_load_dword {vr(vFl)}, {vr(vT0)}, {sr(sWS,4)}, {sr(sT0)} offen sc1")
    e(f"buffer_load_dword {vr(vFl+1)}, {vr(vT0)}, {sr(sWS,4)}, {sr(sT1)} offen sc1")
    e(f"s_setpc_b64 {sr(sRet,2)}")

    for hd, lb in ((0, "L_T1"), (1, "L_T1b")):
        g.lab(lb)
        e(f"v_add_u32 {vr(vT0)}, 0x10000, {vr(vTR)}")
        e(f"v_add_u32 {vr(vT1)}, 0x20000, {vr(vTR)}")
        for t in range(9):
            for j in range(4):
                for hf in range(2):
                    off = t*16384 + j*4096 + hf*2048
                    a = (vTR, vT0, vT1)[off >> 16]
                    ty, rg = wo_reg(hd, t*4+j)
                    e(f"ds_read_b64_tr_b16 {rr((ty, rg+hf*2),2)}, {vr(a)} offset:{off & 0xffff}")
        e("s_waitcnt lgkmcnt(0)")
        e(f"s_setpc_b64 {sr(sRet,2)}")

    hdr = HEADER
    hdr += f"; @launch grid=(256,1,1) block=(256,1,1) lds={LDS_TOTAL}\n"
    hdr += '.amdgcn_target "amdgcn-amd-amdhsa--gfx950"\n.text\n'
    hdr += f".globl {KN}\n.p2align 8\n.type {KN},@function\n"
    tail = f""".section .rodata,"a"
.p2align 6
.amdhsa_kernel {KN}
  .amdhsa_next_free_vgpr 512
  .amdhsa_next_free_sgpr 102
  .amdhsa_accum_offset 256
  .amdhsa_group_segment_fixed_size 0
  .amdhsa_kernarg_size 104
  .amdhsa_user_sgpr_count 2
  .amdhsa_user_sgpr_kernarg_segment_ptr 1
  .amdhsa_system_sgpr_workgroup_id_x 1
.end_amdhsa_kernel
"""
    return hdr + g.text() + tail

if __name__ == "__main__":
    out = sys.argv[1]
    opts = {}
    for a in sys.argv[2:]:
        k, v = a.split("=")
        opts[k] = int(v)
    open(out, "w").write(gen(opts))
```

```python
import sys, math, struct

KN = "concat_heads__sliding_block_cached__mha_block_cached__decode_kernel"

def f32bits(x):
    return struct.unpack("<I", struct.pack("<f", x))[0]

class Gen:
    def __init__(self):
        self.lines = []
        self.q = []
    def e(self, s):
        self.lines.append("    " + s)
    def lab(self, s):
        self.lines.append(s + ":")
    def vm(self, s, tag=None):
        self.e(s)
        self.q.append(tag)
    def wait_tag(self, tag):
        idx = max(i for i, t in enumerate(self.q) if t == tag)
        n = len(self.q) - 1 - idx
        assert n <= 63, n
        self.e(f"s_waitcnt vmcnt({n})")
    def text(self):
        return "\n".join(self.lines) + "\n"

def vr(a, n=1):
    return f"v{a}" if n == 1 else f"v[{a}:{a+n-1}]"
def ar(a, n=1):
    return f"a{a}" if n == 1 else f"a[{a}:{a+n-1}]"
def sr(a, n=1):
    return f"s{a}" if n == 1 else f"s[{a}:{a+n-1}]"

HEADER = open("concat_heads__sliding_block_cached__mha_block_cached__decode.s.ref").read().split("; Override launch")[0]

NROWS = 320
YROW = 2304
Q_OFF = 256
Y_OFF = Q_OFF + 8 * 32768
ML_OFF = Y_OFF + NROWS * YROW
ORG_OFF = ML_OFF + NROWS * 16
BADROW = 0x40000
LDS_OT = 147456
OT_STRIDE = 272
OT_BYTES = 16 * OT_STRIDE
LDS_M = LDS_OT + 2 * OT_BYTES
LDS_TK = LDS_M + 256
LDS_CNT = LDS_TK + 16
LDS_QP = LDS_TK + 64
LDS_TOTAL = LDS_QP + 2048
CSCALE = (128 ** -0.5) * math.log2(math.e)
OOB = 0x40000000

def gen(opts):
    NX = opts.get("nx", 4)
    D = 2 + NX
    NT = {0: " nt", 1: "", 2: " sc1", 3: " sc0 sc1", 4: " sc1 nt", 5: " sc0 sc1 nt", 6: " sc0", 7: " sc0 nt"}[opts.get("ntm", 0)]
    PROF = opts.get("prof", 0)
    EARLY = opts.get("early", 2)
    SLEEP = opts.get("sleep", 16)
    DSLEEP = opts.get("dsleep", 2)
    PB = PA = 2
    QPOS = opts.get("qpos", 4)
    T0N = opts.get("t0n", 2)
    T1B = opts.get("t1b", 12)
    SB = opts.get("sb", 31)
    WS_BYTES = 0x400000 if PROF else ORG_OFF + 2048
    TK0 = opts.get("tk0", 60)
    FIX = opts.get("fix", 2)
    H3 = opts.get("h3", 72)
    NE = opts.get("ne", 6)
    NO = 18 - NE
    NS, NB = min(NE, NO), max(NE, NO)
    assert NE % 2 == 0 and NB <= 16
    ILV = 1
    RM = opts.get("rm", 0)
    RMA = opts.get("rma", 0)
    AM = opts.get("am", 0)
    AMA = opts.get("ama", AM)
    GR = opts.get("gr", 2)
    SA = opts.get("sa", 27)
    g = Gen()
    e = g.e
    sW = 3
    sRet = 4
    sE, sNon = 6, 7
    sDbg, sOut = 8, 12
    sWoff, sSpin = 34, 35
    sK, sV, sWQ, sX, sWO, sWS = 36, 40, 44, 48, 52, 56
    sH, sKk, sT0, sT1, sT2, sT3 = 60, 61, 62, 63, 64, 65
    sOff, sIt, sC, sSelLo, sSelHi, sLdsW = 66, 67, 68, 69, 70, 71
    sRem, sR0, sR1, sQo, sIsA, sDt, sDoff, sDlds = 72, 73, 74, 75, 76, 77, 78, 79
    sKVo, sWoO, sWoS, sPq = 96, 97, 98, 99
    sEx = 100
    sSt, sCnt, sTrig, sCl = 44, 45, 46, 47
    sDyn, sLim, sHas, sCi = 48, 49, 50, 51
    sInc, sRot, sMask = 61, 60, 100
    sD1 = 74
    sL, sA = 101, 5
    sA = 99
    sHist = 16
    HW = opts.get("hw", 0)
    def vwait(n, uid, isA):
        if not HW:
            e(f"s_waitcnt vmcnt({n})"); return
        if isA:
            e(f"s_waitcnt vmcnt({n+16})")
            e(f"s_cmp_eq_u32 {sr(sHist)}, 3")
            e(f"s_cbranch_scc1 L_vw{uid}")
        e(f"s_waitcnt vmcnt({n+(8 if isA else 4)})")
        e(f"s_cmp_lg_u32 {sr(sHist)}, 0")
        e(f"s_cbranch_scc1 L_vw{uid}")
        e(f"s_waitcnt vmcnt({n})")
        g.lab(f"L_vw{uid}")
    def phys(src):
        e(f"s_lshr_b32 {sr(sOff)}, {sr(src)}, {GR}")
        e(f"s_mul_i32 {sr(sOff)}, {sr(sOff)}, {sr(sA)}")
        e(f"s_add_u32 {sr(sOff)}, {sr(sOff)}, {sr(sRot)}")
        if opts.get("hs", 0):
            HB = opts.get("hs")
            e(f"s_lshl_b32 {sr(sOff)}, {sr(sOff)}, {12+GR}")
            e(f"s_and_b32 {sr(sOff)}, {sr(sOff)}, {sr(sMask)}")
            e(f"s_lshr_b32 {sr(sWoff)}, {sr(sOff)}, {HB}")
            e(f"s_xor_b32 {sr(sOff)}, {sr(sOff)}, {sr(sWoff)}")
            e(f"s_lshr_b32 {sr(sOff)}, {sr(sOff)}, {12+GR}")
            e(f"s_mul_i32 {sr(sOff)}, {sr(sOff)}, {opts.get('hm', 37)}")
        e(f"s_lshl_b32 {sr(sOff)}, {sr(sOff)}, {12+GR}")
        if GR:
            e(f"s_and_b32 {sr(sWoff)}, {sr(src)}, {(1<<GR)-1}")
            e(f"s_lshl_b32 {sr(sWoff)}, {sr(sWoff)}, 12")
            e(f"s_or_b32 {sr(sOff)}, {sr(sOff)}, {sr(sWoff)}")
        e(f"s_and_b32 {sr(sOff)}, {sr(sOff)}, {sr(sMask)}")
    def adv():
        e(f"s_add_u32 {sr(sL)}, {sr(sL)}, {sr(sInc)}")
        phys(sL)
    vLane, vG, vCc = 1, 2, 3
    vK, vV, vSt0, vSt1, vTR, vU0 = 4, 5, 6, 7, 8, 9
    vT0, vT1 = 10, 11
    vM, vL, vM2, vL2 = 12, 13, 14, 15
    vS, vS2 = 16, 20
    vE, vA, vMn = 24, 28, 29
    vTk = 30
    vFl = 88
    vO, vO2 = 32, 40
    vP = 48
    vQ, vQ2 = 64, 80
    vVb = 96
    vWOj = 160
    vXa, vXb = 32, 40
    vWQ, vX = 24, 26
    vQa, vQs = 28, 29
    vQacc = 64
    vW = 164
    vQl = 216
    vTmp = 232
    def kreg(d, j): return d * 16 + j * 4
    def vreg(d, r): return (vVb + d * 16 if d < 4 else 164 + (d - 4) * 16) + r * 4
    aW = 64
    def wo_reg(hd, idx):
        if hd == 0: return ("a", aW + 4 * idx)
        return ("a", 208 + 4 * idx) if idx < 12 else ("v", 160 + 4 * (idx - 12))
    def rr(t, n): return (ar if t[0] == "a" else vr)(t[1], n)
    def stamp(i):
        if PROF == 8:
            if i in (2, 5): e(f"s_memrealtime s[{80+2*i}:{81+2*i}]")
            return
        if (PROF == 1 and i != 4) or (PROF == 6 and i in (0, 7)) or (PROF == 5 and i != 4) or (PROF == 2 and i in (0, 1, 2, 7)) or (PROF == 3 and i in (0, 1, 2, 5, 6, 7)):
            e(f"s_memrealtime s[{80+2*i}:{81+2*i}]")
    def stamp2(i):
        if PROF == 2:
            e(f"s_memrealtime s[{80+2*i}:{81+2*i}]")
    def srd_tail(s, size):
        e(f"s_mov_b32 {sr(s+2)}, {size}")
        e(f"s_mov_b32 {sr(s+3)}, 0x00020000")
    def add64(s, off):
        e(f"s_add_u32 {sr(s)}, {sr(s)}, {off}")
        e(f"s_addc_u32 {sr(s+1)}, {sr(s+1)}, 0")
    KO = [0, 128, 2048, 2176]
    VO = [0, 256, 2048, 2304]
    sLev, sSch, sNow = 17, 18, 20
    sMh, sMf = 22, 24
    FIXL = opts.get("fixl", -1)
    ORG = opts.get("org", 1) if FIXL < 0 else 0
    PSPL = opts.get("pspl", 0)
    def issue_k(d, tag=None, split=True):
        for j in range(4):
            ld = f"buffer_load_dwordx4 {ar(kreg(d,j),4)}, {vr(vK)}, {sr(sK,4)}, {sr(sOff)} offen offset:{KO[j]}{NT}"
            if split is True:
                if FIXL >= 0:
                    e(f"s_mov_b64 exec, {sr(sMf if FIXL > j else sMh,2)}")
                else:
                    e(f"s_cmp_gt_i32 {sr(sLev)}, {j}")
                    e(f"s_cselect_b64 exec, {sr(sMf,2)}, {sr(sMh,2)}")
                g.vm(ld, tag)
                e("s_not_b64 exec, exec")
                g.vm(ld, tag)
            elif j < split:
                e("s_mov_b32 exec_lo, 0x55555555"); e("s_mov_b32 exec_hi, 0x55555555")
                g.vm(ld, tag)
                e("s_not_b64 exec, exec")
                g.vm(ld, tag)
                e("s_mov_b64 exec, -1")
            else:
                g.vm(ld, tag)
        if split is True: e("s_mov_b64 exec, -1")
    def issue_v(d, tag=None):
        for r in range(4):
            g.vm(f"buffer_load_dwordx4 {vr(vreg(d,r),4)}, {vr(vV)}, {sr(sV,4)}, {sr(sOff)} offen offset:{VO[r]}{NT}", tag)
    def issue_tile(d):
        issue_k(d, ("k", d), PSPL); issue_v(d, ("v", d))
        adv()
        if PROF == 6 and d < 6:
            e(f"s_memrealtime s[{82+2*d}:{83+2*d}]")

    g.lab(KN)
    e("s_cmp_ge_u32 s2, 256")
    e("s_cbranch_scc1 L_exit")
    stamp(0)
    if opts.get("fixl", -1) < 0: e("s_memrealtime s[94:95]")
    e("s_load_dwordx16 s[8:23], s[0:1], 0")
    e("s_load_dwordx8 s[24:31], s[0:1], 64")
    e("s_load_dwordx2 s[32:33], s[0:1], 96")
    e(f"v_lshrrev_b32 {vr(vT0)}, 6, v0")
    e(f"v_and_b32 {vr(vLane)}, 63, v0")
    e(f"v_readfirstlane_b32 {sr(sW)}, {vr(vT0)}")
    e(f"v_lshrrev_b32 {vr(vG)}, 4, {vr(vLane)}")
    e(f"v_and_b32 {vr(vCc)}, 15, {vr(vLane)}")
    e(f"s_bitcmp1_b32 s2, 0")
    e(f"s_cselect_b32 {sr(sT0)}, {32*NE}, 0")
    e(f"s_cselect_b32 {sr(sT3)}, {NO}, {NE}")
    e(f"s_bfe_u32 {sr(sT1)}, s2, 0x60001")
    e(f"s_lshl_b32 {sr(sT2)}, {sr(sT1)}, 7")
    e(f"v_lshrrev_b32 {vr(vX)}, 3, v0")
    e(f"v_mul_lo_u32 {vr(vX)}, {vr(vX)}, {sr(sT3)}")
    e(f"v_lshrrev_b32 {vr(vT0)}, 3, {vr(vLane)}")
    e(f"v_and_b32 {vr(vT1)}, 7, {vr(vLane)}")
    e(f"v_lshl_add_u32 {vr(vT1)}, {vr(vT1)}, 4, {sr(sT2)}")
    e(f"v_add_u32 {vr(vX)}, {sr(sT0)}, {vr(vX)}")
    e(f"v_lshl_add_u32 {vr(vWQ)}, {vr(vX)}, 13, {vr(vT1)}")
    e(f"v_lshlrev_b32 {vr(vX)}, 1, {vr(vX)}")
    e(f"s_lshr_b32 {sr(sPq)}, s2, 7")
    e(f"s_lshl_b32 {sr(sT0)}, {sr(sPq)}, 2")
    e(f"s_and_b32 {sr(sT2)}, {sr(sW)}, 2")
    e(f"s_add_u32 {sr(sT0)}, {sr(sT0)}, {sr(sT2)}")
    e(f"s_and_b32 {sr(sT2)}, s2, 1")
    e(f"s_add_u32 {sr(sT0)}, {sr(sT0)}, {sr(sT2)}")
    e(f"s_lshl_b32 {sr(sT0)}, {sr(sT0)}, 15")
    e(f"s_lshl_b32 {sr(sT1)}, {sr(sT1)}, 9")
    e(f"s_add_u32 {sr(sT0)}, {sr(sT0)}, {sr(sT1)}")
    e(f"s_and_b32 {sr(sT2)}, {sr(sW)}, 1")
    e(f"s_lshl_b32 {sr(sT2)}, {sr(sT2)}, 8")
    e(f"s_add_u32 {sr(sT0)}, {sr(sT0)}, {sr(sT2)}")
    e(f"s_add_u32 {sr(sT0)}, {sr(sT0)}, {Q_OFF}")
    e(f"v_and_b32 {vr(vT1)}, 7, {vr(vLane)}")
    e(f"v_lshl_add_u32 {vr(vQs)}, {vr(vT1)}, 5, {sr(sT0)}")
    e(f"v_lshl_add_u32 {vr(vQs)}, {vr(vT0)}, 4, {vr(vQs)}")
    e(f"v_cmp_gt_u32 vcc, 16, {vr(vLane)}")
    e(f"v_mov_b32 {vr(vT1)}, {OOB}")
    e(f"v_lshrrev_b32 {vr(vK)}, 1, {vr(vCc)}")
    e(f"v_and_b32 {vr(vV)}, 1, {vr(vCc)}")
    e(f"v_cndmask_b32 {vr(vQs)}, {vr(vT1)}, {vr(vQs)}, vcc")
    e(f"v_lshlrev_b32 {vr(vK)}, 8, {vr(vK)}")
    e(f"v_lshl_add_u32 {vr(vK)}, {vr(vV)}, 6, {vr(vK)}")
    e(f"v_lshl_add_u32 {vr(vK)}, {vr(vG)}, 4, {vr(vK)}")
    e(f"v_lshlrev_b32 {vr(vV)}, 9, {vr(vG)}")
    e(f"v_lshl_add_u32 {vr(vV)}, {vr(vCc)}, 4, {vr(vV)}")
    e(f"s_and_b32 {sr(sT0)}, s2, 7")
    e(f"s_lshr_b32 {sr(sT1)}, s2, 3")
    e(f"s_cmp_ge_u32 {sr(sT1)}, 28")
    e("s_cbranch_scc1 L_setA")
    e(f"s_mov_b32 {sr(sIsA)}, 0")
    if opts.get("xmap", 0):
        e(f"s_mul_i32 {sr(sH)}, s2, 9363")
        e(f"s_lshr_b32 {sr(sH)}, {sr(sH)}, 16")
        e(f"s_mul_i32 {sr(sT3)}, {sr(sH)}, 7")
        e(f"s_sub_u32 {sr(sKk)}, s2, {sr(sT3)}")
    else:
        e(f"s_mul_i32 {sr(sT2)}, {sr(sT1)}, 37")
        e(f"s_lshr_b32 {sr(sT2)}, {sr(sT2)}, 8")
        e(f"s_mul_i32 {sr(sT3)}, {sr(sT2)}, 7")
        e(f"s_sub_u32 {sr(sKk)}, {sr(sT1)}, {sr(sT3)}")
        e(f"s_lshl_b32 {sr(sT0)}, {sr(sT0)}, 2")
        e(f"s_add_u32 {sr(sH)}, {sr(sT0)}, {sr(sT2)}")
    e(f"s_lshl_b32 {sr(sT0)}, {sr(sKk)}, 2")
    e(f"s_add_u32 {sr(sT0)}, {sr(sT0)}, {sr(sW)}")
    e(f"s_cmp_ge_u32 {sr(sT0)}, 14")
    e(f"s_cselect_b32 {sr(sT1)}, 14, 0")
    e(f"s_cselect_b32 {sr(sT2)}, 32, 0")
    e(f"s_cselect_b32 {sr(sQo)}, {Q_OFF + 6*32768}, 0")
    e(f"s_cselect_b32 {sr(sT3)}, 0, {Q_OFF + 4*32768}")
    e(f"s_add_u32 {sr(sQo)}, {sr(sQo)}, {sr(sT3)}")
    e(f"s_lshl_b32 {sr(sT3)}, {sr(sH)}, 10")
    e(f"s_add_u32 {sr(sQo)}, {sr(sQo)}, {sr(sT3)}")
    e(f"s_sub_u32 {sr(sT0)}, {sr(sT0)}, {sr(sT1)}")
    if True:
        e(f"s_cmp_eq_u32 {sr(sKk)}, 3")
        e(f"s_cselect_b32 {sr(sT1)}, 1, 3")
        e(f"s_cselect_b32 {sr(sT3)}, 2, 0")
        e(f"s_and_b32 {sr(sT3)}, {sr(sT3)}, {sr(sW)}")
        e(f"s_lshl_b32 {sr(sDlds)}, {sr(sT3)}, 1")
        e(f"s_and_b32 {sr(sT3)}, {sr(sT1)}, {sr(sW)}")
        e(f"s_sub_u32 {sr(sT0)}, {sr(sT0)}, {sr(sT3)}")
        e(f"s_add_u32 {sr(sT1)}, {sr(sT1)}, 1")
        e(f"s_add_u32 {sr(sDoff)}, {sr(sT0)}, {sr(sT1)}")
        FQ = -(-(512 - H3) * 1024 // 12)
        OFFQ = 512 * 1024 - 14 * FQ
        assert OFFQ <= 0
        e(f"s_cmp_lg_u32 {sr(sT2)}, 0")
        e(f"s_cselect_b32 {sr(sDt)}, {OFFQ}, 0")
        for r in (sDoff, sT0):
            e(f"s_mul_i32 {sr(r)}, {sr(r)}, {FQ}")
            e(f"s_add_i32 {sr(r)}, {sr(r)}, {sr(sDt)}")
            e(f"s_max_i32 {sr(r)}, {sr(r)}, 0")
            e(f"s_lshr_b32 {sr(r)}, {sr(r)}, 10")
            e(f"s_min_u32 {sr(r)}, {sr(r)}, 512")
        stf = lambda u, b: min(512, max(0, u * FQ + (OFFQ if b else 0)) >> 10)
        sys.stderr.write(f"ranges b0 {[stf(u,0) for u in (0,4,8,12,14)]} b1 {[stf(u,1) for u in (0,2,6,10,14)]}\n")
        if not ILV:
            e(f"s_mul_i32 {sr(sT3)}, {sr(sT3)}, {SB}")
        e(f"s_add_u32 {sr(sT3)}, {sr(sT3)}, {sr(sT0)}")
        e(f"s_mov_b32 {sr(sL)}, {sr(sT3)}")
        e(f"s_mov_b32 {sr(sMask)}, {sr(sT1)}")
        e(f"s_mul_i32 {sr(sT1)}, {sr(sT1)}, {SB}")
        e(f"s_add_u32 {sr(sIt)}, {sr(sT1)}, {sr(sT0)}")
    e(f"s_mov_b32 {sr(sRem)}, 512")
    e(f"s_add_u32 {sr(sT2)}, {sr(sT2)}, {sr(sH)}")
    e(f"s_lshl_b32 {sr(sKVo)}, {sr(sT2)}, 21")
    e(f"s_lshl_b32 {sr(sT0)}, {sr(sH)}, 2")
    e(f"s_add_u32 {sr(sR0)}, {sr(sT0)}, {sr(sKk)}")
    e(f"s_add_u32 {sr(sR1)}, {sr(sT0)}, 128")
    e(f"s_cmp_gt_u32 {sr(sKk)}, 3")
    e(f"s_cselect_b32 {sr(sT3)}, 125, 0")
    e(f"s_add_u32 {sr(sR0)}, {sr(sR0)}, {sr(sT3)}")
    e(f"s_cmp_eq_u32 {sr(sKk)}, 3")
    e(f"s_cselect_b32 {sr(sR1)}, {sr(sR1)}, {BADROW}")
    e(f"s_mul_i32 {sr(sWoO)}, {sr(sH)}, 147456")
    e(f"s_mov_b32 {sr(sWoS)}, 147456")
    e(f"s_mov_b32 {sr(sInc)}, {sr(sMask) if ILV else 1}")
    e(f"s_mul_i32 {sr(sRot)}, {sr(sT2)}, {RM}")
    e(f"s_mul_i32 {sr(sOff)}, {sr(sT2)}, {2*AM}")
    SM = opts.get("sm", 0)
    if SM == 1:
        e(f"s_and_b32 {sr(sOff)}, {sr(sT2)}, 15")
        e(f"s_lshl_b32 {sr(sOff)}, {sr(sOff)}, 1")
        e(f"s_and_b32 {sr(sT3)}, {sr(sT2)}, 16")
        e(f"s_lshl_b32 {sr(sT3)}, {sr(sT3)}, 2")
        e(f"s_add_u32 {sr(sOff)}, {sr(sOff)}, {sr(sT3)}")
        e(f"s_add_u32 {sr(sOff)}, {sr(sOff)}, 16")
    if SM == 2:
        e(f"s_and_b32 {sr(sT3)}, {sr(sT2)}, 31")
        e(f"s_lshl_b32 {sr(sT3)}, 1, {sr(sT3)}")
        e(f"s_and_b32 {sr(sT0)}, {sr(sT3)}, {(1<<2)|(1<<4)}")
        e(f"s_cselect_b32 {sr(sT0)}, 20, 0")
        e(f"s_add_u32 {sr(sOff)}, {sr(sOff)}, {sr(sT0)}")
        e(f"s_and_b32 {sr(sT0)}, {sr(sT3)}, {(1<<27)|(1<<29)}")
        e(f"s_cselect_b32 {sr(sT0)}, 20, 0")
        e(f"s_sub_u32 {sr(sOff)}, {sr(sOff)}, {sr(sT0)}")
    if SM == 3:
        e(f"s_mov_b32 {sr(sOff)}, {opts.get('ca', 27) - 1}")
    e("s_branch L_common")
    g.lab("L_setA")
    e(f"s_mov_b32 {sr(sIsA)}, 1")
    e(f"s_sub_u32 {sr(sT1)}, {sr(sT1)}, 28")
    e(f"s_lshl_b32 {sr(sT0)}, {sr(sT0)}, 1")
    e(f"s_lshr_b32 {sr(sT2)}, {sr(sT1)}, 1")
    e(f"s_add_u32 {sr(sH)}, {sr(sT0)}, {sr(sT2)}")
    e(f"s_and_b32 {sr(sT1)}, {sr(sT1)}, 1")
    e(f"s_lshl_b32 {sr(sQo)}, {sr(sT1)}, 16")
    e(f"s_lshl_b32 {sr(sT3)}, {sr(sH)}, 11")
    e(f"s_add_u32 {sr(sQo)}, {sr(sQo)}, {sr(sT3)}")
    e(f"s_add_u32 {sr(sQo)}, {sr(sQo)}, {Q_OFF}")
    e(f"s_lshl_b32 {sr(sT2)}, {sr(sT1)}, 4")
    e(f"s_add_u32 {sr(sT2)}, {sr(sT2)}, {sr(sH)}")
    e(f"s_lshl_b32 {sr(sR0)}, {sr(sT2)}, 1")
    e(f"s_add_u32 {sr(sR0)}, {sr(sR0)}, 256")
    e(f"s_add_u32 {sr(sR1)}, {sr(sR0)}, 1")
    e(f"s_mul_i32 {sr(sT3)}, {sr(sT2)}, {RMA}")
    e(f"s_mul_i32 {sr(sOff)}, {sr(sT2)}, {2*AMA}")
    e(f"s_lshl_b32 {sr(sT2)}, {sr(sT2)}, 21")
    e(f"s_mul_i32 {sr(sL)}, {sr(sW)}, {1 if ILV else SA}")
    e(f"s_mov_b32 {sr(sDlds)}, 0")
    e(f"s_mov_b32 {sr(sDoff)}, 128")
    e(f"s_mov_b32 {sr(sIt)}, {4*SA}")
    e(f"s_add_u32 {sr(sKVo)}, {sr(sT2)}, 0x180000")
    e(f"s_mov_b32 {sr(sRem)}, 128")
    e(f"s_mul_i32 {sr(sWoO)}, {sr(sH)}, 294912")
    e(f"s_mov_b32 {sr(sWoS)}, 294912")
    e(f"s_mov_b32 {sr(sInc)}, {4 if ILV else 1}")
    e(f"s_mov_b32 {sr(sRot)}, {sr(sT3)}")
    g.lab("L_common")
    srd_tail(sWQ, 576 * 8192)
    srd_tail(sX, 2304)
    e(f"s_lshl_b32 {sr(sK+2)}, {sr(sRem)}, 12"); e(f"s_mov_b32 {sr(sK+3)}, 0x00020000")
    e(f"s_lshl_b32 {sr(sV+2)}, {sr(sRem)}, 12"); e(f"s_mov_b32 {sr(sV+3)}, 0x00020000")
    srd_tail(sWS, WS_BYTES)
    e(f"s_sub_u32 {sr(sMask)}, {sr(sK+2)}, 1")
    e(f"s_cmp_eq_u32 {sr(sPq)}, 0")
    e("s_waitcnt lgkmcnt(0)")
    stamp2(3)
    e(f"s_cselect_b64 {sr(sWQ,2)}, s[14:15], s[24:25]")
    e(f"s_cselect_b64 {sr(sX,2)}, s[8:9], s[18:19]")
    e(f"s_load_dword {sr(sE)}, s[32:33], 0")
    g.q = []
    def wq_load(n):
        so = "0" if n == 0 else sr(sWoff)
        if n: e(f"s_mov_b32 {sr(sWoff)}, {n*8192}")
        g.vm(f"buffer_load_dwordx4 {vr(vW+4*n,4)}, {vr(vWQ)}, {sr(sWQ,4)}, {so} offen", ("wq", n))
    bigbit = 1 if NO > NE else 0
    e(f"s_bitcmp{bigbit}_b32 s2, 0")
    e("s_cbranch_scc0 L_wq1")
    for n in range(NS, NB): wq_load(n)
    g.lab("L_wq1")
    for n in range(NS): wq_load(n)
    e(f"s_mov_b32 {sr(sWS)}, s32"); e(f"s_mov_b32 {sr(sWS+1)}, s33")
    vU1 = vT1
    e(f"s_mul_i32 {sr(sT0)}, {sr(sR0)}, {YROW}")
    e(f"s_mul_i32 {sr(sT1)}, {sr(sR1)}, {YROW}")
    e(f"v_mov_b32 {vr(vSt0)}, {sr(sT0)}")
    e(f"v_mov_b32 {vr(vSt1)}, {sr(sT1)}")
    e(f"v_cmp_lt_u32 vcc, 31, {vr(vLane)}")
    e(f"v_and_b32 {vr(vU0)}, 31, {vr(vLane)}")
    e(f"s_lshl_b32 {sr(sT2)}, {sr(sW)}, 6")
    e(f"v_cndmask_b32 {vr(vSt1)}, {vr(vSt0)}, {vr(vSt1)}, vcc")
    e(f"s_add_u32 {sr(sT2)}, {sr(sT2)}, {2048 + Y_OFF}")
    e(f"v_lshl_add_u32 {vr(vSt1)}, {vr(vCc)}, 2, {vr(vSt1)}")
    e(f"v_add_u32 {vr(vSt1)}, {sr(sT2)}, {vr(vSt1)}")
    e(f"s_lshl_b32 {sr(sT2)}, {sr(sW)}, 9")
    e(f"s_add_u32 {sr(sT2)}, {sr(sT2)}, {Y_OFF}")
    e(f"s_add_u32 {sr(sT2)}, {sr(sT2)}, {sr(sT0)}")
    e(f"v_lshl_add_u32 {vr(vSt0)}, {vr(vLane)}, 3, {sr(sT2)}")
    e(f"s_lshl_b32 {sr(sT3)}, {sr(sR1)}, 4")
    e(f"s_sub_u32 {sr(sD1)}, {sr(sT1)}, {sr(sT0)}")
    for i in range(4):
        e(f"v_mov_b32 {vr(vTmp+i)}, -1")
    g.vm(f"buffer_store_dwordx2 {vr(vTmp,2)}, {vr(vSt0)}, {sr(sWS,4)}, 0 offen sc1", "clr")
    g.vm(f"buffer_store_dwordx2 {vr(vTmp,2)}, {vr(vSt0)}, {sr(sWS,4)}, {sr(sD1)} offen sc1", "clr")
    e(f"s_lshl_b32 {sr(sT0)}, {sr(sR0)}, 4")
    e(f"s_add_u32 {sr(sT0)}, {sr(sT0)}, {ML_OFF}")
    e(f"s_add_u32 {sr(sT1)}, {sr(sT3)}, {ML_OFF}")
    e(f"s_cmp_eq_u32 {sr(sW)}, 0")
    e(f"s_cselect_b32 {sr(sT0)}, {sr(sT0)}, {OOB}")
    e(f"s_cselect_b32 {sr(sT1)}, {sr(sT1)}, {OOB}")
    e(f"v_mov_b32 {vr(vT0)}, {sr(sT0)}")
    e(f"v_mov_b32 {vr(vU1)}, {sr(sT1)}")
    e(f"v_cndmask_b32 {vr(vT0)}, {vr(vT0)}, {vr(vU1)}, vcc")
    e(f"v_and_b32 {vr(vU1)}, 19, {vr(vLane)}")
    e(f"v_cmp_eq_u32 vcc, 0, {vr(vU1)}")
    e(f"v_mov_b32 {vr(vU1)}, {OOB}")
    e("s_nop 0")
    e(f"v_cndmask_b32 {vr(vSt1)}, {vr(vU1)}, {vr(vSt1)}, vcc")
    g.vm(f"buffer_store_dwordx4 {vr(vTmp,4)}, {vr(vSt1)}, {sr(sWS,4)}, 0 offen sc1", "clr")
    e(f"v_cmp_eq_u32 vcc, 16, {vr(vU0)}")
    e("s_nop 1")
    e(f"v_cndmask_b32 {vr(vSt1)}, {vr(vSt1)}, {vr(vT0)}, vcc")
    e(f"v_cndmask_b32 {vr(vQs)}, {vr(vQs)}, {vr(vT0)}, vcc")
    for xr, off in ((vXa, 0), (vXb, 1152)):
        g.vm(f"buffer_load_dwordx4 {vr(xr,4)}, {vr(vX)}, {sr(sX,4)}, 0 offen offset:{off}", "x")
        g.vm(f"buffer_load_dwordx4 {vr(xr+4,4)}, {vr(vX)}, {sr(sX,4)}, 0 offen offset:{off+16}", "x")
    e(f"s_cmp_eq_u32 {sr(sIsA)}, 1")
    e(f"s_cselect_b64 {sr(sK,2)}, s[10:11], s[20:21]")
    e(f"s_cselect_b64 {sr(sV,2)}, s[12:13], s[22:23]")
    e(f"s_cselect_b64 {sr(sWO,2)}, s[16:17], s[26:27]")
    add64(sK, sr(sKVo)); add64(sV, sr(sKVo))
    e(f"s_add_u32 {sr(sA)}, {sr(sOff)}, 1")
    phys(sL)
    for d in range(T0N): issue_tile(d)
    stamp2(4)
    add64(sWO, sr(sWoO))
    e(f"s_mov_b32 {sr(sWO+2)}, {sr(sWoS)}"); e(f"s_mov_b32 {sr(sWO+3)}, 0x00020000")
    e(f"s_mov_b32 {sr(sC)}, 0x{f32bits(CSCALE):08x}")
    e(f"s_mov_b32 {sr(sSelLo)}, 0x05040100")
    e(f"s_mov_b32 {sr(sSelHi)}, 0x07060302")
    e(f"s_lshl_b32 {sr(sLdsW)}, {sr(sW)}, 10")
    e(f"v_bfe_u32 {vr(vT0)}, {vr(vLane)}, 3, 2")
    e(f"v_xor_b32 {vr(vT0)}, {sr(sW)}, {vr(vT0)}")
    e(f"v_lshlrev_b32 {vr(vT0)}, 5, {vr(vT0)}")
    e(f"v_lshrrev_b32 {vr(vT1)}, 2, {vr(vLane)}")
    e(f"v_lshl_add_u32 {vr(vT0)}, {vr(vT1)}, 7, {vr(vT0)}")
    e(f"v_and_b32 {vr(vT1)}, 3, {vr(vLane)}")
    e(f"v_lshl_add_u32 {vr(vTR)}, {vr(vT1)}, 3, {vr(vT0)}")
    e(f"s_mov_b32 {sr(sOut)}, s28"); e(f"s_mov_b32 {sr(sOut+1)}, s29"); srd_tail(sOut, 4608)
    e(f"s_mov_b32 {sr(sDbg)}, s30"); e(f"s_mov_b32 {sr(sDbg+1)}, s31"); srd_tail(sDbg, 256)
    for i in range(16):
        e(f"v_mov_b32 {vr(vQacc+i)}, 0")
    e(f"v_and_b32 {vr(vT0)}, 3, {vr(vCc)}")
    e(f"v_lshlrev_b32 {vr(vT0)}, 8, {vr(vT0)}")
    e(f"v_lshl_add_u32 {vr(vT0)}, {vr(vG)}, 6, {vr(vT0)}")
    e(f"v_bfe_u32 {vr(vT1)}, {vr(vCc)}, 2, 1")
    e(f"v_lshl_add_u32 {vr(vT0)}, {vr(vT1)}, 5, {vr(vT0)}")
    e(f"v_lshrrev_b32 {vr(vT1)}, 3, {vr(vCc)}")
    e(f"v_lshl_add_u32 {vr(vT0)}, {vr(vT1)}, 15, {vr(vT0)}")
    e(f"v_add_u32 {vr(vQa)}, {sr(sQo)}, {vr(vT0)}")
    e(f"v_bfe_u32 {vr(vT0)}, {vr(vLane)}, 3, 2")
    e(f"v_lshrrev_b32 {vr(vT1)}, 5, {vr(vLane)}")
    e(f"v_lshl_add_u32 {vr(vT0)}, {vr(vT1)}, 3, {vr(vT0)}")
    e(f"s_and_b32 {sr(sT0)}, {sr(sW)}, 1")
    e(f"s_lshl_b32 {sr(sT0)}, {sr(sT0)}, 4")
    e(f"s_lshr_b32 {sr(sT1)}, {sr(sW)}, 1")
    e(f"s_lshl_b32 {sr(sT1)}, {sr(sT1)}, 2")
    e(f"s_add_u32 {sr(sT0)}, {sr(sT0)}, {sr(sT1)}")
    e(f"v_add_u32 {vr(vT0)}, {sr(sT0)}, {vr(vT0)}")
    e(f"v_mul_u32_u24 {vr(vWOj)}, 1152, {vr(vT0)}")
    e(f"v_lshlrev_b32 {vr(vT1)}, 1, {vr(vG)}")
    e(f"v_and_b32 {vr(vT0)}, 7, {vr(vLane)}")
    e(f"v_xor_b32 {vr(vT1)}, {vr(vT1)}, {vr(vT0)}")
    e(f"v_lshl_add_u32 {vr(vWOj)}, {vr(vT1)}, 4, {vr(vWOj)}")
    for j in range(1, 4):
        e(f"v_add_u32 {vr(vWOj+j)}, {36864*j}, {vr(vWOj)}")
    vLw, vLr = vTmp + 14, vTmp + 15
    e(f"s_lshl_b32 {sr(sT0)}, {sr(sW)}, 9")
    e(f"s_add_u32 {sr(sT0)}, {sr(sT0)}, {LDS_QP}")
    e(f"v_and_b32 {vr(vT0)}, 7, {vr(vLane)}")
    e(f"v_lshl_add_u32 {vr(vLw)}, {vr(vT0)}, 5, {sr(sT0)}")
    e(f"v_and_b32 {vr(vT1)}, 1, {vr(vG)}")
    e(f"v_lshl_add_u32 {vr(vLw)}, {vr(vT1)}, 4, {vr(vLw)}")
    e(f"v_lshrrev_b32 {vr(vT1)}, 1, {vr(vG)}")
    e(f"v_lshl_add_u32 {vr(vLw)}, {vr(vT1)}, 8, {vr(vLw)}")
    e(f"s_lshl_b32 {sr(sT0)}, {sr(sW)}, 7")
    e(f"s_add_u32 {sr(sT0)}, {sr(sT0)}, {LDS_QP}")
    e(f"v_lshl_add_u32 {vr(vLr)}, {vr(vT0)}, 4, {sr(sT0)}")
    e(f"v_bfe_u32 {vr(vT0)}, {vr(vLane)}, 3, 1")
    e(f"v_cmp_eq_u32 vcc, 1, {vr(vT0)}")
    e("s_waitcnt lgkmcnt(0)")
    e(f"s_add_u32 {sr(sE)}, {sr(sE)}, 1")
    e(f"s_mul_i32 {sr(sNon)}, {sr(sE)}, 0x9E3779B1")
    e(f"s_or_b32 {sr(sNon)}, {sr(sNon)}, 1")
    e(f"v_mov_b32 {vr(vT1)}, {sr(sNon)}")
    vXm = vTmp + 13
    e(f"v_cndmask_b32 {vr(vXm)}, 0, {vr(vT1)}, vcc")
    vZ = vTmp + 8
    for i in range(4):
        e(f"v_mov_b32 {vr(vZ+i)}, 0")
    vPl = vTmp + 4
    e(f"v_mov_b32 {vr(vPl)}, -1")
    e(f"v_mov_b32 {vr(vPl+1)}, -1")
    if ORG:
        e(f"s_add_u32 {sr(sT0)}, s2, {sr(sW)}")
        e(f"s_cmp_eq_u32 {sr(sT0)}, 0")
        e(f"s_cselect_b32 exec_hi, 0xffff, 0")
        e(f"s_mov_b32 exec_lo, 0")
        e(f"s_xor_b32 {sr(sT0)}, s94, {sr(sNon)}")
        e(f"v_mov_b32 {vr(vPl)}, s94")
        e(f"v_mov_b32 {vr(vPl+1)}, {sr(sT0)}")
        e(f"v_lshlrev_b32 {vr(vQs)}, 7, {vr(vCc)}")
        e(f"v_add_u32 {vr(vQs)}, {ORG_OFF}, {vr(vQs)}")
        e(f"s_mov_b64 exec, -1")
    e(f"v_mov_b32 {vr(vT0)}, {LDS_CNT}")
    stamp2(5)
    g.wait_tag("x")
    stamp2(6)
    def wq_pair(p):
        a, b = vW + 8 * p, vW + 8 * p + 4
        for d in range(4):
            t0, t1 = vTmp + 2 * (d & 1), vTmp + 2 * (d & 1) + 1
            e(f"v_perm_b32 {vr(t0)}, {vr(b+d)}, {vr(a+d)}, {sr(sSelLo)}")
            e(f"v_perm_b32 {vr(t1)}, {vr(b+d)}, {vr(a+d)}, {sr(sSelHi)}")
            e(f"v_dot2c_f32_bf16 {vr(vQacc+2*d)}, {vr(t0)}, {vr(vXa+p)}")
            e(f"v_dot2c_f32_bf16 {vr(vQacc+2*d+1)}, {vr(t1)}, {vr(vXa+p)}")
            e(f"v_dot2c_f32_bf16 {vr(vQacc+8+2*d)}, {vr(t0)}, {vr(vXb+p)}")
            e(f"v_dot2c_f32_bf16 {vr(vQacc+8+2*d+1)}, {vr(t1)}, {vr(vXb+p)}")
    e(f"s_bitcmp{bigbit}_b32 s2, 0")
    e("s_cbranch_scc0 L_wq2")
    for p in range(NS // 2, NB // 2): wq_pair(p)
    g.lab("L_wq2")
    MID = opts.get("mid", 0)
    if MID == 1: issue_tile(T0N)
    for p in range(NS // 2):
        wq_pair(p)
        if MID == 2 and p == 0: issue_k(T0N, ("k", T0N))
        if MID == 2 and p == 1: issue_v(T0N, ("v", T0N)); adv()
    if MID == 3: issue_tile(T0N)
    e("s_nop 2")
    for i in range(8):
        e(f"v_permlane32_swap_b32 {vr(vQacc+i)}, {vr(vQacc+i+8)}")
    e("s_nop 1")
    for i in range(8):
        e(f"v_add_f32 {vr(vQacc+i)}, {vr(vQacc+i)}, {vr(vQacc+i+8)}")
    e("s_nop 1")
    for i in range(4):
        e(f"v_permlane16_swap_b32 {vr(vQacc+i)}, {vr(vQacc+i+4)}")
    e("s_nop 1")
    for i in range(4):
        e(f"v_add_f32 {vr(vQacc+i)}, {vr(vQacc+i)}, {vr(vQacc+i+4)}")
    e("s_nop 1")
    for i in range(4):
        e(f"v_add_f32_dpp {vr(vQacc+4+i)}, {vr(vQacc+i)}, {vr(vQacc+i)} row_ror:8 row_mask:0xf bank_mask:0xf")
    e(f"ds_write_b128 {vr(vLw)}, {vr(vQacc+4,4)}")
    e(f"ds_write_b128 {vr(vT0)}, {vr(vZ,4)}")
    e(f"ds_write_b128 {vr(vT0)}, {vr(vZ,4)} offset:16")
    e("s_waitcnt lgkmcnt(0)")
    e("s_barrier")
    for w in range(4):
        e(f"ds_read_b128 {vr(vQacc+4*w,4)}, {vr(vLr)} offset:{512*w}")
    e("s_waitcnt lgkmcnt(2)")
    for i in range(4):
        e(f"v_add_f32 {vr(vQacc+i)}, {vr(vQacc+i)}, {vr(vQacc+4+i)}")
    e("s_waitcnt lgkmcnt(0)")
    for i in range(4):
        e(f"v_add_f32 {vr(vQacc+8+i)}, {vr(vQacc+8+i)}, {vr(vQacc+12+i)}")
    for i in range(4):
        e(f"v_add_f32 {vr(vQacc+i)}, {vr(vQacc+i)}, {vr(vQacc+8+i)}")
    for i in range(4):
        e(f"v_xor_b32 {vr(vQacc+i)}, {vr(vXm)}, {vr(vQacc+i)}")
    e(f"s_mov_b32 exec_lo, 0xffff0000")
    e(f"v_mov_b32 {vr(vQacc)}, {vr(vPl)}")
    e(f"v_mov_b32 {vr(vQacc+1)}, {vr(vPl+1)}")
    e(f"v_mov_b32 {vr(vQacc+2)}, {sr(sNon)}")
    e(f"s_mov_b32 exec_lo, -1")
    g.vm(f"buffer_store_dwordx4 {vr(vQacc,4)}, {vr(vQs)}, {sr(sWS,4)}, 0 offen sc1", "qs")
    stamp(1)
    for d in range(T0N + (1 if MID else 0), QPOS): issue_tile(d)
    e(f"s_cmp_eq_u32 {sr(sIsA)}, 1")
    e("s_cbranch_scc1 L_A")
    q_common = list(g.q)

    def prologue2(isA):
        nm = "A" if isA else "B"
        nh = 2 if isA else 1
        g.q = list(q_common)
        QS = [vQl, 200, 80]
        def qloads(tag, R=vQl):
            for i in range(2 * nh):
                g.vm(f"buffer_load_dwordx4 {vr(R+4*i,4)}, {vr(vQa)}, {sr(sWS,4)}, 0 offen offset:{(i>>1)*1024+(i&1)*16} sc1", tag)
        def qcheck(R=vQl):
            for hd in range(nh):
                for i in range(4):
                    e(f"v_bitop3_b32 {vr(vTmp+4+4*hd+i)}, {vr(R+8*hd+i)}, {vr(R+8*hd+4+i)}, {sr(sNon)} bitop3:0x96")
            e(f"v_or3_b32 {vr(vT0)}, {vr(vTmp+4)}, {vr(vTmp+5)}, {vr(vTmp+6)}")
            if isA:
                e(f"v_or3_b32 {vr(vT0)}, {vr(vT0)}, {vr(vTmp+7)}, {vr(vTmp+8)}")
                e(f"v_or3_b32 {vr(vT0)}, {vr(vT0)}, {vr(vTmp+9)}, {vr(vTmp+10)}")
                e(f"v_or_b32 {vr(vT0)}, {vr(vT0)}, {vr(vTmp+11)}")
            else:
                e(f"v_or_b32 {vr(vT0)}, {vr(vT0)}, {vr(vTmp+7)}")
            e(f"v_cmp_ne_u32 vcc, 0, {vr(vT0)}")
        NP = min(opts.get("np", 1), D - QPOS + 1, 2 if isA else 3)
        assert NX <= 4 or NP < 2
        QB = opts.get("qb", 0)
        if ORG:
            e(f"s_and_b32 {sr(sT0)}, s2, 15")
            e(f"s_lshl_b32 {sr(sT0)}, {sr(sT0)}, 7")
            e(f"s_add_u32 {sr(sT0)}, {sr(sT0)}, {ORG_OFF}")
            e("s_mov_b64 exec, 1")
            g.vm(f"buffer_load_dwordx2 {vr(vS,2)}, off, {sr(sWS,4)}, {sr(sT0)} sc1", "org")
            e("s_mov_b64 exec, -1")
        qloads(("ql", 0))
        def mid_tiles(hi):
            for d in range(QPOS, hi):
                issue_tile(d)
                k = d - QPOS + 1
                if k < NP: qloads(("ql", k), QS[k])
        if QB: NP = min(NP, QB - QPOS + 1)
        else: mid_tiles(D)
        for i in range(8 * nh):
            e(f"v_mov_b32 {vr(vO+i)}, 0")
        e(f"v_mov_b32 {vr(vM)}, 0xff800000")
        e(f"v_mov_b32 {vr(vL)}, 0")
        if isA:
            e(f"v_mov_b32 {vr(vM2)}, 0xff800000")
            e(f"v_mov_b32 {vr(vL2)}, 0")
        if PROF == 3:
            e(f"v_mov_b32 {vr(vTk)}, 0")
        e(f"s_mov_b32 {sr(sDyn)}, {sr(sIt)}")
        e(f"s_mov_b32 {sr(sLim)}, {sr(sDoff)}")
        e(f"s_add_u32 {sr(sCnt)}, {sr(sDlds)}, {LDS_CNT + 12}")
        e(f"s_mul_i32 {sr(sTrig)}, {sr(sInc)}, {EARLY}")
        e(f"s_sub_u32 {sr(sTrig)}, {sr(sLim)}, {sr(sTrig)}")
        e(f"s_cmp_eq_u32 {sr(sDlds)}, 0")
        e(f"s_cselect_b32 {sr(sTrig)}, {sr(sTrig)}, -1")
        e(f"s_mov_b32 {sr(sHas)}, 0")
        if FIX:
            if FIX == 1:
                e(f"s_lshr_b32 {sr(sCi)}, s2, 1")
                e(f"s_bitcmp1_b32 s2, 0")
                e(f"s_cselect_b32 {sr(sCi)}, {sr(sCi)}, 1000")
            elif FIX == 2:
                e(f"s_mov_b32 {sr(sCi)}, s2")
            elif FIX == 3:
                e(f"s_sub_u32 {sr(sCi)}, 255, s2")
                e(f"s_lshr_b32 {sr(sCi)}, {sr(sCi)}, 1")
                e(f"s_bitcmp1_b32 s2, 0")
                e(f"s_cselect_b32 {sr(sCi)}, {sr(sCi)}, 1000")
            elif FIX == 4:
                e(f"s_lshr_b32 {sr(sCi)}, s2, 3")
                e(f"s_and_b32 {sr(sT0)}, s2, 7")
                e(f"s_cmp_eq_u32 {sr(sT0)}, 1")
                e(f"s_cselect_b32 {sr(sT1)}, 0, 1000")
                e(f"s_cmp_eq_u32 {sr(sT0)}, 3")
                e(f"s_cselect_b32 {sr(sT1)}, 32, {sr(sT1)}")
                e(f"s_cmp_eq_u32 {sr(sT0)}, 7")
                e(f"s_cselect_b32 {sr(sT1)}, 64, {sr(sT1)}")
                e(f"s_add_u32 {sr(sCi)}, {sr(sCi)}, {sr(sT1)}")
            e(f"s_cmp_lt_u32 {sr(sCi)}, 72")
            e(f"s_cselect_b32 {sr(sTrig)}, {sr(sTrig)}, -1")
        e(f"s_mov_b32 {sr(sIt)}, 0")
        e(f"s_mov_b32 {sr(sHist)}, 0")
        e(f"s_mov_b32 {sr(sMh)}, 0x55555555"); e(f"s_mov_b32 {sr(sMh+1)}, 0x55555555")
        e(f"s_mov_b32 {sr(sMf)}, 0x00ff00ff"); e(f"s_mov_b32 {sr(sMf+1)}, 0x00ff00ff")
        e(f"s_mov_b32 {sr(sLev)}, {opts.get('lev0', 1)}")
        if PROF in (1, 8): e("s_mov_b32 s88, 0")
        e(f"s_mov_b32 {sr(sSt)}, {(SA if isA else SB) - D}")
        e(f"s_mov_b32 {sr(sDt)}, {opts.get('nodma', 0) if not isA else opts.get('nodmaa', 0)}")
        e(f"s_mov_b32 {sr(sDoff)}, 0")
        e(f"s_mov_b32 {sr(sDlds)}, {sr(sLdsW)}")
        e(f"s_mov_b32 {sr(sRem)}, {62 if PROF == 3 else 900}")
        e(f"s_mov_b32 {sr(sSpin)}, 0x40000")
        if QB: mid_tiles(QB)
        g.wait_tag(("ql", 0))
        qcheck()
        e(f"s_cbranch_vccz L_qok{nm}")
        for k in range(1, NP):
            e(f"s_sub_u32 {sr(sSpin)}, {sr(sSpin)}, 1")
            g.wait_tag(("ql", k))
            qcheck(QS[k])
            for hd in range(nh):
                for i in range(4):
                    e(f"v_mov_b32 {vr(vQl+8*hd+i)}, {vr(QS[k]+8*hd+i)}")
            e(f"s_cbranch_vccz L_qok{nm}")
        g.lab(f"L_qretry{nm}")
        sv = list(g.q)
        qloads(None)
        g.q = sv
        e(f"s_sub_u32 {sr(sSpin)}, {sr(sSpin)}, 1")
        e(f"s_cbranch_scc1 L_qok{nm}")
        e("s_waitcnt vmcnt(0)")
        qcheck()
        e(f"s_cbranch_vccnz L_qretry{nm}")
        g.lab(f"L_qok{nm}")
        if ORG:
            e(f"v_readfirstlane_b32 {sr(sT0)}, {vr(vS)}")
            e(f"v_readfirstlane_b32 {sr(sT1)}, {vr(vS+1)}")
            e(f"s_xor_b32 {sr(sT1)}, {sr(sT1)}, {sr(sT0)}")
            e(f"s_cmp_eq_u32 {sr(sT1)}, {sr(sNon)}")
            e(f"s_cselect_b32 s94, {sr(sT0)}, s94")
        if FIXL < 0:
            e(f"s_lshl_b32 {sr(sSch)}, s94, 4")
            e(f"s_add_u32 {sr(sSch)}, {sr(sSch)}, {(opts.get('t0', 7000) + (opts.get('t0a', 200) if isA else 0))*16//10}")
            if not isA and opts.get("tq", 0):
                e(f"s_sub_u32 {sr(sT0)}, {sr(sLim)}, {sr(sDyn)}")
                e(f"s_cmp_eq_u32 {sr(sInc)}, 2")
                e(f"s_cselect_b32 {sr(sT1)}, 1, 0")
                e(f"s_cselect_b32 {sr(sT2)}, {146 - 4*SB + opts.get('hq', 0)}, {146 - 4*SB}")
                e(f"s_lshl_b32 {sr(sT0)}, {sr(sT0)}, {sr(sT1)}")
                e(f"s_sub_i32 {sr(sT0)}, {sr(sT0)}, {sr(sT2)}")
                e(f"s_mul_i32 {sr(sT0)}, {sr(sT0)}, {opts.get('tq')*16//10}")
                e(f"s_sub_i32 {sr(sSch)}, {sr(sSch)}, {sr(sT0)}")
            if not isA and opts.get("t0c", 0):
                e(f"s_cmp_lt_u32 s2, 72")
                e(f"s_cselect_b32 {sr(sT0)}, {opts.get('t0c')*16//10}, 0")
                e(f"s_sub_u32 {sr(sSch)}, {sr(sSch)}, {sr(sT0)}")
        if PROF == 5:
            e(f"s_sub_u32 s88, 0x40000, {sr(sSpin)}")
        e("s_nop 0")
        for hd in range(nh):
            for i in range(4):
                e(f"v_add_f32_dpp {vr(vTmp+4*hd+i)}, {vr(vQl+8*hd+i)}, {vr(vQl+8*hd+i)} row_ror:8 row_mask:0xf bank_mask:0xf")
        for hd in range(nh):
            e(f"v_cvt_pk_bf16_f32 {vr(vTmp+8+2*hd)}, {vr(vTmp+4*hd)}, {vr(vTmp+4*hd+1)}")
            e(f"v_cvt_pk_bf16_f32 {vr(vTmp+8+2*hd+1)}, {vr(vTmp+4*hd+2)}, {vr(vTmp+4*hd+3)}")
        e("s_nop 1")
        for hd in range(nh):
            qq = vQ2 if hd else vQ
            for j in range(4):
                for dd in range(4):
                    e(f"v_mov_b32_dpp {vr(qq+4*(j>>1)+dd)}, {vr(vTmp+8+2*hd+(dd&1))} row_newbcast:{j+4*(dd>>1)} row_mask:0xf bank_mask:{0xc if j & 1 else 0x3}")
        stamp(2)
        if QB:
            for d in range(QB, D): issue_tile(d)

    def softmax(S, M, L, O, P):
        e(f"v_max3_f32 {vr(vT0)}, {vr(S)}, {vr(S+1)}, {vr(S+2)}")
        e(f"v_max_f32 {vr(vT0)}, {vr(vT0)}, {vr(S+3)}")
        e(f"v_mul_f32 {vr(vT0)}, {sr(sC)}, {vr(vT0)}")
        e(f"v_max_f32 {vr(vMn)}, {vr(vT0)}, {vr(M)}")
        e(f"v_sub_f32 {vr(vA)}, {vr(M)}, {vr(vMn)}")
        for r in range(4):
            e(f"v_fma_f32 {vr(vE+r)}, {vr(S+r)}, {sr(sC)}, -{vr(vMn)}")
        e(f"v_exp_f32 {vr(vA)}, {vr(vA)}")
        for r in range(4):
            e(f"v_exp_f32 {vr(vE+r)}, {vr(vE+r)}")
        e(f"v_mov_b32 {vr(M)}, {vr(vMn)}")
        for i in range(8):
            e(f"v_mul_f32 {vr(O+i)}, {vr(vA)}, {vr(O+i)}")
        e(f"v_fma_f32 {vr(L)}, {vr(L)}, {vr(vA)}, {vr(vE)}")
        e(f"v_add_f32 {vr(vT0)}, {vr(vE+1)}, {vr(vE+2)}")
        e(f"v_add_f32 {vr(L)}, {vr(L)}, {vr(vE+3)}")
        e(f"v_add_f32 {vr(L)}, {vr(L)}, {vr(vT0)}")
        for r in range(4):
            e(f"v_cvt_pk_bf16_f32 {vr(P+2*r)}, {vr(vE+r)}, 0")
            e(f"v_cvt_pk_bf16_f32 {vr(P+2*r+1)}, 0, {vr(vE+r)}")

    def dma_group(lbl, mark, isA):
        e(f"s_cmp_lt_u32 {sr(sDt)}, 9")
        e(f"s_cbranch_scc0 {lbl}")
        if mark and HW: e(f"s_or_b32 {sr(sHist)}, {sr(sHist)}, 2")
        for j in range(4):
            e(f"s_add_u32 m0, {sr(sDlds)}, {4096*j}")
            e("s_nop 0")
            e(f"buffer_load_dwordx4 {vr(vWOj+j)}, {sr(sWO,4)}, {sr(sDoff)} offen lds")
        e(f"s_add_u32 {sr(sDt)}, {sr(sDt)}, 1")
        if FIXL < 0: e(f"s_add_u32 {sr(sSch)}, {sr(sSch)}, {opts.get('tauda' if isA else 'taud', 370 if isA else 260)*16//10}")
        e(f"s_add_u32 {sr(sDoff)}, {sr(sDoff)}, 128")
        e(f"s_add_u32 {sr(sDlds)}, {sr(sDlds)}, 16384")
        g.lab(lbl)

    def step(isA, d, dn, wk, wv, uid, dma, nm, cidx=0):
        P = PA if isA else PB
        LC = True
        if LC and dn is not None:
            e(f"s_cmp_gt_i32 {sr(sSt)}, 0")
            e(f"s_cbranch_scc1 L_c1{uid}")
            e(f"v_mov_b32 {vr(vT0)}, {sr(sCnt)}")
            e(f"v_mov_b32 {vr(vT1)}, 1")
            e("s_mov_b64 exec, 1")
            e(f"ds_add_rtn_u32 {vr(vT1)}, {vr(vT0)}, {vr(vT1)}")
            e("s_mov_b64 exec, -1")
            g.lab(f"L_c1{uid}")
        vwait(wk, "k" + uid, isA)
        if dn is not None and FIXL < 0:
            e(f"s_memrealtime {sr(sNow,2)}")
        for qq in ((vQ, vQ2) if isA else (vQ,)):
            for j in (0, 2, 1, 3):
                dst = vr(qq + 8 + 4 * (j >> 1), 4)
                cc = "0" if j & 1 == 0 else dst
                e(f"v_mfma_f32_16x16x32_bf16 {dst}, {ar(kreg(d,j),4)}, {vr(qq+4*(j&1),4)}, {cc}")
        if dn is not None:
            if LC:
                e(f"s_cmp_gt_i32 {sr(sSt)}, 0")
                e(f"s_cbranch_scc1 L_c2{uid}")
                e("s_waitcnt lgkmcnt(0)")
                e(f"v_readfirstlane_b32 {sr(sCl)}, {vr(vT1)}")
                e(f"s_min_u32 {sr(sT0)}, {sr(sRem)}, {P-1}")
                e(f"s_add_u32 {sr(sCl)}, {sr(sCl)}, {sr(sDyn)}")
                phys(sCl)
                e(f"s_cmp_ge_u32 {sr(sCl)}, {sr(sLim)}")
                e(f"s_cselect_b32 {sr(sRem)}, {sr(sT0)}, {sr(sRem)}")
                e(f"s_cselect_b32 {sr(sOff)}, {OOB}, {sr(sOff)}")
                e(f"s_cmp_lg_u32 {sr(sCl)}, {sr(sTrig)}")
                e(f"s_cbranch_scc1 L_c2{uid}")
                e(f"s_call_b64 {sr(sRet,2)}, L_sig")
                g.lab(f"L_c2{uid}")
            e(f"s_sub_u32 {sr(sSt)}, {sr(sSt)}, 1")
            issue_k(dn)
            e("s_nop 3")
        else:
            e("s_nop 7")
        for qq, S in (((vQ, vS), (vQ2, vS2)) if isA else ((vQ, vS),)):
            for r in range(4):
                a, b = qq + 8 + 2 * r, qq + 9 + 2 * r
                e(f"v_add_f32_dpp {vr(S+r)}, {vr(b)}, {vr(a)} row_ror:8 row_mask:0xf bank_mask:0x3")
                e(f"v_add_f32_dpp {vr(S+r)}, {vr(a)}, {vr(b)} row_ror:8 row_mask:0xf bank_mask:0xc")
        softmax(vS, vM, vL, vO, vP)
        if isA:
            softmax(vS2, vM2, vL2, vO2, vP + 8)
        vwait(wv, "v" + uid, isA)
        if PROF == 3:
            e("s_memrealtime s[86:87]")
        for r in range(4):
            for dd in range(4):
                e(f"v_dot2c_f32_bf16 {vr(vO+2*dd)}, {vr(vreg(d,r)+dd)}, {vr(vP+2*r)}")
                e(f"v_dot2c_f32_bf16 {vr(vO+2*dd+1)}, {vr(vreg(d,r)+dd)}, {vr(vP+2*r+1)}")
                if isA:
                    e(f"v_dot2c_f32_bf16 {vr(vO2+2*dd)}, {vr(vreg(d,r)+dd)}, {vr(vP+8+2*r)}")
                    e(f"v_dot2c_f32_bf16 {vr(vO2+2*dd+1)}, {vr(vreg(d,r)+dd)}, {vr(vP+8+2*r+1)}")
        if PROF == 3:
            e(f"s_add_u32 m0, {sr(sRem)}, 1")
            e("s_waitcnt lgkmcnt(0)")
            e(f"v_writelane_b32 {vr(vTk)}, s86, m0")
        e(f"s_sub_u32 {sr(sRem)}, {sr(sRem)}, 1")
        if dn is None: return
        e(f"s_cbranch_scc1 L_end{nm}")
        issue_v(dn)
        adv()
        if FIXL < 0:
            e("s_waitcnt lgkmcnt(0)")
            e(f"s_add_u32 {sr(sSch)}, {sr(sSch)}, {opts.get('tau', 1100)*16//10}")
            e(f"s_lshl_b32 {sr(sNow)}, {sr(sNow)}, 4")
            e(f"s_sub_i32 {sr(sLev)}, {sr(sNow)}, {sr(sSch)}")
            BS = opts.get('bsh', 5) + 4
            if opts.get("ki", 0):
                e(f"s_sub_i32 {sr(sNow)}, {sr(sLev)}, {opts.get('sp', 4) << (BS-1)}")
                e(f"s_ashr_i32 {sr(sNow)}, {sr(sNow)}, {opts.get('ki')}")
                e(f"s_add_i32 {sr(sSch)}, {sr(sSch)}, {sr(sNow)}")
            if opts.get("aw", 0):
                e(f"s_min_i32 {sr(sNow)}, {sr(sLev)}, {opts.get('hi', 6) << (BS-1)}")
                e(f"s_max_i32 {sr(sNow)}, {sr(sNow)}, {opts.get('lo', 1) << (BS-1)}")
                e(f"s_sub_i32 {sr(sNow)}, {sr(sLev)}, {sr(sNow)}")
                e(f"s_ashr_i32 {sr(sNow)}, {sr(sNow)}, {opts.get('aw')}")
                e(f"s_add_i32 {sr(sSch)}, {sr(sSch)}, {sr(sNow)}")
            e(f"s_ashr_i32 {sr(sLev)}, {sr(sLev)}, {BS}")
            e(f"s_min_i32 {sr(sLev)}, {sr(sLev)}, {opts.get('maxl', 4)}")
            if PROF in (1, 8):
                e(f"s_max_i32 {sr(sNow)}, {sr(sLev)}, 0")
                e(f"s_add_u32 s88, s88, {sr(sNow)}")
        if HW: e(f"s_lshr_b32 {sr(sHist)}, {sr(sHist)}, 1")
        for x in range(dma):
            dma_group(f"L_dma{uid}_{x}", x == dma - 1, isA)

    def mainloop(isA):
        nm = "A" if isA else "B"
        P = PA if isA else PB
        WK, WV = 16, 20
        def arrive(k):
            e(f"v_mov_b32 {vr(vT0)}, {LDS_CNT}")
            e(f"v_mov_b32 {vr(vT1)}, 1")
            e("s_mov_b64 exec, 1")
            e(f"ds_add_u32 {vr(vT0)}, {vr(vT1)} offset:{4*k}")
            e("s_mov_b64 exec, -1")
        def wait_all(k):
            e(f"v_mov_b32 {vr(vT0)}, {LDS_CNT}")
            g.lab(f"L_w{nm}{k}")
            e(f"ds_read_b32 {vr(vT1)}, {vr(vT0)} offset:{4*k}")
            e("s_waitcnt lgkmcnt(0)")
            e(f"v_readfirstlane_b32 {sr(sT0)}, {vr(vT1)}")
            e("s_nop 3")
            e(f"s_cmp_lt_u32 {sr(sT0)}, 4")
            e(f"s_cbranch_scc1 L_w{nm}{k}")
        def h_arr0():
            e(f"s_waitcnt vmcnt(36)")
            arrive(0)
        def h_t1():
            stamp(3)
            wait_all(0)
            e(f"s_call_b64 {sr(sRet,2)}, L_T1")
            if isA: arrive(1)
            stamp(4)
        def h_dma2():
            wait_all(1)
            e(f"s_mov_b32 {sr(sDt)}, {opts.get('nodmaa', 0)}")
            e(f"s_mov_b32 {sr(sDoff)}, 147456")
            e(f"s_mov_b32 {sr(sDlds)}, {sr(sLdsW)}")
        def h_arr2():
            e("s_waitcnt vmcnt(36)")
            arrive(2)
        def h_t1b():
            wait_all(2)
            e(f"s_call_b64 {sr(sRet,2)}, L_T1b")
        def h_extra():
            for x in range(2, D):
                step(isA, x, None, 24, 24, f"{nm}x{x}", 0, nm)
        hooks = {4: h_arr0, 5: h_t1, 6: h_dma2, 10: h_arr2, 11: h_t1b} if isA else {10: h_arr0, T1B: h_t1}
        XI = opts.get("xi", 1)
        def mk(xs, then):
            def f():
                for x in xs:
                    step(isA, x, None, 24, 24, f"{nm}x{x}", 0, nm)
                if then: then()
            return f
        xl = list(range(2, D))
        it = 1
        while xl:
            hooks[it] = mk(xl[:XI], hooks.get(it)); xl = xl[XI:]; it += 1
        assert EARLY * 2 <= H3 - 1 - 2 * SB and EARLY >= 1 and EARLY * 4 <= 128 - 4 * SA
        assert (SA if isA else SB) - NX > 2 * max(hooks)
        g.lab(f"L_loop{nm}")
        e(f"s_bitcmp1_b32 {sum(1 << k for k in hooks)}, {sr(sIt)}")
        e(f"s_cbranch_scc0 L_body{nm}")
        ks = sorted(hooks)
        for n, k in enumerate(ks):
            if n < len(ks) - 1:
                e(f"s_cmp_lg_u32 {sr(sIt)}, {k}")
                e(f"s_cbranch_scc1 L_hk{nm}{n+1}")
            hooks[k]()
            if n < len(ks) - 1:
                e(f"s_branch L_body{nm}")
                g.lab(f"L_hk{nm}{n+1}")
        g.lab(f"L_body{nm}")
        for i in range(2):
            step(isA, i, i, WK, WV, f"{nm}{i}", 2 if isA else 1 - i, nm, i)
        e(f"s_add_u32 {sr(sIt)}, {sr(sIt)}, 1")
        if opts.get("pst", 0):
            e(f"s_cmp_lg_u32 {sr(sW)}, 0")
            e(f"s_cbranch_scc1 L_loop{nm}")
            e(f"s_lshl_b32 {sr(sT0)}, s2, 8")
            e(f"s_add_u32 {sr(sT0)}, {sr(sT0)}, 0x1e0000")
            e(f"s_mov_b64 exec, 1")
            e(f"v_mov_b32 {vr(vT0)}, {sr(sIt)}")
            e(f"buffer_store_dword {vr(vT0)}, off, {sr(sWS,4)}, {sr(sT0)} sc1")
            if opts.get("pst") == 2:
                e(f"s_mov_b64 exec, 0xff")
                e(f"s_andn2_b32 {sr(sT0)}, {sr(sT0)}, 0x7ff")
                e(f"buffer_load_dword {vr(vA)}, {vr(vK)}, {sr(sWS,4)}, {sr(sT0)} offen sc1")
            e(f"s_mov_b64 exec, -1")
        e(f"s_branch L_loop{nm}")
        g.lab(f"L_end{nm}")

    def T2(nh, nm):
        vAcc = [64, 100]
        aAop = [0, 16]
        vMh = [136, 144]; vMo = [152, 156]; vLo = [48, 52]; vPk = [56, 60]
        vMM = [12, 14]; vLL = [13, 15]
        vOut = [16, 24]
        vU1, vU2 = vK, vTR
        vMh2 = [32, 40]
        Os = [vO, vO2]; Ms = [vM, vM2]; Ls = [vL, vL2]
        e(f"s_lshl_b32 {sr(sT0)}, {sr(sW)}, 2")
        e(f"v_add_u32 {vr(vT0)}, {sr(sT0)}, {vr(vG)}")
        e(f"v_mul_u32_u24 {vr(vT1)}, {OT_STRIDE}, {vr(vT0)}")
        for hd in range(nh):
            for d in range(4):
                e(f"v_cvt_pk_bf16_f32 {vr(vPk[hd]+d)}, {vr(Os[hd]+2*d)}, {vr(Os[hd]+2*d+1)}")
        e(f"v_lshl_add_u32 {vr(vT1)}, {vr(vCc)}, 4, {vr(vT1)}")
        e(f"v_add_u32 {vr(vT1)}, {LDS_OT}, {vr(vT1)}")
        e(f"v_lshlrev_b32 {vr(vT0)}, 2, {vr(vT0)}")
        e(f"v_add_u32 {vr(vT0)}, {LDS_M}, {vr(vT0)}")
        for hd in range(nh):
            e(f"ds_write_b128 {vr(vT1)}, {vr(vPk[hd],4)} offset:{hd*OT_BYTES}")
            e(f"ds_write_b32 {vr(vT0)}, {vr(Ms[hd])} offset:{hd*128}")
            e(f"ds_write_b32 {vr(vT0)}, {vr(Ls[hd])} offset:{hd*128+64}")
        e(f"v_mul_u32_u24 {vr(vT1)}, {OT_STRIDE}, {vr(vCc)}")
        e(f"v_lshl_add_u32 {vr(vT1)}, {vr(vG)}, 4, {vr(vT1)}")
        e(f"v_add_u32 {vr(vT1)}, {LDS_OT}, {vr(vT1)}")
        e(f"v_lshlrev_b32 {vr(vT0)}, 4, {vr(vG)}")
        e(f"v_add_u32 {vr(vT0)}, {LDS_M}, {vr(vT0)}")
        e(f"v_and_b32 {vr(vU1)}, 32, {vr(vLane)}")
        if nh == 1:
            e(f"s_cmp_gt_u32 {sr(sD1)}, 0x10000000")
            e(f"s_cselect_b32 {sr(sT1)}, 32, 0")
            e(f"v_xor_b32 {vr(vU2)}, {sr(sT1)}, {vr(vU1)}")
        else:
            e(f"v_xor_b32 {vr(vU2)}, 32, {vr(vU1)}")
        e(f"v_add_u32 {vr(vU1)}, {LDS_M}, {vr(vU1)}")
        e(f"v_add_u32 {vr(vU2)}, {LDS_M}, {vr(vU2)}")
        e("s_waitcnt vmcnt(0)")
        if PROF == 3:
            e(f"s_lshl_b32 s88, s2, 10")
            e(f"s_add_u32 s88, s88, 0x300000")
            e(f"v_lshlrev_b32 {vr(vV)}, 2, v0")
            e(f"buffer_store_dword {vr(vTk)}, {vr(vV)}, {sr(sWS,4)}, s88 offen")
        if nh == 1:
            e(f"s_cmp_eq_u32 {sr(sHas)}, 0")
            e(f"s_cbranch_scc1 L_T2b{nm}")
            e(f"v_cmp_ne_u32 vcc, {sr(sNon)}, {vr(vFl)}")
            e(f"v_cmp_ne_u32 {sr(sT2,2)}, {sr(sNon)}, {vr(vFl+1)}")
            e(f"v_mov_b32 {vr(vV)}, {LDS_TK}")
            e(f"s_or_b64 vcc, vcc, {sr(sT2,2)}")
            e(f"s_cselect_b32 {sr(sT2)}, 0, 1")
            e(f"v_mov_b32 {vr(vFl)}, {sr(sT2)}")
            e("s_mov_b64 exec, 1")
            e(f"ds_write_b32 {vr(vV)}, {vr(vFl)}")
            e("s_mov_b64 exec, -1")
            g.lab(f"L_T2b{nm}")
        e("s_waitcnt lgkmcnt(0)")
        e("s_barrier")
        for hd in range(nh):
            for j in range(4):
                e(f"ds_read_b128 {ar(aAop[hd]+4*j,4)}, {vr(vT1)} offset:{hd*OT_BYTES+64*j}")
            for i in range(2):
                e(f"ds_read_b128 {vr(vMh[hd]+4*i,4)}, {vr(vU1)} offset:{hd*128+16*i}")
                e(f"ds_read_b128 {vr(vMh2[hd]+4*i,4)}, {vr(vU2)} offset:{hd*128+16*i}")
            e(f"ds_read_b128 {vr(vMo[hd],4)}, {vr(vT0)} offset:{hd*128}")
            e(f"ds_read_b128 {vr(vLo[hd],4)}, {vr(vT0)} offset:{hd*128+64}")
        e(f"v_cmp_eq_u32 vcc, 16, {vr(vU0)}")
        def side(hd):
            Mh, Mo, Lo, MM, LL = vMh[hd], vMo[hd], vLo[hd], vMM[hd], vLL[hd]
            M2 = vMh2[hd]
            ops = [[f"v_max3_f32 {vr(MM)}, {vr(Mh)}, {vr(Mh+1)}, {vr(Mh+2)}", f"v_max3_f32 {vr(LL)}, {vr(M2)}, {vr(M2+1)}, {vr(M2+2)}",
                    f"v_max3_f32 {vr(MM)}, {vr(MM)}, {vr(Mh+3)}, {vr(Mh+4)}"],
                   [f"v_max3_f32 {vr(LL)}, {vr(LL)}, {vr(M2+3)}, {vr(M2+4)}", f"v_max3_f32 {vr(MM)}, {vr(MM)}, {vr(Mh+5)}, {vr(Mh+6)}",
                    f"v_max3_f32 {vr(LL)}, {vr(LL)}, {vr(M2+5)}, {vr(M2+6)}"],
                   [f"v_max3_f32 {vr(MM)}, {vr(MM)}, {vr(Mh+7)}, {vr(M2+7)}", f"v_max_f32 {vr(MM)}, {vr(MM)}, {vr(LL)}"]]
            for r in range(4):
                ops.append([f"v_sub_f32 {vr(Mo+r)}, {vr(Mo+r)}, {vr(MM)}", f"v_exp_f32 {vr(Mo+r)}, {vr(Mo+r)}"])
            ops.append([f"v_mul_f32 {vr(LL)}, {vr(Mo)}, {vr(Lo)}", f"v_fmac_f32 {vr(LL)}, {vr(Mo+1)}, {vr(Lo+1)}"])
            ops.append([f"v_fmac_f32 {vr(LL)}, {vr(Mo+2)}, {vr(Lo+2)}", f"v_fmac_f32 {vr(LL)}, {vr(Mo+3)}, {vr(Lo+3)}"])
            return ops
        def finish(hd):
            A, Mo, MM, LL, Out = vAcc[hd], vMo[hd], vMM[hd], vLL[hd], vOut[hd]
            ops = []
            for t in range(9):
                a = A + 4*t
                ops.append(f"v_mul_f32 {vr(a)}, {vr(Mo)}, {vr(a)}")
                for r in range(1, 4):
                    ops.append(f"v_fmac_f32 {vr(a)}, {vr(Mo+r)}, {vr(a+r)}")
            vals = [A + 4*t for t in range(9)] + [LL]
            ops.append("s_nop 1")
            for k in range(5):
                ops.append(f"v_permlane16_swap_b32 {vr(vals[2*k])}, {vr(vals[2*k+1])}")
            ops.append("s_nop 1")
            ops.append(f"v_add_f32 {vr(Out+4)}, {vr(vals[8])}, {vr(vals[9])}")
            ops.append(f"v_add_f32 {vr(Out+5)}, {vr(vals[8])}, {vr(vals[9])}")
            ops.append(f"v_add_f32 {vr(Out+6)}, {vr(vals[8])}, {vr(vals[9])}")
            for k in range(4):
                ops.append(f"v_add_f32 {vr(Out+k)}, {vr(vals[2*k])}, {vr(vals[2*k+1])}")
            ops.append(f"v_min_u32 {vr(MM)}, -2, {vr(MM)}")
            ops.append(f"v_permlane32_swap_b32 {vr(Out+5)}, {vr(Out+6)}")
            ops.append(f"v_permlane32_swap_b32 {vr(Out)}, {vr(Out+2)}")
            ops.append(f"v_permlane32_swap_b32 {vr(Out+1)}, {vr(Out+3)}")
            if nh == 1:
                ops.append(f"s_cmp_eq_u32 {sr(sT1)}, 0")
                ops.append(f"s_cbranch_scc0 L_full")
                for k in (2, 3):
                    ops.append(f"v_min_u32 {vr(Out+k)}, -2, {vr(Out+k)}")
                ops.append(f"buffer_store_dwordx2 {vr(Out+2,2)}, {vr(vSt0)}, {sr(sWS,4)}, {sr(sD1)} offen sc1")
                ops.append(f"s_branch L_half")
                ops.append("L_full:")
            else:
                ops.append("s_nop 0")
            ops.append(f"v_add_f32 {vr(Out+4)}, {vr(Out+5)}, {vr(Out+6)}")
            for k in range(2):
                ops.append(f"v_add_f32 {vr(Out+k)}, {vr(Out+k)}, {vr(Out+k+2)}")
            if nh == 1: ops.append("L_half:")
            ops.append(f"v_min_u32 {vr(Out+4)}, -2, {vr(Out+4)}")
            for k in range(2):
                ops.append(f"v_min_u32 {vr(Out+k)}, -2, {vr(Out+k)}")
            so = sr(sD1) if hd else "0"
            ops.append(f"buffer_store_dwordx2 {vr(Out,2)}, {vr(vSt0)}, {sr(sWS,4)}, {so} offen sc1")
            for k in range(1, 4):
                ops.append(f"v_mov_b32_dpp {vr(Out+4+k)}, {vr(Out+4)} quad_perm:[{k},{k},{k},{k}] row_mask:0xf bank_mask:0xf")
            ops.append(f"v_cndmask_b32 {vr(Out+4)}, {vr(Out+4)}, {vr(MM)}, vcc")
            ops.append(f"v_cndmask_b32 {vr(Out+6)}, {vr(Out+6)}, {vr(vV)}, vcc")
            st = f"buffer_store_dwordx4 {vr(Out+4,4)}, {vr(vSt1)}, {sr(sWS,4)}, 0 offen sc1"
            if nh == 2:
                x = "exec_lo" if hd else "exec_hi"
                st = f"s_mov_b32 {x}, 0\n    {st}\n    s_mov_b32 {x}, -1"
            ops.append(st)
            return ops
        e(f"v_mov_b32 {vr(vV)}, {sr(sNon)}")
        pend = []
        for hd in range(nh):
            sd = side(hd)
            for j in range(4):
                if j == 0: e(f"s_waitcnt lgkmcnt({min(15, 10*(nh-hd)-1)})")
                if j == 1: e(f"s_waitcnt lgkmcnt({10*(nh-hd-1)})")
                for t in range(9):
                    cc = "0" if j == 0 else vr(vAcc[hd]+4*t,4)
                    e(f"v_mfma_f32_16x16x32_bf16 {vr(vAcc[hd]+4*t,4)}, {ar(aAop[hd]+4*j,4)}, {rr(wo_reg(hd,t*4+j),4)}, {cc}")
                    if j == 1:
                        for o in sd[t]: e(o)
                    elif pend and not (j == 0 and t < 1):
                        for o in pend[:3]: e(o)
                        pend = pend[3:]
            for o in pend: e(o)
            pend = finish(hd)
        for o in pend: e(o)

    prologue2(False)
    mainloop(False)
    stamp(5)
    T2(1, "B")
    stamp(6)

    g.lab("L_cons")
    sP, sCb, sSl, sRow = sT0, sT1, sT2, sT3
    e(f"s_cmp_ge_u32 {sr(sCi)}, 72")
    e("s_cbranch_scc1 L_done")
    e(f"v_mov_b32 {vr(vT0)}, {LDS_TK}")
    e(f"ds_read_b32 {vr(vT0)}, {vr(vT0)}")
    vHd, vCh, vYo, vMlo, vMx, vRes = 48, 49, 50, 51, 52, 24
    vML, vY, vWt = 32, 64, 53
    e(f"v_lshrrev_b32 {vr(vHd)}, 3, v0")
    e(f"v_and_b32 {vr(vCh)}, 7, v0")
    e(f"s_mov_b32 {sr(sSpin)}, 0x100000")
    e("s_waitcnt lgkmcnt(0)")
    e(f"v_readfirstlane_b32 {sr(sRem)}, {vr(vT0)}")
    e("s_nop 3")
    e(f"s_cmp_eq_u32 {sr(sRem)}, 1")
    e("s_cbranch_scc1 L_pollc_done")
    g.lab("L_pollc")
    e(f"s_sleep {SLEEP}")
    e(f"s_call_b64 {sr(sRet,2)}, L_sig")
    e(f"s_sub_u32 {sr(sSpin)}, {sr(sSpin)}, 1")
    e("s_cbranch_scc1 L_pollc_done")
    e("s_waitcnt vmcnt(0)")
    e(f"v_cmp_ne_u32 vcc, {sr(sNon)}, {vr(vFl)}")
    e(f"v_cmp_ne_u32 {sr(sT2,2)}, {sr(sNon)}, {vr(vFl+1)}")
    e(f"s_or_b64 vcc, vcc, {sr(sT2,2)}")
    e("s_cbranch_scc1 L_pollc")
    g.lab("L_pollc_done")
    e(f"s_cmp_lt_u32 {sr(sCi)}, 36")
    e(f"s_cselect_b32 {sr(sP)}, 1, 0")
    e(f"s_cselect_b32 {sr(sRow)}, 0, 36")
    e(f"s_sub_u32 {sr(sSl)}, {sr(sCi)}, {sr(sRow)}")
    e(f"s_cmp_ge_u32 {sr(sSl)}, 18")
    e(f"s_cselect_b32 {sr(sCb)}, 1, 0")
    e(f"s_cselect_b32 {sr(sRow)}, 18, 0")
    e(f"s_sub_u32 {sr(sSl)}, {sr(sSl)}, {sr(sRow)}")
    e(f"s_lshl_b32 {sr(sOff)}, {sr(sSl)}, 7")
    e(f"s_add_u32 {sr(sOff)}, {sr(sOff)}, {Y_OFF}")
    e(f"s_mov_b32 {sr(sSpin)}, 0x100000")
    e(f"s_cmp_eq_u32 {sr(sP)}, 0")
    e("s_cbranch_scc1 L_finA")
    DP = "row_mask:0xf bank_mask:0xf"
    def consumer(ns, nm):
        if ns == 4: e(f"v_lshl_add_u32 {vr(vMx)}, {vr(vHd)}, 2, {sr(sRow)}")
        else: e(f"v_add_u32 {vr(vMx)}, {sr(sRow)}, {vr(vHd)}")
        e(f"v_mul_u32_u24 {vr(vYo)}, {YROW}, {vr(vMx)}")
        e(f"v_lshl_add_u32 {vr(vYo)}, {vr(vCh)}, 4, {vr(vYo)}")
        e(f"v_add_u32 {vr(vYo)}, {sr(sOff)}, {vr(vYo)}")
        if ns == 4:
            e(f"v_and_b32 {vr(vMlo)}, 3, {vr(vCh)}")
            e(f"v_add_u32 {vr(vMx)}, {vr(vMx)}, {vr(vMlo)}")
        e(f"v_lshlrev_b32 {vr(vMlo)}, 4, {vr(vMx)}")
        e(f"v_add_u32 {vr(vMlo)}, {ML_OFF}, {vr(vMlo)}")
        sMask = 16
        for i in range(ns + 1):
            e(f"s_mov_b64 {sr(sMask+2*i,2)}, -1")
        g.lab(f"L_polld{nm}")
        for i in range(ns + 1):
            e(f"s_mov_b64 exec, {sr(sMask+2*i,2)}")
            e(f"s_cbranch_execz L_pd{nm}{i}")
            if i == ns:
                e(f"buffer_load_dwordx2 {vr(vML,2)}, {vr(vMlo)}, {sr(sWS,4)}, 0 offen sc1")
            elif i < 2:
                e(f"buffer_load_dwordx4 {vr(vY+4*i,4)}, {vr(vYo)}, {sr(sWS,4)}, 0 offen offset:{YROW*i} sc1")
            else:
                e(f"s_movk_i32 {sr(sWoff)}, {YROW*2}")
                e(f"buffer_load_dwordx4 {vr(vY+4*i,4)}, {vr(vYo)}, {sr(sWS,4)}, {sr(sWoff)} offen offset:{YROW*(i-2)} sc1")
            g.lab(f"L_pd{nm}{i}")
        e("s_mov_b64 exec, -1")
        e("s_waitcnt vmcnt(0)")
        e(f"v_max_u32 {vr(vMx)}, {vr(vML)}, {vr(vML+1)}")
        e(f"v_cmp_eq_u32 {sr(sMask+2*ns,2)}, -1, {vr(vMx)}")
        for i in range(ns):
            e(f"v_max3_u32 {vr(vMx)}, {vr(vY+4*i)}, {vr(vY+4*i+1)}, {vr(vY+4*i+2)}")
            e(f"v_max_u32 {vr(vMx)}, {vr(vMx)}, {vr(vY+4*i+3)}")
            e(f"v_cmp_eq_u32 {sr(sMask+2*i,2)}, -1, {vr(vMx)}")
            e(f"s_or_b64 {sr(sEx,2)}, {sr(sEx,2) if i else sr(sMask+2*ns,2)}, {sr(sMask+2*i,2)}")
        e(f"s_cbranch_scc0 L_polld{nm}_done")
        e(f"s_sub_u32 {sr(sSpin)}, {sr(sSpin)}, 1")
        e(f"s_cbranch_scc1 L_polld{nm}_done")
        if DSLEEP:
            e(f"s_sleep {DSLEEP}")
        e(f"s_branch L_polld{nm}")
        g.lab(f"L_polld{nm}_done")
        if ns == 1:
            e(f"v_rcp_f32 {vr(vMx)}, {vr(vML+1)}")
            e("s_nop 0")
            for k in range(4):
                e(f"v_mul_f32 {vr(vY+k)}, {vr(vMx)}, {vr(vY+k)}")
            return
        e(f"v_max_f32_dpp {vr(vMx)}, {vr(vML)}, {vr(vML)} quad_perm:[1,0,3,2] {DP}")
        e("s_nop 1")
        e(f"v_max_f32_dpp {vr(vWt)}, {vr(vMx)}, {vr(vMx)} quad_perm:[2,3,0,1] {DP}")
        e(f"v_sub_f32 {vr(vML)}, {vr(vML)}, {vr(vWt)}")
        e(f"v_exp_f32 {vr(vML)}, {vr(vML)}")
        e("s_nop 0")
        e(f"v_mul_f32 {vr(vML+1)}, {vr(vML)}, {vr(vML+1)}")
        for k in range(2):
            e(f"v_mul_f32_dpp {vr(vY+k)}, {vr(vML)}, {vr(vY+k)} quad_perm:[0,0,0,0] {DP}")
        e(f"v_add_f32_dpp {vr(vMx)}, {vr(vML+1)}, {vr(vML+1)} quad_perm:[1,0,3,2] {DP}")
        for k in range(2, 4):
            e(f"v_mul_f32_dpp {vr(vY+k)}, {vr(vML)}, {vr(vY+k)} quad_perm:[0,0,0,0] {DP}")
        e(f"v_add_f32_dpp {vr(vWt)}, {vr(vMx)}, {vr(vMx)} quad_perm:[2,3,0,1] {DP}")
        e(f"v_rcp_f32 {vr(vWt)}, {vr(vWt)}")
        for i in range(1, ns):
            for k in range(4):
                e(f"v_fmac_f32_dpp {vr(vY+k)}, {vr(vML)}, {vr(vY+4*i+k)} quad_perm:[{i},{i},{i},{i}] {DP}")
        for k in range(4):
            e(f"v_mul_f32 {vr(vY+k)}, {vr(vWt)}, {vr(vY+k)}")
    e(f"s_lshl_b32 {sr(sRow)}, {sr(sCb)}, 7")
    consumer(4, "B")
    e("s_branch L_fin2")
    g.lab("L_finA")
    e(f"s_lshl_b32 {sr(sRow)}, {sr(sCb)}, 5")
    e(f"s_add_u32 {sr(sRow)}, {sr(sRow)}, 256")
    consumer(1, "A")
    g.lab("L_fin2")
    e("s_nop 1")
    for k in range(4):
        e(f"v_add_f32_dpp {vr(vRes+k)}, {vr(vY+k)}, {vr(vY+k)} row_ror:8 row_mask:0xf bank_mask:0xf")
    e("s_nop 1")
    e(f"v_permlane32_swap_b32 {vr(vRes)}, {vr(vRes+1)}")
    e(f"v_permlane32_swap_b32 {vr(vRes+2)}, {vr(vRes+3)}")
    e("s_nop 1")
    e(f"v_add_f32 {vr(vRes)}, {vr(vRes)}, {vr(vRes+1)}")
    e(f"v_add_f32 {vr(vRes+2)}, {vr(vRes+2)}, {vr(vRes+3)}")
    e("s_nop 1")
    e(f"v_permlane16_swap_b32 {vr(vRes)}, {vr(vRes+2)}")
    e(f"v_and_b32 {vr(vT0)}, 1, {vr(vG)}")
    e(f"v_lshlrev_b32 {vr(vT0)}, 1, {vr(vT0)}")
    e(f"v_add_f32 {vr(vRes)}, {vr(vRes)}, {vr(vRes+2)}")
    e(f"v_lshrrev_b32 {vr(vT1)}, 1, {vr(vG)}")
    e(f"v_or_b32 {vr(vT0)}, {vr(vT0)}, {vr(vT1)}")
    e(f"v_lshl_add_u32 {vr(vT0)}, {vr(vCh)}, 2, {vr(vT0)}")
    e(f"v_lshlrev_b32 {vr(vT0)}, 2, {vr(vT0)}")
    e(f"s_lshl_b32 {sr(sRem)}, {sr(sW)}, 7")
    e(f"s_add_u32 {sr(sRem)}, {sr(sRem)}, {LDS_QP}")
    e(f"v_add_u32 {vr(vT0)}, {sr(sRem)}, {vr(vT0)}")
    e(f"ds_write_b32 {vr(vT0)}, {vr(vRes)}")
    e(f"v_lshlrev_b32 {vr(vT1)}, 2, v0")
    e(f"v_add_u32 {vr(vT1)}, {LDS_QP}, {vr(vT1)}")
    e(f"s_mul_i32 {sr(sCb)}, {sr(sCb)}, 1152")
    e(f"s_mul_i32 {sr(sP)}, {sr(sP)}, 576")
    e(f"s_add_u32 {sr(sCb)}, {sr(sCb)}, {sr(sP)}")
    e(f"s_lshr_b32 {sr(sP)}, {sr(sSl)}, 2")
    e(f"s_lshl_b32 {sr(sP)}, {sr(sP)}, 4")
    e(f"s_and_b32 {sr(sRow)}, {sr(sSl)}, 2")
    e(f"s_lshl_b32 {sr(sRow)}, {sr(sRow)}, 7")
    e(f"s_add_u32 {sr(sP)}, {sr(sP)}, {sr(sRow)}")
    e(f"s_and_b32 {sr(sRow)}, {sr(sSl)}, 1")
    e(f"s_lshl_b32 {sr(sRow)}, {sr(sRow)}, 6")
    e(f"s_add_u32 {sr(sP)}, {sr(sP)}, {sr(sRow)}")
    e(f"s_lshl_b32 {sr(sRow)}, {sr(sSl)}, 5")
    e(f"v_and_b32 {vr(vYo)}, 1, v0")
    e(f"v_lshlrev_b32 {vr(vYo)}, 7, {vr(vYo)}")
    e(f"v_lshrrev_b32 {vr(vMlo)}, 1, v0")
    e(f"v_add_u32 {vr(vYo)}, {vr(vYo)}, {vr(vMlo)}")
    e(f"s_cmp_lt_u32 {sr(sSl)}, 16")
    e(f"s_cselect_b32 {sr(sP)}, {sr(sP)}, {sr(sRow)}")
    e(f"s_cselect_b64 vcc, -1, 0")
    e(f"s_add_u32 {sr(sCb)}, {sr(sCb)}, {sr(sP)}")
    e(f"v_cndmask_b32 {vr(vYo)}, v0, {vr(vYo)}, vcc")
    e(f"v_add_u32 {vr(vYo)}, {sr(sCb)}, {vr(vYo)}")
    e(f"v_lshlrev_b32 {vr(vYo)}, 1, {vr(vYo)}")
    e("s_waitcnt lgkmcnt(0)")
    e("s_barrier")
    e(f"s_cmp_lg_u32 {sr(sW)}, 0")
    e("s_cbranch_scc1 L_done")
    e("v_cmp_gt_u32 vcc, 32, v0")
    e(f"s_and_saveexec_b64 {sr(sEx,2)}, vcc")
    for w in range(4):
        e(f"ds_read_b32 {vr(vRes+w)}, {vr(vT1)} offset:{128*w}")
    e("s_waitcnt lgkmcnt(0)")
    e(f"v_add_f32 {vr(vRes)}, {vr(vRes)}, {vr(vRes+1)}")
    e(f"v_add_f32 {vr(vRes+2)}, {vr(vRes+2)}, {vr(vRes+3)}")
    e(f"v_add_f32 {vr(vRes)}, {vr(vRes)}, {vr(vRes+2)}")
    e(f"v_cvt_pk_bf16_f32 {vr(vRes)}, {vr(vRes)}, {vr(vRes)}")
    e(f"buffer_store_short {vr(vRes)}, {vr(vYo)}, {sr(sOut,4)}, 0 offen")
    e("s_mov_b64 exec, -1")
    e("s_branch L_done")

    g.lab("L_A")
    prologue2(True)
    mainloop(True)
    stamp(5)
    T2(2, "A")
    stamp(6)
    e(f"s_add_u32 {sr(sT0)}, s2, {sr(sW)}")
    e(f"s_cmp_lg_u32 {sr(sT0)}, 258")
    e("s_cbranch_scc1 L_done")
    e(f"v_lshlrev_b32 {vr(vT0)}, 4, {vr(vLane)}")
    e(f"v_add_u32 {vr(vT0)}, {ML_OFF + 8}, {vr(vT0)}")
    e(f"v_add_u32 {vr(vT1)}, 4096, {vr(vT0)}")
    e(f"s_mov_b32 {sr(sSpin)}, 0x100000")
    g.lab("L_ep")
    for i in range(5):
        e(f"buffer_load_dword {vr(64+i)}, {vr(vT1 if i == 4 else vT0)}, {sr(sWS,4)}, 0 offen offset:{(1024*i)&4095} sc1")
    e(f"s_sub_u32 {sr(sSpin)}, {sr(sSpin)}, 1")
    e("s_cbranch_scc1 L_done")
    e("s_waitcnt vmcnt(0)")
    for i in range(5):
        e(f"v_xor_b32 {vr(64+i)}, {sr(sNon)}, {vr(64+i)}")
    e(f"v_or3_b32 v64, v64, v65, v66")
    e(f"v_or3_b32 v64, v64, v67, v68")
    e(f"v_cmp_ne_u32 vcc, 0, v64")
    e("s_cbranch_vccnz L_ep")
    e(f"v_mov_b32 v64, {sr(sE)}")
    e("s_mov_b64 exec, 1")
    e(f"buffer_store_dword v64, off, {sr(sWS,4)}, 0 sc1")
    e("s_mov_b64 exec, -1")
    g.lab("L_done")
    if opts.get("diag", 0):
        e("s_waitcnt vmcnt(0) lgkmcnt(0)")
        e("s_memrealtime s[20:21]")
        e("s_waitcnt lgkmcnt(0)")
        e("s_sub_u32 s22, s20, s94")
        e("s_sub_i32 s22, s22, 4000")
        e("s_max_i32 s22, s22, 0")
        e("s_min_i32 s22, s22, 5000")
        e(f"s_mul_i32 s22, s22, {opts.get('diag')}")
        e("s_add_u32 s22, s22, s20")
        e("s_mov_b32 s23, 100000")
        g.lab("L_diag")
        e("s_sleep 8")
        e("s_memrealtime s[20:21]")
        e("s_sub_u32 s23, s23, 1")
        e("s_cbranch_scc1 L_exit")
        e("s_waitcnt lgkmcnt(0)")
        e("s_sub_i32 s24, s20, s22")
        e("s_cmp_lt_i32 s24, 0")
        e("s_cbranch_scc1 L_diag")
    if PROF == 8:
        e("s_waitcnt lgkmcnt(0)")
        e(f"s_mul_i32 {sr(sT0)}, s2, 0x1c72")
        e(f"s_lshr_b32 {sr(sT0)}, {sr(sT0)}, 16")
        e(f"s_mul_i32 {sr(sT1)}, {sr(sT0)}, 9")
        e(f"s_add_u32 {sr(sT1)}, {sr(sT1)}, {sr(sW)}")
        e(f"s_cmp_lg_u32 {sr(sT1)}, s2")
        e("s_cbranch_scc1 L_exit")
        e(f"s_cmp_lg_u32 {sr(sW)}, 0")
        e("s_cbranch_scc1 L_exit")
        e(f"s_cmp_ge_u32 {sr(sT0)}, 16")
        e("s_cbranch_scc1 L_exit")
        e("s_sub_u32 s90, s90, s94")
        e("s_sub_u32 s84, s84, s94")
        e("s_mul_i32 s84, s84, 0x199a")
        e("s_lshr_b32 s84, s84, 16")
        e("s_mul_i32 s90, s90, 1000")
        e("s_add_u32 s90, s90, s84")
        e("s_mul_i32 s90, s90, 100")
        e("s_lshr_b32 s88, s88, 1")
        e("s_add_u32 s90, s90, s88")
        e("v_mov_b32 v20, s90")
        e(f"s_lshl_b32 {sr(sT0)}, {sr(sT0)}, 2")
        e("s_mov_b64 exec, 1")
        e(f"buffer_store_dword v20, off, {sr(sDbg,4)}, {sr(sT0)}")
    elif PROF:
        e("s_waitcnt vmcnt(0)")
        stamp(7)
        e("s_getreg_b32 s96, hwreg(HW_REG_XCC_ID)")
        e("s_getreg_b32 s97, hwreg(HW_REG_HW_ID)")
        e("s_waitcnt lgkmcnt(0)")
        e(f"s_lshl_b32 {sr(sT0)}, s2, 2")
        e(f"s_add_u32 {sr(sT0)}, {sr(sT0)}, {sr(sW)}")
        e(f"s_lshl_b32 {sr(sT0)}, {sr(sT0)}, 6")
        e(f"s_add_u32 {sr(sT0)}, {sr(sT0)}, 0x200000")
        e(f"v_mov_b32 v20, {sr(sT0)}")
        for i in range(8):
            e(f"v_mov_b32 v{24+i}, s{80+2*i}")
        e("v_mov_b32 v32, s96")
        e("v_mov_b32 v33, s97")
        e(f"v_cmp_eq_u32 vcc, 0, {vr(vLane)}")
        e("s_and_saveexec_b64 s[98:99], vcc")
        e(f"buffer_store_dwordx4 v[24:27], v20, {sr(sWS,4)}, 0 offen")
        e(f"buffer_store_dwordx4 v[28:31], v20, {sr(sWS,4)}, 0 offen offset:16")
        e(f"buffer_store_dwordx2 v[32:33], v20, {sr(sWS,4)}, 0 offen offset:32")
    g.lab("L_exit")
    e("s_endpgm")

    g.lab("L_sig")
    e(f"s_mov_b32 {sr(sHas)}, 1")
    e(f"s_cmp_ge_u32 {sr(sCi)}, 18")
    e(f"s_cselect_b32 {sr(sT0)}, 2048, 0")
    e(f"s_add_u32 {sr(sT0)}, {sr(sT0)}, {ML_OFF + 8}")
    e(f"s_add_u32 {sr(sT1)}, {sr(sT0)}, 1024")
    e(f"s_cmp_ge_u32 {sr(sCi)}, 36")
    e(f"s_cselect_b32 {sr(sT0)}, {ML_OFF + 8 + 4096}, {sr(sT0)}")
    e(f"s_cselect_b32 {sr(sT1)}, {sr(sT0)}, {sr(sT1)}")
    e(f"v_lshlrev_b32 {vr(vT0)}, 4, {vr(vLane)}")
    e(f"buffer_load_dword {vr(vFl)}, {vr(vT0)}, {sr(sWS,4)}, {sr(sT0)} offen sc1")
    e(f"buffer_load_dword {vr(vFl+1)}, {vr(vT0)}, {sr(sWS,4)}, {sr(sT1)} offen sc1")
    e(f"s_setpc_b64 {sr(sRet,2)}")

    for hd, lb in ((0, "L_T1"), (1, "L_T1b")):
        g.lab(lb)
        e(f"v_add_u32 {vr(vT0)}, 0x10000, {vr(vTR)}")
        e(f"v_add_u32 {vr(vT1)}, 0x20000, {vr(vTR)}")
        for t in range(9):
            for j in range(4):
                for hf in range(2):
                    off = t*16384 + j*4096 + hf*2048
                    a = (vTR, vT0, vT1)[off >> 16]
                    ty, rg = wo_reg(hd, t*4+j)
                    e(f"ds_read_b64_tr_b16 {rr((ty, rg+hf*2),2)}, {vr(a)} offset:{off & 0xffff}")
        e("s_waitcnt lgkmcnt(0)")
        e(f"s_setpc_b64 {sr(sRet,2)}")

    hdr = HEADER
    hdr += f"; @launch grid=(256,1,1) block=(256,1,1) lds={LDS_TOTAL}\n"
    hdr += '.amdgcn_target "amdgcn-amd-amdhsa--gfx950"\n.text\n'
    hdr += f".globl {KN}\n.p2align 8\n.type {KN},@function\n"
    tail = f""".section .rodata,"a"
.p2align 6
.amdhsa_kernel {KN}
  .amdhsa_next_free_vgpr 512
  .amdhsa_next_free_sgpr 102
  .amdhsa_accum_offset 256
  .amdhsa_group_segment_fixed_size 0
  .amdhsa_kernarg_size 104
  .amdhsa_user_sgpr_count 2
  .amdhsa_user_sgpr_kernarg_segment_ptr 1
  .amdhsa_system_sgpr_workgroup_id_x 1
.end_amdhsa_kernel
"""
    return hdr + g.text() + tail

if __name__ == "__main__":
    out = sys.argv[1]
    opts = {}
    for a in sys.argv[2:]:
        k, v = a.split("=")
        opts[k] = int(v)
    open(out, "w").write(gen(opts))
```

```python
import sys, math, struct

KN = "concat_heads__sliding_block_cached__mha_block_cached__decode_kernel"

def f32bits(x):
    return struct.unpack("<I", struct.pack("<f", x))[0]

class Gen:
    def __init__(self):
        self.lines = []
        self.q = []
    def e(self, s):
        self.lines.append("    " + s)
    def lab(self, s):
        self.lines.append(s + ":")
    def vm(self, s, tag=None):
        self.e(s)
        self.q.append(tag)
    def wait_tag(self, tag):
        idx = max(i for i, t in enumerate(self.q) if t == tag)
        n = len(self.q) - 1 - idx
        assert n <= 63, n
        self.e(f"s_waitcnt vmcnt({n})")
    def text(self):
        return "\n".join(self.lines) + "\n"

def vr(a, n=1):
    return f"v{a}" if n == 1 else f"v[{a}:{a+n-1}]"
def ar(a, n=1):
    return f"a{a}" if n == 1 else f"a[{a}:{a+n-1}]"
def sr(a, n=1):
    return f"s{a}" if n == 1 else f"s[{a}:{a+n-1}]"

HEADER = open("concat_heads__sliding_block_cached__mha_block_cached__decode.s.ref").read().split("; Override launch")[0]

NROWS = 320
YROW = 2304
Q_OFF = 256
Y_OFF = Q_OFF + 8 * 32768
ML_OFF = Y_OFF + NROWS * YROW
ORG_OFF = ML_OFF + NROWS * 16
BADROW = 0x40000
LDS_OT = 147456
OT_STRIDE = 272
OT_BYTES = 16 * OT_STRIDE
LDS_M = LDS_OT + 2 * OT_BYTES
LDS_TK = LDS_M + 256
LDS_CNT = LDS_TK + 16
LDS_QP = LDS_TK + 64
LDS_TOTAL = LDS_QP + 2048
CSCALE = (128 ** -0.5) * math.log2(math.e)
OOB = 0x40000000

def gen(opts):
    NX = opts.get("nx", 4)
    D = 2 + NX
    NT = {0: " nt", 1: "", 2: " sc1", 3: " sc0 sc1", 4: " sc1 nt", 5: " sc0 sc1 nt", 6: " sc0", 7: " sc0 nt"}[opts.get("ntm", 0)]
    PROF = opts.get("prof", 0)
    EARLY = opts.get("early", 2)
    SLEEP = opts.get("sleep", 16)
    DSLEEP = opts.get("dsleep", 2)
    PB = PA = 2
    QPOS = opts.get("qpos", 4)
    T0N = opts.get("t0n", 2)
    T1B = opts.get("t1b", 12)
    SB = opts.get("sb", 31)
    WS_BYTES = 0x400000 if PROF else ORG_OFF + 2048
    TK0 = opts.get("tk0", 60)
    FIX = opts.get("fix", 2)
    H3 = opts.get("h3", 72)
    NE = opts.get("ne", 6)
    NO = 18 - NE
    NS, NB = min(NE, NO), max(NE, NO)
    assert NE % 2 == 0 and NB <= 16
    ILV = 1
    RM = opts.get("rm", 0)
    RMA = opts.get("rma", 0)
    AM = opts.get("am", 0)
    AMA = opts.get("ama", AM)
    GR = opts.get("gr", 2)
    SA = opts.get("sa", 27)
    g = Gen()
    e = g.e
    sW = 3
    sRet = 4
    sE, sNon = 6, 7
    sDbg, sOut = 8, 12
    sWoff, sSpin = 34, 35
    sK, sV, sWQ, sX, sWO, sWS = 36, 40, 44, 48, 52, 56
    sH, sKk, sT0, sT1, sT2, sT3 = 60, 61, 62, 63, 64, 65
    sOff, sIt, sC, sSelLo, sSelHi, sLdsW = 66, 67, 68, 69, 70, 71
    sRem, sR0, sR1, sQo, sIsA, sDt, sDoff, sDlds = 72, 73, 74, 75, 76, 77, 78, 79
    sKVo, sWoO, sWoS, sPq = 96, 97, 98, 99
    sEx = 100
    sSt, sCnt, sTrig, sCl = 44, 45, 46, 47
    sDyn, sLim, sHas, sCi = 48, 49, 50, 51
    sInc, sRot, sMask = 61, 60, 100
    sD1 = 74
    sL, sA = 101, 5
    sA = 99
    sHist = 16
    HW = opts.get("hw", 0)
    def vwait(n, uid, isA):
        if not HW:
            e(f"s_waitcnt vmcnt({n})"); return
        if isA:
            e(f"s_waitcnt vmcnt({n+16})")
            e(f"s_cmp_eq_u32 {sr(sHist)}, 3")
            e(f"s_cbranch_scc1 L_vw{uid}")
        e(f"s_waitcnt vmcnt({n+(8 if isA else 4)})")
        e(f"s_cmp_lg_u32 {sr(sHist)}, 0")
        e(f"s_cbranch_scc1 L_vw{uid}")
        e(f"s_waitcnt vmcnt({n})")
        g.lab(f"L_vw{uid}")
    def phys(src):
        e(f"s_lshr_b32 {sr(sOff)}, {sr(src)}, {GR}")
        e(f"s_mul_i32 {sr(sOff)}, {sr(sOff)}, {sr(sA)}")
        e(f"s_add_u32 {sr(sOff)}, {sr(sOff)}, {sr(sRot)}")
        if opts.get("hs", 0):
            HB = opts.get("hs")
            e(f"s_lshl_b32 {sr(sOff)}, {sr(sOff)}, {12+GR}")
            e(f"s_and_b32 {sr(sOff)}, {sr(sOff)}, {sr(sMask)}")
            e(f"s_lshr_b32 {sr(sWoff)}, {sr(sOff)}, {HB}")
            e(f"s_xor_b32 {sr(sOff)}, {sr(sOff)}, {sr(sWoff)}")
            e(f"s_lshr_b32 {sr(sOff)}, {sr(sOff)}, {12+GR}")
            e(f"s_mul_i32 {sr(sOff)}, {sr(sOff)}, {opts.get('hm', 37)}")
        e(f"s_lshl_b32 {sr(sOff)}, {sr(sOff)}, {12+GR}")
        if GR:
            e(f"s_and_b32 {sr(sWoff)}, {sr(src)}, {(1<<GR)-1}")
            e(f"s_lshl_b32 {sr(sWoff)}, {sr(sWoff)}, 12")
            e(f"s_or_b32 {sr(sOff)}, {sr(sOff)}, {sr(sWoff)}")
        e(f"s_and_b32 {sr(sOff)}, {sr(sOff)}, {sr(sMask)}")
    def adv():
        e(f"s_add_u32 {sr(sL)}, {sr(sL)}, {sr(sInc)}")
        phys(sL)
    vLane, vG, vCc = 1, 2, 3
    vK, vV, vSt0, vSt1, vTR, vU0 = 4, 5, 6, 7, 8, 9
    vT0, vT1 = 10, 11
    vM, vL, vM2, vL2 = 12, 13, 14, 15
    vS, vS2 = 16, 20
    vE, vA, vMn = 24, 28, 29
    vTk = 30
    vFl = 88
    vO, vO2 = 32, 40
    vP = 48
    vQ, vQ2 = 64, 80
    vVb = 96
    vWOj = 160
    vXa, vXb = 32, 40
    vWQ, vX = 24, 26
    vQa, vQs = 28, 29
    vQacc = 64
    vW = 164
    vQl = 216
    vTmp = 232
    def kreg(d, j): return d * 16 + j * 4
    def vreg(d, r): return (vVb + d * 16 if d < 4 else 164 + (d - 4) * 16) + r * 4
    aW = 64
    def wo_reg(hd, idx):
        if hd == 0: return ("a", aW + 4 * idx)
        return ("a", 208 + 4 * idx) if idx < 12 else ("v", 160 + 4 * (idx - 12))
    def rr(t, n): return (ar if t[0] == "a" else vr)(t[1], n)
    def stamp9(i):
        if PROF == 9: e(f"s_memrealtime s[{80+2*i}:{81+2*i}]")
    def stamp(i):
        if PROF == 9:
            if i in (0, 5, 7): e(f"s_memrealtime s[{80+2*i}:{81+2*i}]")
            if i == 6: e(f"s_memrealtime s[86:87]")
            return
        if PROF == 8:
            if i in (2, 5): e(f"s_memrealtime s[{80+2*i}:{81+2*i}]")
            return
        if (PROF == 1 and i != 4) or (PROF == 6 and i in (0, 7)) or (PROF == 5 and i != 4) or (PROF == 2 and i in (0, 1, 2, 7)) or (PROF == 3 and i in (0, 1, 2, 5, 6, 7)):
            e(f"s_memrealtime s[{80+2*i}:{81+2*i}]")
    def stamp2(i):
        if PROF == 2:
            e(f"s_memrealtime s[{80+2*i}:{81+2*i}]")
    def srd_tail(s, size):
        e(f"s_mov_b32 {sr(s+2)}, {size}")
        e(f"s_mov_b32 {sr(s+3)}, 0x00020000")
    def add64(s, off):
        e(f"s_add_u32 {sr(s)}, {sr(s)}, {off}")
        e(f"s_addc_u32 {sr(s+1)}, {sr(s+1)}, 0")
    KO = [0, 128, 2048, 2176]
    VO = [0, 256, 2048, 2304]
    sLev, sSch, sNow = 17, 18, 20
    sMh, sMf = 22, 24
    FIXL = opts.get("fixl", -1)
    ORG = opts.get("org", 1) if FIXL < 0 else 0
    PSPL = opts.get("pspl", 0)
    def issue_k(d, tag=None, split=True):
        for j in range(4):
            ld = f"buffer_load_dwordx4 {ar(kreg(d,j),4)}, {vr(vK)}, {sr(sK,4)}, {sr(sOff)} offen offset:{KO[j]}{NT}"
            if split is True:
                if FIXL >= 0:
                    e(f"s_mov_b64 exec, {sr(sMf if FIXL > j else sMh,2)}")
                else:
                    e(f"s_cmp_gt_i32 {sr(sLev)}, {j}")
                    e(f"s_cselect_b64 exec, {sr(sMf,2)}, {sr(sMh,2)}")
                g.vm(ld, tag)
                e("s_not_b64 exec, exec")
                g.vm(ld, tag)
            elif j < split:
                e("s_mov_b32 exec_lo, 0x55555555"); e("s_mov_b32 exec_hi, 0x55555555")
                g.vm(ld, tag)
                e("s_not_b64 exec, exec")
                g.vm(ld, tag)
                e("s_mov_b64 exec, -1")
            else:
                g.vm(ld, tag)
        if split is True: e("s_mov_b64 exec, -1")
    def issue_v(d, tag=None):
        for r in range(4):
            g.vm(f"buffer_load_dwordx4 {vr(vreg(d,r),4)}, {vr(vV)}, {sr(sV,4)}, {sr(sOff)} offen offset:{VO[r]}{NT}", tag)
    def issue_tile(d):
        issue_k(d, ("k", d), PSPL); issue_v(d, ("v", d))
        adv()
        if PROF == 6 and d < 6:
            e(f"s_memrealtime s[{82+2*d}:{83+2*d}]")

    g.lab(KN)
    e("s_cmp_ge_u32 s2, 256")
    e("s_cbranch_scc1 L_exit")
    stamp(0)
    if opts.get("fixl", -1) < 0: e("s_memrealtime s[94:95]")
    e("s_load_dwordx16 s[8:23], s[0:1], 0")
    e("s_load_dwordx8 s[24:31], s[0:1], 64")
    e("s_load_dwordx2 s[32:33], s[0:1], 96")
    e(f"v_lshrrev_b32 {vr(vT0)}, 6, v0")
    e(f"v_and_b32 {vr(vLane)}, 63, v0")
    e(f"v_readfirstlane_b32 {sr(sW)}, {vr(vT0)}")
    e(f"v_lshrrev_b32 {vr(vG)}, 4, {vr(vLane)}")
    e(f"v_and_b32 {vr(vCc)}, 15, {vr(vLane)}")
    e(f"s_bitcmp1_b32 s2, 0")
    e(f"s_cselect_b32 {sr(sT0)}, {32*NE}, 0")
    e(f"s_cselect_b32 {sr(sT3)}, {NO}, {NE}")
    e(f"s_bfe_u32 {sr(sT1)}, s2, 0x60001")
    e(f"s_lshl_b32 {sr(sT2)}, {sr(sT1)}, 7")
    e(f"v_lshrrev_b32 {vr(vX)}, 3, v0")
    e(f"v_mul_lo_u32 {vr(vX)}, {vr(vX)}, {sr(sT3)}")
    e(f"v_lshrrev_b32 {vr(vT0)}, 3, {vr(vLane)}")
    e(f"v_and_b32 {vr(vT1)}, 7, {vr(vLane)}")
    e(f"v_lshl_add_u32 {vr(vT1)}, {vr(vT1)}, 4, {sr(sT2)}")
    e(f"v_add_u32 {vr(vX)}, {sr(sT0)}, {vr(vX)}")
    e(f"v_lshl_add_u32 {vr(vWQ)}, {vr(vX)}, 13, {vr(vT1)}")
    e(f"v_lshlrev_b32 {vr(vX)}, 1, {vr(vX)}")
    e(f"s_lshr_b32 {sr(sPq)}, s2, 7")
    e(f"s_lshl_b32 {sr(sT0)}, {sr(sPq)}, 2")
    e(f"s_and_b32 {sr(sT2)}, {sr(sW)}, 2")
    e(f"s_add_u32 {sr(sT0)}, {sr(sT0)}, {sr(sT2)}")
    e(f"s_and_b32 {sr(sT2)}, s2, 1")
    e(f"s_add_u32 {sr(sT0)}, {sr(sT0)}, {sr(sT2)}")
    e(f"s_lshl_b32 {sr(sT0)}, {sr(sT0)}, 15")
    e(f"s_lshl_b32 {sr(sT1)}, {sr(sT1)}, 9")
    e(f"s_add_u32 {sr(sT0)}, {sr(sT0)}, {sr(sT1)}")
    e(f"s_and_b32 {sr(sT2)}, {sr(sW)}, 1")
    e(f"s_lshl_b32 {sr(sT2)}, {sr(sT2)}, 8")
    e(f"s_add_u32 {sr(sT0)}, {sr(sT0)}, {sr(sT2)}")
    e(f"s_add_u32 {sr(sT0)}, {sr(sT0)}, {Q_OFF}")
    e(f"v_and_b32 {vr(vT1)}, 7, {vr(vLane)}")
    e(f"v_lshl_add_u32 {vr(vQs)}, {vr(vT1)}, 5, {sr(sT0)}")
    e(f"v_lshl_add_u32 {vr(vQs)}, {vr(vT0)}, 4, {vr(vQs)}")
    e(f"v_cmp_gt_u32 vcc, 16, {vr(vLane)}")
    e(f"v_mov_b32 {vr(vT1)}, {OOB}")
    e(f"v_lshrrev_b32 {vr(vK)}, 1, {vr(vCc)}")
    e(f"v_and_b32 {vr(vV)}, 1, {vr(vCc)}")
    e(f"v_cndmask_b32 {vr(vQs)}, {vr(vT1)}, {vr(vQs)}, vcc")
    e(f"v_lshlrev_b32 {vr(vK)}, 8, {vr(vK)}")
    e(f"v_lshl_add_u32 {vr(vK)}, {vr(vV)}, 6, {vr(vK)}")
    e(f"v_lshl_add_u32 {vr(vK)}, {vr(vG)}, 4, {vr(vK)}")
    e(f"v_lshlrev_b32 {vr(vV)}, 9, {vr(vG)}")
    e(f"v_lshl_add_u32 {vr(vV)}, {vr(vCc)}, 4, {vr(vV)}")
    e(f"s_and_b32 {sr(sT0)}, s2, 7")
    e(f"s_lshr_b32 {sr(sT1)}, s2, 3")
    e(f"s_cmp_ge_u32 {sr(sT1)}, 28")
    e("s_cbranch_scc1 L_setA")
    e(f"s_mov_b32 {sr(sIsA)}, 0")
    if opts.get("xmap", 0):
        e(f"s_mul_i32 {sr(sH)}, s2, 9363")
        e(f"s_lshr_b32 {sr(sH)}, {sr(sH)}, 16")
        e(f"s_mul_i32 {sr(sT3)}, {sr(sH)}, 7")
        e(f"s_sub_u32 {sr(sKk)}, s2, {sr(sT3)}")
    else:
        e(f"s_mul_i32 {sr(sT2)}, {sr(sT1)}, 37")
        e(f"s_lshr_b32 {sr(sT2)}, {sr(sT2)}, 8")
        e(f"s_mul_i32 {sr(sT3)}, {sr(sT2)}, 7")
        e(f"s_sub_u32 {sr(sKk)}, {sr(sT1)}, {sr(sT3)}")
        e(f"s_lshl_b32 {sr(sT0)}, {sr(sT0)}, 2")
        e(f"s_add_u32 {sr(sH)}, {sr(sT0)}, {sr(sT2)}")
    e(f"s_lshl_b32 {sr(sT0)}, {sr(sKk)}, 2")
    e(f"s_add_u32 {sr(sT0)}, {sr(sT0)}, {sr(sW)}")
    e(f"s_cmp_ge_u32 {sr(sT0)}, 14")
    e(f"s_cselect_b32 {sr(sT1)}, 14, 0")
    e(f"s_cselect_b32 {sr(sT2)}, 32, 0")
    e(f"s_cselect_b32 {sr(sQo)}, {Q_OFF + 6*32768}, 0")
    e(f"s_cselect_b32 {sr(sT3)}, 0, {Q_OFF + 4*32768}")
    e(f"s_add_u32 {sr(sQo)}, {sr(sQo)}, {sr(sT3)}")
    e(f"s_lshl_b32 {sr(sT3)}, {sr(sH)}, 10")
    e(f"s_add_u32 {sr(sQo)}, {sr(sQo)}, {sr(sT3)}")
    e(f"s_sub_u32 {sr(sT0)}, {sr(sT0)}, {sr(sT1)}")
    if True:
        e(f"s_cmp_eq_u32 {sr(sKk)}, 3")
        e(f"s_cselect_b32 {sr(sT1)}, 1, 3")
        e(f"s_cselect_b32 {sr(sT3)}, 2, 0")
        e(f"s_and_b32 {sr(sT3)}, {sr(sT3)}, {sr(sW)}")
        e(f"s_lshl_b32 {sr(sDlds)}, {sr(sT3)}, 1")
        e(f"s_and_b32 {sr(sT3)}, {sr(sT1)}, {sr(sW)}")
        e(f"s_sub_u32 {sr(sT0)}, {sr(sT0)}, {sr(sT3)}")
        e(f"s_add_u32 {sr(sT1)}, {sr(sT1)}, 1")
        e(f"s_add_u32 {sr(sDoff)}, {sr(sT0)}, {sr(sT1)}")
        RB = [[0, opts.get("ra1", 146), opts.get("ra2", 292), opts.get("ra3", 439), 512],
              [0, opts.get("rb1", 72), opts.get("rb2", 219), opts.get("rb3", 365), 512]]
        US = [[0, 4, 8, 12, 14], [0, 2, 6, 10, 14]]
        tab = [sum((RB[b][i] - (US[b][i] * 73 >> 1) + 4) << (4 * i) for i in range(5)) for b in range(2)]
        assert all(0 <= RB[b][i] - (US[b][i] * 73 >> 1) + 4 < 16 for b in range(2) for i in range(5))
        H3 = min(512 - RB[0][3], RB[1][1]) + 1
        e(f"s_cmp_lg_u32 {sr(sT2)}, 0")
        e(f"s_cselect_b32 {sr(sDt)}, {tab[1]}, 0")
        e(f"s_cselect_b32 {sr(sOff)}, 0, {tab[0]}")
        e(f"s_or_b32 {sr(sDt)}, {sr(sDt)}, {sr(sOff)}")
        for r in (sDoff, sT0):
            e(f"s_add_u32 {sr(sOff)}, {sr(r)}, 2")
            e(f"s_andn2_b32 {sr(sOff)}, {sr(sOff)}, 3")
            e(f"s_lshr_b32 {sr(sOff)}, {sr(sDt)}, {sr(sOff)}")
            e(f"s_and_b32 {sr(sOff)}, {sr(sOff)}, 15")
            e(f"s_mul_i32 {sr(r)}, {sr(r)}, 73")
            e(f"s_lshr_b32 {sr(r)}, {sr(r)}, 1")
            e(f"s_add_u32 {sr(r)}, {sr(r)}, {sr(sOff)}")
            e(f"s_sub_u32 {sr(r)}, {sr(r)}, 4")
        if not ILV:
            e(f"s_mul_i32 {sr(sT3)}, {sr(sT3)}, {SB}")
        e(f"s_add_u32 {sr(sT3)}, {sr(sT3)}, {sr(sT0)}")
        e(f"s_mov_b32 {sr(sL)}, {sr(sT3)}")
        e(f"s_mov_b32 {sr(sMask)}, {sr(sT1)}")
        e(f"s_mul_i32 {sr(sT1)}, {sr(sT1)}, {SB}")
        e(f"s_add_u32 {sr(sIt)}, {sr(sT1)}, {sr(sT0)}")
    e(f"s_mov_b32 {sr(sRem)}, 512")
    e(f"s_add_u32 {sr(sT2)}, {sr(sT2)}, {sr(sH)}")
    e(f"s_lshl_b32 {sr(sKVo)}, {sr(sT2)}, 21")
    e(f"s_lshl_b32 {sr(sT0)}, {sr(sH)}, 2")
    e(f"s_add_u32 {sr(sR0)}, {sr(sT0)}, {sr(sKk)}")
    e(f"s_add_u32 {sr(sR1)}, {sr(sT0)}, 128")
    e(f"s_cmp_gt_u32 {sr(sKk)}, 3")
    e(f"s_cselect_b32 {sr(sT3)}, 125, 0")
    e(f"s_add_u32 {sr(sR0)}, {sr(sR0)}, {sr(sT3)}")
    e(f"s_cmp_eq_u32 {sr(sKk)}, 3")
    e(f"s_cselect_b32 {sr(sR1)}, {sr(sR1)}, {BADROW}")
    e(f"s_mul_i32 {sr(sWoO)}, {sr(sH)}, 147456")
    e(f"s_mov_b32 {sr(sWoS)}, 147456")
    e(f"s_mov_b32 {sr(sInc)}, {sr(sMask) if ILV else 1}")
    e(f"s_mul_i32 {sr(sRot)}, {sr(sT2)}, {RM}")
    e(f"s_mul_i32 {sr(sOff)}, {sr(sT2)}, {2*AM}")
    SM = opts.get("sm", 0)
    if SM == 1:
        e(f"s_and_b32 {sr(sOff)}, {sr(sT2)}, 15")
        e(f"s_lshl_b32 {sr(sOff)}, {sr(sOff)}, 1")
        e(f"s_and_b32 {sr(sT3)}, {sr(sT2)}, 16")
        e(f"s_lshl_b32 {sr(sT3)}, {sr(sT3)}, 2")
        e(f"s_add_u32 {sr(sOff)}, {sr(sOff)}, {sr(sT3)}")
        e(f"s_add_u32 {sr(sOff)}, {sr(sOff)}, 16")
    if SM == 2:
        e(f"s_and_b32 {sr(sT3)}, {sr(sT2)}, 31")
        e(f"s_lshl_b32 {sr(sT3)}, 1, {sr(sT3)}")
        e(f"s_and_b32 {sr(sT0)}, {sr(sT3)}, {(1<<2)|(1<<4)}")
        e(f"s_cselect_b32 {sr(sT0)}, 20, 0")
        e(f"s_add_u32 {sr(sOff)}, {sr(sOff)}, {sr(sT0)}")
        e(f"s_and_b32 {sr(sT0)}, {sr(sT3)}, {(1<<27)|(1<<29)}")
        e(f"s_cselect_b32 {sr(sT0)}, 20, 0")
        e(f"s_sub_u32 {sr(sOff)}, {sr(sOff)}, {sr(sT0)}")
    if SM == 3:
        e(f"s_mov_b32 {sr(sOff)}, {opts.get('ca', 27) - 1}")
    e("s_branch L_common")
    g.lab("L_setA")
    e(f"s_mov_b32 {sr(sIsA)}, 1")
    e(f"s_sub_u32 {sr(sT1)}, {sr(sT1)}, 28")
    e(f"s_lshl_b32 {sr(sT0)}, {sr(sT0)}, 1")
    e(f"s_lshr_b32 {sr(sT2)}, {sr(sT1)}, 1")
    e(f"s_add_u32 {sr(sH)}, {sr(sT0)}, {sr(sT2)}")
    e(f"s_and_b32 {sr(sT1)}, {sr(sT1)}, 1")
    e(f"s_lshl_b32 {sr(sQo)}, {sr(sT1)}, 16")
    e(f"s_lshl_b32 {sr(sT3)}, {sr(sH)}, 11")
    e(f"s_add_u32 {sr(sQo)}, {sr(sQo)}, {sr(sT3)}")
    e(f"s_add_u32 {sr(sQo)}, {sr(sQo)}, {Q_OFF}")
    e(f"s_lshl_b32 {sr(sT2)}, {sr(sT1)}, 4")
    e(f"s_add_u32 {sr(sT2)}, {sr(sT2)}, {sr(sH)}")
    e(f"s_lshl_b32 {sr(sR0)}, {sr(sT2)}, 1")
    e(f"s_add_u32 {sr(sR0)}, {sr(sR0)}, 256")
    e(f"s_add_u32 {sr(sR1)}, {sr(sR0)}, 1")
    e(f"s_mul_i32 {sr(sT3)}, {sr(sT2)}, {RMA}")
    e(f"s_mul_i32 {sr(sOff)}, {sr(sT2)}, {2*AMA}")
    e(f"s_lshl_b32 {sr(sT2)}, {sr(sT2)}, 21")
    e(f"s_mul_i32 {sr(sL)}, {sr(sW)}, {1 if ILV else SA}")
    e(f"s_mov_b32 {sr(sDlds)}, 0")
    e(f"s_mov_b32 {sr(sDoff)}, 128")
    e(f"s_mov_b32 {sr(sIt)}, {4*SA}")
    e(f"s_add_u32 {sr(sKVo)}, {sr(sT2)}, 0x180000")
    e(f"s_mov_b32 {sr(sRem)}, 128")
    e(f"s_mul_i32 {sr(sWoO)}, {sr(sH)}, 294912")
    e(f"s_mov_b32 {sr(sWoS)}, 294912")
    e(f"s_mov_b32 {sr(sInc)}, {4 if ILV else 1}")
    e(f"s_mov_b32 {sr(sRot)}, {sr(sT3)}")
    g.lab("L_common")
    srd_tail(sWQ, 576 * 8192)
    srd_tail(sX, 2304)
    e(f"s_lshl_b32 {sr(sK+2)}, {sr(sRem)}, 12"); e(f"s_mov_b32 {sr(sK+3)}, 0x00020000")
    e(f"s_lshl_b32 {sr(sV+2)}, {sr(sRem)}, 12"); e(f"s_mov_b32 {sr(sV+3)}, 0x00020000")
    srd_tail(sWS, WS_BYTES)
    e(f"s_sub_u32 {sr(sMask)}, {sr(sK+2)}, 1")
    e(f"s_cmp_eq_u32 {sr(sPq)}, 0")
    e("s_waitcnt lgkmcnt(0)")
    stamp2(3)
    e(f"s_cselect_b64 {sr(sWQ,2)}, s[14:15], s[24:25]")
    e(f"s_cselect_b64 {sr(sX,2)}, s[8:9], s[18:19]")
    e(f"s_load_dword {sr(sE)}, s[32:33], 0")
    g.q = []
    def wq_load(n):
        so = "0" if n == 0 else sr(sWoff)
        if n: e(f"s_mov_b32 {sr(sWoff)}, {n*8192}")
        g.vm(f"buffer_load_dwordx4 {vr(vW+4*n,4)}, {vr(vWQ)}, {sr(sWQ,4)}, {so} offen", ("wq", n))
    bigbit = 1 if NO > NE else 0
    e(f"s_bitcmp{bigbit}_b32 s2, 0")
    e("s_cbranch_scc0 L_wq1")
    for n in range(NS, NB): wq_load(n)
    g.lab("L_wq1")
    for n in range(NS): wq_load(n)
    e(f"s_mov_b32 {sr(sWS)}, s32"); e(f"s_mov_b32 {sr(sWS+1)}, s33")
    vU1 = vT1
    e(f"s_mul_i32 {sr(sT0)}, {sr(sR0)}, {YROW}")
    e(f"s_mul_i32 {sr(sT1)}, {sr(sR1)}, {YROW}")
    e(f"v_mov_b32 {vr(vSt0)}, {sr(sT0)}")
    e(f"v_mov_b32 {vr(vSt1)}, {sr(sT1)}")
    e(f"v_cmp_lt_u32 vcc, 31, {vr(vLane)}")
    e(f"v_and_b32 {vr(vU0)}, 31, {vr(vLane)}")
    e(f"s_lshl_b32 {sr(sT2)}, {sr(sW)}, 6")
    e(f"v_cndmask_b32 {vr(vSt1)}, {vr(vSt0)}, {vr(vSt1)}, vcc")
    e(f"s_add_u32 {sr(sT2)}, {sr(sT2)}, {2048 + Y_OFF}")
    e(f"v_lshl_add_u32 {vr(vSt1)}, {vr(vCc)}, 2, {vr(vSt1)}")
    e(f"v_add_u32 {vr(vSt1)}, {sr(sT2)}, {vr(vSt1)}")
    e(f"s_lshl_b32 {sr(sT2)}, {sr(sW)}, 9")
    e(f"s_add_u32 {sr(sT2)}, {sr(sT2)}, {Y_OFF}")
    e(f"s_add_u32 {sr(sT2)}, {sr(sT2)}, {sr(sT0)}")
    e(f"v_lshl_add_u32 {vr(vSt0)}, {vr(vLane)}, 3, {sr(sT2)}")
    e(f"s_lshl_b32 {sr(sT3)}, {sr(sR1)}, 4")
    e(f"s_sub_u32 {sr(sD1)}, {sr(sT1)}, {sr(sT0)}")
    for i in range(4):
        e(f"v_mov_b32 {vr(vTmp+i)}, -1")
    g.vm(f"buffer_store_dwordx2 {vr(vTmp,2)}, {vr(vSt0)}, {sr(sWS,4)}, 0 offen sc1", "clr")
    g.vm(f"buffer_store_dwordx2 {vr(vTmp,2)}, {vr(vSt0)}, {sr(sWS,4)}, {sr(sD1)} offen sc1", "clr")
    e(f"s_lshl_b32 {sr(sT0)}, {sr(sR0)}, 4")
    e(f"s_add_u32 {sr(sT0)}, {sr(sT0)}, {ML_OFF}")
    e(f"s_add_u32 {sr(sT1)}, {sr(sT3)}, {ML_OFF}")
    e(f"s_cmp_eq_u32 {sr(sW)}, 0")
    e(f"s_cselect_b32 {sr(sT0)}, {sr(sT0)}, {OOB}")
    e(f"s_cselect_b32 {sr(sT1)}, {sr(sT1)}, {OOB}")
    e(f"v_mov_b32 {vr(vT0)}, {sr(sT0)}")
    e(f"v_mov_b32 {vr(vU1)}, {sr(sT1)}")
    e(f"v_cndmask_b32 {vr(vT0)}, {vr(vT0)}, {vr(vU1)}, vcc")
    e(f"v_and_b32 {vr(vU1)}, 19, {vr(vLane)}")
    e(f"v_cmp_eq_u32 vcc, 0, {vr(vU1)}")
    e(f"v_mov_b32 {vr(vU1)}, {OOB}")
    e("s_nop 0")
    e(f"v_cndmask_b32 {vr(vSt1)}, {vr(vU1)}, {vr(vSt1)}, vcc")
    g.vm(f"buffer_store_dwordx4 {vr(vTmp,4)}, {vr(vSt1)}, {sr(sWS,4)}, 0 offen sc1", "clr")
    e(f"v_cmp_eq_u32 vcc, 16, {vr(vU0)}")
    e("s_nop 1")
    e(f"v_cndmask_b32 {vr(vSt1)}, {vr(vSt1)}, {vr(vT0)}, vcc")
    e(f"v_cndmask_b32 {vr(vQs)}, {vr(vQs)}, {vr(vT0)}, vcc")
    for xr, off in ((vXa, 0), (vXb, 1152)):
        g.vm(f"buffer_load_dwordx4 {vr(xr,4)}, {vr(vX)}, {sr(sX,4)}, 0 offen offset:{off}", "x")
        g.vm(f"buffer_load_dwordx4 {vr(xr+4,4)}, {vr(vX)}, {sr(sX,4)}, 0 offen offset:{off+16}", "x")
    e(f"s_cmp_eq_u32 {sr(sIsA)}, 1")
    e(f"s_cselect_b64 {sr(sK,2)}, s[10:11], s[20:21]")
    e(f"s_cselect_b64 {sr(sV,2)}, s[12:13], s[22:23]")
    e(f"s_cselect_b64 {sr(sWO,2)}, s[16:17], s[26:27]")
    add64(sK, sr(sKVo)); add64(sV, sr(sKVo))
    e(f"s_add_u32 {sr(sA)}, {sr(sOff)}, 1")
    phys(sL)
    for d in range(T0N): issue_tile(d)
    stamp2(4)
    add64(sWO, sr(sWoO))
    e(f"s_mov_b32 {sr(sWO+2)}, {sr(sWoS)}"); e(f"s_mov_b32 {sr(sWO+3)}, 0x00020000")
    e(f"s_mov_b32 {sr(sC)}, 0x{f32bits(CSCALE):08x}")
    e(f"s_mov_b32 {sr(sSelLo)}, 0x05040100")
    e(f"s_mov_b32 {sr(sSelHi)}, 0x07060302")
    e(f"s_lshl_b32 {sr(sLdsW)}, {sr(sW)}, 10")
    e(f"v_bfe_u32 {vr(vT0)}, {vr(vLane)}, 3, 2")
    e(f"v_xor_b32 {vr(vT0)}, {sr(sW)}, {vr(vT0)}")
    e(f"v_lshlrev_b32 {vr(vT0)}, 5, {vr(vT0)}")
    e(f"v_lshrrev_b32 {vr(vT1)}, 2, {vr(vLane)}")
    e(f"v_lshl_add_u32 {vr(vT0)}, {vr(vT1)}, 7, {vr(vT0)}")
    e(f"v_and_b32 {vr(vT1)}, 3, {vr(vLane)}")
    e(f"v_lshl_add_u32 {vr(vTR)}, {vr(vT1)}, 3, {vr(vT0)}")
    e(f"s_mov_b32 {sr(sOut)}, s28"); e(f"s_mov_b32 {sr(sOut+1)}, s29"); srd_tail(sOut, 4608)
    e(f"s_mov_b32 {sr(sDbg)}, s30"); e(f"s_mov_b32 {sr(sDbg+1)}, s31"); srd_tail(sDbg, 256)
    for i in range(16):
        e(f"v_mov_b32 {vr(vQacc+i)}, 0")
    e(f"v_and_b32 {vr(vT0)}, 3, {vr(vCc)}")
    e(f"v_lshlrev_b32 {vr(vT0)}, 8, {vr(vT0)}")
    e(f"v_lshl_add_u32 {vr(vT0)}, {vr(vG)}, 6, {vr(vT0)}")
    e(f"v_bfe_u32 {vr(vT1)}, {vr(vCc)}, 2, 1")
    e(f"v_lshl_add_u32 {vr(vT0)}, {vr(vT1)}, 5, {vr(vT0)}")
    e(f"v_lshrrev_b32 {vr(vT1)}, 3, {vr(vCc)}")
    e(f"v_lshl_add_u32 {vr(vT0)}, {vr(vT1)}, 15, {vr(vT0)}")
    e(f"v_add_u32 {vr(vQa)}, {sr(sQo)}, {vr(vT0)}")
    e(f"v_bfe_u32 {vr(vT0)}, {vr(vLane)}, 3, 2")
    e(f"v_lshrrev_b32 {vr(vT1)}, 5, {vr(vLane)}")
    e(f"v_lshl_add_u32 {vr(vT0)}, {vr(vT1)}, 3, {vr(vT0)}")
    e(f"s_and_b32 {sr(sT0)}, {sr(sW)}, 1")
    e(f"s_lshl_b32 {sr(sT0)}, {sr(sT0)}, 4")
    e(f"s_lshr_b32 {sr(sT1)}, {sr(sW)}, 1")
    e(f"s_lshl_b32 {sr(sT1)}, {sr(sT1)}, 2")
    e(f"s_add_u32 {sr(sT0)}, {sr(sT0)}, {sr(sT1)}")
    e(f"v_add_u32 {vr(vT0)}, {sr(sT0)}, {vr(vT0)}")
    e(f"v_mul_u32_u24 {vr(vWOj)}, 1152, {vr(vT0)}")
    e(f"v_lshlrev_b32 {vr(vT1)}, 1, {vr(vG)}")
    e(f"v_and_b32 {vr(vT0)}, 7, {vr(vLane)}")
    e(f"v_xor_b32 {vr(vT1)}, {vr(vT1)}, {vr(vT0)}")
    e(f"v_lshl_add_u32 {vr(vWOj)}, {vr(vT1)}, 4, {vr(vWOj)}")
    for j in range(1, 4):
        e(f"v_add_u32 {vr(vWOj+j)}, {36864*j}, {vr(vWOj)}")
    vLw, vLr = vTmp + 14, vTmp + 15
    e(f"s_lshl_b32 {sr(sT0)}, {sr(sW)}, 9")
    e(f"s_add_u32 {sr(sT0)}, {sr(sT0)}, {LDS_QP}")
    e(f"v_and_b32 {vr(vT0)}, 7, {vr(vLane)}")
    e(f"v_lshl_add_u32 {vr(vLw)}, {vr(vT0)}, 5, {sr(sT0)}")
    e(f"v_and_b32 {vr(vT1)}, 1, {vr(vG)}")
    e(f"v_lshl_add_u32 {vr(vLw)}, {vr(vT1)}, 4, {vr(vLw)}")
    e(f"v_lshrrev_b32 {vr(vT1)}, 1, {vr(vG)}")
    e(f"v_lshl_add_u32 {vr(vLw)}, {vr(vT1)}, 8, {vr(vLw)}")
    e(f"s_lshl_b32 {sr(sT0)}, {sr(sW)}, 7")
    e(f"s_add_u32 {sr(sT0)}, {sr(sT0)}, {LDS_QP}")
    e(f"v_lshl_add_u32 {vr(vLr)}, {vr(vT0)}, 4, {sr(sT0)}")
    e(f"v_bfe_u32 {vr(vT0)}, {vr(vLane)}, 3, 1")
    e(f"v_cmp_eq_u32 vcc, 1, {vr(vT0)}")
    e("s_waitcnt lgkmcnt(0)")
    e(f"s_add_u32 {sr(sE)}, {sr(sE)}, 1")
    e(f"s_mul_i32 {sr(sNon)}, {sr(sE)}, 0x9E3779B1")
    e(f"s_or_b32 {sr(sNon)}, {sr(sNon)}, 1")
    e(f"v_mov_b32 {vr(vT1)}, {sr(sNon)}")
    vXm = vTmp + 13
    e(f"v_cndmask_b32 {vr(vXm)}, 0, {vr(vT1)}, vcc")
    vZ = vTmp + 8
    for i in range(4):
        e(f"v_mov_b32 {vr(vZ+i)}, 0")
    vPl = vTmp + 4
    e(f"v_mov_b32 {vr(vPl)}, -1")
    e(f"v_mov_b32 {vr(vPl+1)}, -1")
    if ORG:
        e(f"s_add_u32 {sr(sT0)}, s2, {sr(sW)}")
        e(f"s_cmp_eq_u32 {sr(sT0)}, 0")
        e(f"s_cselect_b32 exec_hi, 0xffff, 0")
        e(f"s_mov_b32 exec_lo, 0")
        e(f"s_xor_b32 {sr(sT0)}, s94, {sr(sNon)}")
        e(f"v_mov_b32 {vr(vPl)}, s94")
        e(f"v_mov_b32 {vr(vPl+1)}, {sr(sT0)}")
        e(f"v_lshlrev_b32 {vr(vQs)}, 7, {vr(vCc)}")
        e(f"v_add_u32 {vr(vQs)}, {ORG_OFF}, {vr(vQs)}")
        e(f"s_mov_b64 exec, -1")
    e(f"v_mov_b32 {vr(vT0)}, {LDS_CNT}")
    stamp2(5)
    g.wait_tag("x")
    stamp2(6)
    def wq_pair(p):
        a, b = vW + 8 * p, vW + 8 * p + 4
        for d in range(4):
            t0, t1 = vTmp + 2 * (d & 1), vTmp + 2 * (d & 1) + 1
            e(f"v_perm_b32 {vr(t0)}, {vr(b+d)}, {vr(a+d)}, {sr(sSelLo)}")
            e(f"v_perm_b32 {vr(t1)}, {vr(b+d)}, {vr(a+d)}, {sr(sSelHi)}")
            e(f"v_dot2c_f32_bf16 {vr(vQacc+2*d)}, {vr(t0)}, {vr(vXa+p)}")
            e(f"v_dot2c_f32_bf16 {vr(vQacc+2*d+1)}, {vr(t1)}, {vr(vXa+p)}")
            e(f"v_dot2c_f32_bf16 {vr(vQacc+8+2*d)}, {vr(t0)}, {vr(vXb+p)}")
            e(f"v_dot2c_f32_bf16 {vr(vQacc+8+2*d+1)}, {vr(t1)}, {vr(vXb+p)}")
    e(f"s_bitcmp{bigbit}_b32 s2, 0")
    e("s_cbranch_scc0 L_wq2")
    for p in range(NS // 2, NB // 2): wq_pair(p)
    g.lab("L_wq2")
    MID = opts.get("mid", 0)
    if MID == 1: issue_tile(T0N)
    for p in range(NS // 2):
        wq_pair(p)
        if MID == 2 and p == 0: issue_k(T0N, ("k", T0N))
        if MID == 2 and p == 1: issue_v(T0N, ("v", T0N)); adv()
    if MID == 3: issue_tile(T0N)
    e("s_nop 2")
    for i in range(8):
        e(f"v_permlane32_swap_b32 {vr(vQacc+i)}, {vr(vQacc+i+8)}")
    e("s_nop 1")
    for i in range(8):
        e(f"v_add_f32 {vr(vQacc+i)}, {vr(vQacc+i)}, {vr(vQacc+i+8)}")
    e("s_nop 1")
    for i in range(4):
        e(f"v_permlane16_swap_b32 {vr(vQacc+i)}, {vr(vQacc+i+4)}")
    e("s_nop 1")
    for i in range(4):
        e(f"v_add_f32 {vr(vQacc+i)}, {vr(vQacc+i)}, {vr(vQacc+i+4)}")
    e("s_nop 1")
    for i in range(4):
        e(f"v_add_f32_dpp {vr(vQacc+4+i)}, {vr(vQacc+i)}, {vr(vQacc+i)} row_ror:8 row_mask:0xf bank_mask:0xf")
    e(f"ds_write_b128 {vr(vLw)}, {vr(vQacc+4,4)}")
    e(f"ds_write_b128 {vr(vT0)}, {vr(vZ,4)}")
    e(f"ds_write_b128 {vr(vT0)}, {vr(vZ,4)} offset:16")
    e("s_waitcnt lgkmcnt(0)")
    e("s_barrier")
    for w in range(4):
        e(f"ds_read_b128 {vr(vQacc+4*w,4)}, {vr(vLr)} offset:{512*w}")
    e("s_waitcnt lgkmcnt(2)")
    for i in range(4):
        e(f"v_add_f32 {vr(vQacc+i)}, {vr(vQacc+i)}, {vr(vQacc+4+i)}")
    e("s_waitcnt lgkmcnt(0)")
    for i in range(4):
        e(f"v_add_f32 {vr(vQacc+8+i)}, {vr(vQacc+8+i)}, {vr(vQacc+12+i)}")
    for i in range(4):
        e(f"v_add_f32 {vr(vQacc+i)}, {vr(vQacc+i)}, {vr(vQacc+8+i)}")
    for i in range(4):
        e(f"v_xor_b32 {vr(vQacc+i)}, {vr(vXm)}, {vr(vQacc+i)}")
    e(f"s_mov_b32 exec_lo, 0xffff0000")
    e(f"v_mov_b32 {vr(vQacc)}, {vr(vPl)}")
    e(f"v_mov_b32 {vr(vQacc+1)}, {vr(vPl+1)}")
    e(f"v_mov_b32 {vr(vQacc+2)}, {sr(sNon)}")
    e(f"s_mov_b32 exec_lo, -1")
    g.vm(f"buffer_store_dwordx4 {vr(vQacc,4)}, {vr(vQs)}, {sr(sWS,4)}, 0 offen sc1", "qs")
    stamp(1)
    for d in range(T0N + (1 if MID else 0), QPOS): issue_tile(d)
    e(f"s_cmp_eq_u32 {sr(sIsA)}, 1")
    e("s_cbranch_scc1 L_A")
    q_common = list(g.q)

    def prologue2(isA):
        nm = "A" if isA else "B"
        nh = 2 if isA else 1
        g.q = list(q_common)
        QS = [vQl, 200, 80]
        def qloads(tag, R=vQl):
            for i in range(2 * nh):
                g.vm(f"buffer_load_dwordx4 {vr(R+4*i,4)}, {vr(vQa)}, {sr(sWS,4)}, 0 offen offset:{(i>>1)*1024+(i&1)*16} sc1", tag)
        def qcheck(R=vQl):
            for hd in range(nh):
                for i in range(4):
                    e(f"v_bitop3_b32 {vr(vTmp+4+4*hd+i)}, {vr(R+8*hd+i)}, {vr(R+8*hd+4+i)}, {sr(sNon)} bitop3:0x96")
            e(f"v_or3_b32 {vr(vT0)}, {vr(vTmp+4)}, {vr(vTmp+5)}, {vr(vTmp+6)}")
            if isA:
                e(f"v_or3_b32 {vr(vT0)}, {vr(vT0)}, {vr(vTmp+7)}, {vr(vTmp+8)}")
                e(f"v_or3_b32 {vr(vT0)}, {vr(vT0)}, {vr(vTmp+9)}, {vr(vTmp+10)}")
                e(f"v_or_b32 {vr(vT0)}, {vr(vT0)}, {vr(vTmp+11)}")
            else:
                e(f"v_or_b32 {vr(vT0)}, {vr(vT0)}, {vr(vTmp+7)}")
            e(f"v_cmp_ne_u32 vcc, 0, {vr(vT0)}")
        NP = min(opts.get("np", 1), D - QPOS + 1, 2 if isA else 3)
        assert NX <= 4 or NP < 2
        QB = opts.get("qb", 0)
        if ORG:
            e(f"s_and_b32 {sr(sT0)}, s2, 15")
            e(f"s_lshl_b32 {sr(sT0)}, {sr(sT0)}, 7")
            e(f"s_add_u32 {sr(sT0)}, {sr(sT0)}, {ORG_OFF}")
            e("s_mov_b64 exec, 1")
            g.vm(f"buffer_load_dwordx2 {vr(vS,2)}, off, {sr(sWS,4)}, {sr(sT0)} sc1", "org")
            e("s_mov_b64 exec, -1")
        qloads(("ql", 0))
        def mid_tiles(hi):
            for d in range(QPOS, hi):
                issue_tile(d)
                k = d - QPOS + 1
                if k < NP: qloads(("ql", k), QS[k])
        if QB: NP = min(NP, QB - QPOS + 1)
        else: mid_tiles(D)
        for i in range(8 * nh):
            e(f"v_mov_b32 {vr(vO+i)}, 0")
        e(f"v_mov_b32 {vr(vM)}, 0xff800000")
        e(f"v_mov_b32 {vr(vL)}, 0")
        if isA:
            e(f"v_mov_b32 {vr(vM2)}, 0xff800000")
            e(f"v_mov_b32 {vr(vL2)}, 0")
        if PROF == 3:
            e(f"v_mov_b32 {vr(vTk)}, 0")
        e(f"s_mov_b32 {sr(sDyn)}, {sr(sIt)}")
        e(f"s_mov_b32 {sr(sLim)}, {sr(sDoff)}")
        e(f"s_add_u32 {sr(sCnt)}, {sr(sDlds)}, {LDS_CNT + 12}")
        e(f"s_mul_i32 {sr(sTrig)}, {sr(sInc)}, {EARLY}")
        e(f"s_sub_u32 {sr(sTrig)}, {sr(sLim)}, {sr(sTrig)}")
        e(f"s_cmp_eq_u32 {sr(sDlds)}, 0")
        e(f"s_cselect_b32 {sr(sTrig)}, {sr(sTrig)}, -1")
        e(f"s_mov_b32 {sr(sHas)}, 0")
        if FIX:
            if FIX == 1:
                e(f"s_lshr_b32 {sr(sCi)}, s2, 1")
                e(f"s_bitcmp1_b32 s2, 0")
                e(f"s_cselect_b32 {sr(sCi)}, {sr(sCi)}, 1000")
            elif FIX == 2:
                e(f"s_mov_b32 {sr(sCi)}, s2")
            elif FIX == 3:
                e(f"s_sub_u32 {sr(sCi)}, 255, s2")
                e(f"s_lshr_b32 {sr(sCi)}, {sr(sCi)}, 1")
                e(f"s_bitcmp1_b32 s2, 0")
                e(f"s_cselect_b32 {sr(sCi)}, {sr(sCi)}, 1000")
            elif FIX == 4:
                e(f"s_lshr_b32 {sr(sCi)}, s2, 3")
                e(f"s_and_b32 {sr(sT0)}, s2, 7")
                e(f"s_cmp_eq_u32 {sr(sT0)}, 1")
                e(f"s_cselect_b32 {sr(sT1)}, 0, 1000")
                e(f"s_cmp_eq_u32 {sr(sT0)}, 3")
                e(f"s_cselect_b32 {sr(sT1)}, 32, {sr(sT1)}")
                e(f"s_cmp_eq_u32 {sr(sT0)}, 7")
                e(f"s_cselect_b32 {sr(sT1)}, 64, {sr(sT1)}")
                e(f"s_add_u32 {sr(sCi)}, {sr(sCi)}, {sr(sT1)}")
            e(f"s_cmp_lt_u32 {sr(sCi)}, 72")
            e(f"s_cselect_b32 {sr(sTrig)}, {sr(sTrig)}, -1")
        e(f"s_mov_b32 {sr(sIt)}, 0")
        e(f"s_mov_b32 {sr(sHist)}, 0")
        e(f"s_mov_b32 {sr(sMh)}, 0x55555555"); e(f"s_mov_b32 {sr(sMh+1)}, 0x55555555")
        e(f"s_mov_b32 {sr(sMf)}, 0x00ff00ff"); e(f"s_mov_b32 {sr(sMf+1)}, 0x00ff00ff")
        e(f"s_mov_b32 {sr(sLev)}, {opts.get('lev0', 1)}")
        if PROF in (1, 8): e("s_mov_b32 s88, 0")
        e(f"s_mov_b32 {sr(sSt)}, {(SA if isA else SB) - D}")
        e(f"s_mov_b32 {sr(sDt)}, {opts.get('nodma', 0) if not isA else opts.get('nodmaa', 0)}")
        e(f"s_mov_b32 {sr(sDoff)}, 0")
        e(f"s_mov_b32 {sr(sDlds)}, {sr(sLdsW)}")
        e(f"s_mov_b32 {sr(sRem)}, {62 if PROF == 3 else 900}")
        e(f"s_mov_b32 {sr(sSpin)}, 0x40000")
        if QB: mid_tiles(QB)
        if not isA: cons_setup()
        g.wait_tag(("ql", 0))
        qcheck()
        e(f"s_cbranch_vccz L_qok{nm}")
        for k in range(1, NP):
            e(f"s_sub_u32 {sr(sSpin)}, {sr(sSpin)}, 1")
            g.wait_tag(("ql", k))
            qcheck(QS[k])
            for hd in range(nh):
                for i in range(4):
                    e(f"v_mov_b32 {vr(vQl+8*hd+i)}, {vr(QS[k]+8*hd+i)}")
            e(f"s_cbranch_vccz L_qok{nm}")
        g.lab(f"L_qretry{nm}")
        sv = list(g.q)
        qloads(None)
        g.q = sv
        e(f"s_sub_u32 {sr(sSpin)}, {sr(sSpin)}, 1")
        e(f"s_cbranch_scc1 L_qok{nm}")
        e("s_waitcnt vmcnt(0)")
        qcheck()
        e(f"s_cbranch_vccnz L_qretry{nm}")
        g.lab(f"L_qok{nm}")
        if ORG:
            e(f"v_readfirstlane_b32 {sr(sT0)}, {vr(vS)}")
            e(f"v_readfirstlane_b32 {sr(sT1)}, {vr(vS+1)}")
            e(f"s_xor_b32 {sr(sT1)}, {sr(sT1)}, {sr(sT0)}")
            e(f"s_cmp_eq_u32 {sr(sT1)}, {sr(sNon)}")
            e(f"s_cselect_b32 s94, {sr(sT0)}, s94")
        if FIXL < 0:
            e(f"s_lshl_b32 {sr(sSch)}, s94, 4")
            e(f"s_add_u32 {sr(sSch)}, {sr(sSch)}, {(opts.get('t0', 7000) + (opts.get('t0a', 200) if isA else 0))*16//10}")
            if not isA and opts.get("tq", 0):
                e(f"s_sub_u32 {sr(sT0)}, {sr(sLim)}, {sr(sDyn)}")
                e(f"s_cmp_eq_u32 {sr(sInc)}, 2")
                e(f"s_cselect_b32 {sr(sT1)}, 1, 0")
                e(f"s_cselect_b32 {sr(sT2)}, {146 - 4*SB + opts.get('hq', 0)}, {146 - 4*SB}")
                e(f"s_lshl_b32 {sr(sT0)}, {sr(sT0)}, {sr(sT1)}")
                e(f"s_sub_i32 {sr(sT0)}, {sr(sT0)}, {sr(sT2)}")
                e(f"s_mul_i32 {sr(sT0)}, {sr(sT0)}, {opts.get('tq')*16//10}")
                e(f"s_sub_i32 {sr(sSch)}, {sr(sSch)}, {sr(sT0)}")
            if not isA and opts.get("t0c", 0):
                e(f"s_cmp_lt_u32 s2, 72")
                e(f"s_cselect_b32 {sr(sT0)}, {opts.get('t0c')*16//10}, 0")
                e(f"s_sub_u32 {sr(sSch)}, {sr(sSch)}, {sr(sT0)}")
        if PROF == 5:
            e(f"s_sub_u32 s88, 0x40000, {sr(sSpin)}")
        e("s_nop 0")
        for hd in range(nh):
            for i in range(4):
                e(f"v_add_f32_dpp {vr(vTmp+4*hd+i)}, {vr(vQl+8*hd+i)}, {vr(vQl+8*hd+i)} row_ror:8 row_mask:0xf bank_mask:0xf")
        for hd in range(nh):
            e(f"v_cvt_pk_bf16_f32 {vr(vTmp+8+2*hd)}, {vr(vTmp+4*hd)}, {vr(vTmp+4*hd+1)}")
            e(f"v_cvt_pk_bf16_f32 {vr(vTmp+8+2*hd+1)}, {vr(vTmp+4*hd+2)}, {vr(vTmp+4*hd+3)}")
        e("s_nop 1")
        for hd in range(nh):
            qq = vQ2 if hd else vQ
            for j in range(4):
                for dd in range(4):
                    e(f"v_mov_b32_dpp {vr(qq+4*(j>>1)+dd)}, {vr(vTmp+8+2*hd+(dd&1))} row_newbcast:{j+4*(dd>>1)} row_mask:0xf bank_mask:{0xc if j & 1 else 0x3}")
        stamp(2)
        if QB:
            for d in range(QB, D): issue_tile(d)

    def softmax(S, M, L, O, P):
        e(f"v_max3_f32 {vr(vT0)}, {vr(S)}, {vr(S+1)}, {vr(S+2)}")
        e(f"v_max_f32 {vr(vT0)}, {vr(vT0)}, {vr(S+3)}")
        e(f"v_mul_f32 {vr(vT0)}, {sr(sC)}, {vr(vT0)}")
        e(f"v_max_f32 {vr(vMn)}, {vr(vT0)}, {vr(M)}")
        e(f"v_sub_f32 {vr(vA)}, {vr(M)}, {vr(vMn)}")
        for r in range(4):
            e(f"v_fma_f32 {vr(vE+r)}, {vr(S+r)}, {sr(sC)}, -{vr(vMn)}")
        e(f"v_exp_f32 {vr(vA)}, {vr(vA)}")
        for r in range(4):
            e(f"v_exp_f32 {vr(vE+r)}, {vr(vE+r)}")
        e(f"v_mov_b32 {vr(M)}, {vr(vMn)}")
        for i in range(8):
            e(f"v_mul_f32 {vr(O+i)}, {vr(vA)}, {vr(O+i)}")
        e(f"v_fma_f32 {vr(L)}, {vr(L)}, {vr(vA)}, {vr(vE)}")
        e(f"v_add_f32 {vr(vT0)}, {vr(vE+1)}, {vr(vE+2)}")
        e(f"v_add_f32 {vr(L)}, {vr(L)}, {vr(vE+3)}")
        e(f"v_add_f32 {vr(L)}, {vr(L)}, {vr(vT0)}")
        for r in range(4):
            e(f"v_cvt_pk_bf16_f32 {vr(P+2*r)}, {vr(vE+r)}, 0")
            e(f"v_cvt_pk_bf16_f32 {vr(P+2*r+1)}, 0, {vr(vE+r)}")

    def dma_group(lbl, mark, isA):
        e(f"s_cmp_lt_u32 {sr(sDt)}, 9")
        e(f"s_cbranch_scc0 {lbl}")
        if mark and HW: e(f"s_or_b32 {sr(sHist)}, {sr(sHist)}, 2")
        for j in range(4):
            e(f"s_add_u32 m0, {sr(sDlds)}, {4096*j}")
            e("s_nop 0")
            e(f"buffer_load_dwordx4 {vr(vWOj+j)}, {sr(sWO,4)}, {sr(sDoff)} offen lds")
        e(f"s_add_u32 {sr(sDt)}, {sr(sDt)}, 1")
        if FIXL < 0: e(f"s_add_u32 {sr(sSch)}, {sr(sSch)}, {opts.get('tauda' if isA else 'taud', 370 if isA else 260)*16//10}")
        e(f"s_add_u32 {sr(sDoff)}, {sr(sDoff)}, 128")
        e(f"s_add_u32 {sr(sDlds)}, {sr(sDlds)}, 16384")
        g.lab(lbl)

    def step(isA, d, dn, wk, wv, uid, dma, nm, cidx=0):
        P = PA if isA else PB
        if dn is not None:
            e(f"s_cmp_gt_i32 {sr(sSt)}, 0")
            e(f"s_cbranch_scc1 L_c1{uid}")
            e(f"v_mov_b32 {vr(vT0)}, {sr(sCnt)}")
            e(f"v_mov_b32 {vr(vT1)}, 1")
            e("s_mov_b64 exec, 1")
            e(f"ds_add_rtn_u32 {vr(vT1)}, {vr(vT0)}, {vr(vT1)}")
            e("s_mov_b64 exec, -1")
            g.lab(f"L_c1{uid}")
        e(f"s_waitcnt vmcnt({wk})")
        if dn is not None:
            e(f"s_cmp_lg_u32 {sr(sRem)}, 0")
            e(f"s_cbranch_scc1 L_k1{uid}")
            e(f"s_waitcnt vmcnt(4)")
            g.lab(f"L_k1{uid}")
        if dn is not None and FIXL < 0:
            e(f"s_memrealtime {sr(sNow,2)}")
        for qq in ((vQ, vQ2) if isA else (vQ,)):
            for j in (0, 2, 1, 3):
                dst = vr(qq + 8 + 4 * (j >> 1), 4)
                cc = "0" if j & 1 == 0 else dst
                e(f"v_mfma_f32_16x16x32_bf16 {dst}, {ar(kreg(d,j),4)}, {vr(qq+4*(j&1),4)}, {cc}")
        if dn is not None:
            e(f"s_cmp_gt_i32 {sr(sSt)}, 0")
            e(f"s_cbranch_scc1 L_c2{uid}")
            e("s_waitcnt lgkmcnt(0)")
            e(f"v_readfirstlane_b32 {sr(sCl)}, {vr(vT1)}")
            e(f"s_add_u32 {sr(sCl)}, {sr(sCl)}, {sr(sDyn)}")
            phys(sCl)
            e(f"s_cmp_ge_u32 {sr(sCl)}, {sr(sLim)}")
            e(f"s_cselect_b32 {sr(sRem)}, 1, {sr(sRem)}")
            e(f"s_cselect_b32 {sr(sSt)}, 1000, {sr(sSt)}")
            e(f"s_cmp_lg_u32 {sr(sCl)}, {sr(sTrig)}")
            e(f"s_cbranch_scc1 L_c2{uid}")
            e(f"s_call_b64 {sr(sRet,2)}, L_sig")
            g.lab(f"L_c2{uid}")
            e(f"s_sub_u32 {sr(sSt)}, {sr(sSt)}, 1")
            e(f"s_cmp_le_u32 {sr(sRem)}, 1")
            e(f"s_cbranch_scc1 L_nk{uid}")
            issue_k(dn)
            g.lab(f"L_nk{uid}")
            e("s_nop 3")
        else:
            e("s_nop 7")
        for qq, S in (((vQ, vS), (vQ2, vS2)) if isA else ((vQ, vS),)):
            for r in range(4):
                a, b = qq + 8 + 2 * r, qq + 9 + 2 * r
                e(f"v_add_f32_dpp {vr(S+r)}, {vr(b)}, {vr(a)} row_ror:8 row_mask:0xf bank_mask:0x3")
                e(f"v_add_f32_dpp {vr(S+r)}, {vr(a)}, {vr(b)} row_ror:8 row_mask:0xf bank_mask:0xc")
        softmax(vS, vM, vL, vO, vP)
        if isA:
            softmax(vS2, vM2, vL2, vO2, vP + 8)
        e(f"s_waitcnt vmcnt({wv})")
        if dn is not None:
            e(f"s_cmp_gt_u32 {sr(sRem)}, 1")
            e(f"s_cbranch_scc1 L_v1{uid}")
            e(f"s_waitcnt vmcnt(12)")
            e(f"s_cmp_lg_u32 {sr(sRem)}, 0")
            e(f"s_cbranch_scc1 L_v1{uid}")
            e(f"s_waitcnt vmcnt(0)")
            g.lab(f"L_v1{uid}")
        for r in range(4):
            for dd in range(4):
                e(f"v_dot2c_f32_bf16 {vr(vO+2*dd)}, {vr(vreg(d,r)+dd)}, {vr(vP+2*r)}")
                e(f"v_dot2c_f32_bf16 {vr(vO+2*dd+1)}, {vr(vreg(d,r)+dd)}, {vr(vP+2*r+1)}")
                if isA:
                    e(f"v_dot2c_f32_bf16 {vr(vO2+2*dd)}, {vr(vreg(d,r)+dd)}, {vr(vP+8+2*r)}")
                    e(f"v_dot2c_f32_bf16 {vr(vO2+2*dd+1)}, {vr(vreg(d,r)+dd)}, {vr(vP+8+2*r+1)}")
        if dn is None: return
        e(f"s_sub_u32 {sr(sRem)}, {sr(sRem)}, 1")
        e(f"s_cbranch_scc1 L_end{nm}")
        e(f"s_cmp_eq_u32 {sr(sRem)}, 0")
        e(f"s_cbranch_scc1 L_nv{uid}")
        issue_v(dn)
        adv()
        if FIXL < 0:
            e("s_waitcnt lgkmcnt(0)")
            e(f"s_add_u32 {sr(sSch)}, {sr(sSch)}, {opts.get('tau', 1100)*16//10}")
            e(f"s_lshl_b32 {sr(sNow)}, {sr(sNow)}, 4")
            e(f"s_sub_i32 {sr(sLev)}, {sr(sNow)}, {sr(sSch)}")
            BS = opts.get('bsh', 5) + 4
            e(f"s_ashr_i32 {sr(sLev)}, {sr(sLev)}, {BS}")
            e(f"s_min_i32 {sr(sLev)}, {sr(sLev)}, {opts.get('maxl', 4)}")
            if PROF in (1, 8):
                e(f"s_max_i32 {sr(sNow)}, {sr(sLev)}, 0")
                e(f"s_add_u32 s88, s88, {sr(sNow)}")
        for x in range(dma):
            dma_group(f"L_dma{uid}_{x}", x == dma - 1, isA)
        g.lab(f"L_nv{uid}")

    vAw, vAm, vAr, vAx = 148, 149, 150, 151
    vYo, vMlo, vCw, vCr, vOa, vTKr = 196, 197, 198, 199, 200, 201
    vEp = 152
    def ep_loads():
        e(f"v_lshlrev_b32 {vr(vT0)}, 4, {vr(vLane)}")
        e(f"v_add_u32 {vr(vT0)}, {ML_OFF + 8}, {vr(vT0)}")
        e(f"v_add_u32 {vr(vT1)}, 4096, {vr(vT0)}")
        for i in range(5):
            e(f"buffer_load_dword {vr(vEp+i)}, {vr(vT1 if i == 4 else vT0)}, {sr(sWS,4)}, 0 offen offset:{(1024*i)&4095} sc1")
    def ep_check():
        for i in range(5):
            e(f"v_xor_b32 {vr(vEp+i)}, {sr(sNon)}, {vr(vEp+i)}")
        e(f"v_or3_b32 {vr(vEp)}, {vr(vEp)}, {vr(vEp+1)}, {vr(vEp+2)}")
        e(f"v_or3_b32 {vr(vEp)}, {vr(vEp)}, {vr(vEp+3)}, {vr(vEp+4)}")
        e(f"v_cmp_ne_u32 vcc, 0, {vr(vEp)}")
    def ep_store():
        e(f"v_mov_b32 {vr(vEp)}, {sr(sE)}")
        e("s_mov_b64 exec, 1")
        e(f"buffer_store_dword {vr(vEp)}, off, {sr(sWS,4)}, 0 sc1")
        e("s_mov_b64 exec, -1")
    def tail_setup(isA):
        e(f"s_lshl_b32 {sr(sT0)}, {sr(sW)}, 2")
        e(f"v_add_u32 {vr(vT0)}, {sr(sT0)}, {vr(vG)}")
        e(f"v_mul_u32_u24 {vr(vAw)}, {OT_STRIDE}, {vr(vT0)}")
        e(f"v_lshl_add_u32 {vr(vAw)}, {vr(vCc)}, 4, {vr(vAw)}")
        e(f"v_add_u32 {vr(vAw)}, {LDS_OT}, {vr(vAw)}")
        e(f"v_lshlrev_b32 {vr(vAm)}, 3, {vr(vT0)}")
        e(f"v_add_u32 {vr(vAm)}, {LDS_M}, {vr(vAm)}")
        e(f"v_mul_u32_u24 {vr(vAr)}, {OT_STRIDE}, {vr(vCc)}")
        e(f"v_lshl_add_u32 {vr(vAr)}, {vr(vG)}, 4, {vr(vAr)}")
        e(f"v_add_u32 {vr(vAr)}, {LDS_OT}, {vr(vAr)}")
        e(f"v_lshlrev_b32 {vr(vT0)}, 2, {vr(vG)}")
        e(f"v_add_u32 {vr(vT1)}, {vr(vT0)}, {vr(vCc)}")
        if isA:
            e(f"v_and_b32 {vr(vT1)}, 15, {vr(vT1)}")
        else:
            e(f"s_cmp_gt_u32 {sr(sD1)}, 0x10000000")
            e(f"s_cselect_b32 {sr(sT1)}, 15, 7")
            e(f"v_bfi_b32 {vr(vT1)}, {sr(sT1)}, {vr(vT1)}, {vr(vT0)}")
        e(f"v_lshlrev_b32 {vr(vAx)}, 3, {vr(vT1)}")
        e(f"v_add_u32 {vr(vAx)}, {LDS_M}, {vr(vAx)}")
    def cons_setup():
        sP, sCb, sSl, sRow = sT0, sT1, sT2, sT3
        e(f"s_cmp_lt_u32 {sr(sCi)}, 36")
        e(f"s_cselect_b32 {sr(sP)}, 1, 0")
        e(f"s_cselect_b32 {sr(sRow)}, 0, 36")
        e(f"s_sub_u32 {sr(sSl)}, {sr(sCi)}, {sr(sRow)}")
        e(f"s_cmp_ge_u32 {sr(sSl)}, 18")
        e(f"s_cselect_b32 {sr(sCb)}, 1, 0")
        e(f"s_cselect_b32 {sr(sRow)}, 18, 0")
        e(f"s_sub_u32 {sr(sSl)}, {sr(sSl)}, {sr(sRow)}")
        e(f"s_lshl_b32 {sr(sRow)}, {sr(sCb)}, 5")
        e(f"v_lshrrev_b32 {vr(vT0)}, 3, v0")
        e(f"v_add_u32 {vr(vT0)}, {sr(sRow)}, {vr(vT0)}")
        e(f"s_lshl_b32 {sr(sRow)}, {sr(sP)}, 1")
        e(f"v_lshlrev_b32 {vr(vT0)}, {sr(sRow)}, {vr(vT0)}")
        e(f"s_cmp_eq_u32 {sr(sP)}, 0")
        e(f"s_cselect_b32 {sr(sRow)}, 256, 0")
        e(f"s_cselect_b32 {sr(sWoff)}, 0, 3")
        e(f"v_add_u32 {vr(vT0)}, {sr(sRow)}, {vr(vT0)}")
        e(f"v_mul_u32_u24 {vr(vYo)}, {YROW}, {vr(vT0)}")
        e(f"v_and_b32 {vr(vT1)}, 7, v0")
        e(f"v_lshl_add_u32 {vr(vYo)}, {vr(vT1)}, 4, {vr(vYo)}")
        e(f"s_lshl_b32 {sr(sRow)}, {sr(sSl)}, 7")
        e(f"s_add_u32 {sr(sRow)}, {sr(sRow)}, {Y_OFF}")
        e(f"v_add_u32 {vr(vYo)}, {sr(sRow)}, {vr(vYo)}")
        e(f"v_and_b32 {vr(vMlo)}, {sr(sWoff)}, v0")
        e(f"v_add_u32 {vr(vMlo)}, {vr(vMlo)}, {vr(vT0)}")
        e(f"v_lshlrev_b32 {vr(vMlo)}, 4, {vr(vMlo)}")
        e(f"v_add_u32 {vr(vMlo)}, {ML_OFF}, {vr(vMlo)}")
        e(f"v_and_b32 {vr(vT0)}, 1, {vr(vG)}")
        e(f"v_lshlrev_b32 {vr(vT0)}, 1, {vr(vT0)}")
        e(f"v_lshrrev_b32 {vr(vCw)}, 1, {vr(vG)}")
        e(f"v_or_b32 {vr(vT0)}, {vr(vT0)}, {vr(vCw)}")
        e(f"v_lshl_add_u32 {vr(vT0)}, {vr(vT1)}, 2, {vr(vT0)}")
        e(f"s_lshl_b32 {sr(sRow)}, {sr(sW)}, 7")
        e(f"s_add_u32 {sr(sRow)}, {sr(sRow)}, {LDS_QP}")
        e(f"v_lshl_add_u32 {vr(vCw)}, {vr(vT0)}, 2, {sr(sRow)}")
        e(f"v_lshlrev_b32 {vr(vCr)}, 2, v0")
        e(f"v_add_u32 {vr(vCr)}, {LDS_QP}, {vr(vCr)}")
        e(f"s_mul_i32 {sr(sCb)}, {sr(sCb)}, 1152")
        e(f"s_mul_i32 {sr(sP)}, {sr(sP)}, 576")
        e(f"s_add_u32 {sr(sCb)}, {sr(sCb)}, {sr(sP)}")
        e(f"s_lshr_b32 {sr(sP)}, {sr(sSl)}, 2")
        e(f"s_lshl_b32 {sr(sP)}, {sr(sP)}, 4")
        e(f"s_and_b32 {sr(sRow)}, {sr(sSl)}, 2")
        e(f"s_lshl_b32 {sr(sRow)}, {sr(sRow)}, 7")
        e(f"s_add_u32 {sr(sP)}, {sr(sP)}, {sr(sRow)}")
        e(f"s_and_b32 {sr(sRow)}, {sr(sSl)}, 1")
        e(f"s_lshl_b32 {sr(sRow)}, {sr(sRow)}, 6")
        e(f"s_add_u32 {sr(sP)}, {sr(sP)}, {sr(sRow)}")
        e(f"s_lshl_b32 {sr(sRow)}, {sr(sSl)}, 5")
        e(f"v_and_b32 {vr(vOa)}, 1, v0")
        e(f"v_lshlrev_b32 {vr(vOa)}, 7, {vr(vOa)}")
        e(f"v_lshrrev_b32 {vr(vT0)}, 1, v0")
        e(f"v_add_u32 {vr(vOa)}, {vr(vOa)}, {vr(vT0)}")
        e(f"s_cmp_lt_u32 {sr(sSl)}, 16")
        e(f"s_cselect_b32 {sr(sP)}, {sr(sP)}, {sr(sRow)}")
        e(f"s_cselect_b64 vcc, -1, 0")
        e(f"s_add_u32 {sr(sCb)}, {sr(sCb)}, {sr(sP)}")
        e(f"v_cndmask_b32 {vr(vOa)}, v0, {vr(vOa)}, vcc")
        e(f"v_add_u32 {vr(vOa)}, {sr(sCb)}, {vr(vOa)}")
        e(f"v_lshlrev_b32 {vr(vOa)}, 1, {vr(vOa)}")

    def mainloop(isA):
        nm = "A" if isA else "B"
        P = PA if isA else PB
        WK, WV = 16, 20
        def arrive(k):
            e(f"v_mov_b32 {vr(vT0)}, {LDS_CNT}")
            e(f"v_mov_b32 {vr(vT1)}, 1")
            e("s_mov_b64 exec, 1")
            e(f"ds_add_u32 {vr(vT0)}, {vr(vT1)} offset:{4*k}")
            e("s_mov_b64 exec, -1")
        def wait_all(k):
            e(f"v_mov_b32 {vr(vT0)}, {LDS_CNT}")
            g.lab(f"L_w{nm}{k}")
            e(f"ds_read_b32 {vr(vT1)}, {vr(vT0)} offset:{4*k}")
            e("s_waitcnt lgkmcnt(0)")
            e(f"v_readfirstlane_b32 {sr(sT0)}, {vr(vT1)}")
            e("s_nop 3")
            e(f"s_cmp_lt_u32 {sr(sT0)}, 4")
            e(f"s_cbranch_scc1 L_w{nm}{k}")
        def h_arr0():
            e(f"s_waitcnt vmcnt(36)")
            arrive(0)
        def h_t1():
            stamp(3)
            tail_setup(isA)
            wait_all(0)
            e(f"s_call_b64 {sr(sRet,2)}, L_T1")
            if isA: arrive(1)
            stamp(4)
        def h_dma2():
            wait_all(1)
            e(f"s_mov_b32 {sr(sDt)}, {opts.get('nodmaa', 0)}")
            e(f"s_mov_b32 {sr(sDoff)}, 147456")
            e(f"s_mov_b32 {sr(sDlds)}, {sr(sLdsW)}")
        def h_arr2():
            e("s_waitcnt vmcnt(36)")
            arrive(2)
        def h_t1b():
            wait_all(2)
            e(f"s_call_b64 {sr(sRet,2)}, L_T1b")
            e(f"s_add_u32 {sr(sT0)}, s2, {sr(sW)}")
            e(f"s_cmp_lg_u32 {sr(sT0)}, 258")
            e("s_cbranch_scc1 L_ep0")
            ep_loads()
            g.lab("L_ep0")
        def h_extra():
            for x in range(2, D):
                step(isA, x, None, 24, 24, f"{nm}x{x}", 0, nm)
        hooks = {4: h_arr0, 5: h_t1, 6: h_dma2, 10: h_arr2, 11: h_t1b} if isA else {10: h_arr0, T1B: h_t1}
        XI = opts.get("xi", 1)
        def mk(xs, then):
            def f():
                for x in xs:
                    step(isA, x, None, 24, 24, f"{nm}x{x}", 0, nm)
                if then: then()
            return f
        xl = list(range(2, D))
        it = 1
        while xl:
            hooks[it] = mk(xl[:XI], hooks.get(it)); xl = xl[XI:]; it += 1
        assert EARLY * 2 <= H3 - 1 - 2 * SB and EARLY >= 1 and EARLY * 4 <= 128 - 4 * SA
        assert (SA if isA else SB) - NX > 2 * max(hooks)
        g.lab(f"L_loop{nm}")
        e(f"s_bitcmp1_b32 {sum(1 << k for k in hooks)}, {sr(sIt)}")
        e(f"s_cbranch_scc0 L_body{nm}")
        ks = sorted(hooks)
        for n, k in enumerate(ks):
            if n < len(ks) - 1:
                e(f"s_cmp_lg_u32 {sr(sIt)}, {k}")
                e(f"s_cbranch_scc1 L_hk{nm}{n+1}")
            hooks[k]()
            if n < len(ks) - 1:
                e(f"s_branch L_body{nm}")
                g.lab(f"L_hk{nm}{n+1}")
        g.lab(f"L_body{nm}")
        for i in range(2):
            step(isA, i, i, WK, WV, f"{nm}{i}", 2 if isA else 1 - i, nm, i)
        e(f"s_add_u32 {sr(sIt)}, {sr(sIt)}, 1")
        if opts.get("pst", 0):
            e(f"s_cmp_lg_u32 {sr(sW)}, 0")
            e(f"s_cbranch_scc1 L_loop{nm}")
            e(f"s_lshl_b32 {sr(sT0)}, s2, 8")
            e(f"s_add_u32 {sr(sT0)}, {sr(sT0)}, 0x1e0000")
            e(f"s_mov_b64 exec, 1")
            e(f"v_mov_b32 {vr(vT0)}, {sr(sIt)}")
            e(f"buffer_store_dword {vr(vT0)}, off, {sr(sWS,4)}, {sr(sT0)} sc1")
            if opts.get("pst") == 2:
                e(f"s_mov_b64 exec, 0xff")
                e(f"s_andn2_b32 {sr(sT0)}, {sr(sT0)}, 0x7ff")
                e(f"buffer_load_dword {vr(vA)}, {vr(vK)}, {sr(sWS,4)}, {sr(sT0)} offen sc1")
            e(f"s_mov_b64 exec, -1")
        e(f"s_branch L_loop{nm}")
        g.lab(f"L_end{nm}")

    DP = "row_mask:0xf bank_mask:0xf"
    NSL = opts.get("nsl", 1)
    SCS = {0: "sc1", 1: "sc0 sc1", 2: "sc1 nt", 3: "sc0 sc1 nt"}[opts.get("scs", 0)]
    SCL = {0: "sc1", 1: "sc0 sc1", 2: "sc1 nt", 3: "sc0 sc1 nt"}[opts.get("scl", 0)]
    def schedule(main, ops, per=2):
        pos = [0]; hist = []
        mpos = {}
        def emit(text, kind, wr=(), rd=(), n=1):
            e(text); hist.append((pos[0] + n - 1, kind, set(wr), set(rd))); pos[0] += n
        def need(op):
            t = 0
            if op.get("after") is not None:
                if op["after"] not in mpos: return None
                t = mpos[op["after"]] + 1 + (2 if op["kind"] == "dpp" else 0)
            for (p, k, wr, rd) in hist:
                d = None
                if k == "mfma":
                    if wr & (op["rd"] | op["wr"]): d = 8
                elif k in ("valu", "dpp", "swap", "trans"):
                    if wr & op["rd"]:
                        d = 0
                        if op["kind"] in ("dpp", "swap"): d = 2
                        elif k == "trans": d = 1
                        if any(isinstance(x, str) for x in wr & op["rd"]): d = 2
                elif k == "store":
                    if rd & op["wr"]: d = 2
                if d is not None: t = max(t, p + 1 + d)
            return t
        done = [False] * len(ops)
        mw = {}
        for i, (t_, k_, w_) in enumerate(main):
            for r in w_: mw[r] = i
        def ready(i):
            op = ops[i]
            for j in range(i):
                if not done[j]:
                    o = ops[j]
                    if (o["wr"] & (op["rd"] | op["wr"])) or (o["rd"] & op["wr"]) or (o["kind"] == "store" and op["kind"] == "store"): return None
            for r in op["rd"] | op["wr"]:
                if r in mw and mw[r] not in mpos: return None
            return need(op)
        def fill(n):
            k = 0
            while k < n:
                c = [i for i in range(len(ops)) if not done[i] and ready(i) is not None and ready(i) <= pos[0]]
                if not c:
                    w = [ready(i) - pos[0] for i in range(len(ops)) if not done[i] and ready(i) is not None]
                    if w and min(w) <= 2 and k + min(w) < n + NSL:
                        emit(f"s_nop {min(w)-1}", "nop", n=min(w)); k += min(w); n = max(n, k + 1)
                        continue
                    break
                i = c[0]
                emit(ops[i]["text"], ops[i]["kind"], ops[i]["wr"], ops[i]["rd"], ops[i].get("n", 1)); done[i] = True
                k += 2 if ops[i]["kind"] == "trans" else 1
        for i, (text, kind, wr) in enumerate(main):
            mpos[i] = pos[0]
            emit(text, kind, wr)
            if kind in ("mfma", "wait0"): fill(per)
        stamp9(2)
        while not all(done):
            fill(1000)
            if all(done): break
            c = [ready(i) for i in range(len(ops)) if not done[i] and ready(i) is not None]
            w = min(c) - pos[0]
            assert w > 0
            emit(f"s_nop {w-1}", "nop", n=w)
    def T2(nh, nm):
        vAcc = [64, 100]
        aAop = [0, 16]
        vMLr = [136, 138]; vW4 = [140, 144]; vPk = [56, 60]
        vTa = [48, 52]
        vMM = [32, 34]; vLL = [33, 35]
        vOut = [16, 24]
        sF, sFm = sT0, sT2
        Os = [vO, vO2]; Ms = [vM, vM2]
        for hd in range(nh):
            for d in range(4):
                e(f"v_cvt_pk_bf16_f32 {vr(vPk[hd]+d)}, {vr(Os[hd]+2*d)}, {vr(Os[hd]+2*d+1)}")
            e(f"ds_write_b128 {vr(vAw)}, {vr(vPk[hd],4)} offset:{hd*OT_BYTES}")
            e(f"ds_write_b64 {vr(vAm)}, {vr(Ms[hd],2)} offset:{hd*128}")
        if nh == 1:
            e(f"v_mov_b32 {vr(vTKr)}, {LDS_TK}")
            e(f"s_cmp_eq_u32 {sr(sHas)}, 0")
            e(f"s_cbranch_scc1 L_T2b{nm}")
            e(f"v_cmp_ne_u32 vcc, {sr(sNon)}, {vr(vFl)}")
            e(f"v_cmp_ne_u32 {sr(sT2,2)}, {sr(sNon)}, {vr(vFl+1)}")
            e(f"s_or_b64 vcc, vcc, {sr(sT2,2)}")
            e(f"s_cselect_b32 {sr(sT2)}, 0, 1")
            e(f"v_mov_b32 {vr(vFl)}, {sr(sT2)}")
            e("s_mov_b64 exec, 1")
            e(f"ds_write_b32 {vr(vTKr)}, {vr(vFl)}")
            e("s_mov_b64 exec, -1")
            g.lab(f"L_T2b{nm}")
            e(f"s_cmp_gt_u32 {sr(sD1)}, 0x10000000")
            e(f"s_cselect_b32 {sr(sF)}, 1.0, 0")
            e(f"s_cselect_b64 {sr(sFm,2)}, -1, 0")
        else:
            e(f"s_add_u32 {sr(sT0)}, s2, {sr(sW)}")
            e(f"s_cmp_lg_u32 {sr(sT0)}, 258")
            e("s_cbranch_scc1 L_ep1")
            ep_check()
            e("s_cbranch_vccnz L_ep1")
            ep_store()
            e(f"s_mov_b32 {sr(sT0)}, 0")
            g.lab("L_ep1")
        e(f"v_cmp_eq_u32 vcc, 16, {vr(vU0)}")
        e(f"v_mov_b32 {vr(vV)}, {sr(sNon)}")
        e("s_waitcnt lgkmcnt(0)")
        e("s_barrier")
        stamp9(1)
        nrd = 0
        for hd in range(nh):
            for j in range(4):
                if j == 0:
                    e(f"ds_read_b64 {vr(vMLr[hd],2)}, {vr(vAx)} offset:{hd*128}"); nrd += 1
                e(f"ds_read_b128 {ar(aAop[hd]+4*j,4)}, {vr(vAr)} offset:{hd*OT_BYTES+64*j}"); nrd += 1
        if nh == 1:
            e(f"ds_read_b32 {vr(vTKr)}, {vr(vTKr)}"); nrd += 1
        main = []; ops = []
        TO = [8, 0, 1, 4, 5, 2, 3, 6, 7]
        def op(text, rd, wr, kind="valu", **kw):
            ops.append(dict(text=text, rd=set(rd), wr=set(wr), kind=kind, **kw))
        mlw = {}
        for hd in range(nh):
            for n, t in enumerate(TO):
                for j in range(4):
                    if hd == 0 and n == 0:
                        if j == 0:
                            main.append((f"s_waitcnt lgkmcnt({nrd - 1})", "wait0", ())); mlw[0] = len(main) - 1
                        main.append((f"s_waitcnt lgkmcnt({nrd - j - 2})", "wait", ()))
                    if nh == 2 and hd == 0 and n == 2 and j == 0:
                        main.append(("s_waitcnt lgkmcnt(0)", "wait", ())); mlw[1] = len(main) - 1
                    a = vAcc[hd] + 4 * t
                    cc = "0" if j == 0 else vr(a, 4)
                    main.append((f"v_mfma_f32_16x16x32_bf16 {vr(a,4)}, {ar(aAop[hd]+4*j,4)}, {rr(wo_reg(hd,t*4+j),4)}, {cc}", "mfma", range(a, a + 4)))
        def weights(hd):
            M, L = vMLr[hd], vMLr[hd] + 1
            t0, t1, w, wl = range(vTa[hd], vTa[hd] + 4)
            MM, LL, W = vMM[hd], vLL[hd], vW4[hd]
            for src, dst, rot in ((M, t0, 8), (t0, t1, 4), (t1, t0, 2), (t0, MM, 1)):
                op(f"v_max_f32_dpp {vr(dst)}, {vr(src)}, {vr(src)} row_ror:{rot} {DP}", [src], [dst], "dpp", after=mlw[hd])
            op(f"v_sub_f32 {vr(w)}, {vr(M)}, {vr(MM)}", [M, MM], [w])
            op(f"v_exp_f32 {vr(w)}, {vr(w)}", [w], [w], "trans")
            op(f"v_mul_f32 {vr(wl)}, {vr(w)}, {vr(L)}", [w, L], [wl])
            for r in range(4):
                op(f"v_mov_b32_dpp {vr(W+r)}, {vr(w)} row_newbcast:{r} {DP}", [w], [W + r], "dpp")
            op(f"v_add_f32_dpp {vr(t0)}, {vr(wl)}, {vr(wl)} quad_perm:[1,0,3,2] {DP}", [wl], [t0], "dpp")
            op(f"v_add_f32_dpp {vr(LL)}, {vr(t0)}, {vr(t0)} quad_perm:[2,3,0,1] {DP}", [t0], [LL], "dpp")
            op(f"v_min_u32 {vr(MM)}, -2, {vr(MM)}", [MM], [MM])
        def body(hd):
            MM, LL, W, Out = vMM[hd], vLL[hd], vW4[hd], vOut[hd]
            A = lambda t: vAcc[hd] + 4 * t
            def comb(t):
                a = A(t)
                op(f"v_mul_f32 {vr(a)}, {vr(W)}, {vr(a)}", [W, a], [a])
                for r in range(1, 4):
                    op(f"v_fmac_f32 {vr(a)}, {vr(W+r)}, {vr(a+r)}", [a, W + r, a + r], [a])
            def pair(x, y, outs):
                op(f"v_permlane16_swap_b32 {vr(x)}, {vr(y)}", [x, y], [x, y], "swap")
                for o in outs:
                    op(f"v_add_f32 {vr(o)}, {vr(x)}, {vr(y)}", [x, y], [o])
            def fold(x, y):
                op(f"v_permlane32_swap_b32 {vr(x)}, {vr(y)}", [x, y], [x, y], "swap")
                if nh == 1: op(f"v_fmac_f32 {vr(x)}, {sr(sF)}, {vr(y)}", [x, y], [x])
                else: op(f"v_add_f32 {vr(x)}, {vr(x)}, {vr(y)}", [x, y], [x])
                op(f"v_min_u32 {vr(x)}, -2, {vr(x)}", [x], [x])
            comb(8)
            pair(A(8), LL, [Out + 5, Out + 6] + ([Out + 4] if nh == 1 else []))
            op(f"v_permlane32_swap_b32 {vr(Out+5)}, {vr(Out+6)}", [Out + 5, Out + 6], [Out + 5, Out + 6], "swap")
            if nh == 1:
                op(f"v_add_f32 {vr(Out+5)}, {vr(Out+5)}, {vr(Out+6)}", [Out + 5, Out + 6], [Out + 5])
                op(f"v_cndmask_b32 {vr(Out+4)}, {vr(Out+4)}, {vr(Out+5)}, {sr(sFm,2)}", [Out + 4, Out + 5], [Out + 4])
            else:
                op(f"v_add_f32 {vr(Out+4)}, {vr(Out+5)}, {vr(Out+6)}", [Out + 5, Out + 6], [Out + 4])
            op(f"v_min_u32 {vr(Out+4)}, -2, {vr(Out+4)}", [Out + 4], [Out + 4])
            comb(0)
            for k in range(1, 4):
                op(f"v_mov_b32_dpp {vr(Out+4+k)}, {vr(Out+4)} quad_perm:[{k},{k},{k},{k}] {DP}", [Out + 4], [Out + 4 + k], "dpp")
            op(f"v_cndmask_b32 {vr(Out+4)}, {vr(Out+4)}, {vr(MM)}, vcc", [Out + 4, MM], [Out + 4])
            op(f"v_cndmask_b32 {vr(Out+6)}, {vr(Out+6)}, {vr(vV)}, vcc", [Out + 6], [Out + 6])
            st = f"buffer_store_dwordx4 {vr(Out+4,4)}, {vr(vSt1)}, {sr(sWS,4)}, 0 offen {SCS}"
            if nh == 2:
                x = "exec_lo" if hd else "exec_hi"
                st = f"s_mov_b32 {x}, 0\n    {st}\n    s_mov_b32 {x}, -1"
            op(st, range(Out + 4, Out + 8), [], "store", n=3 if nh == 2 else 1)
            comb(1); pair(A(0), A(1), [Out])
            comb(4); comb(5); pair(A(4), A(5), [Out + 2])
            fold(Out, Out + 2)
            comb(2); comb(3); pair(A(2), A(3), [Out + 1])
            comb(6); comb(7); pair(A(6), A(7), [Out + 3])
            fold(Out + 1, Out + 3)
            so = sr(sD1) if hd else "0"
            op(f"buffer_store_dwordx2 {vr(Out,2)}, {vr(vSt0)}, {sr(sWS,4)}, {so} offen {SCS}", [Out, Out + 1], [], "store")
        weights(0); body(0)
        if nh == 2: weights(1); body(1)
        schedule(main, ops, opts.get("per", 2))
        if nh == 1:
            Out = vOut[0]
            e(f"s_cmp_lg_u32 {sr(sF)}, 0")
            e("s_cbranch_scc1 L_full")
            for k in (2, 3):
                e(f"v_min_u32 {vr(Out+k)}, -2, {vr(Out+k)}")
            e(f"buffer_store_dwordx2 {vr(Out+2,2)}, {vr(vSt0)}, {sr(sWS,4)}, {sr(sD1)} offen {SCS}")
            g.lab("L_full")

    prologue2(False)
    mainloop(False)
    stamp(5)
    T2(1, "B")
    stamp(6)

    g.lab("L_cons")
    e(f"s_cmp_ge_u32 {sr(sCi)}, 72")
    e("s_cbranch_scc1 L_done")
    vMx, vRes, vWt = 48, 40, 56
    vML, vY, vZc = 36, 64, 80
    sPr, sFast = sT0, sT1
    e(f"s_mov_b32 {sr(sSpin)}, 0x100000")
    e("s_waitcnt lgkmcnt(0)")
    e(f"v_readfirstlane_b32 {sr(sRem)}, {vr(vTKr)}")
    e(f"s_movk_i32 {sr(sWoff)}, {YROW*2}")
    e(f"s_cmp_eq_u32 {sr(sRem)}, 1")
    e("s_cbranch_scc1 L_pollc_done")
    g.lab("L_pollc")
    e(f"s_sleep {SLEEP}")
    e(f"s_call_b64 {sr(sRet,2)}, L_sig")
    e(f"s_sub_u32 {sr(sSpin)}, {sr(sSpin)}, 1")
    e("s_cbranch_scc1 L_pollc_done")
    e("s_waitcnt vmcnt(0)")
    e(f"v_cmp_ne_u32 vcc, {sr(sNon)}, {vr(vFl)}")
    e(f"v_cmp_ne_u32 {sr(sT2,2)}, {sr(sNon)}, {vr(vFl+1)}")
    e(f"s_or_b64 vcc, vcc, {sr(sT2,2)}")
    e("s_cbranch_scc1 L_pollc")
    e(f"s_mov_b32 {sr(sSpin)}, 0x100000")
    g.lab("L_pollc_done")
    e(f"s_mov_b32 {sr(sPr)}, 0")
    e(f"s_mov_b32 {sr(sFast)}, 0")
    e(f"s_cmp_ge_u32 {sr(sCi)}, 36")
    e("s_cbranch_scc1 L_finA")
    NPL = opts.get("npl", 2)
    PSL = opts.get("psl", 8)
    PTH = opts.get("pth", 64)
    FRC = opts.get("frc", 0)
    def consumer_fr(ns, nm):
        sMask = 16
        def ld(i):
            if i == ns:
                e(f"buffer_load_dwordx2 {vr(vML,2)}, {vr(vMlo)}, {sr(sWS,4)}, 0 offen sc1")
            elif i < 2:
                e(f"buffer_load_dwordx4 {vr(vY+4*i,4)}, {vr(vYo)}, {sr(sWS,4)}, 0 offen offset:{YROW*i} sc1")
            else:
                e(f"buffer_load_dwordx4 {vr(vY+4*i,4)}, {vr(vYo)}, {sr(sWS,4)}, {sr(sWoff)} offen offset:{YROW*(i-2)} sc1")
        for i in range(ns + 1): ld(i)
        e("s_waitcnt vmcnt(0)")
        g.lab(f"L_pc{nm}")
        e(f"v_max_u32 {vr(vMx+ns)}, {vr(vML)}, {vr(vML+1)}")
        for i in range(ns):
            e(f"v_max3_u32 {vr(vMx+i)}, {vr(vY+4*i)}, {vr(vY+4*i+1)}, {vr(vY+4*i+2)}")
            e(f"v_max_u32 {vr(vMx+i)}, {vr(vMx+i)}, {vr(vY+4*i+3)}")
        if ns == 4:
            e(f"v_max3_u32 {vr(vMx+5)}, {vr(vMx)}, {vr(vMx+1)}, {vr(vMx+4)}")
            e(f"v_max3_u32 {vr(vMx+5)}, {vr(vMx+5)}, {vr(vMx+2)}, {vr(vMx+3)}")
        else:
            e(f"v_max_u32 {vr(vMx+5)}, {vr(vMx)}, {vr(vMx+1)}")
        e(f"v_cmp_eq_u32 vcc, -1, {vr(vMx+5)}")
        e(f"s_cbranch_vccz L_polld{nm}_done")
        e(f"s_sub_u32 {sr(sPr)}, {sr(sPr)}, 1")
        e(f"s_cbranch_scc0 L_pc{nm}")
        e(f"s_mov_b32 {sr(sPr)}, {(FRC if ns == 4 else 2*FRC)-1}")
        for i in range(ns + 1):
            e(f"v_cmp_eq_u32 {sr(sMask+2*i,2)}, -1, {vr(vMx+i)}")
        e(f"s_sub_u32 {sr(sSpin)}, {sr(sSpin)}, 1")
        e(f"s_cbranch_scc1 L_polld{nm}_done")
        e(f"s_waitcnt vmcnt({opts.get('frw', 40)})")
        for i in range(ns + 1):
            e(f"s_mov_b64 exec, {sr(sMask+2*i,2)}")
            e(f"s_cbranch_execz L_pd{nm}{i}")
            ld(i)
            g.lab(f"L_pd{nm}{i}")
        e("s_mov_b64 exec, -1")
        e(f"s_branch L_pc{nm}")
    def consumer(ns, nm):
        sMask = 16
        if FRC: consumer_fr(ns, nm)
        else: consumer_lk(ns, nm)
        consumer_fin(ns, nm)
    def consumer_lk(ns, nm):
        sMask = 16
        for i in range(ns + 1):
            e(f"s_mov_b64 {sr(sMask+2*i,2)}, -1")
        g.lab(f"L_polld{nm}")
        for i in ([ns] + list(range(ns)) if opts.get("mlf", 0) else range(ns + 1)):
            if NPL > 1 or opts.get("dum", 0): e(f"s_or_b64 exec, {sr(sMask+2*i,2)}, 1")
            else:
                e(f"s_mov_b64 exec, {sr(sMask+2*i,2)}")
                e(f"s_cbranch_execz L_pd{nm}{i}")
            if i == ns:
                e(f"buffer_load_dwordx2 {vr(vML,2)}, {vr(vMlo)}, {sr(sWS,4)}, 0 offen {SCL}")
            elif i < 2:
                e(f"buffer_load_dwordx4 {vr(vY+4*i,4)}, {vr(vYo)}, {sr(sWS,4)}, 0 offen offset:{YROW*i} {SCL}")
            else:
                e(f"buffer_load_dwordx4 {vr(vY+4*i,4)}, {vr(vYo)}, {sr(sWS,4)}, {sr(sWoff)} offen offset:{YROW*(i-2)} {SCL}")
            g.lab(f"L_pd{nm}{i}")
        e("s_mov_b64 exec, -1")
        if NPL > 1:
            e(f"s_sub_u32 {sr(sPr)}, {sr(sPr)}, 1")
            e(f"s_cbranch_scc1 L_pw{nm}")
            e(f"s_sleep {PSL}")
            e(f"s_branch L_polld{nm}")
            g.lab(f"L_pw{nm}")
            e(f"s_mov_b32 {sr(sPr)}, 0")
            e(f"s_cmp_lg_u32 {sr(sFast)}, 0")
            e(f"s_waitcnt vmcnt({(ns+1)*(NPL-1)})")
            e(f"s_cbranch_scc1 L_pc{nm}")
        e("s_waitcnt vmcnt(0)")
        g.lab(f"L_pc{nm}")
        e(f"v_max_u32 {vr(vMx+ns)}, {vr(vML)}, {vr(vML+1)}")
        for i in range(ns):
            e(f"v_max3_u32 {vr(vMx+i)}, {vr(vY+4*i)}, {vr(vY+4*i+1)}, {vr(vY+4*i+2)}")
            e(f"v_max_u32 {vr(vMx+i)}, {vr(vMx+i)}, {vr(vY+4*i+3)}")
        if ns == 4:
            e(f"v_max3_u32 {vr(vMx+5)}, {vr(vMx)}, {vr(vMx+1)}, {vr(vMx+4)}")
            e(f"v_max3_u32 {vr(vMx+5)}, {vr(vMx+5)}, {vr(vMx+2)}, {vr(vMx+3)}")
        else:
            e(f"v_max_u32 {vr(vMx+5)}, {vr(vMx)}, {vr(vMx+1)}")
        e(f"v_cmp_eq_u32 vcc, -1, {vr(vMx+5)}")
        e(f"s_cbranch_vccz L_polld{nm}_done")
        for i in range(ns + 1):
            e(f"v_cmp_eq_u32 {sr(sMask+2*i,2)}, -1, {vr(vMx+i)}")
        if opts.get("gate", 0):
            for i in range(ns):
                if ns == 4:
                    e(f"v_mov_b32_dpp {vr(vMx+5)}, {vr(vMx+ns)} quad_perm:[{i},{i},{i},{i}] {DP}")
                    e(f"v_cmp_ne_u32 vcc, -1, {vr(vMx+5)}")
                    e(f"s_and_b64 {sr(sMask+2*i,2)}, {sr(sMask+2*i,2)}, vcc")
                else:
                    e(f"s_andn2_b64 {sr(sMask)}, {sr(sMask,2)}, {sr(sMask+2,2)}".replace(f"{sr(sMask)},", f"{sr(sMask,2)},", 1))
        e(f"s_sub_u32 {sr(sSpin)}, {sr(sSpin)}, 1")
        e(f"s_cbranch_scc1 L_polld{nm}_done")
        if NPL > 1:
            e(f"s_cmp_lg_u32 {sr(sFast)}, 0")
            e(f"s_cbranch_scc1 L_polld{nm}")
            for i in range(ns):
                e(f"s_bcnt1_i32_b64 {sr(sT2 if i == 0 else sT3)}, {sr(sMask+2*i,2)}")
                if i: e(f"s_add_u32 {sr(sT2)}, {sr(sT2)}, {sr(sT3)}")
            e(f"s_cmp_le_u32 {sr(sT2)}, {PTH}")
            e(f"s_cselect_b32 {sr(sFast)}, 1, 0")
            e(f"s_cselect_b32 {sr(sPr)}, {NPL-1}, 0")
            e(f"s_cbranch_scc1 L_polld{nm}")
        if DSLEEP:
            e(f"s_sleep {DSLEEP}")
        e(f"s_branch L_polld{nm}")
    def consumer_fin(ns, nm):
        g.lab(f"L_polld{nm}_done")
        stamp9(4)
        if opts.get("cnt", 0): e(f"s_sub_u32 s84, 0x100000, {sr(sSpin)}")
        if ns == 1:
            e(f"v_rcp_f32 {vr(vMx)}, {vr(vML+1)}")
            e("s_nop 0")
            for k in range(4):
                e(f"v_mul_f32 {vr(vZc+k)}, {vr(vMx)}, {vr(vY+k)}")
            return
        e(f"v_max_f32_dpp {vr(vMx)}, {vr(vML)}, {vr(vML)} quad_perm:[1,0,3,2] {DP}")
        e("s_nop 1")
        e(f"v_max_f32_dpp {vr(vWt)}, {vr(vMx)}, {vr(vMx)} quad_perm:[2,3,0,1] {DP}")
        e(f"v_sub_f32 {vr(vMx)}, {vr(vML)}, {vr(vWt)}")
        e(f"v_exp_f32 {vr(vMx)}, {vr(vMx)}")
        e("s_nop 0")
        e(f"v_mul_f32 {vr(vMx+1)}, {vr(vMx)}, {vr(vML+1)}")
        for k in range(2):
            e(f"v_mul_f32_dpp {vr(vZc+k)}, {vr(vMx)}, {vr(vY+k)} quad_perm:[0,0,0,0] {DP}")
        e(f"v_add_f32_dpp {vr(vMx+2)}, {vr(vMx+1)}, {vr(vMx+1)} quad_perm:[1,0,3,2] {DP}")
        for k in range(2, 4):
            e(f"v_mul_f32_dpp {vr(vZc+k)}, {vr(vMx)}, {vr(vY+k)} quad_perm:[0,0,0,0] {DP}")
        e(f"v_add_f32_dpp {vr(vWt)}, {vr(vMx+2)}, {vr(vMx+2)} quad_perm:[2,3,0,1] {DP}")
        e(f"v_rcp_f32 {vr(vWt)}, {vr(vWt)}")
        for i in range(1, ns):
            for k in range(4):
                e(f"v_fmac_f32_dpp {vr(vZc+k)}, {vr(vMx)}, {vr(vY+4*i+k)} quad_perm:[{i},{i},{i},{i}] {DP}")
        for k in range(4):
            e(f"v_mul_f32 {vr(vZc+k)}, {vr(vWt)}, {vr(vZc+k)}")
    g.lab("L_finA0")
    e("s_branch L_finB")
    g.lab("L_finA")
    consumer(1, "A")
    e("s_branch L_fin2")
    g.lab("L_finB")
    consumer(4, "B")
    g.lab("L_fin2")
    for k in range(4):
        e(f"v_add_f32_dpp {vr(vRes+k)}, {vr(vZc+k)}, {vr(vZc+k)} row_ror:8 row_mask:0xf bank_mask:0xf")
    e(f"v_permlane32_swap_b32 {vr(vRes)}, {vr(vRes+1)}")
    e("s_nop 0")
    e(f"v_permlane32_swap_b32 {vr(vRes+2)}, {vr(vRes+3)}")
    e(f"v_add_f32 {vr(vRes)}, {vr(vRes)}, {vr(vRes+1)}")
    e(f"v_add_f32 {vr(vRes+2)}, {vr(vRes+2)}, {vr(vRes+3)}")
    e("s_nop 1")
    e(f"v_permlane16_swap_b32 {vr(vRes)}, {vr(vRes+2)}")
    e(f"v_add_f32 {vr(vRes)}, {vr(vRes)}, {vr(vRes+2)}")
    e(f"ds_write_b32 {vr(vCw)}, {vr(vRes)}")
    e(f"s_cmp_lg_u32 {sr(sW)}, 0")
    e("s_mov_b32 exec_hi, 0")
    e("s_waitcnt lgkmcnt(0)")
    e("s_barrier")
    stamp9(6)
    e("s_cbranch_scc1 L_done0")
    for w in range(4):
        e(f"ds_read_b32 {vr(vRes+w)}, {vr(vCr)} offset:{128*w}")
    e("s_waitcnt lgkmcnt(0)")
    e(f"v_add_f32 {vr(vRes)}, {vr(vRes)}, {vr(vRes+1)}")
    e(f"v_add_f32 {vr(vRes+2)}, {vr(vRes+2)}, {vr(vRes+3)}")
    e(f"v_add_f32 {vr(vRes)}, {vr(vRes)}, {vr(vRes+2)}")
    e(f"v_cvt_pk_bf16_f32 {vr(vRes)}, {vr(vRes)}, {vr(vRes)}")
    e(f"buffer_store_short {vr(vRes)}, {vr(vOa)}, {sr(sOut,4)}, 0 offen")
    g.lab("L_done0")
    if PROF:
        e("s_mov_b64 exec, -1")
        e("s_branch L_done")
    else:
        e("s_endpgm")

    g.lab("L_A")
    prologue2(True)
    mainloop(True)
    stamp(5)
    T2(2, "A")
    stamp(6)
    e(f"s_cmp_lg_u32 {sr(sT0)}, 258")
    e("s_cbranch_scc1 L_done")
    e(f"s_mov_b32 {sr(sSpin)}, 0x100000")
    g.lab("L_ep")
    ep_loads()
    e(f"s_sub_u32 {sr(sSpin)}, {sr(sSpin)}, 1")
    e("s_cbranch_scc1 L_done")
    e("s_waitcnt vmcnt(0)")
    ep_check()
    e("s_cbranch_vccnz L_ep")
    ep_store()
    g.lab("L_done")
    if opts.get("diag", 0):
        e("s_waitcnt vmcnt(0) lgkmcnt(0)")
        e("s_memrealtime s[20:21]")
        e("s_waitcnt lgkmcnt(0)")
        e("s_sub_u32 s22, s20, s94")
        e("s_sub_i32 s22, s22, 4000")
        e("s_max_i32 s22, s22, 0")
        e("s_min_i32 s22, s22, 5000")
        e(f"s_mul_i32 s22, s22, {opts.get('diag')}")
        e("s_add_u32 s22, s22, s20")
        e("s_mov_b32 s23, 100000")
        g.lab("L_diag")
        e("s_sleep 8")
        e("s_memrealtime s[20:21]")
        e("s_sub_u32 s23, s23, 1")
        e("s_cbranch_scc1 L_exit")
        e("s_waitcnt lgkmcnt(0)")
        e("s_sub_i32 s24, s20, s22")
        e("s_cmp_lt_i32 s24, 0")
        e("s_cbranch_scc1 L_diag")
    if PROF == 8:
        e("s_waitcnt lgkmcnt(0)")
        e(f"s_mul_i32 {sr(sT0)}, s2, 0x1c72")
        e(f"s_lshr_b32 {sr(sT0)}, {sr(sT0)}, 16")
        e(f"s_mul_i32 {sr(sT1)}, {sr(sT0)}, 9")
        e(f"s_add_u32 {sr(sT1)}, {sr(sT1)}, {sr(sW)}")
        e(f"s_cmp_lg_u32 {sr(sT1)}, s2")
        e("s_cbranch_scc1 L_exit")
        e(f"s_cmp_lg_u32 {sr(sW)}, 0")
        e("s_cbranch_scc1 L_exit")
        e(f"s_cmp_ge_u32 {sr(sT0)}, 16")
        e("s_cbranch_scc1 L_exit")
        e("s_sub_u32 s90, s90, s94")
        e("s_sub_u32 s84, s84, s94")
        e("s_mul_i32 s84, s84, 0x199a")
        e("s_lshr_b32 s84, s84, 16")
        e("s_mul_i32 s90, s90, 1000")
        e("s_add_u32 s90, s90, s84")
        e("s_mul_i32 s90, s90, 100")
        e("s_lshr_b32 s88, s88, 1")
        e("s_add_u32 s90, s90, s88")
        e("v_mov_b32 v20, s90")
        e(f"s_lshl_b32 {sr(sT0)}, {sr(sT0)}, 2")
        e("s_mov_b64 exec, 1")
        e(f"buffer_store_dword v20, off, {sr(sDbg,4)}, {sr(sT0)}")
    elif PROF:
        e("s_waitcnt vmcnt(0)")
        stamp(7)
        e("s_getreg_b32 s96, hwreg(HW_REG_XCC_ID)")
        e("s_getreg_b32 s97, hwreg(HW_REG_HW_ID)")
        e("s_waitcnt lgkmcnt(0)")
        e(f"s_lshl_b32 {sr(sT0)}, s2, 2")
        e(f"s_add_u32 {sr(sT0)}, {sr(sT0)}, {sr(sW)}")
        e(f"s_lshl_b32 {sr(sT0)}, {sr(sT0)}, 6")
        e(f"s_add_u32 {sr(sT0)}, {sr(sT0)}, 0x200000")
        e(f"v_mov_b32 v20, {sr(sT0)}")
        for i in range(8):
            e(f"v_mov_b32 v{24+i}, s{80+2*i}")
        e("v_mov_b32 v32, s96")
        e("v_mov_b32 v33, s97")
        e(f"v_cmp_eq_u32 vcc, 0, {vr(vLane)}")
        e("s_and_saveexec_b64 s[98:99], vcc")
        e(f"buffer_store_dwordx4 v[24:27], v20, {sr(sWS,4)}, 0 offen")
        e(f"buffer_store_dwordx4 v[28:31], v20, {sr(sWS,4)}, 0 offen offset:16")
        e(f"buffer_store_dwordx2 v[32:33], v20, {sr(sWS,4)}, 0 offen offset:32")
    g.lab("L_exit")
    e("s_endpgm")

    g.lab("L_sig")
    e(f"s_mov_b32 {sr(sHas)}, 1")
    e(f"s_cmp_ge_u32 {sr(sCi)}, 18")
    e(f"s_cselect_b32 {sr(sT0)}, 2048, 0")
    e(f"s_add_u32 {sr(sT0)}, {sr(sT0)}, {ML_OFF + 8}")
    e(f"s_add_u32 {sr(sT1)}, {sr(sT0)}, 1024")
    e(f"s_cmp_ge_u32 {sr(sCi)}, 36")
    e(f"s_cselect_b32 {sr(sT0)}, {ML_OFF + 8 + 4096}, {sr(sT0)}")
    e(f"s_cselect_b32 {sr(sT1)}, {sr(sT0)}, {sr(sT1)}")
    e(f"v_lshlrev_b32 {vr(vT0)}, 4, {vr(vLane)}")
    e(f"buffer_load_dword {vr(vFl)}, {vr(vT0)}, {sr(sWS,4)}, {sr(sT0)} offen sc1")
    e(f"buffer_load_dword {vr(vFl+1)}, {vr(vT0)}, {sr(sWS,4)}, {sr(sT1)} offen sc1")
    e(f"s_setpc_b64 {sr(sRet,2)}")

    for hd, lb in ((0, "L_T1"), (1, "L_T1b")):
        g.lab(lb)
        e(f"v_add_u32 {vr(vT0)}, 0x10000, {vr(vTR)}")
        e(f"v_add_u32 {vr(vT1)}, 0x20000, {vr(vTR)}")
        for t in range(9):
            for j in range(4):
                for hf in range(2):
                    off = t*16384 + j*4096 + hf*2048
                    a = (vTR, vT0, vT1)[off >> 16]
                    ty, rg = wo_reg(hd, t*4+j)
                    e(f"ds_read_b64_tr_b16 {rr((ty, rg+hf*2),2)}, {vr(a)} offset:{off & 0xffff}")
        e("s_waitcnt lgkmcnt(0)")
        e(f"s_setpc_b64 {sr(sRet,2)}")

    hdr = HEADER
    hdr += f"; @launch grid=(256,1,1) block=(256,1,1) lds={LDS_TOTAL}\n"
    hdr += '.amdgcn_target "amdgcn-amd-amdhsa--gfx950"\n.text\n'
    hdr += f".globl {KN}\n.p2align 8\n.type {KN},@function\n"
    tail = f""".section .rodata,"a"
.p2align 6
.amdhsa_kernel {KN}
  .amdhsa_next_free_vgpr 512
  .amdhsa_next_free_sgpr 102
  .amdhsa_accum_offset 256
  .amdhsa_group_segment_fixed_size 0
  .amdhsa_kernarg_size 104
  .amdhsa_user_sgpr_count 2
  .amdhsa_user_sgpr_kernarg_segment_ptr 1
  .amdhsa_system_sgpr_workgroup_id_x 1
.end_amdhsa_kernel
"""
    return hdr + g.text() + tail

if __name__ == "__main__":
    out = sys.argv[1]
    opts = {}
    for a in sys.argv[2:]:
        k, v = a.split("=")
        opts[k] = int(v)
    open(out, "w").write(gen(opts))
```

```python
import sys, math, struct

KN = "concat_heads__sliding_block_cached__mha_block_cached__decode_kernel"

def f32bits(x):
    return struct.unpack("<I", struct.pack("<f", x))[0]

class Gen:
    def __init__(self):
        self.lines = []
        self.q = []
    def e(self, s):
        self.lines.append("    " + s)
    def lab(self, s):
        self.lines.append(s + ":")
    def vm(self, s, tag=None):
        self.e(s)
        self.q.append(tag)
    def wait_tag(self, tag):
        idx = max(i for i, t in enumerate(self.q) if t == tag)
        n = len(self.q) - 1 - idx
        assert n <= 63, n
        self.e(f"s_waitcnt vmcnt({n})")
    def text(self):
        return "\n".join(self.lines) + "\n"

def vr(a, n=1):
    return f"v{a}" if n == 1 else f"v[{a}:{a+n-1}]"
def ar(a, n=1):
    return f"a{a}" if n == 1 else f"a[{a}:{a+n-1}]"
def sr(a, n=1):
    return f"s{a}" if n == 1 else f"s[{a}:{a+n-1}]"

HEADER = open("concat_heads__sliding_block_cached__mha_block_cached__decode.s.ref").read().split("; Override launch")[0]

NROWS = 256
YROW = 2304
HF_OFF = 256
Q_OFF = 0x400000
Y_OFF = 1024
ML_OFF = Y_OFF + NROWS * YROW
ORG_OFF = ML_OFF + NROWS * 16
AF_OFF = ORG_OFF + 2048
AR_OFF = AF_OFF + 32768
WS_END = Q_OFF + 16 * 32768
LDS_OT = 147456
OT_STRIDE = 272
OT_BYTES = 16 * OT_STRIDE
LDS_M = LDS_OT + OT_BYTES
LDS_CNT = LDS_M + 128
LDS_SC = LDS_CNT + 64
LDS_TOTAL = LDS_SC + 176 * 64
CSCALE = (128 ** -0.5) * math.log2(math.e)
OOB = 0x40000000
assert AR_OFF + 256 * 1024 <= 0x200000 and AF_OFF % 128 == 0 and ML_OFF % 128 == 0 and LDS_TOTAL <= 163840

def gen(opts):
    U = opts.get("u", 4)
    NT = " nt"
    PROF = opts.get("prof", 0)
    SLEEP = opts.get("sleep", 16)
    SB = opts.get("sb", 37)
    WS_BYTES = WS_END
    QW = opts.get('qw', 3)
    RM = opts.get("rm", 25)
    RMA = opts.get("rma", 25)
    RB = [0, opts.get("r1", 171), opts.get("r2", 342), 512]
    assert all(4 * SB + 4 <= RB[i + 1] - RB[i] <= 176 for i in range(3))
    FLV = opts.get("flv", -1)
    PSPL = opts.get("pspl", 0)
    PSPV = opts.get("pspv", 0)
    MHV = 0x0f0f0f0f
    LW = [int(ch, 16) for ch in "%x" % opts.get("lw", 0x8642)]
    g = Gen()
    e = g.e
    sW, sRet, sE, sNon, sOut = 3, 4, 6, 7, 12
    sWoff, sSpin = 34, 35
    sK, sV, sWQ, sX, sWO, sWS = 36, 40, 44, 48, 52, 56
    sAK, sAV = sWQ, sX
    sRot, sAL, sT0, sT1, sT2, sT3 = 60, 61, 62, 63, 64, 65
    sOff, sIt, sC, sSelLo, sSelHi, sLdsW = 66, 67, 68, 69, 70, 71
    sRem, sR0, sAr, sQo, sIsH, sDt, sDoff, sDlds = 72, 73, 74, 75, 76, 77, 78, 79
    sKVo, sWoO, sAo, sPq, sQa, sL = 96, 97, 98, 99, 100, 101
    sX15 = 96
    sSt, sCl, sCi, sSrc = 44, 47, 45, 46
    sDyn, sLim, sL0, sBase = 48, 49, 50, 51
    sLev, sSch, sNow, sOff0 = 17, 18, 20, 22
    sTi, sPh = 26, 30
    PM = [int(ch, 16) + 8 for ch in "%013x" % (opts.get("perm", 0x10712345689abc) & (16**13 - 1))]
    assert sorted(PM) == list(range(8, 21)) and PM[11:] == [19, 20] and PM[0] <= 11 and PM[3] <= 11 and PM[4:] == sorted(PM[4:]), PM
    HOLE = sum(1 << p for p in PM[:4] if p > PM[4])
    TMASK = sum(1 << p for p in PM[4:])
    def phys(src, add, mask=None):
        e(f"s_add_u32 {sr(sX15)}, {sr(src)}, {add}")
        runs = []
        for i in range(9):
            if runs and runs[-1][1] + runs[-1][2] == PM[4 + i]: runs[-1][2] += 1
            else: runs.append([i, PM[4 + i], 1])
        for n, (i, p, w) in enumerate(runs):
            d = sOff if n == 0 else sWoff
            e(f"s_bfe_u32 {sr(d)}, {sr(sX15)}, {(w << 16) | i}")
            e(f"s_lshl_b32 {sr(d)}, {sr(d)}, {p}")
            if n: e(f"s_or_b32 {sr(sOff)}, {sr(sOff)}, {sr(sWoff)}")
        if mask: e(f"s_and_b32 {sr(sOff)}, {sr(sOff)}, {mask}")
    def adv():
        e(f"s_add_u32 {sr(sOff)}, {sr(sOff)}, {HOLE + (1 << PM[6])}")
        e(f"s_and_b32 {sr(sOff)}, {sr(sOff)}, {TMASK}")
        e(f"s_add_u32 {sr(sL)}, {sr(sL)}, 256")
    assert all(p > PM[6] for p in PM[:4] if p > PM[4])
    vLane, vG, vCc = 1, 2, 3
    vK, vV, vSt0, vSt1, vTR, vU0 = 4, 5, 6, 7, 8, 9
    vT0, vT1 = 10, 11
    vM, vL, vM2, vL2 = 12, 13, 14, 15
    vS, vMk = 16, 20
    vE, vA, vMn = 24, 28, 29
    vSa, vSb = 30, 31
    vO, vO2 = 32, 36
    vP = 48
    vQ, vQA = 64, 68
    vVb = 96
    vWOj = 160
    vSA = 164
    vTk = 202
    vAw, vAm, vAr, vAx = 204, 205, 206, 207
    vYo, vMlo, vCw, vCr, vOa, vWm = 196, 197, 198, 199, 200, 201
    vEp = 152
    vHf, vHa = 162, 163
    vQa = 161
    vQl = 208
    vTmp = 240
    aW = 64
    aA = 64
    DP = "row_mask:0xf bank_mask:0xf"
    def stamp9(i):
        if PROF == 9: e(f"s_memrealtime s[{80+2*i}:{81+2*i}]")
    def stamp(i):
        if PROF in (9, 11):
            if i in (0, 5, 7): e(f"s_memrealtime s[{80+2*i}:{81+2*i}]")
            if i == 6: e(f"s_memrealtime s[86:87]")
        elif PROF in (1, 3) or (PROF == 2 and i in (0, 1, 2, 7)):
            e(f"s_memrealtime s[{80+2*i}:{81+2*i}]")
    def stamp2(i):
        if PROF == 2: e(f"s_memrealtime s[{80+2*i}:{81+2*i}]")
    def srd_tail(s, size):
        e(f"s_mov_b32 {sr(s+2)}, {size}")
        e(f"s_mov_b32 {sr(s+3)}, 0x00020000")
    def add64(d, s, off):
        e(f"s_add_u32 {sr(d)}, {sr(s)}, {off}")
        e(f"s_addc_u32 {sr(d+1)}, {sr(s+1)}, 0")
    def issue(isK, reg, srd, tag=None, split=0):
        for j in range(4):
            if isK: ld = f"buffer_load_dwordx4 {ar(reg+4*j,4)}, {vr(vK)}, {sr(srd,4)}, {sr(sOff)} offen offset:{((j&1) << PM[0]) + ((j>>1) << PM[3])}{NT}"
            else: ld = f"buffer_load_dwordx4 {vr(reg+4*j,4)}, {vr(vV)}, {sr(srd,4)}, {sr(sOff)} offen offset:{((j&1) << PM[0]) + ((j>>1) << PM[3])}{NT}"
            if j < split:
                m = 0x0000ffff if isK else MHV
                e(f"s_mov_b32 exec_lo, {m}"); e(f"s_mov_b32 exec_hi, {m}")
                g.vm(ld, tag)
                e("s_not_b64 exec, exec")
                g.vm(ld, tag)
                e("s_mov_b64 exec, -1")
            else:
                g.vm(ld, tag)
    def throttle(uid):
        for n, w in enumerate(LW):
            e(f"s_cmp_ge_i32 {sr(sLev)}, {len(LW) - n}")
            e(f"s_cbranch_scc1 L_th{uid}")
            e(f"s_waitcnt vmcnt({w})")
        g.lab(f"L_th{uid}")

    g.lab(KN)
    e("s_cmp_ge_u32 s2, 256")
    e("s_cbranch_scc1 L_exit")
    stamp(0)
    e("s_memrealtime s[94:95]")
    e("s_load_dwordx16 s[8:23], s[0:1], 0")
    e("s_load_dwordx8 s[24:31], s[0:1], 64")
    e("s_load_dwordx2 s[32:33], s[0:1], 96")
    e(f"v_lshrrev_b32 {vr(vT0)}, 6, v0")
    e(f"v_mov_b32 {vr(vT1)}, {LDS_CNT}")
    for i in range(4):
        e(f"v_mov_b32 {vr(vO+i)}, 0")
    e(f"v_readfirstlane_b32 {sr(sW)}, {vr(vT0)}")
    e(f"ds_write_b128 {vr(vT1)}, {vr(vO,4)}")
    e(f"v_and_b32 {vr(vLane)}, 63, v0")
    e(f"v_bfe_u32 {vr(vG)}, v0, 4, 2")
    e(f"v_and_b32 {vr(vCc)}, 15, v0")
    vWQ, vX, vXs, vXo, vQs = 24, 25, 96, 120, 26
    e(f"s_and_b32 {sr(sT0)}, s2, 3")
    e(f"s_mul_i32 {sr(sT1)}, {sr(sT0)}, 144")
    e(f"v_mad_u32_u24 {vr(vX)}, {vr(vG)}, 36, {sr(sT1)}")
    e(f"s_bfe_u32 {sr(sT1)}, s2, 0x50002")
    e(f"s_lshl_b32 {sr(sT2)}, {sr(sT1)}, 8")
    e(f"v_lshl_add_u32 {vr(vWQ)}, {vr(vCc)}, 4, {sr(sT2)}")
    e(f"v_lshl_add_u32 {vr(vWQ)}, {vr(vX)}, 13, {vr(vWQ)}")
    e(f"v_lshrrev_b32 {vr(vT0)}, 3, {vr(vCc)}")
    e(f"v_mul_u32_u24 {vr(vT0)}, 1152, {vr(vT0)}")
    e(f"v_lshl_add_u32 {vr(vX)}, {vr(vX)}, 1, {vr(vT0)}")
    e(f"s_lshr_b32 {sr(sPq)}, s2, 7")
    srd_tail(sWQ, 576 * 8192)
    srd_tail(sX, 2304)
    srd_tail(sWS, WS_BYTES)
    e(f"s_cmp_eq_u32 {sr(sPq)}, 0")
    e("s_waitcnt lgkmcnt(0)")
    e(f"s_cselect_b64 {sr(sWQ,2)}, s[14:15], s[24:25]")
    e(f"s_cselect_b64 {sr(sX,2)}, s[8:9], s[18:19]")
    e(f"s_load_dword {sr(sE)}, s[32:33], 0")
    e(f"s_cmp_lg_u32 {sr(sW)}, {QW}")
    e("s_cbranch_scc1 L_nq0")
    g.q = []
    for i in range(4):
        g.vm(f"buffer_load_dwordx4 {vr(vXs+4*i,4)}, {vr(vX)}, {sr(sX,4)}, 0 offen offset:{16*i}", "x")
    g.vm(f"buffer_load_dwordx2 {vr(vXs+16,2)}, {vr(vX)}, {sr(sX,4)}, 0 offen offset:64", "x")
    for n in range(36):
        if n: e(f"s_mov_b32 {sr(sWoff)}, {n*8192}")
        g.vm(f"buffer_load_dwordx4 {ar(4*n,4)}, {vr(vWQ)}, {sr(sWQ,4)}, {sr(sWoff) if n else 0} offen" + (NT if opts.get("wqnt", 1) else ""), ("wq", n))
        if n == opts.get("qbar", 15): e("s_barrier")
    stamp2(3)
    e("s_branch L_nq1")
    g.lab("L_nq0")
    e("s_barrier")
    g.lab("L_nq1")
    e(f"s_mov_b32 {sr(sWS)}, s32"); e(f"s_mov_b32 {sr(sWS+1)}, s33")
    e(f"v_and_b32 {vr(vT0)}, 1, {vr(vLane)}")
    e(f"v_lshlrev_b32 {vr(vT0)}, 4, {vr(vT0)}")
    e(f"v_mov_b32 {vr(vT1)}, 0xffff")
    e(f"v_lshlrev_b32 {vr(vT0)}, {vr(vT0)}, {vr(vT1)}")
    e(f"v_bfe_u32 {vr(vT1)}, {vr(vLane)}, 1, 2")
    for d in range(4):
        e(f"v_cmp_eq_u32 vcc, {d}, {vr(vT1)}")
        e(f"v_cndmask_b32 {vr(vMk+d)}, 0, {vr(vT0)}, vcc")
    e(f"s_cbranch_scc1 L_nq2")
    e(f"s_lshl3_add_u32 {sr(sT0)}, {sr(sPq)}, {sr(sT0)}")
    e(f"s_lshl_b32 {sr(sT0)}, {sr(sT0)}, 15")
    e(f"s_lshl_b32 {sr(sT1)}, {sr(sT1)}, 10")
    e(f"s_add_u32 {sr(sT0)}, {sr(sT0)}, {sr(sT1)}")
    e(f"s_add_u32 {sr(sT0)}, {sr(sT0)}, {Q_OFF}")
    e(f"v_and_b32 {vr(vT0)}, 31, {vr(vLane)}")
    e(f"v_lshl_add_u32 {vr(vQs)}, {vr(vT0)}, 4, {sr(sT0)}")
    e(f"v_lshrrev_b32 {vr(vT0)}, 5, {vr(vLane)}")
    e(f"v_lshl_add_u32 {vr(vQs)}, {vr(vT0)}, 17, {vr(vQs)}")
    e(f"s_mov_b32 {sr(sSelLo)}, 0x01000100")
    e(f"s_mov_b32 {sr(sSelHi)}, 0x03020302")
    e("s_waitcnt lgkmcnt(0)")
    e(f"s_add_u32 {sr(sT2)}, {sr(sE)}, 1")
    e(f"s_mul_i32 {sr(sNon)}, {sr(sT2)}, 0x9E3779B1")
    e(f"s_or_b32 {sr(sNon)}, {sr(sNon)}, 1")
    stamp2(5)
    g.wait_tag("x")
    stamp2(6)
    def xop(n):
        t = vXo + 8 * (n & 3)
        e(f"v_perm_b32 {vr(t+4)}, {vr(vXs+(n>>1))}, {vr(vXs+(n>>1))}, {sr(sSelHi if n & 1 else sSelLo)}")
        for d in range(4):
            e(f"v_and_b32 {vr(t+d)}, {vr(t+4)}, {vr(vMk+d)}")
    xop(0)
    for n in range(36):
        if n < 35: xop(n + 1)
        g.wait_tag(("wq", n))
        acc = vr(vQ + 4 * (n & 1), 4)
        e(f"v_mfma_f32_16x16x32_bf16 {acc}, {vr(vXo+8*(n&3),4)}, {ar(4*n,4)}, {acc if n > 1 else 0}")
    e("s_nop 7")
    e("s_nop 0")
    for i in range(4):
        e(f"v_add_f32 {vr(vQ+i)}, {vr(vQ+i)}, {vr(vQ+4+i)}")
    for i in range(4):
        e(f"v_xor_b32 {vr(vQ+4+i)}, {sr(sNon)}, {vr(vQ+i)}")
    e(f"buffer_store_dwordx4 {vr(vQ,4)}, {vr(vQs)}, {sr(sWS,4)}, 0 offen sc1")
    e(f"buffer_store_dwordx4 {vr(vQ+4,4)}, {vr(vQs)}, {sr(sWS,4)}, 0 offen offset:512 sc1")
    stamp(1)
    e(f"s_cmp_lg_u32 s2, 0")
    e("s_cbranch_scc1 L_nq3")
    e(f"s_xor_b32 {sr(sT0)}, s94, {sr(sNon)}")
    e(f"v_mov_b32 {vr(vS)}, s94")
    e(f"v_mov_b32 {vr(vS+1)}, {sr(sT0)}")
    e(f"v_lshlrev_b32 {vr(vT0)}, 7, {vr(vCc)}")
    e(f"s_mov_b32 {sr(sT0)}, {ORG_OFF}")
    e(f"s_mov_b64 exec, 0xffff")
    e(f"buffer_store_dwordx2 {vr(vS,2)}, {vr(vT0)}, {sr(sWS,4)}, {sr(sT0)} offen sc1")
    e(f"s_mov_b64 exec, -1")
    g.lab("L_nq3")
    g.lab("L_nq2")
    g.q = []
    e(f"v_and_b32 {vr(vK)}, 3, {vr(vCc)}")
    e(f"v_lshlrev_b32 {vr(vK)}, 4, {vr(vK)}")
    e(f"v_lshl_add_u32 {vr(vK)}, {vr(vG)}, 6, {vr(vK)}")
    e(f"v_lshrrev_b32 {vr(vT0)}, 2, {vr(vCc)}")
    e(f"v_lshl_add_u32 {vr(vQa)}, {vr(vT0)}, 15, {vr(vK)}")
    e(f"v_lshlrev_b32 {vr(vV)}, 4, {vr(vCc)}")
    for i in range(2):
        e(f"v_bfe_u32 {vr(vT1)}, {vr(vCc)}, {i+2}, 1")
        e(f"v_lshl_add_u32 {vr(vK)}, {vr(vT1)}, {PM[i+1]}, {vr(vK)}")
        e(f"v_bfe_u32 {vr(vT1)}, {vr(vG)}, {i}, 1")
        e(f"v_lshl_add_u32 {vr(vV)}, {vr(vT1)}, {PM[i+1]}, {vr(vV)}")
    e(f"s_and_b32 {sr(sT0)}, s2, 7")
    e(f"s_lshr_b32 {sr(sT1)}, s2, 3")
    e(f"s_bfe_u32 {sr(sT2)}, s2, 0x10004")
    e(f"s_lshl1_add_u32 {sr(sT2)}, {sr(sT0)}, {sr(sT2)}")
    e(f"s_bfe_u32 {sr(sT3)}, s2, 0x10003")
    e(f"s_lshl_b32 {sr(sQa)}, {sr(sT3)}, 17")
    e(f"s_lshl_b32 {sr(sAo)}, {sr(sT2)}, 11")
    e(f"s_add_u32 {sr(sQa)}, {sr(sQa)}, {sr(sAo)}")
    e(f"s_add_u32 {sr(sQa)}, {sr(sQa)}, {Q_OFF}")
    e(f"s_lshl4_add_u32 {sr(sT2)}, {sr(sT3)}, {sr(sT2)}")
    e(f"s_lshl_b32 {sr(sAo)}, {sr(sT2)}, 21")
    e(f"s_add_u32 {sr(sAo)}, {sr(sAo)}, 0x180000")
    e(f"s_lshr_b32 {sr(sT3)}, s2, 5")
    e(f"s_lshl3_add_u32 {sr(sAr)}, {sr(sT2)}, {sr(sT3)}")
    e(f"s_mul_i32 {sr(sAL)}, {sr(sT2)}, {RMA}")
    e(f"s_lshl4_add_u32 {sr(sAL)}, {sr(sT3)}, {sr(sAL)}")
    e(f"s_add_u32 {sr(sAL)}, {sr(sAL)}, {sr(sW)}")
    add64(sAK, 10, sr(sAo)); add64(sAV, 12, sr(sAo))
    e(f"s_mov_b32 {sr(sAK+2)}, 0x80000"); e(f"s_mov_b32 {sr(sAV+2)}, 0x80000")
    def a_unit(n):
        phys(sAL, 4 * (n & 3), 0x7ffff)
        if n < 4: issue(True, aA + 16 * n, sAK, "a", PSPL)
        else: issue(False, vVb + 16 * (n - 4), sAV, "a", PSPV)
    T0N = opts.get("t0n", 2)
    for n in range(T0N): a_unit(n)
    stamp2(4)
    e(f"s_cmp_ge_u32 {sr(sT1)}, 24")
    e("s_cbranch_scc1 L_setH")
    e(f"s_mov_b32 {sr(sIsH)}, 0")
    e(f"s_mul_i32 {sr(sT2)}, {sr(sT1)}, 171")
    e(f"s_lshr_b32 {sr(sT2)}, {sr(sT2)}, 9")
    e(f"s_mul_i32 {sr(sT3)}, {sr(sT2)}, 3")
    e(f"s_sub_u32 {sr(sT1)}, {sr(sT1)}, {sr(sT3)}")
    e(f"s_lshr_b32 {sr(sT3)}, {sr(sT2)}, 1")
    e(f"s_lshl2_add_u32 {sr(sT0)}, {sr(sT0)}, {sr(sT3)}")
    e(f"s_and_b32 {sr(sT2)}, {sr(sT2)}, 1")
    e(f"s_lshl_b32 {sr(sQo)}, {sr(sT2)}, 17")
    e(f"s_lshl_b32 {sr(sT3)}, {sr(sT0)}, 10")
    e(f"s_add_u32 {sr(sQo)}, {sr(sQo)}, {sr(sT3)}")
    e(f"s_add_u32 {sr(sQo)}, {sr(sQo)}, {Q_OFF + 8*32768}")
    e(f"s_lshl_b32 {sr(sT2)}, {sr(sT2)}, 5")
    e(f"s_add_u32 {sr(sT2)}, {sr(sT2)}, {sr(sT0)}")
    e(f"s_lshl_b32 {sr(sKVo)}, {sr(sT2)}, 21")
    e(f"s_mul_i32 {sr(sRot)}, {sr(sT2)}, {RM}")
    e(f"s_mul_i32 {sr(sR0)}, {sr(sT2)}, 3")
    e(f"s_add_u32 {sr(sR0)}, {sr(sR0)}, {sr(sT1)}")
    e(f"s_cmp_eq_u32 {sr(sT1)}, 1")
    e(f"s_cselect_b32 {sr(sIt)}, {RB[1]}, 0")
    e(f"s_cselect_b32 {sr(sDoff)}, {RB[2]}, 0")
    e(f"s_cmp_eq_u32 {sr(sT1)}, 0")
    e(f"s_cselect_b32 {sr(sDoff)}, {RB[1]}, {sr(sDoff)}")
    e(f"s_cmp_eq_u32 {sr(sT1)}, 2")
    e(f"s_cselect_b32 {sr(sIt)}, {RB[2]}, {sr(sIt)}")
    e(f"s_cselect_b32 {sr(sDoff)}, 512, {sr(sDoff)}")
    e("s_branch L_common")
    g.lab("L_setH")
    e(f"s_mov_b32 {sr(sIsH)}, 1")
    e(f"s_bfe_u32 {sr(sT2)}, s2, 0x20004")
    e(f"s_lshl2_add_u32 {sr(sT0)}, {sr(sT0)}, {sr(sT2)}")
    e(f"s_bfe_u32 {sr(sT2)}, s2, 0x10003")
    e(f"s_lshl_b32 {sr(sT2)}, {sr(sT2)}, 5")
    e(f"s_add_u32 {sr(sIt)}, {sr(sT2)}, {sr(sT0)}")
    e(f"s_add_u32 {sr(sR0)}, {sr(sIt)}, 192")
    e(f"s_mov_b32 {sr(sKVo)}, 0")
    e(f"s_mov_b32 {sr(sRot)}, 0")
    g.lab("L_common")
    e(f"s_mul_i32 {sr(sWoO)}, {sr(sT0)}, 147456")
    e(f"s_mul_i32 {sr(sT0)}, {sr(sR0)}, {YROW}")
    e(f"s_add_u32 {sr(sT0)}, {sr(sT0)}, {Y_OFF}")
    e(f"s_lshl_b32 {sr(sT2)}, {sr(sW)}, 6")
    e(f"s_add_u32 {sr(sT2)}, {sr(sT2)}, 2048")
    e(f"s_add_u32 {sr(sT2)}, {sr(sT2)}, {sr(sT0)}")
    e(f"v_lshl_add_u32 {vr(vSt1)}, {vr(vCc)}, 2, {sr(sT2)}")
    e(f"s_lshl_b32 {sr(sT2)}, {sr(sW)}, 9")
    e(f"s_add_u32 {sr(sT2)}, {sr(sT2)}, {sr(sT0)}")
    e(f"v_lshl_add_u32 {vr(vSt0)}, {vr(vLane)}, 3, {sr(sT2)}")
    e(f"s_lshl_b32 {sr(sT0)}, {sr(sR0)}, 4")
    e(f"s_add_u32 {sr(sT0)}, {sr(sT0)}, {ML_OFF}")
    e(f"s_cmp_eq_u32 {sr(sW)}, 0")
    e(f"s_cselect_b32 {sr(sT0)}, {sr(sT0)}, {OOB}")
    e(f"s_mov_b32 exec_lo, 0xffff0000")
    e(f"v_mov_b32 {vr(vSt1)}, {OOB}")
    e(f"s_mov_b64 exec, 0x30000")
    e(f"v_lshl_add_u32 {vr(vSt1)}, {vr(vCc)}, 2, {sr(sT0)}")
    e(f"s_mov_b64 exec, -1")
    add64(sK, 20, sr(sKVo)); add64(sV, 22, sr(sKVo))
    srd_tail(sK, 0x200000); srd_tail(sV, 0x200000)
    e(f"s_cmp_eq_u32 {sr(sIsH)}, 1")
    e(f"s_cselect_b64 {sr(sWO,2)}, s[16:17], s[26:27]")
    add64(sWO, sWO, sr(sWoO))
    srd_tail(sWO, 147456)
    e(f"s_mov_b32 {sr(sC)}, 0x{f32bits(CSCALE):08x}")
    e(f"s_lshl_b32 {sr(sLdsW)}, {sr(sW)}, 10")
    e(f"v_bfe_u32 {vr(vT0)}, {vr(vLane)}, 3, 2")
    e(f"v_xor_b32 {vr(vT0)}, {sr(sW)}, {vr(vT0)}")
    e(f"v_lshlrev_b32 {vr(vT0)}, 5, {vr(vT0)}")
    e(f"v_lshrrev_b32 {vr(vT1)}, 2, {vr(vLane)}")
    e(f"v_lshl_add_u32 {vr(vT0)}, {vr(vT1)}, 7, {vr(vT0)}")
    e(f"v_and_b32 {vr(vT1)}, 3, {vr(vLane)}")
    e(f"v_lshl_add_u32 {vr(vTR)}, {vr(vT1)}, 3, {vr(vT0)}")
    e(f"s_mov_b32 {sr(sOut)}, s28"); e(f"s_mov_b32 {sr(sOut+1)}, s29"); srd_tail(sOut, 4608)
    e(f"v_bfe_u32 {vr(vT0)}, {vr(vLane)}, 3, 2")
    e(f"v_lshrrev_b32 {vr(vT1)}, 5, {vr(vLane)}")
    e(f"v_lshl_add_u32 {vr(vT0)}, {vr(vT1)}, 3, {vr(vT0)}")
    e(f"s_and_b32 {sr(sT0)}, {sr(sW)}, 1")
    e(f"s_lshl_b32 {sr(sT0)}, {sr(sT0)}, 4")
    e(f"s_lshr_b32 {sr(sT1)}, {sr(sW)}, 1")
    e(f"s_lshl_b32 {sr(sT1)}, {sr(sT1)}, 2")
    e(f"s_add_u32 {sr(sT0)}, {sr(sT0)}, {sr(sT1)}")
    e(f"v_add_u32 {vr(vT0)}, {sr(sT0)}, {vr(vT0)}")
    e(f"v_mul_u32_u24 {vr(vWOj)}, 1152, {vr(vT0)}")
    e(f"v_lshlrev_b32 {vr(vT1)}, 1, {vr(vG)}")
    e(f"v_and_b32 {vr(vT0)}, 7, {vr(vLane)}")
    e(f"v_xor_b32 {vr(vT1)}, {vr(vT1)}, {vr(vT0)}")
    e(f"v_lshl_add_u32 {vr(vWOj)}, {vr(vT1)}, 4, {vr(vWOj)}")
    e(f"v_lshlrev_b32 {vr(vHa)}, 2, {vr(vLane)}")
    e(f"v_lshlrev_b32 {vr(vSa)}, 4, {vr(vG)}")
    e(f"v_add_u32 {vr(vSa)}, {LDS_SC}, {vr(vSa)}")
    e("s_waitcnt lgkmcnt(0)")
    e(f"s_add_u32 {sr(sE)}, {sr(sE)}, 1")
    e(f"s_mul_i32 {sr(sNon)}, {sr(sE)}, 0x9E3779B1")
    e(f"s_or_b32 {sr(sNon)}, {sr(sNon)}, 1")
    QPOS = opts.get("qpos", 8)
    for n in range(T0N, QPOS): a_unit(n)
    def qloads(nh, so, tag, sc):
        for i in range(4 * nh):
            g.vm(f"buffer_load_dwordx4 {vr(vQl+4*i,4)}, {vr(vQa)}, {sr(sWS,4)}, {sr(so)} offen offset:{256*i}{sc}", tag)
    def qcheck(nh):
        for hd in range(nh):
            for i in range(8):
                e(f"v_bitop3_b32 {vr(vQl+16*hd+8+i)}, {vr(vQl+16*hd+i)}, {vr(vQl+16*hd+8+i)}, {sr(sNon)} bitop3:0x96")
        R = [vQl + 16 * hd + 8 + i for hd in range(nh) for i in range(8)]
        e(f"v_or_b32 {vr(vT0)}, {vr(R[0])}, {vr(R[1])}")
        for i in range(2, len(R), 2):
            e(f"v_or3_b32 {vr(vT0)}, {vr(vT0)}, {vr(R[i])}, {vr(R[i+1])}")
        e(f"v_cmp_ne_u32 vcc, 0, {vr(vT0)}")
    def qget(nh, so, qq, nm):
        qcheck(nh)
        e(f"s_cbranch_vccz L_qok{nm}")
        e(f"s_mov_b32 {sr(sSpin)}, 0x40000")
        g.lab(f"L_qretry{nm}")
        qloads(nh, so, None, " sc1")
        e(f"s_sub_u32 {sr(sSpin)}, {sr(sSpin)}, 1")
        e("s_waitcnt vmcnt(0)")
        e(f"s_cbranch_scc1 L_qok{nm}")
        qcheck(nh)
        e(f"s_cbranch_vccnz L_qretry{nm}")
        g.lab(f"L_qok{nm}")
        for hd in range(nh):
            for i in range(8):
                e(f"v_add_f32_dpp {vr(vQl+16*hd+8+i)}, {vr(vQl+16*hd+i)}, {vr(vQl+16*hd+i)} row_ror:4 {DP}")
        for hd in range(nh):
            bm = "0xf" if nh == 1 else ("0xc" if hd else "0x3")
            for i in range(8):
                e(f"v_add_f32_dpp {vr(vQl+i)}, {vr(vQl+16*hd+8+i)}, {vr(vQl+16*hd+8+i)} row_ror:8 row_mask:0xf bank_mask:{bm}")
        for d in range(4):
            e(f"v_cvt_pk_bf16_f32 {vr(qq+d)}, {vr(vQl+2*d)}, {vr(vQl+2*d+1)}")
    QSC = " sc1" if opts.get("qsc", 0) else ""
    e(f"s_cmp_eq_u32 {sr(sIsH)}, 1")
    e("s_cbranch_scc1 L_nqp")
    e(f"s_and_b32 {sr(sT0)}, s2, 15")
    e(f"s_lshl_b32 {sr(sT0)}, {sr(sT0)}, 7")
    e(f"s_add_u32 {sr(sT0)}, {sr(sT0)}, {ORG_OFF}")
    e("s_mov_b64 exec, 1")
    g.vm(f"buffer_load_dwordx2 {vr(vS,2)}, off, {sr(sWS,4)}, {sr(sT0)} sc1", "org")
    e("s_mov_b64 exec, -1")
    qloads(1, sQo, "ql", QSC)
    g.lab("L_nqp")
    for n in range(QPOS, 8): a_unit(n)
    for i in range(4, 8):
        e(f"v_mov_b32 {vr(vO+i)}, 0")
    e(f"v_mov_b32 {vr(vM)}, 0xff800000")
    e(f"v_mov_b32 {vr(vL)}, 0")
    e(f"v_mov_b32 {vr(vL2)}, 0")
    e(f"s_mov_b32 {sr(sDlds)}, {sr(sLdsW)}")
    if PROF == 3:
        e(f"v_mov_b32 {vr(vTk)}, 0"); e(f"v_mov_b32 {vr(vTk+1)}, 0")
        e("s_mov_b32 s19, 0")
    if PROF == 11:
        for r in (82, 84, 88): e(f"s_mov_b32 s{r}, 0")
    e(f"s_add_u32 {sr(sBase)}, {sr(sIt)}, {sr(sRot)}")
    e(f"s_sub_u32 {sr(sLim)}, {sr(sDoff)}, {sr(sIt)}")
    e(f"s_lshl_b32 {sr(sLim)}, {sr(sLim)}, 6")
    e(f"s_lshl_b32 {sr(sL0)}, {sr(sW)}, 6")
    e(f"s_add_u32 {sr(sDyn)}, {sr(sBase)}, {4*SB}")
    e(f"s_mov_b32 {sr(sDoff)}, 0")
    e(f"s_mov_b32 {sr(sDt)}, {0 if not opts.get('xd', 0) else 100}")
    e(f"s_cmp_eq_u32 {sr(sIsH)}, 1")
    e("s_cbranch_scc1 L_H")
    phys(sBase, sr(sW))
    e(f"s_mov_b32 {sr(sOff0)}, {sr(sOff)}")
    e(f"s_mov_b32 {sr(sL)}, {sr(sL0)}")
    for d in range(U):
        issue(True, 16 * d, sK, "k")
        e(f"s_mov_b32 {sr(sTi+d)}, {sr(sL)}")
        adv()
    e(f"s_bfe_u32 {sr(sIt)}, s2, 0x20003")
    e(f"s_mul_i32 {sr(sIt)}, {sr(sIt)}, {-opts.get('stg', 0)}")
    e(f"s_mov_b32 {sr(sPh)}, 0")
    e(f"s_mov_b32 {sr(sLev)}, {opts.get('lev0', 4)}")
    e(f"s_mov_b32 {sr(sSt)}, {SB - U}")
    e(f"s_mov_b32 {sr(sRem)}, 900")
    g.wait_tag("ql")
    e(f"v_readfirstlane_b32 {sr(sT0)}, {vr(vS)}")
    e(f"v_readfirstlane_b32 {sr(sT1)}, {vr(vS+1)}")
    qget(1, sQo, vQ, "B")
    e(f"s_xor_b32 {sr(sT1)}, {sr(sT1)}, {sr(sT0)}")
    e(f"s_cmp_eq_u32 {sr(sT1)}, {sr(sNon)}")
    e(f"s_cselect_b32 s94, {sr(sT0)}, s94")
    e(f"s_lshl_b32 {sr(sSch)}, s94, 4")
    e(f"s_add_u32 {sr(sSch)}, {sr(sSch)}, {opts.get('t0', 7000)*16//10}")
    if opts.get("tq", 0):
        e(f"s_lshr_b32 {sr(sT0)}, {sr(sLim)}, 6")
        e(f"s_sub_i32 {sr(sT0)}, {sr(sT0)}, 171")
        e(f"s_mul_i32 {sr(sT0)}, {sr(sT0)}, {opts.get('tq')*16//10}")
        e(f"s_sub_i32 {sr(sSch)}, {sr(sSch)}, {sr(sT0)}")
    if opts.get("tw", 0):
        e(f"s_cmp_eq_u32 {sr(sW)}, {QW}")
        e(f"s_cselect_b32 {sr(sT0)}, {opts.get('tw')*16//10}, 0")
        e(f"s_add_u32 {sr(sSch)}, {sr(sSch)}, {sr(sT0)}")
    stamp(2)

    def qk(kr, qq, acc):
        for j in range(4):
            e(f"v_mfma_f32_16x16x32_bf16 {vr(acc+4*j,4)}, {ar(kr+4*j,4)}, {vr(qq,4)}, 0")
    def fold(acc, S, full):
        for k in range(0 if full else 1, 4):
            for r in range(4):
                qp = f"quad_perm:[{k},{k},{k},{k}] {DP}"
                if k == 0: e(f"v_mov_b32_dpp {vr(S+r)}, {vr(acc+4*r)} {qp}")
                else: e(f"v_add_f32_dpp {vr(S+r)}, {vr(acc+4*r+k)}, {vr(S+r if full or k > 1 else acc+4*r)} {qp}")
    def probs(S, M, L):
        for r in range(4):
            e(f"v_fma_f32 {vr(vE+r)}, {vr(S+r)}, {sr(sC)}, -{vr(M)}")
        for r in range(4):
            e(f"v_exp_f32 {vr(vE+r)}, {vr(vE+r)}")
        e(f"v_add_f32 {vr(vT0)}, {vr(vE)}, {vr(vE+1)}")
        e(f"v_add_f32 {vr(L)}, {vr(L)}, {vr(vE+2)}")
        e(f"v_add_f32 {vr(vT0)}, {vr(vT0)}, {vr(vE+3)}")
        for r in range(4):
            e(f"v_cvt_pk_bf16_f32 {vr(vE+r)}, {vr(vE+r)}, {vr(vE+r)}")
        e(f"v_add_f32 {vr(L)}, {vr(L)}, {vr(vT0)}")
        for r in range(4):
            for d in range(4):
                e(f"v_and_b32 {vr(vP+4*r+d)}, {vr(vE+r)}, {vr(vMk+d)}")
    def pv(reg, O):
        for r in range(4):
            e(f"v_mfma_f32_16x16x32_bf16 {vr(O,4)}, {vr(vP+4*r,4)}, {vr(reg+4*r,4)}, {vr(O,4)}")
    def gmax(M, op="v_max_f32"):
        for sw in ("v_permlane32_swap_b32", "v_permlane16_swap_b32"):
            e(f"v_mov_b32 {vr(vT0)}, {vr(M)}")
            e("s_nop 1")
            e(f"{sw} {vr(M)}, {vr(vT0)}")
            e("s_nop 1")
            e(f"{op} {vr(M)}, {vr(M)}, {vr(vT0)}")
    def dma_load(nt=opts.get("wont", 0) & 1):
        e(f"s_mov_b32 m0, {sr(sDlds)}")
        e(f"s_add_u32 {sr(sDlds)}, {sr(sDlds)}, 4096")
        e(f"buffer_load_dwordx4 {vr(vWOj)}, {sr(sWO,4)}, {sr(sDoff)} offen" + (" nt" if nt else "") + " lds")
        e(f"s_add_u32 {sr(sDoff)}, {sr(sDoff)}, 36864")
        e(f"s_cmp_ge_u32 {sr(sDoff)}, 147456")
        e(f"s_cselect_b32 {sr(sT0)}, {147456 - 128}, 0")
        e(f"s_sub_u32 {sr(sDoff)}, {sr(sDoff)}, {sr(sT0)}")
        e(f"s_add_u32 {sr(sDt)}, {sr(sDt)}, 1")
    DMK = opts.get("dmk", 5); DMV = opts.get("dmv", 7)
    def dma_one(lbl):
        e(f"s_cmp_lt_u32 {sr(sDt)}, 36")
        e(f"s_cbranch_scc0 {lbl}")
        dma_load()
        if opts.get('taud', 0): e(f"s_add_u32 {sr(sSch)}, {sr(sSch)}, {opts.get('taud', 0)*16//10}")
        g.lab(lbl)
    def level(tau):
        BS = opts.get('bsh', 5) + 4
        e("s_waitcnt lgkmcnt(0)")
        e(f"s_add_u32 {sr(sSch)}, {sr(sSch)}, {tau*16//10}")
        e(f"s_lshl_b32 {sr(sNow)}, {sr(sNow)}, 4")
        e(f"s_sub_i32 {sr(sLev)}, {sr(sNow)}, {sr(sSch)}")
        if PROF == 11:
            e(f"s_lshl_b32 {sr(sT0)}, s94, 4")
            e(f"s_sub_u32 {sr(sT0)}, {sr(sNow)}, {sr(sT0)}")
            for r, T in ((82, 12000), (84, 24000), (88, 36000)):
                e(f"s_cmp_lt_u32 {sr(sT0)}, {T*16//10}")
                e(f"s_addc_u32 s{r}, s{r}, 0")
        if PROF == 3:
            n = len(g.lines)
            e(f"s_and_b32 m0, s19, 63")
            e(f"s_add_u32 s19, s19, 1")
            e(f"s_cmp_gt_u32 s19, 64")
            e(f"s_cbranch_scc1 L_tr{n}")
            e(f"v_writelane_b32 {vr(vTk)}, {sr(sLev)}, m0")
            g.lab(f"L_tr{n}")
            e(f"s_cbranch_scc0 L_ts{n}")
            e(f"v_writelane_b32 {vr(vTk+1)}, {sr(sLev)}, m0")
            g.lab(f"L_ts{n}")
        if FLV >= 0: e(f"s_mov_b32 {sr(sLev)}, {FLV}")
        else: e(f"s_ashr_i32 {sr(sLev)}, {sr(sLev)}, {BS}")
    def hook_dispatch(hooks, nm):
        e(f"s_bitcmp1_b32 {sum(1 << k for k in hooks)}, {sr(sIt)}")
        e(f"s_cbranch_scc0 L_body{nm}")
        ks = sorted(hooks)
        for n, k in enumerate(ks):
            if n < len(ks) - 1:
                e(f"s_cmp_lg_u32 {sr(sIt)}, {k}")
                e(f"s_cbranch_scc1 L_hk{nm}{n+1}")
            hooks[k]()
            if n < len(ks) - 1:
                e(f"s_branch L_body{nm}")
                g.lab(f"L_hk{nm}{n+1}")
        g.lab(f"L_body{nm}")
    def call(l): e(f"s_call_b64 {sr(sRet,2)}, {l}")
    TAUK = opts.get("tauk", opts.get("tau", 410)); TAUV = opts.get("tauv", opts.get("tau", 410))

    AH0 = opts.get("ah0", 1)
    hk = {AH0: ["L_AQ"], AH0 + 1: ["L_AK"], AH0 + 2: ["L_AV0"], AH0 + 3: ["L_AV1"]}
    assert (AH0 + 4 + 3 * opts.get('stg', 0) + 1) * U <= min(RB[i + 1] - RB[i] for i in range(3)) // 4
    if opts.get("xa", 0): hk = {AH0: ["L_AV1"]}
    def mkh(ls):
        def f():
            for l in ls:
                if l == "L_AK": e(f"s_waitcnt vmcnt({4*U})")
                call(l)
        return f
    g.lab("L_loopK")
    hook_dispatch({k: mkh(v) for k, v in hk.items()}, "K")
    for i in range(U):
        e(f"v_add_u32 {vr(vSb)}, {sr(sTi+i)}, {vr(vSa)}")
        e(f"s_mov_b32 {sr(sTi+i)}, {sr(sL)}")
        e(f"s_waitcnt vmcnt({4*(U-1)})")
        e(f"s_memrealtime {sr(sNow,2)}")
        qk(16 * i, vQ, vP)
        throttle(f"K{i}")
        e(f"s_cmp_lg_u32 {sr(sPh)}, 0")
        e(f"s_cbranch_scc1 L_Kv{i}")
        issue(True, 16 * i, sK)
        adv()
        e(f"s_cmp_lt_u32 {sr(sL)}, {sr(sLim)}")
        e(f"s_cbranch_scc1 L_Kc{i}")
        e(f"s_mov_b32 {sr(sPh)}, 1")
        e(f"s_mov_b32 {sr(sL)}, {sr(sL0)}")
        e(f"s_mov_b32 {sr(sOff)}, {sr(sOff0)}")
        e(f"s_branch L_Kc{i}")
        g.lab(f"L_Kv{i}")
        issue(False, vVb + 16 * i, sV)
        adv()
        e(f"s_add_u32 {sr(sPh)}, {sr(sPh)}, 1")
        g.lab(f"L_Kc{i}")
        fold(vP, vS, False)
        e(f"s_mov_b32 exec_lo, 0x00010001"); e(f"s_mov_b32 exec_hi, 0x00010001")
        e(f"ds_write_b128 {vr(vSb)}, {vr(vS,4)}")
        e("s_mov_b64 exec, -1")
        e(f"v_max3_f32 {vr(vM)}, {vr(vM)}, {vr(vS)}, {vr(vS+1)}")
        e(f"v_max3_f32 {vr(vM)}, {vr(vM)}, {vr(vS+2)}, {vr(vS+3)}")
        level(TAUK)
        if DMK >> i & 1: dma_one(f"L_dma{i}")
        e(f"s_cmp_lg_u32 {sr(sPh)}, {U+1}")
        e(f"s_cbranch_scc1 L_Kn{i}")
        call("L_TR")
        e(f"s_branch L_V{(i+1) % U}")
        g.lab(f"L_Kn{i}")
    e(f"s_add_u32 {sr(sIt)}, {sr(sIt)}, 1")
    e(f"s_branch L_loopK")

    def tail_setup():
        e(f"s_mul_i32 {sr(sT0)}, {sr(sW)}, {OT_STRIDE}")
        e(f"s_add_u32 {sr(sT0)}, {sr(sT0)}, {LDS_OT}")
        e(f"v_lshl_add_u32 {vr(vAw)}, {vr(vCc)}, 4, {sr(sT0)}")
        e(f"v_and_b32 {vr(vT0)}, 1, {vr(vG)}")
        e(f"v_lshl_add_u32 {vr(vAw)}, {vr(vT0)}, 3, {vr(vAw)}")
        e(f"s_lshl_b32 {sr(sT0)}, {sr(sW)}, 4")
        e(f"s_add_u32 {sr(sT0)}, {sr(sT0)}, {LDS_M}")
        e(f"v_lshl_add_u32 {vr(vAm)}, {vr(vG)}, 2, {sr(sT0)}")
        e(f"v_and_b32 {vr(vT0)}, 3, {vr(vCc)}")
        e(f"v_mul_u32_u24 {vr(vAr)}, {OT_STRIDE}, {vr(vT0)}")
        e(f"v_lshl_add_u32 {vr(vAr)}, {vr(vG)}, 4, {vr(vAr)}")
        e(f"v_add_u32 {vr(vAr)}, {LDS_OT}, {vr(vAr)}")
        e(f"v_lshlrev_b32 {vr(vAx)}, 2, {vr(vCc)}")
        e(f"v_add_u32 {vr(vAx)}, {LDS_M}, {vr(vAx)}")
    def h_arr():
        g.lab("L_ar0")
        e(f"s_cmp_lt_u32 {sr(sDt)}, 36")
        e(f"s_cbranch_scc0 L_ar1")
        dma_load()
        e("s_branch L_ar0")
        g.lab("L_ar1")
    def h_arr2():
        e(f"s_waitcnt vmcnt({4*U})")
        e(f"v_mov_b32 {vr(vT0)}, {LDS_CNT}")
        e(f"v_mov_b32 {vr(vT1)}, 1")
        e("s_mov_b64 exec, 1")
        e(f"ds_add_u32 {vr(vT0)}, {vr(vT1)}")
        e("s_mov_b64 exec, -1")
        e(f"buffer_load_dword {vr(vHf)}, {vr(vHa)}, {sr(sWS,4)}, 0 offen offset:{HF_OFF}")
    def h_t1():
        stamp(3)
        if opts.get("taut", 0): e(f"s_add_u32 {sr(sSch)}, {sr(sSch)}, {opts.get('taut')*16//10}")
        e(f"v_mov_b32 {vr(vT0)}, {LDS_CNT}")
        g.lab(f"L_wa")
        e(f"ds_read_b32 {vr(vT1)}, {vr(vT0)}")
        e("s_waitcnt lgkmcnt(0)")
        e(f"v_readfirstlane_b32 {sr(sT0)}, {vr(vT1)}")
        e("s_nop 3")
        e(f"s_cmp_lt_u32 {sr(sT0)}, 4")
        e(f"s_cbranch_scc1 L_wa")
        e(f"ds_read_b128 {vr(vS,4)}, {vr(vT0)} offset:16")
        call("L_T1")
        e(f"v_max3_f32 {vr(vT0)}, {vr(vS)}, {vr(vS+1)}, {vr(vS+2)}")
        e(f"v_max_f32 {vr(vT0)}, {vr(vT0)}, {vr(vS+3)}")
        e(f"v_sub_f32 {vr(vT1)}, {vr(vM)}, {vr(vT0)}")
        e(f"v_exp_f32 {vr(vT1)}, {vr(vT1)}")
        e(f"v_mov_b32 {vr(vM)}, {vr(vT0)}")
        e(f"v_mul_f32 {vr(vL)}, {vr(vT1)}, {vr(vL)}")
        for i in range(4):
            e(f"v_mul_f32 {vr(vO+i)}, {vr(vT1)}, {vr(vO+i)}")
        e(f"s_waitcnt vmcnt({4*U})")
        e(f"s_mov_b32 {sr(sSpin)}, 0x40000")
        g.lab("L_hc")
        e(f"v_cmp_ne_u32 vcc, {sr(sNon)}, {vr(vHf)}")
        e("s_cbranch_vccz L_hc1")
        e(f"s_sleep {SLEEP}")
        e(f"buffer_load_dword {vr(vHf)}, {vr(vHa)}, {sr(sWS,4)}, 0 offen offset:{HF_OFF} sc1")
        e(f"s_sub_u32 {sr(sSpin)}, {sr(sSpin)}, {1 if not opts.get('xq', 0) else 0x40001}")
        e("s_waitcnt vmcnt(0)")
        e("s_cbranch_scc0 L_hc")
        g.lab("L_hc1")
        stamp(4)
    HA = opts.get("ha", 6); HT = opts.get("ht", 7)
    assert 2 <= HA < HT and (HT + 1) * U <= SB - U
    pc = lambda m: bin(m & ((1 << U) - 1)).count("1")
    g.lab("L_loopV")
    hook_dispatch({HA - 1: h_arr, HA: h_arr2, HT: h_t1}, "V")
    for i in range(U):
        g.lab(f"L_V{i}")
        e(f"v_add_u32 {vr(vSb)}, {sr(sTi+i)}, {vr(vSa)}")
        e(f"ds_read_b128 {vr(vS,4)}, {vr(vSb)}")
        e(f"v_mov_b32 {vr(vSb)}, {LDS_CNT + 12}")
        e(f"v_mov_b32 {vr(vT1)}, 1")
        e("s_waitcnt lgkmcnt(0)")
        probs(vS, vM, vL)
        CE = opts.get("ce", 0)
        def claim():
            e(f"s_cmp_gt_i32 {sr(sSt)}, 0")
            e(f"s_cbranch_scc1 L_c1{i}")
            e("s_mov_b64 exec, 1")
            e(f"ds_add_rtn_u32 {vr(vT1)}, {vr(vSb)}, {vr(vT1)}")
            e("s_mov_b64 exec, -1")
            g.lab(f"L_c1{i}")
        if CE: claim()
        e(f"s_waitcnt vmcnt({4*(U-1)})")
        for r in range(U - 1, 0, -1):
            e(f"s_cmp_ge_u32 {sr(sRem)}, {r}")
            e(f"s_cbranch_scc1 L_v1{i}")
            e(f"s_waitcnt vmcnt({4*(r-1)})")
        g.lab(f"L_v1{i}")
        pv(vVb + 16 * i, vO)
        e(f"s_sub_u32 {sr(sRem)}, {sr(sRem)}, 1")
        e(f"s_cbranch_scc1 L_end")
        e(f"s_cmp_lt_u32 {sr(sRem)}, {U}")
        e(f"s_cbranch_scc1 L_nv{i}")
        e(f"s_memrealtime {sr(sNow,2)}")
        throttle(f"V{i}")
        if not CE: claim()
        else: e(f"s_cmp_gt_i32 {sr(sSt)}, 0")
        e(f"s_cbranch_scc1 L_c2{i}")
        e("s_waitcnt lgkmcnt(0)")
        e(f"v_readfirstlane_b32 {sr(sCl)}, {vr(vT1)}")
        e(f"s_add_u32 {sr(sL)}, {sr(sCl)}, {4*SB}")
        e(f"s_lshl_b32 {sr(sL)}, {sr(sL)}, 6")
        phys(sCl, sr(sDyn))
        e(f"s_cmp_ge_u32 {sr(sL)}, {sr(sLim)}")
        e(f"s_cselect_b32 {sr(sRem)}, {U-2}, {sr(sRem)}")
        e(f"s_cselect_b32 {sr(sSt)}, 1000, {sr(sSt)}")
        e(f"s_cbranch_scc1 L_nv{i}")
        g.lab(f"L_c2{i}")
        issue(False, vVb + 16 * i, sV)
        e(f"s_mov_b32 {sr(sTi+i)}, {sr(sL)}")
        e(f"s_sub_u32 {sr(sSt)}, {sr(sSt)}, 1")
        adv()
        level(TAUV)
        if DMV >> i & 1: dma_one(f"L_dmv{i}")
        g.lab(f"L_nv{i}")
    e(f"s_add_u32 {sr(sIt)}, {sr(sIt)}, 1")
    e(f"s_branch L_loopV")
    g.lab("L_end")
    stamp(5)

    NSL = opts.get("nsl", 1)
    def schedule(main, ops, per=2):
        pos = [0]; hist = []
        mpos = {}
        def emit(text, kind, wr=(), rd=(), n=1):
            e(text); hist.append((pos[0] + n - 1, kind, set(wr), set(rd))); pos[0] += n
        def need(op):
            t = 0
            if op.get("after") is not None:
                if op["after"] not in mpos: return None
                t = mpos[op["after"]] + 1 + (2 if op["kind"] == "dpp" else 0)
            for (p, k, wr, rd) in hist:
                d = None
                if k == "mfma":
                    if wr & (op["rd"] | op["wr"]): d = 8
                elif k in ("valu", "dpp", "swap", "trans"):
                    if wr & op["rd"]:
                        d = 0
                        if op["kind"] in ("dpp", "swap"): d = 2
                        elif k == "trans": d = 1
                elif k == "store":
                    if rd & op["wr"]: d = 2
                if d is not None: t = max(t, p + 1 + d)
            return t
        done = [False] * len(ops)
        mw = {}
        for i, (t_, k_, w_) in enumerate(main):
            for r in w_: mw[r] = i
        def ready(i):
            op = ops[i]
            for j in range(i):
                if not done[j]:
                    o = ops[j]
                    if (o["wr"] & (op["rd"] | op["wr"])) or (o["rd"] & op["wr"]) or (o["kind"] == "store" and op["kind"] == "store"): return None
            for r in op["rd"] | op["wr"]:
                if r in mw and mw[r] not in mpos: return None
            return need(op)
        def fill(n):
            k = 0
            while k < n:
                c = [i for i in range(len(ops)) if not done[i] and ready(i) is not None and ready(i) <= pos[0]]
                if not c:
                    w = [ready(i) - pos[0] for i in range(len(ops)) if not done[i] and ready(i) is not None]
                    if w and min(w) <= 2 and k + min(w) < n + NSL:
                        emit(f"s_nop {min(w)-1}", "nop", n=min(w)); k += min(w); n = max(n, k + 1)
                        continue
                    break
                i = c[0]
                emit(ops[i]["text"], ops[i]["kind"], ops[i]["wr"], ops[i]["rd"], ops[i].get("n", 1)); done[i] = True
                k += 2 if ops[i]["kind"] == "trans" else 1
        for i, (text, kind, wr) in enumerate(main):
            mpos[i] = pos[0]
            emit(text, kind, wr)
            if kind in ("mfma", "wait0"): fill(per)
        stamp9(2)
        while not all(done):
            fill(1000)
            if all(done): break
            c = [ready(i) for i in range(len(ops)) if not done[i] and ready(i) is not None]
            w = min(c) - pos[0]
            assert w > 0
            emit(f"s_nop {w-1}", "nop", n=w)
    def T2():
        vAcc, vLr, vPk, t0, t1, Out = 64, 136, 56, 48, 49, 16
        if PROF == 3:
            e(f"s_lshl_b32 s88, s2, 10")
            e(f"s_add_u32 s88, s88, 0x300000")
            e(f"v_lshlrev_b32 {vr(vV)}, 1, v0")
            e(f"buffer_store_short {vr(vTk)}, {vr(vV)}, {sr(sWS,4)}, s88 offen")
            e(f"buffer_store_short {vr(vTk+1)}, {vr(vV)}, {sr(sWS,4)}, s88 offen offset:512")
        e(f"ds_write_b32 {vr(vAm)}, {vr(vL)}")
        e(f"v_cmp_eq_u32 vcc, 16, {vr(vLane)}")
        e("s_nop 4")
        for d in range(2):
            e(f"v_cvt_pk_bf16_f32 {vr(vPk+d)}, {vr(vO+2*d)}, {vr(vO+2*d+1)}")
        e(f"ds_write_b64 {vr(vAw)}, {vr(vPk,2)}")
        e("s_waitcnt lgkmcnt(0)")
        e("s_barrier")
        stamp9(1)
        for j in range(4):
            e(f"ds_read_b128 {ar(4*j,4)}, {vr(vAr)} offset:{64*j}")
        e(f"ds_read_b32 {vr(vLr)}, {vr(vAx)}")
        nrd = 5
        main = []; ops = []
        TO = [8, 0, 1, 2, 3, 4, 5, 6, 7]
        def op(text, rd, wr, kind="valu", **kw):
            ops.append(dict(text=text, rd=set(rd), wr=set(wr), kind=kind, **kw))
        for n, t in enumerate(TO):
            for j in range(4):
                if n == 0:
                    main.append((f"s_waitcnt lgkmcnt({nrd - j - 1})", "wait", ()))
                if n == 1 and j == 0:
                    main.append((f"s_waitcnt lgkmcnt(0)", "wait", ())); mlw = len(main) - 1
                a = vAcc + 4 * t
                cc = "0" if j == 0 else vr(a, 4)
                main.append((f"v_mfma_f32_16x16x32_bf16 {vr(a,4)}, {ar(4*j,4)}, {ar(aW+4*(t*4+j),4)}, {cc}", "mfma", range(a, a + 4)))
        for src, dst, rot in ((vLr, t0, 8), (t0, t1, 4), (t1, t0, 2), (t0, t1, 1)):
            op(f"v_add_f32_dpp {vr(dst)}, {vr(src)}, {vr(src)} row_ror:{rot} {DP}", [src], [dst], "dpp", after=mlw)
        op(f"v_cndmask_b32 {vr(Out+2)}, {vr(t1)}, {vr(vM)}, vcc", [t1], [Out + 2])
        def comb(t):
            a = vAcc + 4 * t; o = Out + (t >> 2)
            op(f"v_add_f32 {vr(a)}, {vr(a)}, {vr(a+1)}", [a, a + 1], [a])
            op(f"v_add_f32 {vr(a+2)}, {vr(a+2)}, {vr(a+3)}", [a + 2, a + 3], [a + 2])
            op(f"v_add_f32_dpp {vr(o)}, {vr(a)}, {vr(a+2)} quad_perm:[0,1,2,3] row_mask:{1 << (t & 3)} bank_mask:0xf", [a, a + 2], [o], "dpp")
            if t in (3, 7, 8): op(f"v_min_u32 {vr(o)}, -2, {vr(o)}", [o], [o])
        comb(8)
        op(f"buffer_store_dword {vr(Out+2)}, {vr(vSt1)}, {sr(sWS,4)}, 0 offen sc1", [Out + 2], [], "store")
        for t in range(8): comb(t)
        op(f"buffer_store_dwordx2 {vr(Out,2)}, {vr(vSt0)}, {sr(sWS,4)}, 0 offen sc1", [Out, Out + 1], [], "store")
        schedule(main, ops, opts.get("per", 2))
    g.lab("L_T2")
    T2()
    e(f"s_cmp_eq_u32 {sr(sIsH)}, 1")
    e("s_cbranch_scc1 L_H2")
    stamp(6)
    if PROF: e("s_branch L_done")
    else: e("s_endpgm")

    g.lab("L_H")
    call("L_AQ")
    e("s_waitcnt vmcnt(0)")
    call("L_AK"); call("L_AV0"); call("L_AV1")
    e(f"s_sub_u32 {sr(sT0)}, s2, 192")
    e(f"s_mul_i32 {sr(sT1)}, {sr(sT0)}, {3*YROW}")
    e(f"s_add_u32 {sr(sT1)}, {sr(sT1)}, {Y_OFF}")
    e(f"v_lshlrev_b32 {vr(vT0)}, 4, v0")
    for i in range(4):
        e(f"v_mov_b32 {vr(vTmp+i)}, -1")
    e(f"v_add_u32 {vr(vT1)}, 4096, {vr(vT0)}")
    e(f"v_cmp_gt_u32 vcc, {3*YROW}, {vr(vT1)}")
    e(f"v_mov_b32 {vr(vSb)}, {OOB}")
    e(f"buffer_store_dwordx4 {vr(vTmp,4)}, {vr(vT0)}, {sr(sWS,4)}, {sr(sT1)} offen sc1")
    e(f"v_cndmask_b32 {vr(vT1)}, {vr(vSb)}, {vr(vT1)}, vcc")
    e(f"buffer_store_dwordx4 {vr(vTmp,4)}, {vr(vT1)}, {sr(sWS,4)}, {sr(sT1)} offen sc1")
    e(f"s_cmp_lg_u32 {sr(sT0)}, 0")
    e("s_cbranch_scc1 L_hcl")
    e(f"s_cmp_eq_u32 {sr(sW)}, 3")
    e("s_cbranch_scc1 L_hcl")
    e(f"s_mov_b32 {sr(sT1)}, {ML_OFF}")
    e(f"buffer_store_dwordx4 {vr(vTmp,4)}, {vr(vT0)}, {sr(sWS,4)}, {sr(sT1)} offen sc1")
    g.lab("L_hcl")
    if opts.get("xq", 0) == 1: e("s_branch L_done")
    e(f"s_mov_b32 {sr(sDt)}, 0")
    g.lab("L_hdma")
    dma_load(opts.get("wont", 0) & 2)
    e(f"s_waitcnt vmcnt({opts.get('hd', 2)})")
    e(f"s_cmp_lt_u32 {sr(sDt)}, 36")
    e("s_cbranch_scc1 L_hdma")
    if opts.get("xq", 0) == 2: e("s_branch L_done")
    vFa, vFb, vDa, vF0, vFn, vD0 = 96, 97, 98, 100, 104, 108
    e(f"s_lshr_b32 {sr(sT0)}, {sr(sBase)}, 1")
    e(f"s_and_b32 {sr(sT1)}, {sr(sBase)}, 1")
    e(f"s_lshl4_add_u32 {sr(sT0)}, {sr(sT0)}, {sr(sT1)}")
    e(f"s_lshl_b32 {sr(sT2)}, {sr(sT0)}, 6")
    e(f"s_add_u32 {sr(sT2)}, {sr(sT2)}, {AF_OFF}")
    e(f"v_and_b32 {vr(vT0)}, 7, {vr(vLane)}")
    e(f"v_lshl_add_u32 {vr(vFa)}, {vr(vT0)}, 7, {sr(sT2)}")
    e(f"v_lshrrev_b32 {vr(vT0)}, 5, v0")
    e(f"v_lshl_add_u32 {vr(vFb)}, {vr(vT0)}, 7, {sr(sT2)}")
    e(f"s_lshl_b32 {sr(sT2)}, {sr(sT0)}, 9")
    e(f"s_add_u32 {sr(sT2)}, {sr(sT2)}, {AR_OFF}")
    e(f"v_lshl_add_u32 {vr(vDa)}, {vr(vT0)}, 10, {sr(sT2)}")
    e(f"v_and_b32 {vr(vT0)}, 31, {vr(vLane)}")
    e(f"v_lshl_add_u32 {vr(vDa)}, {vr(vT0)}, 4, {vr(vDa)}")
    e("s_waitcnt vmcnt(0)")
    e("s_barrier")
    call("L_T1")
    e(f"s_mov_b32 {sr(sSpin)}, 0x40000")
    g.lab("L_hp")
    for r, a in ((vF0, vFa), (vFn, vFb), (vD0, vDa)):
        e(f"buffer_load_dwordx4 {vr(r,4)}, {vr(a)}, {sr(sWS,4)}, 0 offen sc1")
    e(f"s_sub_u32 {sr(sSpin)}, {sr(sSpin)}, 1")
    e("s_waitcnt vmcnt(0)")
    e("s_cbranch_scc1 L_hp1")
    for r in (vF0, vFn, vD0):
        for i in range(2):
            e(f"v_bitop3_b32 {vr(r+2+i)}, {vr(r+i)}, {vr(r+2+i)}, {sr(sNon)} bitop3:0x96")
    e(f"v_or3_b32 {vr(vT0)}, {vr(vF0+2)}, {vr(vF0+3)}, {vr(vFn+2)}")
    e(f"v_or3_b32 {vr(vT1)}, {vr(vFn+3)}, {vr(vD0+2)}, {vr(vD0+3)}")
    e(f"v_or_b32 {vr(vT0)}, {vr(vT0)}, {vr(vT1)}")
    e(f"v_cmp_ne_u32 vcc, 0, {vr(vT0)}")
    e("s_cbranch_vccz L_hp1")
    e(f"s_sleep {opts.get('hsl', 64)}")
    e("s_branch L_hp")
    g.lab("L_hp1")
    for src, dst, rot in ((vF0, vM, 4), (vM, vT1, 2), (vT1, vM, 1)):
        e(f"v_max_f32_dpp {vr(dst)}, {vr(src)}, {vr(src)} row_ror:{rot} {DP}")
        e("s_nop 1")
    e(f"v_sub_f32 {vr(vT1)}, {vr(vF0)}, {vr(vM)}")
    e(f"v_sub_f32 {vr(vFn)}, {vr(vFn)}, {vr(vM)}")
    e(f"v_exp_f32 {vr(vT1)}, {vr(vT1)}")
    e(f"v_exp_f32 {vr(vFn)}, {vr(vFn)}")
    for i in range(2):
        e(f"v_lshlrev_b32 {vr(vO+2*i)}, 16, {vr(vD0+i)}")
        e(f"v_and_b32 {vr(vO+2*i+1)}, 0xffff0000, {vr(vD0+i)}")
    e(f"v_mul_f32 {vr(vT1)}, {vr(vT1)}, {vr(vF0+1)}")
    for i in range(4):
        e(f"v_mul_f32 {vr(vO+i)}, {vr(vFn)}, {vr(vO+i)}")
    for src, dst, rot in ((vT1, vL, 4), (vL, vT1, 2), (vT1, vL, 1)):
        e(f"v_add_f32_dpp {vr(dst)}, {vr(src)}, {vr(src)} row_ror:{rot} {DP}")
        e("s_nop 1")
    e(f"v_mul_f32 {vr(vL)}, 0x3d800000, {vr(vL)}")
    for i in range(4):
        e(f"v_mov_b32 {vr(vO2+i)}, {vr(vO+i)}")
    e("s_nop 1")
    for i in range(4):
        e(f"v_permlane32_swap_b32 {vr(vO+i)}, {vr(vO2+i)}")
    e("s_nop 1")
    for i in range(4):
        e(f"v_add_f32 {vr(vO+i)}, {vr(vO+i)}, {vr(vO2+i)}")
    if opts.get("xq", 0) == 4: e("s_branch L_done")
    e("s_branch L_T2")
    g.lab("L_H2")
    e("s_waitcnt vmcnt(0)")
    e("s_barrier")
    e(f"s_cmp_lg_u32 {sr(sW)}, 0")
    e("s_cbranch_scc1 L_H3")
    e(f"s_lshl_b32 {sr(sT0)}, s2, 2")
    e(f"s_add_u32 {sr(sT0)}, {sr(sT0)}, {HF_OFF - 192*4}")
    e(f"v_mov_b32 {vr(vEp)}, {sr(sNon)}")
    e(f"v_lshlrev_b32 {vr(vT0)}, 2, {vr(vLane)}")
    e("s_mov_b64 exec, 1")
    e(f"buffer_store_dword {vr(vEp)}, off, {sr(sWS,4)}, {sr(sT0)} sc1")
    e("s_mov_b64 exec, -1")
    e(f"s_mov_b32 {sr(sSpin)}, 0x40000")
    g.lab("L_hf")
    e(f"s_sleep {opts.get('hsf', 100)}")
    e(f"buffer_load_dword {vr(vEp+1)}, {vr(vT0)}, {sr(sWS,4)}, 0 offen offset:{HF_OFF} sc1")
    e(f"s_sub_u32 {sr(sSpin)}, {sr(sSpin)}, 1")
    e("s_waitcnt vmcnt(0)")
    e("s_cbranch_scc1 L_H3")
    e(f"v_cmp_ne_u32 vcc, {sr(sNon)}, {vr(vEp+1)}")
    e("s_cbranch_vccnz L_hf")
    e(f"s_cmp_lg_u32 s2, 255")
    e("s_cbranch_scc1 L_H3")
    e(f"v_mov_b32 {vr(vEp+1)}, {sr(sE)}")
    e("s_mov_b64 exec, 1")
    e(f"buffer_store_dword {vr(vEp+1)}, off, {sr(sWS,4)}, 0 sc1")
    e("s_mov_b64 exec, -1")
    g.lab("L_H3")
    e("s_barrier")
    if opts.get("xq", 0) == 6: e("s_branch L_done")
    e(f"s_sub_u32 {sr(sCi)}, s2, {192 - 8}")
    e(f"s_cmp_ge_u32 {sr(sCi)}, 36")
    e("s_cbranch_scc1 L_cons")
    g.lab("L_consB")
    if opts.get("xq", 0) == 7: e("s_branch L_done")
    e(f"s_sub_u32 {sr(sCi)}, s2, 192")
    e(f"s_cmp_ge_u32 {sr(sCi)}, 36")
    e("s_cbranch_scc1 L_done")
    g.lab("L_cons")
    sP, sCb, sSl, sRow = sT0, sT1, sT2, sT3
    e(f"s_cmp_lt_u32 {sr(sCi)}, 36")
    e(f"s_cselect_b32 {sr(sP)}, 1, 0")
    e(f"s_cselect_b32 {sr(sRow)}, 0, 36")
    e(f"s_sub_u32 {sr(sSl)}, {sr(sCi)}, {sr(sRow)}")
    e(f"s_cmp_ge_u32 {sr(sSl)}, 18")
    e(f"s_cselect_b32 {sr(sCb)}, 1, 0")
    e(f"s_cselect_b32 {sr(sRow)}, 18, 0")
    e(f"s_sub_u32 {sr(sSl)}, {sr(sSl)}, {sr(sRow)}")
    e(f"s_lshl_b32 {sr(sRow)}, {sr(sCb)}, 5")
    e(f"v_lshrrev_b32 {vr(vT0)}, 3, v0")
    e(f"v_add_u32 {vr(vT0)}, {sr(sRow)}, {vr(vT0)}")
    e(f"s_lshl1_add_u32 {sr(sRow)}, {sr(sP)}, 1")
    e(f"v_mul_u32_u24 {vr(vT0)}, {sr(sRow)}, {vr(vT0)}")
    e(f"s_cmp_eq_u32 {sr(sP)}, 0")
    e(f"s_cselect_b32 {sr(sRow)}, 192, 0")
    e(f"s_cselect_b32 {sr(sWoff)}, 0, 2")
    e(f"v_add_u32 {vr(vT0)}, {sr(sRow)}, {vr(vT0)}")
    e(f"v_mul_u32_u24 {vr(vYo)}, {YROW}, {vr(vT0)}")
    e(f"v_and_b32 {vr(vT1)}, 7, v0")
    e(f"v_lshl_add_u32 {vr(vYo)}, {vr(vT1)}, 4, {vr(vYo)}")
    e(f"s_lshl_b32 {sr(sRow)}, {sr(sSl)}, 7")
    e(f"s_add_u32 {sr(sRow)}, {sr(sRow)}, {Y_OFF}")
    e(f"v_add_u32 {vr(vYo)}, {sr(sRow)}, {vr(vYo)}")
    e(f"v_and_b32 {vr(vMlo)}, 3, v0")
    e(f"v_cmp_ne_u32 vcc, 3, {vr(vMlo)}")
    e(f"v_min_u32 {vr(vMlo)}, {sr(sWoff)}, {vr(vMlo)}")
    e(f"v_add_u32 {vr(vMlo)}, {vr(vMlo)}, {vr(vT0)}")
    e(f"v_cndmask_b32 {vr(vWm)}, 0, 1.0, vcc")
    e(f"v_lshlrev_b32 {vr(vMlo)}, 4, {vr(vMlo)}")
    e(f"v_add_u32 {vr(vMlo)}, {ML_OFF}, {vr(vMlo)}")
    e(f"v_and_b32 {vr(vT0)}, 1, {vr(vG)}")
    e(f"v_lshlrev_b32 {vr(vT0)}, 1, {vr(vT0)}")
    e(f"v_lshrrev_b32 {vr(vCw)}, 1, {vr(vG)}")
    e(f"v_or_b32 {vr(vT0)}, {vr(vT0)}, {vr(vCw)}")
    e(f"v_lshl_add_u32 {vr(vT0)}, {vr(vT1)}, 2, {vr(vT0)}")
    e(f"s_lshl_b32 {sr(sWoff)}, {sr(sP)}, 10")
    e(f"s_add_u32 {sr(sWoff)}, {sr(sWoff)}, {LDS_SC}")
    e(f"s_lshl_b32 {sr(sRow)}, {sr(sW)}, 7")
    e(f"s_add_u32 {sr(sRow)}, {sr(sRow)}, {sr(sWoff)}")
    e(f"v_lshl_add_u32 {vr(vCw)}, {vr(vT0)}, 2, {sr(sRow)}")
    e(f"v_lshl_add_u32 {vr(vCr)}, v0, 2, {sr(sWoff)}")
    e(f"s_mul_i32 {sr(sCb)}, {sr(sCb)}, 1152")
    e(f"s_mul_i32 {sr(sP)}, {sr(sP)}, 576")
    e(f"s_add_u32 {sr(sCb)}, {sr(sCb)}, {sr(sP)}")
    e(f"s_lshr_b32 {sr(sP)}, {sr(sSl)}, 2")
    e(f"s_lshl_b32 {sr(sP)}, {sr(sP)}, 4")
    e(f"s_and_b32 {sr(sRow)}, {sr(sSl)}, 3")
    e(f"s_lshl_b32 {sr(sRow)}, {sr(sRow)}, 6")
    e(f"s_add_u32 {sr(sP)}, {sr(sP)}, {sr(sRow)}")
    e(f"s_lshl_b32 {sr(sRow)}, {sr(sSl)}, 5")
    e(f"v_and_b32 {vr(vOa)}, 1, v0")
    e(f"v_lshlrev_b32 {vr(vOa)}, 8, {vr(vOa)}")
    e(f"v_lshrrev_b32 {vr(vT0)}, 1, v0")
    e(f"v_add_u32 {vr(vOa)}, {vr(vOa)}, {vr(vT0)}")
    e(f"s_cmp_lt_u32 {sr(sSl)}, 16")
    e(f"s_cselect_b32 {sr(sP)}, {sr(sP)}, {sr(sRow)}")
    e(f"s_cselect_b64 vcc, -1, 0")
    e(f"s_add_u32 {sr(sCb)}, {sr(sCb)}, {sr(sP)}")
    e(f"v_cndmask_b32 {vr(vOa)}, v0, {vr(vOa)}, vcc")
    e(f"v_add_u32 {vr(vOa)}, {sr(sCb)}, {vr(vOa)}")
    e(f"v_lshlrev_b32 {vr(vOa)}, 1, {vr(vOa)}")
    vMx, vRes, vWt = 48, 40, 56
    vML, vY, vZc = 36, 64, 80
    e(f"s_mov_b32 {sr(sSpin)}, 0x100000")
    e(f"s_movk_i32 {sr(sWoff)}, {YROW*2}")
    e(f"s_cmp_ge_u32 {sr(sCi)}, 36")
    e("s_cbranch_scc1 L_finA")
    g.lab("L_pollc")
    e(f"buffer_load_dword {vr(vML)}, {vr(vMlo)}, {sr(sWS,4)}, 0 offen sc1")
    e(f"s_sub_u32 {sr(sSpin)}, {sr(sSpin)}, 1")
    e("s_waitcnt vmcnt(0)")
    e("s_cbranch_scc1 L_pollc_done")
    e(f"v_cmp_ne_u32 vcc, -1, {vr(vML)}")
    e(f"s_bcnt1_i32_b64 {sr(sT2)}, vcc")
    e(f"s_cmp_ge_u32 {sr(sT2)}, {opts.get('pth', 1)}")
    e("s_cbranch_scc1 L_pollc_done")
    if opts.get("csl", 8): e(f"s_sleep {opts.get('csl', 8)}")
    e("s_branch L_pollc")
    g.lab("L_pollc_done")
    e(f"s_mov_b32 {sr(sSpin)}, 0x100000")
    def consumer(ns, nm):
        sMask = 16
        for i in range(ns + 1):
            e(f"s_mov_b64 {sr(sMask+2*i,2)}, -1")
        g.lab(f"L_polld{nm}")
        for i in range(ns + 1):
            e(f"s_mov_b64 exec, {sr(sMask+2*i,2)}")
            e(f"s_cbranch_execz L_pd{nm}{i}")
            if i == ns:
                e(f"buffer_load_dwordx2 {vr(vML,2)}, {vr(vMlo)}, {sr(sWS,4)}, 0 offen sc1")
            elif i < 2:
                e(f"buffer_load_dwordx4 {vr(vY+4*i,4)}, {vr(vYo)}, {sr(sWS,4)}, 0 offen offset:{YROW*i} sc1")
            else:
                e(f"buffer_load_dwordx4 {vr(vY+4*i,4)}, {vr(vYo)}, {sr(sWS,4)}, {sr(sWoff)} offen offset:{YROW*(i-2)} sc1")
            g.lab(f"L_pd{nm}{i}")
        e("s_mov_b64 exec, -1")
        e("s_waitcnt vmcnt(0)")
        e(f"v_max_u32 {vr(vMx+ns)}, {vr(vML)}, {vr(vML+1)}")
        for i in range(ns):
            e(f"v_max3_u32 {vr(vMx+i)}, {vr(vY+4*i)}, {vr(vY+4*i+1)}, {vr(vY+4*i+2)}")
            e(f"v_max_u32 {vr(vMx+i)}, {vr(vMx+i)}, {vr(vY+4*i+3)}")
        if ns == 3:
            e(f"v_max3_u32 {vr(vMx+5)}, {vr(vMx)}, {vr(vMx+1)}, {vr(vMx+3)}")
            e(f"v_max_u32 {vr(vMx+5)}, {vr(vMx+5)}, {vr(vMx+2)}")
        else:
            e(f"v_max_u32 {vr(vMx+5)}, {vr(vMx)}, {vr(vMx+1)}")
        e(f"v_cmp_eq_u32 vcc, -1, {vr(vMx+5)}")
        e(f"s_cbranch_vccz L_polld{nm}_done")
        for i in range(ns + 1):
            e(f"v_cmp_eq_u32 {sr(sMask+2*i,2)}, -1, {vr(vMx+i)}")
        e(f"s_sub_u32 {sr(sSpin)}, {sr(sSpin)}, 1")
        e(f"s_cbranch_scc1 L_polld{nm}_done")
        if ns == 1: e(f"s_sleep {SLEEP}")
        e(f"s_branch L_polld{nm}")
        g.lab(f"L_polld{nm}_done")
        if ns == 1:
            e(f"v_rcp_f32 {vr(vMx)}, {vr(vML+1)}")
            e("s_nop 0")
            for k in range(4):
                e(f"v_mul_f32 {vr(vZc+k)}, {vr(vMx)}, {vr(vY+k)}")
            return
        stamp9(4)
        e(f"v_max_f32_dpp {vr(vMx)}, {vr(vML)}, {vr(vML)} quad_perm:[1,0,3,2] {DP}")
        e(f"v_mul_f32 {vr(vML+1)}, {vr(vWm)}, {vr(vML+1)}")
        e("s_nop 0")
        e(f"v_max_f32_dpp {vr(vWt)}, {vr(vMx)}, {vr(vMx)} quad_perm:[2,3,0,1] {DP}")
        e(f"v_sub_f32 {vr(vMx)}, {vr(vML)}, {vr(vWt)}")
        e(f"v_exp_f32 {vr(vMx)}, {vr(vMx)}")
        e("s_nop 0")
        e(f"v_mul_f32 {vr(vMx+1)}, {vr(vMx)}, {vr(vML+1)}")
        for k in range(2):
            e(f"v_mul_f32_dpp {vr(vZc+k)}, {vr(vMx)}, {vr(vY+k)} quad_perm:[0,0,0,0] {DP}")
        e(f"v_add_f32_dpp {vr(vMx+2)}, {vr(vMx+1)}, {vr(vMx+1)} quad_perm:[1,0,3,2] {DP}")
        for k in range(2, 4):
            e(f"v_mul_f32_dpp {vr(vZc+k)}, {vr(vMx)}, {vr(vY+k)} quad_perm:[0,0,0,0] {DP}")
        e(f"v_add_f32_dpp {vr(vWt)}, {vr(vMx+2)}, {vr(vMx+2)} quad_perm:[2,3,0,1] {DP}")
        e(f"v_rcp_f32 {vr(vWt)}, {vr(vWt)}")
        for i in range(1, ns):
            for k in range(4):
                e(f"v_fmac_f32_dpp {vr(vZc+k)}, {vr(vMx)}, {vr(vY+4*i+k)} quad_perm:[{i},{i},{i},{i}] {DP}")
        for k in range(4):
            e(f"v_mul_f32 {vr(vZc+k)}, {vr(vWt)}, {vr(vZc+k)}")
    consumer(3, "B")
    g.lab("L_fin2")
    for k in range(4):
        e(f"v_add_f32_dpp {vr(vRes+k)}, {vr(vZc+k)}, {vr(vZc+k)} row_ror:8 {DP}")
    e(f"v_permlane32_swap_b32 {vr(vRes)}, {vr(vRes+1)}")
    e("s_nop 0")
    e(f"v_permlane32_swap_b32 {vr(vRes+2)}, {vr(vRes+3)}")
    e(f"v_add_f32 {vr(vRes)}, {vr(vRes)}, {vr(vRes+1)}")
    e(f"v_add_f32 {vr(vRes+2)}, {vr(vRes+2)}, {vr(vRes+3)}")
    e("s_nop 1")
    e(f"v_permlane16_swap_b32 {vr(vRes)}, {vr(vRes+2)}")
    e(f"v_add_f32 {vr(vRes)}, {vr(vRes)}, {vr(vRes+2)}")
    e(f"ds_write_b32 {vr(vCw)}, {vr(vRes)}")
    e(f"s_cmp_lg_u32 {sr(sW)}, 0")
    e("s_mov_b32 exec_hi, 0")
    e("s_waitcnt lgkmcnt(0)")
    e("s_barrier")
    stamp9(6)
    e("s_cbranch_scc1 L_done0")
    for w in range(4):
        e(f"ds_read_b32 {vr(vRes+w)}, {vr(vCr)} offset:{128*w}")
    e("s_waitcnt lgkmcnt(0)")
    e(f"v_add_f32 {vr(vRes)}, {vr(vRes)}, {vr(vRes+1)}")
    e(f"v_add_f32 {vr(vRes+2)}, {vr(vRes+2)}, {vr(vRes+3)}")
    e(f"v_add_f32 {vr(vRes)}, {vr(vRes)}, {vr(vRes+2)}")
    e(f"v_cvt_pk_bf16_f32 {vr(vRes)}, {vr(vRes)}, {vr(vRes)}")
    e(f"buffer_store_short {vr(vRes)}, {vr(vOa)}, {sr(sOut,4)}, 0 offen")
    g.lab("L_done0")
    e("s_mov_b64 exec, -1")
    e(f"s_cmp_ge_u32 {sr(sCi)}, 36")
    e("s_cbranch_scc1 L_consB")
    g.lab("L_done")
    if PROF:
        e("s_waitcnt vmcnt(0)")
        stamp(7)
        e("s_getreg_b32 s96, hwreg(HW_REG_XCC_ID)")
        e("s_getreg_b32 s97, hwreg(HW_REG_HW_ID)")
        e("s_waitcnt lgkmcnt(0)")
        e(f"s_lshl_b32 {sr(sT0)}, s2, 2")
        e(f"s_add_u32 {sr(sT0)}, {sr(sT0)}, {sr(sW)}")
        e(f"s_lshl_b32 {sr(sT0)}, {sr(sT0)}, 6")
        e(f"s_add_u32 {sr(sT0)}, {sr(sT0)}, 0x200000")
        e(f"v_mov_b32 v20, {sr(sT0)}")
        for i in range(8):
            e(f"v_mov_b32 v{24+i}, s{80+2*i}")
        e("v_mov_b32 v32, s96")
        e("v_mov_b32 v33, s97")
        e("s_mov_b64 exec, 1")
        e(f"buffer_store_dwordx4 v[24:27], v20, {sr(sWS,4)}, 0 offen")
        e(f"buffer_store_dwordx4 v[28:31], v20, {sr(sWS,4)}, 0 offen offset:16")
        e(f"buffer_store_dwordx2 v[32:33], v20, {sr(sWS,4)}, 0 offen offset:32")
    g.lab("L_exit")
    e("s_endpgm")
    g.lab("L_finA")
    consumer(1, "A")
    e("s_branch L_fin2")

    ret = lambda: e(f"s_setpc_b64 {sr(sRet,2)}")
    g.lab("L_AQ")
    qloads(2, sQa, None, QSC)
    ret()
    g.lab("L_AK")
    qget(2, sQa, vQA, "A")
    e("s_nop 1")
    X = [vP, 72, vQl, vQl + 16]
    for n in range(4): qk(aA + 16 * n, vQA, X[n])
    for n in range(4): fold(X[n], vSA + 4 * n, True)
    e(f"v_max3_f32 {vr(vM2)}, {vr(vSA)}, {vr(vSA+1)}, {vr(vSA+2)}")
    for i in range(3, 15, 2):
        e(f"v_max3_f32 {vr(vM2)}, {vr(vM2)}, {vr(vSA+i)}, {vr(vSA+i+1)}")
    e(f"v_max_f32 {vr(vM2)}, {vr(vM2)}, {vr(vSA+15)}")
    gmax(vM2)
    e(f"v_mul_f32 {vr(vM2)}, {sr(sC)}, {vr(vM2)}")
    ret()
    g.lab(f"L_AV0")
    for n in range(4):
        if n == 2:
            ret()
            g.lab(f"L_AV1")
        probs(vSA + 4 * n, vM2, vL2)
        e("s_nop 1")
        pv(vVb + 16 * n, vO2)
    vAa, vAb, vPm, vPo = vSA, vSA + 1, vSA + 4, vQl
    e(f"v_lshlrev_b32 {vr(vAa)}, 4, v0")
    e(f"v_add_u32 {vr(vAa)}, {LDS_OT}, {vr(vAa)}")
    e(f"s_lshl4_add_u32 {sr(sT0)}, {sr(sW)}, {LDS_M}")
    e(f"v_and_b32 {vr(vAb)}, 8, {vr(vCc)}")
    e(f"v_add_u32 {vr(vAb)}, {sr(sT0)}, {vr(vAb)}")
    gmax(vL2, "v_add_f32")
    e(f"ds_write_b128 {vr(vAa)}, {vr(vO2,4)}")
    e(f"ds_write_b64 {vr(vAb)}, {vr(vM2,2)}")
    e(f"v_mov_b32 {vr(vAa)}, {LDS_CNT + 4}")
    e(f"v_mov_b32 {vr(vAb)}, 1")
    e("s_mov_b64 exec, 1")
    e("s_waitcnt lgkmcnt(0)")
    e(f"ds_add_rtn_u32 {vr(vAb)}, {vr(vAa)}, {vr(vAb)}")
    e("s_mov_b64 exec, -1")
    tail_setup()
    e("s_waitcnt lgkmcnt(0)")
    e(f"v_readfirstlane_b32 {sr(sT0)}, {vr(vAb)}")
    e(f"v_lshlrev_b32 {vr(vAa)}, 4, {vr(vLane)}")
    e(f"v_lshrrev_b32 {vr(vT1)}, 5, {vr(vLane)}")
    e(f"v_add_u32 {vr(vT0)}, {LDS_OT}, {vr(vAa)}")
    e(f"v_lshlrev_b32 {vr(vAb)}, 3, {vr(vT1)}")
    e(f"s_cmp_eq_u32 {sr(sT0)}, 3")
    e("s_cbranch_scc1 L_AM")
    ret()
    g.lab("L_AM")
    e(f"v_add_u32 {vr(vAb)}, {LDS_M}, {vr(vAb)}")
    for w in range(4):
        e(f"ds_read_b64 {vr(vPm+2*w,2)}, {vr(vAb)} offset:{16*w}")
    for w in range(4):
        e(f"ds_read_b128 {vr(vPo+4*w,4)}, {vr(vT0)} offset:{1024*w}")
    e(f"v_lshlrev_b32 {vr(vAb)}, 4, {vr(vCc)}")
    e(f"v_lshl_add_u32 {vr(vAb)}, {vr(vT1)}, 6, {vr(vAb)}")
    e(f"s_lshl_b32 {sr(sT0)}, {sr(sAr)}, 10")
    e(f"s_add_u32 {sr(sT0)}, {sr(sT0)}, {AR_OFF}")
    e(f"s_lshl_b32 {sr(sT1)}, {sr(sAr)}, 7")
    e(f"s_add_u32 {sr(sT1)}, {sr(sT1)}, {AF_OFF}")
    e("s_waitcnt lgkmcnt(4)")
    e(f"v_max3_f32 {vr(vE)}, {vr(vPm)}, {vr(vPm+2)}, {vr(vPm+4)}")
    e(f"v_max_f32 {vr(vE)}, {vr(vE)}, {vr(vPm+6)}")
    for w in range(4):
        e(f"v_sub_f32 {vr(vPm+2*w)}, {vr(vPm+2*w)}, {vr(vE)}")
    for w in range(4):
        e(f"v_exp_f32 {vr(vPm+2*w)}, {vr(vPm+2*w)}")
    e(f"v_xor_b32 {vr(vE+2)}, {sr(sNon)}, {vr(vE)}")
    e(f"v_mul_f32 {vr(vE+1)}, {vr(vPm)}, {vr(vPm+1)}")
    for w in range(1, 4):
        e(f"v_fmac_f32 {vr(vE+1)}, {vr(vPm+2*w)}, {vr(vPm+2*w+1)}")
    e("s_waitcnt lgkmcnt(0)")
    for i in range(4):
        e(f"v_mul_f32 {vr(vPo+i)}, {vr(vPm)}, {vr(vPo+i)}")
    e(f"v_xor_b32 {vr(vE+3)}, {sr(sNon)}, {vr(vE+1)}")
    for w in range(1, 4):
        for i in range(4):
            e(f"v_fmac_f32 {vr(vPo+i)}, {vr(vPm+2*w)}, {vr(vPo+4*w+i)}")
    for d in range(2):
        e(f"v_cvt_pk_bf16_f32 {vr(vO2+d)}, {vr(vPo+2*d)}, {vr(vPo+2*d+1)}")
    for d in range(2):
        e(f"v_xor_b32 {vr(vO2+2+d)}, {sr(sNon)}, {vr(vO2+d)}")
    if not opts.get("xs", 0):
        e(f"buffer_store_dwordx4 {vr(vO2,4)}, {vr(vAa)}, {sr(sWS,4)}, {sr(sT0)} offen sc1")
        e(f"s_mov_b32 exec_lo, 15"); e(f"s_mov_b32 exec_hi, 15")
        e(f"buffer_store_dwordx4 {vr(vE,4)}, {vr(vAb)}, {sr(sWS,4)}, {sr(sT1)} offen sc1")
        e("s_mov_b64 exec, -1")
    ret()
    g.lab("L_TR")
    e(f"v_mov_b32_dpp {vr(vM)}, {vr(vM)} quad_perm:[0,0,0,0] {DP}")
    gmax(vM)
    e(f"s_lshl2_add_u32 {sr(sT0)}, {sr(sW)}, {LDS_CNT + 16}")
    e(f"v_mul_f32 {vr(vM)}, {sr(sC)}, {vr(vM)}")
    e(f"v_mov_b32 {vr(vT0)}, {sr(sT0)}")
    e(f"s_mov_b32 {sr(sIt)}, 0")
    e(f"ds_write_b32 {vr(vT0)}, {vr(vM)}")
    ret()

    g.lab("L_T1")
    e(f"v_add_u32 {vr(vT0)}, 0x10000, {vr(vTR)}")
    e(f"v_add_u32 {vr(vT1)}, 0x20000, {vr(vTR)}")
    for t in range(9):
        for j in range(4):
            for hf in range(2):
                off = t*16384 + j*4096 + hf*2048
                a = (vTR, vT0, vT1)[off >> 16]
                e(f"ds_read_b64_tr_b16 {ar(aW+4*(t*4+j)+hf*2,2)}, {vr(a)} offset:{off & 0xffff}")
    e("s_waitcnt lgkmcnt(0)")
    ret()

    hdr = HEADER
    hdr += f"; @launch grid=(256,1,1) block=(256,1,1) lds={LDS_TOTAL}\n"
    hdr += '.amdgcn_target "amdgcn-amd-amdhsa--gfx950"\n.text\n'
    hdr += f".globl {KN}\n.p2align 8\n.type {KN},@function\n"
    tail = f""".section .rodata,"a"
.p2align 6
.amdhsa_kernel {KN}
  .amdhsa_next_free_vgpr 512
  .amdhsa_next_free_sgpr 102
  .amdhsa_accum_offset 256
  .amdhsa_group_segment_fixed_size 0
  .amdhsa_kernarg_size 104
  .amdhsa_user_sgpr_count 2
  .amdhsa_user_sgpr_kernarg_segment_ptr 1
  .amdhsa_system_sgpr_workgroup_id_x 1
.end_amdhsa_kernel
"""
    return hdr + g.text() + tail

if __name__ == "__main__":
    out = sys.argv[1]
    opts = {}
    for a in sys.argv[2:]:
        k, v = a.split("=")
        opts[k] = int(v, 0)
    open(out, "w").write(gen(opts))
```

```python
import sys, math, struct

KN = "concat_heads__sliding_block_cached__mha_block_cached__decode_kernel"

def f32bits(x):
    return struct.unpack("<I", struct.pack("<f", x))[0]

class Gen:
    def __init__(self):
        self.lines = []
        self.q = []
    def e(self, s):
        self.lines.append("    " + s)
    def lab(self, s):
        self.lines.append(s + ":")
    def vm(self, s, tag=None):
        self.e(s)
        self.q.append(tag)
    def wait_tag(self, tag):
        idx = max(i for i, t in enumerate(self.q) if t == tag)
        n = len(self.q) - 1 - idx
        assert n <= 63, n
        self.e(f"s_waitcnt vmcnt({n})")
    def text(self):
        return "\n".join(self.lines) + "\n"

def vr(a, n=1):
    return f"v{a}" if n == 1 else f"v[{a}:{a+n-1}]"
def ar(a, n=1):
    return f"a{a}" if n == 1 else f"a[{a}:{a+n-1}]"
def sr(a, n=1):
    return f"s{a}" if n == 1 else f"s[{a}:{a+n-1}]"

HEADER = open("concat_heads__sliding_block_cached__mha_block_cached__decode.s.ref").read().split("; Override launch")[0]

NROWS = 256
YROW = 2304
HF_OFF = 256
Q_OFF = 0x400000
Y_OFF = 1024
ML_OFF = Y_OFF + NROWS * YROW
ORG_OFF = ML_OFF + NROWS * 16
AF_OFF = ORG_OFF + 2048
AR_OFF = AF_OFF + 32768
WS_END = Q_OFF + 16 * 32768
LDS_OT = 147456
OT_STRIDE = 272
OT_BYTES = 16 * OT_STRIDE
LDS_M = LDS_OT + OT_BYTES
LDS_CNT = LDS_M + 128
LDS_SC = LDS_CNT + 64
LDS_TOTAL = LDS_SC + 176 * 64
CSCALE = (128 ** -0.5) * math.log2(math.e)
OOB = 0x40000000
assert AR_OFF + 256 * 1024 <= 0x200000 and AF_OFF % 128 == 0 and ML_OFF % 128 == 0 and LDS_TOTAL <= 163840

def gen(opts):
    U = opts.get("u", 4)
    NT = " nt"
    PROF = opts.get("prof", 0)
    SLEEP = opts.get("sleep", 16)
    SB = opts.get("sb", 37)
    WS_BYTES = WS_END
    QW = opts.get('qw', 3)
    RM = opts.get("rm", 25)
    RMA = opts.get("rma", 25)
    RB = [0, opts.get("r1", 171), opts.get("r2", 342), 512]
    assert all(4 * SB + 4 <= RB[i + 1] - RB[i] <= 176 for i in range(3))
    FLV = opts.get("flv", -1)
    PSPL = opts.get("pspl", 0)
    PSPV = opts.get("pspv", 0)
    MHV = 0x0f0f0f0f
    LW = [int(ch, 16) for ch in "%x" % opts.get("lw", 0x8642)]
    g = Gen()
    e = g.e
    sW, sRet, sE, sNon, sOut = 3, 4, 6, 7, 12
    sWoff, sSpin = 34, 35
    sK, sV, sWQ, sX, sWO, sWS = 36, 40, 44, 48, 52, 56
    sAK, sAV = sWQ, sX
    sRot, sAL, sT0, sT1, sT2, sT3 = 60, 61, 62, 63, 64, 65
    sOff, sIt, sC, sSelLo, sSelHi, sLdsW = 66, 67, 68, 69, 70, 71
    sRem, sR0, sAr, sQo, sIsH, sDt, sDoff, sDlds = 72, 73, 74, 75, 76, 77, 78, 79
    sKVo, sWoO, sAo, sPq, sQa, sL = 96, 97, 98, 99, 100, 101
    sX15 = 96
    sSt, sCl, sCi, sSrc = 44, 47, 45, 46
    sDyn, sLim, sL0, sBase = 48, 49, 50, 51
    sLev, sSch, sNow, sOff0 = 17, 18, 20, 22
    sTi, sPh = 26, 30
    PM = [int(ch, 16) + 8 for ch in "%013x" % (opts.get("perm", 0x10712345689abc) & (16**13 - 1))]
    assert sorted(PM) == list(range(8, 21)) and PM[11:] == [19, 20] and PM[0] <= 11 and PM[3] <= 11 and PM[4:] == sorted(PM[4:]), PM
    HOLE = sum(1 << p for p in PM[:4] if p > PM[4])
    TMASK = sum(1 << p for p in PM[4:])
    def phys(src, add, mask=None):
        e(f"s_add_u32 {sr(sX15)}, {sr(src)}, {add}")
        runs = []
        for i in range(9):
            if runs and runs[-1][1] + runs[-1][2] == PM[4 + i]: runs[-1][2] += 1
            else: runs.append([i, PM[4 + i], 1])
        for n, (i, p, w) in enumerate(runs):
            d = sOff if n == 0 else sWoff
            e(f"s_bfe_u32 {sr(d)}, {sr(sX15)}, {(w << 16) | i}")
            e(f"s_lshl_b32 {sr(d)}, {sr(d)}, {p}")
            if n: e(f"s_or_b32 {sr(sOff)}, {sr(sOff)}, {sr(sWoff)}")
        if mask: e(f"s_and_b32 {sr(sOff)}, {sr(sOff)}, {mask}")
    def adv():
        e(f"s_add_u32 {sr(sOff)}, {sr(sOff)}, {HOLE + (1 << PM[6])}")
        e(f"s_and_b32 {sr(sOff)}, {sr(sOff)}, {TMASK}")
        e(f"s_add_u32 {sr(sL)}, {sr(sL)}, 256")
    assert all(p > PM[6] for p in PM[:4] if p > PM[4])
    vLane, vG, vCc = 1, 2, 3
    vK, vV, vSt0, vSt1, vTR, vU0 = 4, 5, 6, 7, 8, 9
    vT0, vT1 = 10, 11
    vM, vL, vM2, vL2 = 12, 13, 14, 15
    vS, vMk = 16, 20
    vE, vA, vMn = 24, 28, 29
    vSa, vSb = 30, 31
    vO, vO2 = 32, 36
    vP = 48
    vQ, vQA = 64, 68
    vVb = 96
    vWOj = 160
    vSA = 164
    vTk = 202
    vAw, vAm, vAr, vAx = 204, 205, 206, 207
    vYo, vMlo, vCw, vCr, vOa, vWm = 196, 197, 198, 199, 200, 201
    vEp = 152
    vHf, vHa = 162, 163
    vQa = 161
    vQl = 208
    vTmp = 240
    aW = 64
    aA = 64
    DP = "row_mask:0xf bank_mask:0xf"
    def stamp9(i):
        if PROF == 9: e(f"s_memrealtime s[{80+2*i}:{81+2*i}]")
    def stamp(i):
        if PROF in (9, 11):
            if i in (0, 5, 7): e(f"s_memrealtime s[{80+2*i}:{81+2*i}]")
            if i == 6: e(f"s_memrealtime s[86:87]")
        elif PROF in (1, 3) or (PROF == 2 and i in (0, 1, 2, 7)):
            e(f"s_memrealtime s[{80+2*i}:{81+2*i}]")
    def stamp2(i):
        if PROF == 2: e(f"s_memrealtime s[{80+2*i}:{81+2*i}]")
    def srd_tail(s, size):
        e(f"s_mov_b32 {sr(s+2)}, {size}")
        e(f"s_mov_b32 {sr(s+3)}, 0x00020000")
    def add64(d, s, off):
        e(f"s_add_u32 {sr(d)}, {sr(s)}, {off}")
        e(f"s_addc_u32 {sr(d+1)}, {sr(s+1)}, 0")
    def issue(isK, reg, srd, tag=None, split=0):
        for j in range(4):
            if isK: ld = f"buffer_load_dwordx4 {ar(reg+4*j,4)}, {vr(vK)}, {sr(srd,4)}, {sr(sOff)} offen offset:{((j&1) << PM[0]) + ((j>>1) << PM[3])}{NT}"
            else: ld = f"buffer_load_dwordx4 {vr(reg+4*j,4)}, {vr(vV)}, {sr(srd,4)}, {sr(sOff)} offen offset:{((j&1) << PM[0]) + ((j>>1) << PM[3])}{NT}"
            if j < split:
                m = 0x0000ffff if isK else MHV
                e(f"s_mov_b32 exec_lo, {m}"); e(f"s_mov_b32 exec_hi, {m}")
                g.vm(ld, tag)
                e("s_not_b64 exec, exec")
                g.vm(ld, tag)
                e("s_mov_b64 exec, -1")
            else:
                g.vm(ld, tag)
    def throttle(uid):
        for n, w in enumerate(LW):
            e(f"s_cmp_ge_i32 {sr(sLev)}, {len(LW) - n}")
            e(f"s_cbranch_scc1 L_th{uid}")
            e(f"s_waitcnt vmcnt({w})")
        g.lab(f"L_th{uid}")

    g.lab(KN)
    e("s_cmp_ge_u32 s2, 256")
    e("s_cbranch_scc1 L_exit")
    stamp(0)
    e("s_memrealtime s[94:95]")
    e("s_load_dwordx16 s[8:23], s[0:1], 0")
    e("s_load_dwordx8 s[24:31], s[0:1], 64")
    e("s_load_dwordx2 s[32:33], s[0:1], 96")
    e(f"v_lshrrev_b32 {vr(vT0)}, 6, v0")
    e(f"v_mov_b32 {vr(vT1)}, {LDS_CNT}")
    for i in range(4):
        e(f"v_mov_b32 {vr(vO+i)}, 0")
    e(f"v_readfirstlane_b32 {sr(sW)}, {vr(vT0)}")
    e(f"ds_write_b128 {vr(vT1)}, {vr(vO,4)}")
    e(f"v_and_b32 {vr(vLane)}, 63, v0")
    e(f"v_bfe_u32 {vr(vG)}, v0, 4, 2")
    e(f"v_and_b32 {vr(vCc)}, 15, v0")
    vWQ, vX, vXs, vXo, vQs = 24, 25, 96, 120, 26
    e(f"s_and_b32 {sr(sT0)}, s2, 3")
    e(f"s_mul_i32 {sr(sT1)}, {sr(sT0)}, 144")
    e(f"v_mad_u32_u24 {vr(vX)}, {vr(vG)}, 36, {sr(sT1)}")
    e(f"s_bfe_u32 {sr(sT1)}, s2, 0x50002")
    e(f"s_lshl_b32 {sr(sT2)}, {sr(sT1)}, 8")
    e(f"v_lshl_add_u32 {vr(vWQ)}, {vr(vCc)}, 4, {sr(sT2)}")
    e(f"v_lshl_add_u32 {vr(vWQ)}, {vr(vX)}, 13, {vr(vWQ)}")
    e(f"v_lshrrev_b32 {vr(vT0)}, 3, {vr(vCc)}")
    e(f"v_mul_u32_u24 {vr(vT0)}, 1152, {vr(vT0)}")
    e(f"v_lshl_add_u32 {vr(vX)}, {vr(vX)}, 1, {vr(vT0)}")
    e(f"s_lshr_b32 {sr(sPq)}, s2, 7")
    srd_tail(sWQ, 576 * 8192)
    srd_tail(sX, 2304)
    srd_tail(sWS, WS_BYTES)
    e(f"s_cmp_eq_u32 {sr(sPq)}, 0")
    e("s_waitcnt lgkmcnt(0)")
    e(f"s_cselect_b64 {sr(sWQ,2)}, s[14:15], s[24:25]")
    e(f"s_cselect_b64 {sr(sX,2)}, s[8:9], s[18:19]")
    e(f"s_load_dword {sr(sE)}, s[32:33], 0")
    e(f"s_cmp_lg_u32 {sr(sW)}, {QW}")
    e("s_cbranch_scc1 L_nq0")
    g.q = []
    for i in range(4):
        g.vm(f"buffer_load_dwordx4 {vr(vXs+4*i,4)}, {vr(vX)}, {sr(sX,4)}, 0 offen offset:{16*i}", "x")
    g.vm(f"buffer_load_dwordx2 {vr(vXs+16,2)}, {vr(vX)}, {sr(sX,4)}, 0 offen offset:64", "x")
    for n in range(36):
        if n: e(f"s_mov_b32 {sr(sWoff)}, {n*8192}")
        g.vm(f"buffer_load_dwordx4 {ar(4*n,4)}, {vr(vWQ)}, {sr(sWQ,4)}, {sr(sWoff) if n else 0} offen" + (NT if opts.get("wqnt", 1) else ""), ("wq", n))
        if n == opts.get("qbar", 15): e("s_barrier")
    stamp2(3)
    e("s_branch L_nq1")
    g.lab("L_nq0")
    e("s_barrier")
    g.lab("L_nq1")
    e(f"s_mov_b32 {sr(sWS)}, s32"); e(f"s_mov_b32 {sr(sWS+1)}, s33")
    e(f"v_and_b32 {vr(vT0)}, 1, {vr(vLane)}")
    e(f"v_lshlrev_b32 {vr(vT0)}, 4, {vr(vT0)}")
    e(f"v_mov_b32 {vr(vT1)}, 0xffff")
    e(f"v_lshlrev_b32 {vr(vT0)}, {vr(vT0)}, {vr(vT1)}")
    e(f"v_bfe_u32 {vr(vT1)}, {vr(vLane)}, 1, 2")
    for d in range(4):
        e(f"v_cmp_eq_u32 vcc, {d}, {vr(vT1)}")
        e(f"v_cndmask_b32 {vr(vMk+d)}, 0, {vr(vT0)}, vcc")
    e(f"s_cbranch_scc1 L_nq2")
    e(f"s_lshl3_add_u32 {sr(sT0)}, {sr(sPq)}, {sr(sT0)}")
    e(f"s_lshl_b32 {sr(sT0)}, {sr(sT0)}, 15")
    e(f"s_lshl_b32 {sr(sT1)}, {sr(sT1)}, 10")
    e(f"s_add_u32 {sr(sT0)}, {sr(sT0)}, {sr(sT1)}")
    e(f"s_add_u32 {sr(sT0)}, {sr(sT0)}, {Q_OFF}")
    e(f"v_and_b32 {vr(vT0)}, 31, {vr(vLane)}")
    e(f"v_lshl_add_u32 {vr(vQs)}, {vr(vT0)}, 4, {sr(sT0)}")
    e(f"v_lshrrev_b32 {vr(vT0)}, 5, {vr(vLane)}")
    e(f"v_lshl_add_u32 {vr(vQs)}, {vr(vT0)}, 17, {vr(vQs)}")
    e(f"s_mov_b32 {sr(sSelLo)}, 0x01000100")
    e(f"s_mov_b32 {sr(sSelHi)}, 0x03020302")
    e("s_waitcnt lgkmcnt(0)")
    e(f"s_add_u32 {sr(sT2)}, {sr(sE)}, 1")
    e(f"s_mul_i32 {sr(sNon)}, {sr(sT2)}, 0x9E3779B1")
    e(f"s_or_b32 {sr(sNon)}, {sr(sNon)}, 1")
    stamp2(5)
    g.wait_tag("x")
    stamp2(6)
    def xop(n):
        t = vXo + 8 * (n & 3)
        e(f"v_perm_b32 {vr(t+4)}, {vr(vXs+(n>>1))}, {vr(vXs+(n>>1))}, {sr(sSelHi if n & 1 else sSelLo)}")
        for d in range(4):
            e(f"v_and_b32 {vr(t+d)}, {vr(t+4)}, {vr(vMk+d)}")
    xop(0)
    for n in range(36):
        if n < 35: xop(n + 1)
        g.wait_tag(("wq", n))
        acc = vr(vQ + 4 * (n & 1), 4)
        e(f"v_mfma_f32_16x16x32_bf16 {acc}, {vr(vXo+8*(n&3),4)}, {ar(4*n,4)}, {acc if n > 1 else 0}")
    e("s_nop 7")
    e("s_nop 0")
    for i in range(4):
        e(f"v_add_f32 {vr(vQ+i)}, {vr(vQ+i)}, {vr(vQ+4+i)}")
    for i in range(4):
        e(f"v_xor_b32 {vr(vQ+4+i)}, {sr(sNon)}, {vr(vQ+i)}")
    e(f"buffer_store_dwordx4 {vr(vQ,4)}, {vr(vQs)}, {sr(sWS,4)}, 0 offen sc1")
    e(f"buffer_store_dwordx4 {vr(vQ+4,4)}, {vr(vQs)}, {sr(sWS,4)}, 0 offen offset:512 sc1")
    stamp(1)
    e(f"s_cmp_lg_u32 s2, 0")
    e("s_cbranch_scc1 L_nq3")
    e(f"s_xor_b32 {sr(sT0)}, s94, {sr(sNon)}")
    e(f"v_mov_b32 {vr(vS)}, s94")
    e(f"v_mov_b32 {vr(vS+1)}, {sr(sT0)}")
    e(f"v_lshlrev_b32 {vr(vT0)}, 7, {vr(vCc)}")
    e(f"s_mov_b32 {sr(sT0)}, {ORG_OFF}")
    e(f"s_mov_b64 exec, 0xffff")
    e(f"buffer_store_dwordx2 {vr(vS,2)}, {vr(vT0)}, {sr(sWS,4)}, {sr(sT0)} offen sc1")
    e(f"s_mov_b64 exec, -1")
    g.lab("L_nq3")
    g.lab("L_nq2")
    g.q = []
    e(f"v_and_b32 {vr(vK)}, 3, {vr(vCc)}")
    e(f"v_lshlrev_b32 {vr(vK)}, 4, {vr(vK)}")
    e(f"v_lshl_add_u32 {vr(vK)}, {vr(vG)}, 6, {vr(vK)}")
    e(f"v_lshrrev_b32 {vr(vT0)}, 2, {vr(vCc)}")
    e(f"v_lshl_add_u32 {vr(vQa)}, {vr(vT0)}, 15, {vr(vK)}")
    e(f"v_lshlrev_b32 {vr(vV)}, 4, {vr(vCc)}")
    for i in range(2):
        e(f"v_bfe_u32 {vr(vT1)}, {vr(vCc)}, {i+2}, 1")
        e(f"v_lshl_add_u32 {vr(vK)}, {vr(vT1)}, {PM[i+1]}, {vr(vK)}")
        e(f"v_bfe_u32 {vr(vT1)}, {vr(vG)}, {i}, 1")
        e(f"v_lshl_add_u32 {vr(vV)}, {vr(vT1)}, {PM[i+1]}, {vr(vV)}")
    e(f"s_and_b32 {sr(sT0)}, s2, 7")
    e(f"s_lshr_b32 {sr(sT1)}, s2, 3")
    e(f"s_bfe_u32 {sr(sT2)}, s2, 0x10004")
    e(f"s_lshl1_add_u32 {sr(sT2)}, {sr(sT0)}, {sr(sT2)}")
    e(f"s_bfe_u32 {sr(sT3)}, s2, 0x10003")
    e(f"s_lshl_b32 {sr(sQa)}, {sr(sT3)}, 17")
    e(f"s_lshl_b32 {sr(sAo)}, {sr(sT2)}, 11")
    e(f"s_add_u32 {sr(sQa)}, {sr(sQa)}, {sr(sAo)}")
    e(f"s_add_u32 {sr(sQa)}, {sr(sQa)}, {Q_OFF}")
    e(f"s_lshl4_add_u32 {sr(sT2)}, {sr(sT3)}, {sr(sT2)}")
    e(f"s_lshl_b32 {sr(sAo)}, {sr(sT2)}, 21")
    e(f"s_add_u32 {sr(sAo)}, {sr(sAo)}, 0x180000")
    e(f"s_lshr_b32 {sr(sT3)}, s2, 5")
    e(f"s_lshl3_add_u32 {sr(sAr)}, {sr(sT2)}, {sr(sT3)}")
    e(f"s_mul_i32 {sr(sAL)}, {sr(sT2)}, {RMA}")
    e(f"s_lshl4_add_u32 {sr(sAL)}, {sr(sT3)}, {sr(sAL)}")
    e(f"s_add_u32 {sr(sAL)}, {sr(sAL)}, {sr(sW)}")
    add64(sAK, 10, sr(sAo)); add64(sAV, 12, sr(sAo))
    e(f"s_mov_b32 {sr(sAK+2)}, 0x80000"); e(f"s_mov_b32 {sr(sAV+2)}, 0x80000")
    def a_unit(n):
        phys(sAL, 4 * (n & 3), 0x7ffff)
        if n < 4: issue(True, aA + 16 * n, sAK, "a", PSPL)
        else: issue(False, vVb + 16 * (n - 4), sAV, "a", PSPV)
    T0N = opts.get("t0n", 2)
    for n in range(T0N): a_unit(n)
    stamp2(4)
    e(f"s_cmp_ge_u32 {sr(sT1)}, 24")
    e("s_cbranch_scc1 L_setH")
    e(f"s_mov_b32 {sr(sIsH)}, 0")
    e(f"s_mul_i32 {sr(sT2)}, {sr(sT1)}, 171")
    e(f"s_lshr_b32 {sr(sT2)}, {sr(sT2)}, 9")
    e(f"s_mul_i32 {sr(sT3)}, {sr(sT2)}, 3")
    e(f"s_sub_u32 {sr(sT1)}, {sr(sT1)}, {sr(sT3)}")
    if "ra" in opts:
        if "rc" in opts:
            e(f"s_lshr_b32 {sr(sRot)}, {sr(sT2)}, 1")
            e(f"s_mul_i32 {sr(sRot)}, {sr(sRot)}, {opts['ra']}")
            e(f"s_and_b32 {sr(sT3)}, {sr(sT2)}, 1")
            e(f"s_mul_i32 {sr(sT3)}, {sr(sT3)}, {opts['rc']}")
            e(f"s_add_u32 {sr(sRot)}, {sr(sRot)}, {sr(sT3)}")
        else: e(f"s_mul_i32 {sr(sRot)}, {sr(sT2)}, {opts['ra']}")
        e(f"s_mul_i32 {sr(sT3)}, {sr(sT0)}, {opts.get('rb', 3)}")
        e(f"s_add_u32 {sr(sRot)}, {sr(sRot)}, {sr(sT3)}")
    e(f"s_lshr_b32 {sr(sT3)}, {sr(sT2)}, 1")
    e(f"s_lshl2_add_u32 {sr(sT0)}, {sr(sT0)}, {sr(sT3)}")
    e(f"s_and_b32 {sr(sT2)}, {sr(sT2)}, 1")
    e(f"s_lshl_b32 {sr(sQo)}, {sr(sT2)}, 17")
    e(f"s_lshl_b32 {sr(sT3)}, {sr(sT0)}, 10")
    e(f"s_add_u32 {sr(sQo)}, {sr(sQo)}, {sr(sT3)}")
    e(f"s_add_u32 {sr(sQo)}, {sr(sQo)}, {Q_OFF + 8*32768}")
    e(f"s_lshl_b32 {sr(sT2)}, {sr(sT2)}, 5")
    e(f"s_add_u32 {sr(sT2)}, {sr(sT2)}, {sr(sT0)}")
    e(f"s_lshl_b32 {sr(sKVo)}, {sr(sT2)}, 21")
    if "ra" not in opts: e(f"s_mul_i32 {sr(sRot)}, {sr(sT2)}, {RM}")
    e(f"s_mul_i32 {sr(sR0)}, {sr(sT2)}, 3")
    e(f"s_add_u32 {sr(sR0)}, {sr(sR0)}, {sr(sT1)}")
    e(f"s_cmp_eq_u32 {sr(sT1)}, 1")
    e(f"s_cselect_b32 {sr(sIt)}, {RB[1]}, 0")
    e(f"s_cselect_b32 {sr(sDoff)}, {RB[2]}, 0")
    e(f"s_cmp_eq_u32 {sr(sT1)}, 0")
    e(f"s_cselect_b32 {sr(sDoff)}, {RB[1]}, {sr(sDoff)}")
    e(f"s_cmp_eq_u32 {sr(sT1)}, 2")
    e(f"s_cselect_b32 {sr(sIt)}, {RB[2]}, {sr(sIt)}")
    e(f"s_cselect_b32 {sr(sDoff)}, 512, {sr(sDoff)}")
    e("s_branch L_common")
    g.lab("L_setH")
    e(f"s_mov_b32 {sr(sIsH)}, 1")
    e(f"s_bfe_u32 {sr(sT2)}, s2, 0x20004")
    e(f"s_lshl2_add_u32 {sr(sT0)}, {sr(sT0)}, {sr(sT2)}")
    e(f"s_bfe_u32 {sr(sT2)}, s2, 0x10003")
    e(f"s_lshl_b32 {sr(sT2)}, {sr(sT2)}, 5")
    e(f"s_add_u32 {sr(sIt)}, {sr(sT2)}, {sr(sT0)}")
    e(f"s_add_u32 {sr(sR0)}, {sr(sIt)}, 192")
    e(f"s_mov_b32 {sr(sKVo)}, 0")
    e(f"s_mov_b32 {sr(sRot)}, 0")
    g.lab("L_common")
    e(f"s_mul_i32 {sr(sWoO)}, {sr(sT0)}, 147456")
    e(f"s_mul_i32 {sr(sT0)}, {sr(sR0)}, {YROW}")
    e(f"s_add_u32 {sr(sT0)}, {sr(sT0)}, {Y_OFF}")
    e(f"s_lshl_b32 {sr(sT2)}, {sr(sW)}, 6")
    e(f"s_add_u32 {sr(sT2)}, {sr(sT2)}, 2048")
    e(f"s_add_u32 {sr(sT2)}, {sr(sT2)}, {sr(sT0)}")
    e(f"v_lshl_add_u32 {vr(vSt1)}, {vr(vCc)}, 2, {sr(sT2)}")
    e(f"s_lshl_b32 {sr(sT2)}, {sr(sW)}, 9")
    e(f"s_add_u32 {sr(sT2)}, {sr(sT2)}, {sr(sT0)}")
    e(f"v_lshl_add_u32 {vr(vSt0)}, {vr(vLane)}, 3, {sr(sT2)}")
    e(f"s_lshl_b32 {sr(sT0)}, {sr(sR0)}, 4")
    e(f"s_add_u32 {sr(sT0)}, {sr(sT0)}, {ML_OFF}")
    e(f"s_cmp_eq_u32 {sr(sW)}, 0")
    e(f"s_cselect_b32 {sr(sT0)}, {sr(sT0)}, {OOB}")
    e(f"s_mov_b32 exec_lo, 0xffff0000")
    e(f"v_mov_b32 {vr(vSt1)}, {OOB}")
    e(f"s_mov_b64 exec, 0x30000")
    e(f"v_lshl_add_u32 {vr(vSt1)}, {vr(vCc)}, 2, {sr(sT0)}")
    e(f"s_mov_b64 exec, -1")
    add64(sK, 20, sr(sKVo)); add64(sV, 22, sr(sKVo))
    srd_tail(sK, 0x200000); srd_tail(sV, 0x200000)
    e(f"s_cmp_eq_u32 {sr(sIsH)}, 1")
    e(f"s_cselect_b64 {sr(sWO,2)}, s[16:17], s[26:27]")
    add64(sWO, sWO, sr(sWoO))
    srd_tail(sWO, 147456)
    e(f"s_mov_b32 {sr(sC)}, 0x{f32bits(CSCALE):08x}")
    e(f"s_lshl_b32 {sr(sLdsW)}, {sr(sW)}, 10")
    e(f"v_bfe_u32 {vr(vT0)}, {vr(vLane)}, 3, 2")
    e(f"v_xor_b32 {vr(vT0)}, {sr(sW)}, {vr(vT0)}")
    e(f"v_lshlrev_b32 {vr(vT0)}, 5, {vr(vT0)}")
    e(f"v_lshrrev_b32 {vr(vT1)}, 2, {vr(vLane)}")
    e(f"v_lshl_add_u32 {vr(vT0)}, {vr(vT1)}, 7, {vr(vT0)}")
    e(f"v_and_b32 {vr(vT1)}, 3, {vr(vLane)}")
    e(f"v_lshl_add_u32 {vr(vTR)}, {vr(vT1)}, 3, {vr(vT0)}")
    e(f"s_mov_b32 {sr(sOut)}, s28"); e(f"s_mov_b32 {sr(sOut+1)}, s29"); srd_tail(sOut, 4608)
    e(f"v_bfe_u32 {vr(vT0)}, {vr(vLane)}, 3, 2")
    e(f"v_lshrrev_b32 {vr(vT1)}, 5, {vr(vLane)}")
    e(f"v_lshl_add_u32 {vr(vT0)}, {vr(vT1)}, 3, {vr(vT0)}")
    e(f"s_and_b32 {sr(sT0)}, {sr(sW)}, 1")
    e(f"s_lshl_b32 {sr(sT0)}, {sr(sT0)}, 4")
    e(f"s_lshr_b32 {sr(sT1)}, {sr(sW)}, 1")
    e(f"s_lshl_b32 {sr(sT1)}, {sr(sT1)}, 2")
    e(f"s_add_u32 {sr(sT0)}, {sr(sT0)}, {sr(sT1)}")
    e(f"v_add_u32 {vr(vT0)}, {sr(sT0)}, {vr(vT0)}")
    e(f"v_mul_u32_u24 {vr(vWOj)}, 1152, {vr(vT0)}")
    e(f"v_lshlrev_b32 {vr(vT1)}, 1, {vr(vG)}")
    e(f"v_and_b32 {vr(vT0)}, 7, {vr(vLane)}")
    e(f"v_xor_b32 {vr(vT1)}, {vr(vT1)}, {vr(vT0)}")
    e(f"v_lshl_add_u32 {vr(vWOj)}, {vr(vT1)}, 4, {vr(vWOj)}")
    e(f"v_lshlrev_b32 {vr(vHa)}, 2, {vr(vLane)}")
    e(f"v_lshlrev_b32 {vr(vSa)}, 4, {vr(vG)}")
    e(f"v_add_u32 {vr(vSa)}, {LDS_SC}, {vr(vSa)}")
    e("s_waitcnt lgkmcnt(0)")
    e(f"s_add_u32 {sr(sE)}, {sr(sE)}, 1")
    e(f"s_mul_i32 {sr(sNon)}, {sr(sE)}, 0x9E3779B1")
    e(f"s_or_b32 {sr(sNon)}, {sr(sNon)}, 1")
    QPOS = opts.get("qpos", 8)
    for n in range(T0N, QPOS): a_unit(n)
    def qloads(nh, so, tag, sc):
        for i in range(4 * nh):
            g.vm(f"buffer_load_dwordx4 {vr(vQl+4*i,4)}, {vr(vQa)}, {sr(sWS,4)}, {sr(so)} offen offset:{256*i}{sc}", tag)
    def qcheck(nh):
        for hd in range(nh):
            for i in range(8):
                e(f"v_bitop3_b32 {vr(vQl+16*hd+8+i)}, {vr(vQl+16*hd+i)}, {vr(vQl+16*hd+8+i)}, {sr(sNon)} bitop3:0x96")
        R = [vQl + 16 * hd + 8 + i for hd in range(nh) for i in range(8)]
        e(f"v_or_b32 {vr(vT0)}, {vr(R[0])}, {vr(R[1])}")
        for i in range(2, len(R), 2):
            e(f"v_or3_b32 {vr(vT0)}, {vr(vT0)}, {vr(R[i])}, {vr(R[i+1])}")
        e(f"v_cmp_ne_u32 vcc, 0, {vr(vT0)}")
    def qget(nh, so, qq, nm):
        qcheck(nh)
        e(f"s_cbranch_vccz L_qok{nm}")
        e(f"s_mov_b32 {sr(sSpin)}, 0x40000")
        g.lab(f"L_qretry{nm}")
        qloads(nh, so, None, " sc1")
        e(f"s_sub_u32 {sr(sSpin)}, {sr(sSpin)}, 1")
        e("s_waitcnt vmcnt(0)")
        e(f"s_cbranch_scc1 L_qok{nm}")
        qcheck(nh)
        e(f"s_cbranch_vccnz L_qretry{nm}")
        g.lab(f"L_qok{nm}")
        for hd in range(nh):
            for i in range(8):
                e(f"v_add_f32_dpp {vr(vQl+16*hd+8+i)}, {vr(vQl+16*hd+i)}, {vr(vQl+16*hd+i)} row_ror:4 {DP}")
        for hd in range(nh):
            bm = "0xf" if nh == 1 else ("0xc" if hd else "0x3")
            for i in range(8):
                e(f"v_add_f32_dpp {vr(vQl+i)}, {vr(vQl+16*hd+8+i)}, {vr(vQl+16*hd+8+i)} row_ror:8 row_mask:0xf bank_mask:{bm}")
        for d in range(4):
            e(f"v_cvt_pk_bf16_f32 {vr(qq+d)}, {vr(vQl+2*d)}, {vr(vQl+2*d+1)}")
    QSC = " sc1" if opts.get("qsc", 0) else ""
    e(f"s_cmp_eq_u32 {sr(sIsH)}, 1")
    e("s_cbranch_scc1 L_nqp")
    e(f"s_and_b32 {sr(sT0)}, s2, 15")
    e(f"s_lshl_b32 {sr(sT0)}, {sr(sT0)}, 7")
    e(f"s_add_u32 {sr(sT0)}, {sr(sT0)}, {ORG_OFF}")
    e("s_mov_b64 exec, 1")
    g.vm(f"buffer_load_dwordx2 {vr(vS,2)}, off, {sr(sWS,4)}, {sr(sT0)} sc1", "org")
    e("s_mov_b64 exec, -1")
    qloads(1, sQo, "ql", QSC)
    g.lab("L_nqp")
    for n in range(QPOS, 8): a_unit(n)
    for i in range(4, 8):
        e(f"v_mov_b32 {vr(vO+i)}, 0")
    e(f"v_mov_b32 {vr(vM)}, 0xff800000")
    e(f"v_mov_b32 {vr(vL)}, 0")
    e(f"v_mov_b32 {vr(vL2)}, 0")
    e(f"s_mov_b32 {sr(sDlds)}, {sr(sLdsW)}")
    if PROF == 3:
        e(f"v_mov_b32 {vr(vTk)}, 0"); e(f"v_mov_b32 {vr(vTk+1)}, 0")
        e("s_mov_b32 s19, 0")
    if PROF == 11:
        for r in (82, 84, 88): e(f"s_mov_b32 s{r}, 0")
    e(f"s_add_u32 {sr(sBase)}, {sr(sIt)}, {sr(sRot)}")
    e(f"s_sub_u32 {sr(sLim)}, {sr(sDoff)}, {sr(sIt)}")
    e(f"s_lshl_b32 {sr(sLim)}, {sr(sLim)}, 6")
    e(f"s_lshl_b32 {sr(sL0)}, {sr(sW)}, 6")
    e(f"s_add_u32 {sr(sDyn)}, {sr(sBase)}, {4*SB}")
    e(f"s_mov_b32 {sr(sDoff)}, 0")
    e(f"s_mov_b32 {sr(sDt)}, {-opts.get('dm0', 0) if not opts.get('xd', 0) else 100}")
    e(f"s_cmp_eq_u32 {sr(sIsH)}, 1")
    e("s_cbranch_scc1 L_H")
    phys(sBase, sr(sW))
    e(f"s_mov_b32 {sr(sOff0)}, {sr(sOff)}")
    e(f"s_mov_b32 {sr(sL)}, {sr(sL0)}")
    for d in range(U):
        issue(True, 16 * d, sK, "k")
        e(f"s_mov_b32 {sr(sTi+d)}, {sr(sL)}")
        adv()
    e(f"s_bfe_u32 {sr(sIt)}, s2, 0x20003")
    e(f"s_mul_i32 {sr(sIt)}, {sr(sIt)}, {-opts.get('stg', 0)}")
    e(f"s_mov_b32 {sr(sPh)}, 0")
    e(f"s_mov_b32 {sr(sLev)}, {opts.get('lev0', 4)}")
    e(f"s_mov_b32 {sr(sSt)}, {SB - U}")
    e(f"s_mov_b32 {sr(sRem)}, 900")
    g.wait_tag("ql")
    e(f"v_readfirstlane_b32 {sr(sT0)}, {vr(vS)}")
    e(f"v_readfirstlane_b32 {sr(sT1)}, {vr(vS+1)}")
    qget(1, sQo, vQ, "B")
    e(f"s_xor_b32 {sr(sT1)}, {sr(sT1)}, {sr(sT0)}")
    e(f"s_cmp_eq_u32 {sr(sT1)}, {sr(sNon)}")
    e(f"s_cselect_b32 s94, {sr(sT0)}, s94")
    e(f"s_lshl_b32 {sr(sSch)}, s94, 4")
    e(f"s_add_u32 {sr(sSch)}, {sr(sSch)}, {opts.get('t0', 7000)*16//10}")
    if opts.get("tq", 0):
        e(f"s_lshr_b32 {sr(sT0)}, {sr(sLim)}, 6")
        e(f"s_sub_i32 {sr(sT0)}, {sr(sT0)}, 171")
        e(f"s_mul_i32 {sr(sT0)}, {sr(sT0)}, {opts.get('tq')*16//10}")
        e(f"s_sub_i32 {sr(sSch)}, {sr(sSch)}, {sr(sT0)}")
    if opts.get("tw", 0):
        e(f"s_cmp_eq_u32 {sr(sW)}, {QW}")
        e(f"s_cselect_b32 {sr(sT0)}, {opts.get('tw')*16//10}, 0")
        e(f"s_add_u32 {sr(sSch)}, {sr(sSch)}, {sr(sT0)}")
    stamp(2)

    def qk(kr, qq, acc):
        for j in range(4):
            e(f"v_mfma_f32_16x16x32_bf16 {vr(acc+4*j,4)}, {ar(kr+4*j,4)}, {vr(qq,4)}, 0")
    def fold(acc, S, full):
        for k in range(0 if full else 1, 4):
            for r in range(4):
                qp = f"quad_perm:[{k},{k},{k},{k}] {DP}"
                if k == 0: e(f"v_mov_b32_dpp {vr(S+r)}, {vr(acc+4*r)} {qp}")
                else: e(f"v_add_f32_dpp {vr(S+r)}, {vr(acc+4*r+k)}, {vr(S+r if full or k > 1 else acc+4*r)} {qp}")
    def probs(S, M, L):
        for r in range(4):
            e(f"v_fma_f32 {vr(vE+r)}, {vr(S+r)}, {sr(sC)}, -{vr(M)}")
        for r in range(4):
            e(f"v_exp_f32 {vr(vE+r)}, {vr(vE+r)}")
        e(f"v_add_f32 {vr(vT0)}, {vr(vE)}, {vr(vE+1)}")
        e(f"v_add_f32 {vr(L)}, {vr(L)}, {vr(vE+2)}")
        e(f"v_add_f32 {vr(vT0)}, {vr(vT0)}, {vr(vE+3)}")
        for r in range(4):
            e(f"v_cvt_pk_bf16_f32 {vr(vE+r)}, {vr(vE+r)}, {vr(vE+r)}")
        e(f"v_add_f32 {vr(L)}, {vr(L)}, {vr(vT0)}")
        for r in range(4):
            for d in range(4):
                e(f"v_and_b32 {vr(vP+4*r+d)}, {vr(vE+r)}, {vr(vMk+d)}")
    def pv(reg, O):
        for r in range(4):
            e(f"v_mfma_f32_16x16x32_bf16 {vr(O,4)}, {vr(vP+4*r,4)}, {vr(reg+4*r,4)}, {vr(O,4)}")
    def gmax(M, op="v_max_f32"):
        for sw in ("v_permlane32_swap_b32", "v_permlane16_swap_b32"):
            e(f"v_mov_b32 {vr(vT0)}, {vr(M)}")
            e("s_nop 1")
            e(f"{sw} {vr(M)}, {vr(vT0)}")
            e("s_nop 1")
            e(f"{op} {vr(M)}, {vr(M)}, {vr(vT0)}")
    def dma_load(nt=opts.get("wont", 0) & 1, lbl=None):
        e(f"s_mov_b32 m0, {sr(sDlds)}")
        e(f"s_add_u32 {sr(sDlds)}, {sr(sDlds)}, 4096")
        e(f"buffer_load_dwordx4 {vr(vWOj)}, {sr(sWO,4)}, {sr(sDoff)} offen" + (" nt" if nt else "") + " lds")
        e(f"s_add_u32 {sr(sDoff)}, {sr(sDoff)}, 36864")
        e(f"s_cmp_ge_u32 {sr(sDoff)}, 147456")
        e(f"s_cselect_b32 {sr(sT0)}, {147456 - 128}, 0")
        e(f"s_sub_u32 {sr(sDoff)}, {sr(sDoff)}, {sr(sT0)}")
        if lbl:
            if opts.get('taud', 0): e(f"s_add_u32 {sr(sSch)}, {sr(sSch)}, {opts.get('taud', 0)*16//10}")
            g.lab(lbl)
        e(f"s_add_u32 {sr(sDt)}, {sr(sDt)}, 1")
    DMK = opts.get("dmk", 5); DMV = opts.get("dmv", 7)
    def dma_one(lbl):
        e(f"s_cmp_lt_u32 {sr(sDt)}, 36")
        e(f"s_cbranch_scc0 {lbl}")
        dma_load(lbl=lbl)
    def level(tau):
        BS = opts.get('bsh', 5) + 4
        e("s_waitcnt lgkmcnt(0)")
        e(f"s_add_u32 {sr(sSch)}, {sr(sSch)}, {tau*16//10}")
        e(f"s_lshl_b32 {sr(sNow)}, {sr(sNow)}, 4")
        e(f"s_sub_i32 {sr(sLev)}, {sr(sNow)}, {sr(sSch)}")
        if PROF == 11:
            e(f"s_lshl_b32 {sr(sT0)}, s94, 4")
            e(f"s_sub_u32 {sr(sT0)}, {sr(sNow)}, {sr(sT0)}")
            for r, T in ((82, 12000), (84, 24000), (88, 36000)):
                e(f"s_cmp_lt_u32 {sr(sT0)}, {T*16//10}")
                e(f"s_addc_u32 s{r}, s{r}, 0")
        if PROF == 3:
            n = len(g.lines)
            e(f"s_and_b32 m0, s19, 63")
            e(f"s_add_u32 s19, s19, 1")
            e(f"s_cmp_gt_u32 s19, 64")
            e(f"s_cbranch_scc1 L_tr{n}")
            e(f"v_writelane_b32 {vr(vTk)}, {sr(sLev)}, m0")
            g.lab(f"L_tr{n}")
            e(f"s_cbranch_scc0 L_ts{n}")
            e(f"v_writelane_b32 {vr(vTk+1)}, {sr(sLev)}, m0")
            g.lab(f"L_ts{n}")
        if FLV >= 0: e(f"s_mov_b32 {sr(sLev)}, {FLV}")
        else: e(f"s_ashr_i32 {sr(sLev)}, {sr(sLev)}, {BS}")
    def hook_dispatch(hooks, nm):
        e(f"s_bitcmp1_b32 {sum(1 << k for k in hooks)}, {sr(sIt)}")
        e(f"s_cbranch_scc0 L_body{nm}")
        ks = sorted(hooks)
        for n, k in enumerate(ks):
            if n < len(ks) - 1:
                e(f"s_cmp_lg_u32 {sr(sIt)}, {k}")
                e(f"s_cbranch_scc1 L_hk{nm}{n+1}")
            hooks[k]()
            if n < len(ks) - 1:
                e(f"s_branch L_body{nm}")
                g.lab(f"L_hk{nm}{n+1}")
        g.lab(f"L_body{nm}")
    def call(l): e(f"s_call_b64 {sr(sRet,2)}, {l}")
    TAUK = opts.get("tauk", opts.get("tau", 410)); TAUV = opts.get("tauv", opts.get("tau", 410))

    AH0 = opts.get("ah0", 1)
    hk = {AH0: ["L_AQ"], AH0 + 1: ["L_AK"], AH0 + 2: ["L_AV0"], AH0 + 3: ["L_AV1"]}
    assert (AH0 + 4 + 3 * opts.get('stg', 0) + 1) * U <= min(RB[i + 1] - RB[i] for i in range(3)) // 4
    if opts.get("xa", 0): hk = {AH0: ["L_AV1"]}
    def mkh(ls):
        def f():
            for l in ls:
                if l == "L_AK": e(f"s_waitcnt vmcnt({4*U})")
                call(l)
        return f
    g.lab("L_loopK")
    hook_dispatch({k: mkh(v) for k, v in hk.items()}, "K")
    for i in range(U):
        e(f"v_add_u32 {vr(vSb)}, {sr(sTi+i)}, {vr(vSa)}")
        e(f"s_mov_b32 {sr(sTi+i)}, {sr(sL)}")
        e(f"s_waitcnt vmcnt({4*(U-1)})")
        e(f"s_memrealtime {sr(sNow,2)}")
        qk(16 * i, vQ, vP)
        throttle(f"K{i}")
        e(f"s_cmp_lg_u32 {sr(sPh)}, 0")
        e(f"s_cbranch_scc1 L_Kv{i}")
        issue(True, 16 * i, sK)
        adv()
        e(f"s_cmp_lt_u32 {sr(sL)}, {sr(sLim)}")
        e(f"s_cbranch_scc1 L_Kc{i}")
        e(f"s_mov_b32 {sr(sPh)}, 1")
        e(f"s_mov_b32 {sr(sL)}, {sr(sL0)}")
        e(f"s_mov_b32 {sr(sOff)}, {sr(sOff0)}")
        e(f"s_branch L_Kc{i}")
        g.lab(f"L_Kv{i}")
        issue(False, vVb + 16 * i, sV)
        adv()
        e(f"s_add_u32 {sr(sPh)}, {sr(sPh)}, 1")
        g.lab(f"L_Kc{i}")
        fold(vP, vS, False)
        e(f"s_mov_b32 exec_lo, 0x00010001"); e(f"s_mov_b32 exec_hi, 0x00010001")
        e(f"ds_write_b128 {vr(vSb)}, {vr(vS,4)}")
        e("s_mov_b64 exec, -1")
        e(f"v_max3_f32 {vr(vM)}, {vr(vM)}, {vr(vS)}, {vr(vS+1)}")
        e(f"v_max3_f32 {vr(vM)}, {vr(vM)}, {vr(vS+2)}, {vr(vS+3)}")
        level(TAUK)
        if DMK >> i & 1: dma_one(f"L_dma{i}")
        e(f"s_cmp_lg_u32 {sr(sPh)}, {U+1}")
        e(f"s_cbranch_scc1 L_Kn{i}")
        call("L_TR")
        e(f"s_branch L_V{(i+1) % U}")
        g.lab(f"L_Kn{i}")
    e(f"s_add_u32 {sr(sIt)}, {sr(sIt)}, 1")
    e(f"s_branch L_loopK")

    def tail_setup():
        e(f"s_mul_i32 {sr(sT0)}, {sr(sW)}, {OT_STRIDE}")
        e(f"s_add_u32 {sr(sT0)}, {sr(sT0)}, {LDS_OT}")
        e(f"v_lshl_add_u32 {vr(vAw)}, {vr(vCc)}, 4, {sr(sT0)}")
        e(f"v_and_b32 {vr(vT0)}, 1, {vr(vG)}")
        e(f"v_lshl_add_u32 {vr(vAw)}, {vr(vT0)}, 3, {vr(vAw)}")
        e(f"s_lshl_b32 {sr(sT0)}, {sr(sW)}, 4")
        e(f"s_add_u32 {sr(sT0)}, {sr(sT0)}, {LDS_M}")
        e(f"v_lshl_add_u32 {vr(vAm)}, {vr(vG)}, 2, {sr(sT0)}")
        e(f"v_and_b32 {vr(vT0)}, 3, {vr(vCc)}")
        e(f"v_mul_u32_u24 {vr(vAr)}, {OT_STRIDE}, {vr(vT0)}")
        e(f"v_lshl_add_u32 {vr(vAr)}, {vr(vG)}, 4, {vr(vAr)}")
        e(f"v_add_u32 {vr(vAr)}, {LDS_OT}, {vr(vAr)}")
        e(f"v_lshlrev_b32 {vr(vAx)}, 2, {vr(vCc)}")
        e(f"v_add_u32 {vr(vAx)}, {LDS_M}, {vr(vAx)}")
    def h_arr():
        g.lab("L_ar0")
        e(f"s_cmp_lt_u32 {sr(sDt)}, 36")
        e(f"s_cbranch_scc0 L_ar1")
        dma_load()
        e("s_branch L_ar0")
        g.lab("L_ar1")
    def h_arr2():
        e(f"s_waitcnt vmcnt({4*U})")
        e(f"v_mov_b32 {vr(vT0)}, {LDS_CNT}")
        e(f"v_mov_b32 {vr(vT1)}, 1")
        e("s_mov_b64 exec, 1")
        e(f"ds_add_u32 {vr(vT0)}, {vr(vT1)}")
        e("s_mov_b64 exec, -1")
        e(f"buffer_load_dword {vr(vHf)}, {vr(vHa)}, {sr(sWS,4)}, 0 offen offset:{HF_OFF}")
    def h_t1():
        stamp(3)
        if opts.get("taut", 0): e(f"s_add_u32 {sr(sSch)}, {sr(sSch)}, {opts.get('taut')*16//10}")
        e(f"v_mov_b32 {vr(vT0)}, {LDS_CNT}")
        g.lab(f"L_wa")
        e(f"ds_read_b32 {vr(vT1)}, {vr(vT0)}")
        e("s_waitcnt lgkmcnt(0)")
        e(f"v_readfirstlane_b32 {sr(sT0)}, {vr(vT1)}")
        e("s_nop 3")
        e(f"s_cmp_lt_u32 {sr(sT0)}, 4")
        e(f"s_cbranch_scc1 L_wa")
        e(f"ds_read_b128 {vr(vS,4)}, {vr(vT0)} offset:16")
        call("L_T1")
        e(f"v_max3_f32 {vr(vT0)}, {vr(vS)}, {vr(vS+1)}, {vr(vS+2)}")
        e(f"v_max_f32 {vr(vT0)}, {vr(vT0)}, {vr(vS+3)}")
        e(f"v_sub_f32 {vr(vT1)}, {vr(vM)}, {vr(vT0)}")
        e(f"v_exp_f32 {vr(vT1)}, {vr(vT1)}")
        e(f"v_mov_b32 {vr(vM)}, {vr(vT0)}")
        e(f"v_mul_f32 {vr(vL)}, {vr(vT1)}, {vr(vL)}")
        for i in range(4):
            e(f"v_mul_f32 {vr(vO+i)}, {vr(vT1)}, {vr(vO+i)}")
        e(f"s_waitcnt vmcnt({4*U})")
        e(f"s_mov_b32 {sr(sSpin)}, 0x40000")
        g.lab("L_hc")
        e(f"v_cmp_ne_u32 vcc, {sr(sNon)}, {vr(vHf)}")
        e("s_cbranch_vccz L_hc1")
        e(f"s_sleep {SLEEP}")
        e(f"buffer_load_dword {vr(vHf)}, {vr(vHa)}, {sr(sWS,4)}, 0 offen offset:{HF_OFF} sc1")
        e(f"s_sub_u32 {sr(sSpin)}, {sr(sSpin)}, {1 if not opts.get('xq', 0) else 0x40001}")
        e("s_waitcnt vmcnt(0)")
        e("s_cbranch_scc0 L_hc")
        g.lab("L_hc1")
        stamp(4)
    HA = opts.get("ha", 6); HT = opts.get("ht", 7)
    assert 2 <= HA < HT and (HT + 1) * U <= SB - U
    pc = lambda m: bin(m & ((1 << U) - 1)).count("1")
    g.lab("L_loopV")
    hook_dispatch({HA - 1: h_arr, HA: h_arr2, HT: h_t1}, "V")
    for i in range(U):
        g.lab(f"L_V{i}")
        e(f"v_add_u32 {vr(vSb)}, {sr(sTi+i)}, {vr(vSa)}")
        e(f"ds_read_b128 {vr(vS,4)}, {vr(vSb)}")
        e(f"v_mov_b32 {vr(vSb)}, {LDS_CNT + 12}")
        e(f"v_mov_b32 {vr(vT1)}, 1")
        e("s_waitcnt lgkmcnt(0)")
        probs(vS, vM, vL)
        CE = opts.get("ce", 0)
        def claim():
            e(f"s_cmp_gt_i32 {sr(sSt)}, 0")
            e(f"s_cbranch_scc1 L_c1{i}")
            e("s_mov_b64 exec, 1")
            e(f"ds_add_rtn_u32 {vr(vT1)}, {vr(vSb)}, {vr(vT1)}")
            e("s_mov_b64 exec, -1")
            g.lab(f"L_c1{i}")
        if CE: claim()
        e(f"s_waitcnt vmcnt({4*(U-1)})")
        for r in range(U - 1, 0, -1):
            e(f"s_cmp_ge_u32 {sr(sRem)}, {r}")
            e(f"s_cbranch_scc1 L_v1{i}")
            e(f"s_waitcnt vmcnt({4*(r-1)})")
        g.lab(f"L_v1{i}")
        pv(vVb + 16 * i, vO)
        e(f"s_sub_u32 {sr(sRem)}, {sr(sRem)}, 1")
        e(f"s_cbranch_scc1 L_end")
        e(f"s_cmp_lt_u32 {sr(sRem)}, {U}")
        e(f"s_cbranch_scc1 L_nv{i}")
        e(f"s_memrealtime {sr(sNow,2)}")
        throttle(f"V{i}")
        if not CE: claim()
        else: e(f"s_cmp_gt_i32 {sr(sSt)}, 0")
        e(f"s_cbranch_scc1 L_c2{i}")
        e("s_waitcnt lgkmcnt(0)")
        e(f"v_readfirstlane_b32 {sr(sCl)}, {vr(vT1)}")
        e(f"s_add_u32 {sr(sL)}, {sr(sCl)}, {4*SB}")
        e(f"s_lshl_b32 {sr(sL)}, {sr(sL)}, 6")
        phys(sCl, sr(sDyn))
        e(f"s_cmp_ge_u32 {sr(sL)}, {sr(sLim)}")
        e(f"s_cselect_b32 {sr(sRem)}, {U-2}, {sr(sRem)}")
        e(f"s_cselect_b32 {sr(sSt)}, 1000, {sr(sSt)}")
        e(f"s_cbranch_scc1 L_nv{i}")
        g.lab(f"L_c2{i}")
        issue(False, vVb + 16 * i, sV)
        e(f"s_mov_b32 {sr(sTi+i)}, {sr(sL)}")
        e(f"s_sub_u32 {sr(sSt)}, {sr(sSt)}, 1")
        adv()
        level(TAUV)
        if DMV >> i & 1: dma_one(f"L_dmv{i}")
        g.lab(f"L_nv{i}")
    e(f"s_add_u32 {sr(sIt)}, {sr(sIt)}, 1")
    e(f"s_branch L_loopV")
    g.lab("L_end")
    stamp(5)

    NSL = opts.get("nsl", 1)
    def schedule(main, ops, per=2):
        pos = [0]; hist = []
        mpos = {}
        def emit(text, kind, wr=(), rd=(), n=1):
            e(text); hist.append((pos[0] + n - 1, kind, set(wr), set(rd))); pos[0] += n
        def need(op):
            t = 0
            if op.get("after") is not None:
                if op["after"] not in mpos: return None
                t = mpos[op["after"]] + 1 + (2 if op["kind"] == "dpp" else 0)
            for (p, k, wr, rd) in hist:
                d = None
                if k == "mfma":
                    if wr & (op["rd"] | op["wr"]): d = 8
                elif k in ("valu", "dpp", "swap", "trans"):
                    if wr & op["rd"]:
                        d = 0
                        if op["kind"] in ("dpp", "swap"): d = 2
                        elif k == "trans": d = 1
                elif k == "store":
                    if rd & op["wr"]: d = 2
                if d is not None: t = max(t, p + 1 + d)
            return t
        done = [False] * len(ops)
        mw = {}
        for i, (t_, k_, w_) in enumerate(main):
            for r in w_: mw[r] = i
        def ready(i):
            op = ops[i]
            for j in range(i):
                if not done[j]:
                    o = ops[j]
                    if (o["wr"] & (op["rd"] | op["wr"])) or (o["rd"] & op["wr"]) or (o["kind"] == "store" and op["kind"] == "store"): return None
            for r in op["rd"] | op["wr"]:
                if r in mw and mw[r] not in mpos: return None
            return need(op)
        def fill(n):
            k = 0
            while k < n:
                c = [i for i in range(len(ops)) if not done[i] and ready(i) is not None and ready(i) <= pos[0]]
                if not c:
                    w = [ready(i) - pos[0] for i in range(len(ops)) if not done[i] and ready(i) is not None]
                    if w and min(w) <= 2 and k + min(w) < n + NSL:
                        emit(f"s_nop {min(w)-1}", "nop", n=min(w)); k += min(w); n = max(n, k + 1)
                        continue
                    break
                i = c[0]
                emit(ops[i]["text"], ops[i]["kind"], ops[i]["wr"], ops[i]["rd"], ops[i].get("n", 1)); done[i] = True
                k += 2 if ops[i]["kind"] == "trans" else 1
        for i, (text, kind, wr) in enumerate(main):
            mpos[i] = pos[0]
            emit(text, kind, wr)
            if kind in ("mfma", "wait0"): fill(per)
        stamp9(2)
        while not all(done):
            fill(1000)
            if all(done): break
            c = [ready(i) for i in range(len(ops)) if not done[i] and ready(i) is not None]
            w = min(c) - pos[0]
            assert w > 0
            emit(f"s_nop {w-1}", "nop", n=w)
    def T2():
        vAcc, vLr, vPk, t0, t1, Out = 64, 136, 56, 48, 49, 16
        if PROF == 3:
            e(f"s_lshl_b32 s88, s2, 10")
            e(f"s_add_u32 s88, s88, 0x300000")
            e(f"v_lshlrev_b32 {vr(vV)}, 1, v0")
            e(f"buffer_store_short {vr(vTk)}, {vr(vV)}, {sr(sWS,4)}, s88 offen")
            e(f"buffer_store_short {vr(vTk+1)}, {vr(vV)}, {sr(sWS,4)}, s88 offen offset:512")
        e(f"ds_write_b32 {vr(vAm)}, {vr(vL)}")
        e(f"v_cmp_eq_u32 vcc, 16, {vr(vLane)}")
        e("s_nop 4")
        for d in range(2):
            e(f"v_cvt_pk_bf16_f32 {vr(vPk+d)}, {vr(vO+2*d)}, {vr(vO+2*d+1)}")
        e(f"ds_write_b64 {vr(vAw)}, {vr(vPk,2)}")
        e("s_waitcnt lgkmcnt(0)")
        e("s_barrier")
        stamp9(1)
        for j in range(4):
            e(f"ds_read_b128 {ar(4*j,4)}, {vr(vAr)} offset:{64*j}")
        e(f"ds_read_b32 {vr(vLr)}, {vr(vAx)}")
        nrd = 5
        main = []; ops = []
        TO = [8, 0, 1, 2, 3, 4, 5, 6, 7]
        def op(text, rd, wr, kind="valu", **kw):
            ops.append(dict(text=text, rd=set(rd), wr=set(wr), kind=kind, **kw))
        for n, t in enumerate(TO):
            for j in range(4):
                if n == 0:
                    main.append((f"s_waitcnt lgkmcnt({nrd - j - 1})", "wait", ()))
                if n == 1 and j == 0:
                    main.append((f"s_waitcnt lgkmcnt(0)", "wait", ())); mlw = len(main) - 1
                a = vAcc + 4 * t
                cc = "0" if j == 0 else vr(a, 4)
                main.append((f"v_mfma_f32_16x16x32_bf16 {vr(a,4)}, {ar(4*j,4)}, {ar(aW+4*(t*4+j),4)}, {cc}", "mfma", range(a, a + 4)))
        for src, dst, rot in ((vLr, t0, 8), (t0, t1, 4), (t1, t0, 2), (t0, t1, 1)):
            op(f"v_add_f32_dpp {vr(dst)}, {vr(src)}, {vr(src)} row_ror:{rot} {DP}", [src], [dst], "dpp", after=mlw)
        op(f"v_cndmask_b32 {vr(Out+2)}, {vr(t1)}, {vr(vM)}, vcc", [t1], [Out + 2])
        def comb(t):
            a = vAcc + 4 * t; o = Out + (t >> 2)
            op(f"v_add_f32 {vr(a)}, {vr(a)}, {vr(a+1)}", [a, a + 1], [a])
            op(f"v_add_f32 {vr(a+2)}, {vr(a+2)}, {vr(a+3)}", [a + 2, a + 3], [a + 2])
            op(f"v_add_f32_dpp {vr(o)}, {vr(a)}, {vr(a+2)} quad_perm:[0,1,2,3] row_mask:{1 << (t & 3)} bank_mask:0xf", [a, a + 2], [o], "dpp")
            if t in (3, 7, 8): op(f"v_min_u32 {vr(o)}, -2, {vr(o)}", [o], [o])
        comb(8)
        op(f"buffer_store_dword {vr(Out+2)}, {vr(vSt1)}, {sr(sWS,4)}, 0 offen sc1", [Out + 2], [], "store")
        for t in range(8): comb(t)
        op(f"buffer_store_dwordx2 {vr(Out,2)}, {vr(vSt0)}, {sr(sWS,4)}, 0 offen sc1", [Out, Out + 1], [], "store")
        schedule(main, ops, opts.get("per", 2))
    g.lab("L_T2")
    T2()
    e(f"s_cmp_eq_u32 {sr(sIsH)}, 1")
    e("s_cbranch_scc1 L_H2")
    stamp(6)
    if PROF: e("s_branch L_done")
    else: e("s_endpgm")

    g.lab("L_H")
    call("L_AQ")
    e("s_waitcnt vmcnt(0)")
    call("L_AK"); call("L_AV0"); call("L_AV1")
    e(f"s_sub_u32 {sr(sT0)}, s2, 192")
    e(f"s_mul_i32 {sr(sT1)}, {sr(sT0)}, {3*YROW}")
    e(f"s_add_u32 {sr(sT1)}, {sr(sT1)}, {Y_OFF}")
    e(f"v_lshlrev_b32 {vr(vT0)}, 4, v0")
    for i in range(4):
        e(f"v_mov_b32 {vr(vTmp+i)}, -1")
    e(f"v_add_u32 {vr(vT1)}, 4096, {vr(vT0)}")
    e(f"v_cmp_gt_u32 vcc, {3*YROW}, {vr(vT1)}")
    e(f"v_mov_b32 {vr(vSb)}, {OOB}")
    e(f"buffer_store_dwordx4 {vr(vTmp,4)}, {vr(vT0)}, {sr(sWS,4)}, {sr(sT1)} offen sc1")
    e(f"v_cndmask_b32 {vr(vT1)}, {vr(vSb)}, {vr(vT1)}, vcc")
    e(f"buffer_store_dwordx4 {vr(vTmp,4)}, {vr(vT1)}, {sr(sWS,4)}, {sr(sT1)} offen sc1")
    e(f"s_cmp_lg_u32 {sr(sT0)}, 0")
    e("s_cbranch_scc1 L_hcl")
    e(f"s_cmp_eq_u32 {sr(sW)}, 3")
    e("s_cbranch_scc1 L_hcl")
    e(f"s_mov_b32 {sr(sT1)}, {ML_OFF}")
    e(f"buffer_store_dwordx4 {vr(vTmp,4)}, {vr(vT0)}, {sr(sWS,4)}, {sr(sT1)} offen sc1")
    g.lab("L_hcl")
    if opts.get("xq", 0) == 1: e("s_branch L_done")
    if opts.get("pf", 1):
        e(f"s_bfe_u32 {sr(sT0)}, s2, 0x10003")
        e(f"s_mul_i32 {sr(sT0)}, {sr(sT0)}, 73728")
        e(f"s_add_u32 {sr(sT0)}, {sr(sT0)}, {sr(sWoO)}")
        add64(sK, 26, sr(sT0))
        e(f"s_mov_b32 {sr(sK+2)}, 73728")
        e(f"s_mov_b32 {sr(sT1)}, 0")
        g.lab("L_hpf")
        e(f"buffer_load_dwordx4 {vr(vVb,4)}, {vr(vT0)}, {sr(sK,4)}, {sr(sT1)} offen")
        e(f"s_waitcnt vmcnt({opts.get('pfd', 4)})")
        e(f"s_add_u32 {sr(sT1)}, {sr(sT1)}, 4096")
        e(f"s_cmp_lt_u32 {sr(sT1)}, 73728")
        e("s_cbranch_scc1 L_hpf")
    e(f"s_mov_b32 {sr(sDt)}, 0")
    g.lab("L_hdma")
    dma_load(opts.get("wont", 0) & 2)
    e(f"s_waitcnt vmcnt({opts.get('hd', 2)})")
    e(f"s_cmp_lt_u32 {sr(sDt)}, 36")
    e("s_cbranch_scc1 L_hdma")
    if opts.get("xq", 0) == 2: e("s_branch L_done")
    vFa, vFb, vDa, vF0, vFn, vD0 = 96, 97, 98, 100, 104, 108
    e(f"s_lshr_b32 {sr(sT0)}, {sr(sBase)}, 1")
    e(f"s_and_b32 {sr(sT1)}, {sr(sBase)}, 1")
    e(f"s_lshl4_add_u32 {sr(sT0)}, {sr(sT0)}, {sr(sT1)}")
    e(f"s_lshl_b32 {sr(sT2)}, {sr(sT0)}, 6")
    e(f"s_add_u32 {sr(sT2)}, {sr(sT2)}, {AF_OFF}")
    e(f"v_and_b32 {vr(vT0)}, 7, {vr(vLane)}")
    e(f"v_lshl_add_u32 {vr(vFa)}, {vr(vT0)}, 7, {sr(sT2)}")
    e(f"v_lshrrev_b32 {vr(vT0)}, 5, v0")
    e(f"v_lshl_add_u32 {vr(vFb)}, {vr(vT0)}, 7, {sr(sT2)}")
    e(f"s_lshl_b32 {sr(sT2)}, {sr(sT0)}, 9")
    e(f"s_add_u32 {sr(sT2)}, {sr(sT2)}, {AR_OFF}")
    e(f"v_lshl_add_u32 {vr(vDa)}, {vr(vT0)}, 10, {sr(sT2)}")
    e(f"v_and_b32 {vr(vT0)}, 31, {vr(vLane)}")
    e(f"v_lshl_add_u32 {vr(vDa)}, {vr(vT0)}, 4, {vr(vDa)}")
    e("s_waitcnt vmcnt(0)")
    e("s_barrier")
    call("L_T1")
    e(f"s_mov_b32 {sr(sSpin)}, 0x40000")
    g.lab("L_hp")
    for r, a in ((vF0, vFa), (vFn, vFb), (vD0, vDa)):
        e(f"buffer_load_dwordx4 {vr(r,4)}, {vr(a)}, {sr(sWS,4)}, 0 offen sc1")
    e(f"s_sub_u32 {sr(sSpin)}, {sr(sSpin)}, 1")
    e("s_waitcnt vmcnt(0)")
    e("s_cbranch_scc1 L_hp1")
    for r in (vF0, vFn, vD0):
        for i in range(2):
            e(f"v_bitop3_b32 {vr(r+2+i)}, {vr(r+i)}, {vr(r+2+i)}, {sr(sNon)} bitop3:0x96")
    e(f"v_or3_b32 {vr(vT0)}, {vr(vF0+2)}, {vr(vF0+3)}, {vr(vFn+2)}")
    e(f"v_or3_b32 {vr(vT1)}, {vr(vFn+3)}, {vr(vD0+2)}, {vr(vD0+3)}")
    e(f"v_or_b32 {vr(vT0)}, {vr(vT0)}, {vr(vT1)}")
    e(f"v_cmp_ne_u32 vcc, 0, {vr(vT0)}")
    e("s_cbranch_vccz L_hp1")
    e(f"s_sleep {opts.get('hsl', 64)}")
    e("s_branch L_hp")
    g.lab("L_hp1")
    for src, dst, rot in ((vF0, vM, 4), (vM, vT1, 2), (vT1, vM, 1)):
        e(f"v_max_f32_dpp {vr(dst)}, {vr(src)}, {vr(src)} row_ror:{rot} {DP}")
        e("s_nop 1")
    e(f"v_sub_f32 {vr(vT1)}, {vr(vF0)}, {vr(vM)}")
    e(f"v_sub_f32 {vr(vFn)}, {vr(vFn)}, {vr(vM)}")
    e(f"v_exp_f32 {vr(vT1)}, {vr(vT1)}")
    e(f"v_exp_f32 {vr(vFn)}, {vr(vFn)}")
    for i in range(2):
        e(f"v_lshlrev_b32 {vr(vO+2*i)}, 16, {vr(vD0+i)}")
        e(f"v_and_b32 {vr(vO+2*i+1)}, 0xffff0000, {vr(vD0+i)}")
    e(f"v_mul_f32 {vr(vT1)}, {vr(vT1)}, {vr(vF0+1)}")
    for i in range(4):
        e(f"v_mul_f32 {vr(vO+i)}, {vr(vFn)}, {vr(vO+i)}")
    for src, dst, rot in ((vT1, vL, 4), (vL, vT1, 2), (vT1, vL, 1)):
        e(f"v_add_f32_dpp {vr(dst)}, {vr(src)}, {vr(src)} row_ror:{rot} {DP}")
        e("s_nop 1")
    e(f"v_mul_f32 {vr(vL)}, 0x3d800000, {vr(vL)}")
    for i in range(4):
        e(f"v_mov_b32 {vr(vO2+i)}, {vr(vO+i)}")
    e("s_nop 1")
    for i in range(4):
        e(f"v_permlane32_swap_b32 {vr(vO+i)}, {vr(vO2+i)}")
    e("s_nop 1")
    for i in range(4):
        e(f"v_add_f32 {vr(vO+i)}, {vr(vO+i)}, {vr(vO2+i)}")
    if opts.get("xq", 0) == 4: e("s_branch L_done")
    e("s_branch L_T2")
    g.lab("L_H2")
    e("s_waitcnt vmcnt(0)")
    e("s_barrier")
    e(f"s_cmp_lg_u32 {sr(sW)}, 0")
    e("s_cbranch_scc1 L_H3")
    e(f"s_lshl_b32 {sr(sT0)}, s2, 2")
    e(f"s_add_u32 {sr(sT0)}, {sr(sT0)}, {HF_OFF - 192*4}")
    e(f"v_mov_b32 {vr(vEp)}, {sr(sNon)}")
    e(f"v_lshlrev_b32 {vr(vT0)}, 2, {vr(vLane)}")
    e("s_mov_b64 exec, 1")
    e(f"buffer_store_dword {vr(vEp)}, off, {sr(sWS,4)}, {sr(sT0)} sc1")
    e("s_mov_b64 exec, -1")
    e(f"s_mov_b32 {sr(sSpin)}, 0x40000")
    g.lab("L_hf")
    e(f"s_sleep {opts.get('hsf', 100)}")
    e(f"buffer_load_dword {vr(vEp+1)}, {vr(vT0)}, {sr(sWS,4)}, 0 offen offset:{HF_OFF} sc1")
    e(f"s_sub_u32 {sr(sSpin)}, {sr(sSpin)}, 1")
    e("s_waitcnt vmcnt(0)")
    e("s_cbranch_scc1 L_H3")
    e(f"v_cmp_ne_u32 vcc, {sr(sNon)}, {vr(vEp+1)}")
    e("s_cbranch_vccnz L_hf")
    e(f"s_cmp_lg_u32 s2, 255")
    e("s_cbranch_scc1 L_H3")
    e(f"v_mov_b32 {vr(vEp+1)}, {sr(sE)}")
    e("s_mov_b64 exec, 1")
    e(f"buffer_store_dword {vr(vEp+1)}, off, {sr(sWS,4)}, 0 sc1")
    e("s_mov_b64 exec, -1")
    g.lab("L_H3")
    e("s_barrier")
    if opts.get("xq", 0) == 6: e("s_branch L_done")
    e(f"s_sub_u32 {sr(sCi)}, s2, {192 - 8}")
    e(f"s_cmp_ge_u32 {sr(sCi)}, 36")
    e("s_cbranch_scc1 L_cons")
    g.lab("L_consB")
    if opts.get("xq", 0) == 7: e("s_branch L_done")
    e(f"s_sub_u32 {sr(sCi)}, s2, 192")
    e(f"s_cmp_ge_u32 {sr(sCi)}, 36")
    e("s_cbranch_scc1 L_done")
    g.lab("L_cons")
    sP, sCb, sSl, sRow = sT0, sT1, sT2, sT3
    e(f"s_cmp_lt_u32 {sr(sCi)}, 36")
    e(f"s_cselect_b32 {sr(sP)}, 1, 0")
    e(f"s_cselect_b32 {sr(sRow)}, 0, 36")
    e(f"s_sub_u32 {sr(sSl)}, {sr(sCi)}, {sr(sRow)}")
    e(f"s_cmp_ge_u32 {sr(sSl)}, 18")
    e(f"s_cselect_b32 {sr(sCb)}, 1, 0")
    e(f"s_cselect_b32 {sr(sRow)}, 18, 0")
    e(f"s_sub_u32 {sr(sSl)}, {sr(sSl)}, {sr(sRow)}")
    e(f"s_lshl_b32 {sr(sRow)}, {sr(sCb)}, 5")
    e(f"v_lshrrev_b32 {vr(vT0)}, 3, v0")
    e(f"v_add_u32 {vr(vT0)}, {sr(sRow)}, {vr(vT0)}")
    e(f"s_lshl1_add_u32 {sr(sRow)}, {sr(sP)}, 1")
    e(f"v_mul_u32_u24 {vr(vT0)}, {sr(sRow)}, {vr(vT0)}")
    e(f"s_cmp_eq_u32 {sr(sP)}, 0")
    e(f"s_cselect_b32 {sr(sRow)}, 192, 0")
    e(f"s_cselect_b32 {sr(sWoff)}, 0, 2")
    e(f"v_add_u32 {vr(vT0)}, {sr(sRow)}, {vr(vT0)}")
    e(f"v_mul_u32_u24 {vr(vYo)}, {YROW}, {vr(vT0)}")
    e(f"v_and_b32 {vr(vT1)}, 7, v0")
    e(f"v_lshl_add_u32 {vr(vYo)}, {vr(vT1)}, 4, {vr(vYo)}")
    e(f"s_lshl_b32 {sr(sRow)}, {sr(sSl)}, 7")
    e(f"s_add_u32 {sr(sRow)}, {sr(sRow)}, {Y_OFF}")
    e(f"v_add_u32 {vr(vYo)}, {sr(sRow)}, {vr(vYo)}")
    e(f"v_and_b32 {vr(vMlo)}, 3, v0")
    e(f"v_cmp_ne_u32 vcc, 3, {vr(vMlo)}")
    e(f"v_min_u32 {vr(vMlo)}, {sr(sWoff)}, {vr(vMlo)}")
    e(f"v_add_u32 {vr(vMlo)}, {vr(vMlo)}, {vr(vT0)}")
    e(f"v_cndmask_b32 {vr(vWm)}, 0, 1.0, vcc")
    e(f"v_lshlrev_b32 {vr(vMlo)}, 4, {vr(vMlo)}")
    e(f"v_add_u32 {vr(vMlo)}, {ML_OFF}, {vr(vMlo)}")
    e(f"v_and_b32 {vr(vT0)}, 1, {vr(vG)}")
    e(f"v_lshlrev_b32 {vr(vT0)}, 1, {vr(vT0)}")
    e(f"v_lshrrev_b32 {vr(vCw)}, 1, {vr(vG)}")
    e(f"v_or_b32 {vr(vT0)}, {vr(vT0)}, {vr(vCw)}")
    e(f"v_lshl_add_u32 {vr(vT0)}, {vr(vT1)}, 2, {vr(vT0)}")
    e(f"s_lshl_b32 {sr(sWoff)}, {sr(sP)}, 10")
    e(f"s_add_u32 {sr(sWoff)}, {sr(sWoff)}, {LDS_SC}")
    e(f"s_lshl_b32 {sr(sRow)}, {sr(sW)}, 7")
    e(f"s_add_u32 {sr(sRow)}, {sr(sRow)}, {sr(sWoff)}")
    e(f"v_lshl_add_u32 {vr(vCw)}, {vr(vT0)}, 2, {sr(sRow)}")
    e(f"v_lshl_add_u32 {vr(vCr)}, v0, 2, {sr(sWoff)}")
    e(f"s_mul_i32 {sr(sCb)}, {sr(sCb)}, 1152")
    e(f"s_mul_i32 {sr(sP)}, {sr(sP)}, 576")
    e(f"s_add_u32 {sr(sCb)}, {sr(sCb)}, {sr(sP)}")
    e(f"s_lshr_b32 {sr(sP)}, {sr(sSl)}, 2")
    e(f"s_lshl_b32 {sr(sP)}, {sr(sP)}, 4")
    e(f"s_and_b32 {sr(sRow)}, {sr(sSl)}, 3")
    e(f"s_lshl_b32 {sr(sRow)}, {sr(sRow)}, 6")
    e(f"s_add_u32 {sr(sP)}, {sr(sP)}, {sr(sRow)}")
    e(f"s_lshl_b32 {sr(sRow)}, {sr(sSl)}, 5")
    e(f"v_and_b32 {vr(vOa)}, 1, v0")
    e(f"v_lshlrev_b32 {vr(vOa)}, 8, {vr(vOa)}")
    e(f"v_lshrrev_b32 {vr(vT0)}, 1, v0")
    e(f"v_add_u32 {vr(vOa)}, {vr(vOa)}, {vr(vT0)}")
    e(f"s_cmp_lt_u32 {sr(sSl)}, 16")
    e(f"s_cselect_b32 {sr(sP)}, {sr(sP)}, {sr(sRow)}")
    e(f"s_cselect_b64 vcc, -1, 0")
    e(f"s_add_u32 {sr(sCb)}, {sr(sCb)}, {sr(sP)}")
    e(f"v_cndmask_b32 {vr(vOa)}, v0, {vr(vOa)}, vcc")
    e(f"v_add_u32 {vr(vOa)}, {sr(sCb)}, {vr(vOa)}")
    e(f"v_lshlrev_b32 {vr(vOa)}, 1, {vr(vOa)}")
    vMx, vRes, vWt = 48, 40, 56
    vML, vY, vZc = 36, 64, 80
    e(f"s_mov_b32 {sr(sSpin)}, 0x100000")
    e(f"s_movk_i32 {sr(sWoff)}, {YROW*2}")
    e(f"s_cmp_ge_u32 {sr(sCi)}, 36")
    e("s_cbranch_scc1 L_finA")
    g.lab("L_pollc")
    e(f"buffer_load_dword {vr(vML)}, {vr(vMlo)}, {sr(sWS,4)}, 0 offen sc1")
    e(f"s_sub_u32 {sr(sSpin)}, {sr(sSpin)}, 1")
    e("s_waitcnt vmcnt(0)")
    e("s_cbranch_scc1 L_pollc_done")
    e(f"v_cmp_ne_u32 vcc, -1, {vr(vML)}")
    e(f"s_bcnt1_i32_b64 {sr(sT2)}, vcc")
    e(f"s_cmp_ge_u32 {sr(sT2)}, {opts.get('pth', 1)}")
    e("s_cbranch_scc1 L_pollc_done")
    if opts.get("csl", 8): e(f"s_sleep {opts.get('csl', 8)}")
    e("s_branch L_pollc")
    g.lab("L_pollc_done")
    e(f"s_mov_b32 {sr(sSpin)}, 0x100000")
    def consumer(ns, nm):
        sMask = 16
        for i in range(ns + 1):
            e(f"s_mov_b64 {sr(sMask+2*i,2)}, -1")
        g.lab(f"L_polld{nm}")
        for i in range(ns + 1):
            e(f"s_mov_b64 exec, {sr(sMask+2*i,2)}")
            e(f"s_cbranch_execz L_pd{nm}{i}")
            if i == ns:
                e(f"buffer_load_dwordx2 {vr(vML,2)}, {vr(vMlo)}, {sr(sWS,4)}, 0 offen sc1")
            elif i < 2:
                e(f"buffer_load_dwordx4 {vr(vY+4*i,4)}, {vr(vYo)}, {sr(sWS,4)}, 0 offen offset:{YROW*i} sc1")
            else:
                e(f"buffer_load_dwordx4 {vr(vY+4*i,4)}, {vr(vYo)}, {sr(sWS,4)}, {sr(sWoff)} offen offset:{YROW*(i-2)} sc1")
            g.lab(f"L_pd{nm}{i}")
        e("s_mov_b64 exec, -1")
        e("s_waitcnt vmcnt(0)")
        e(f"v_max_u32 {vr(vMx+ns)}, {vr(vML)}, {vr(vML+1)}")
        for i in range(ns):
            e(f"v_max3_u32 {vr(vMx+i)}, {vr(vY+4*i)}, {vr(vY+4*i+1)}, {vr(vY+4*i+2)}")
            e(f"v_max_u32 {vr(vMx+i)}, {vr(vMx+i)}, {vr(vY+4*i+3)}")
        if ns == 3:
            e(f"v_max3_u32 {vr(vMx+5)}, {vr(vMx)}, {vr(vMx+1)}, {vr(vMx+3)}")
            e(f"v_max_u32 {vr(vMx+5)}, {vr(vMx+5)}, {vr(vMx+2)}")
        else:
            e(f"v_max_u32 {vr(vMx+5)}, {vr(vMx)}, {vr(vMx+1)}")
        e(f"v_cmp_eq_u32 vcc, -1, {vr(vMx+5)}")
        e(f"s_cbranch_vccz L_polld{nm}_done")
        for i in range(ns + 1):
            e(f"v_cmp_eq_u32 {sr(sMask+2*i,2)}, -1, {vr(vMx+i)}")
        e(f"s_sub_u32 {sr(sSpin)}, {sr(sSpin)}, 1")
        e(f"s_cbranch_scc1 L_polld{nm}_done")
        if ns == 1: e(f"s_sleep {SLEEP}")
        e(f"s_branch L_polld{nm}")
        g.lab(f"L_polld{nm}_done")
        if ns == 1:
            e(f"v_rcp_f32 {vr(vMx)}, {vr(vML+1)}")
            e("s_nop 0")
            for k in range(4):
                e(f"v_mul_f32 {vr(vZc+k)}, {vr(vMx)}, {vr(vY+k)}")
            return
        stamp9(4)
        e(f"v_max_f32_dpp {vr(vMx)}, {vr(vML)}, {vr(vML)} quad_perm:[1,0,3,2] {DP}")
        e(f"v_mul_f32 {vr(vML+1)}, {vr(vWm)}, {vr(vML+1)}")
        e("s_nop 0")
        e(f"v_max_f32_dpp {vr(vWt)}, {vr(vMx)}, {vr(vMx)} quad_perm:[2,3,0,1] {DP}")
        e(f"v_sub_f32 {vr(vMx)}, {vr(vML)}, {vr(vWt)}")
        e(f"v_exp_f32 {vr(vMx)}, {vr(vMx)}")
        e("s_nop 0")
        e(f"v_mul_f32 {vr(vMx+1)}, {vr(vMx)}, {vr(vML+1)}")
        for k in range(2):
            e(f"v_mul_f32_dpp {vr(vZc+k)}, {vr(vMx)}, {vr(vY+k)} quad_perm:[0,0,0,0] {DP}")
        e(f"v_add_f32_dpp {vr(vMx+2)}, {vr(vMx+1)}, {vr(vMx+1)} quad_perm:[1,0,3,2] {DP}")
        for k in range(2, 4):
            e(f"v_mul_f32_dpp {vr(vZc+k)}, {vr(vMx)}, {vr(vY+k)} quad_perm:[0,0,0,0] {DP}")
        e(f"v_add_f32_dpp {vr(vWt)}, {vr(vMx+2)}, {vr(vMx+2)} quad_perm:[2,3,0,1] {DP}")
        e(f"v_rcp_f32 {vr(vWt)}, {vr(vWt)}")
        for i in range(1, ns):
            for k in range(4):
                e(f"v_fmac_f32_dpp {vr(vZc+k)}, {vr(vMx)}, {vr(vY+4*i+k)} quad_perm:[{i},{i},{i},{i}] {DP}")
        for k in range(4):
            e(f"v_mul_f32 {vr(vZc+k)}, {vr(vWt)}, {vr(vZc+k)}")
    consumer(3, "B")
    g.lab("L_fin2")
    for k in range(4):
        e(f"v_add_f32_dpp {vr(vRes+k)}, {vr(vZc+k)}, {vr(vZc+k)} row_ror:8 {DP}")
    e(f"v_permlane32_swap_b32 {vr(vRes)}, {vr(vRes+1)}")
    e("s_nop 0")
    e(f"v_permlane32_swap_b32 {vr(vRes+2)}, {vr(vRes+3)}")
    e(f"v_add_f32 {vr(vRes)}, {vr(vRes)}, {vr(vRes+1)}")
    e(f"v_add_f32 {vr(vRes+2)}, {vr(vRes+2)}, {vr(vRes+3)}")
    e("s_nop 1")
    e(f"v_permlane16_swap_b32 {vr(vRes)}, {vr(vRes+2)}")
    e(f"v_add_f32 {vr(vRes)}, {vr(vRes)}, {vr(vRes+2)}")
    e(f"ds_write_b32 {vr(vCw)}, {vr(vRes)}")
    e(f"s_cmp_lg_u32 {sr(sW)}, 0")
    e("s_mov_b32 exec_hi, 0")
    e("s_waitcnt lgkmcnt(0)")
    e("s_barrier")
    stamp9(6)
    e("s_cbranch_scc1 L_done0")
    for w in range(4):
        e(f"ds_read_b32 {vr(vRes+w)}, {vr(vCr)} offset:{128*w}")
    e("s_waitcnt lgkmcnt(0)")
    e(f"v_add_f32 {vr(vRes)}, {vr(vRes)}, {vr(vRes+1)}")
    e(f"v_add_f32 {vr(vRes+2)}, {vr(vRes+2)}, {vr(vRes+3)}")
    e(f"v_add_f32 {vr(vRes)}, {vr(vRes)}, {vr(vRes+2)}")
    e(f"v_cvt_pk_bf16_f32 {vr(vRes)}, {vr(vRes)}, {vr(vRes)}")
    e(f"buffer_store_short {vr(vRes)}, {vr(vOa)}, {sr(sOut,4)}, 0 offen")
    g.lab("L_done0")
    e("s_mov_b64 exec, -1")
    e(f"s_cmp_ge_u32 {sr(sCi)}, 36")
    e("s_cbranch_scc1 L_consB")
    g.lab("L_done")
    if PROF:
        e("s_waitcnt vmcnt(0)")
        stamp(7)
        e("s_getreg_b32 s96, hwreg(HW_REG_XCC_ID)")
        e("s_getreg_b32 s97, hwreg(HW_REG_HW_ID)")
        e("s_waitcnt lgkmcnt(0)")
        e(f"s_lshl_b32 {sr(sT0)}, s2, 2")
        e(f"s_add_u32 {sr(sT0)}, {sr(sT0)}, {sr(sW)}")
        e(f"s_lshl_b32 {sr(sT0)}, {sr(sT0)}, 6")
        e(f"s_add_u32 {sr(sT0)}, {sr(sT0)}, 0x200000")
        e(f"v_mov_b32 v20, {sr(sT0)}")
        for i in range(8):
            e(f"v_mov_b32 v{24+i}, s{80+2*i}")
        e("v_mov_b32 v32, s96")
        e("v_mov_b32 v33, s97")
        e("s_mov_b64 exec, 1")
        e(f"buffer_store_dwordx4 v[24:27], v20, {sr(sWS,4)}, 0 offen")
        e(f"buffer_store_dwordx4 v[28:31], v20, {sr(sWS,4)}, 0 offen offset:16")
        e(f"buffer_store_dwordx2 v[32:33], v20, {sr(sWS,4)}, 0 offen offset:32")
    g.lab("L_exit")
    e("s_endpgm")
    g.lab("L_finA")
    consumer(1, "A")
    e("s_branch L_fin2")

    ret = lambda: e(f"s_setpc_b64 {sr(sRet,2)}")
    g.lab("L_AQ")
    qloads(2, sQa, None, QSC)
    ret()
    g.lab("L_AK")
    qget(2, sQa, vQA, "A")
    e("s_nop 1")
    X = [vP, 72, vQl, vQl + 16]
    for n in range(4): qk(aA + 16 * n, vQA, X[n])
    for n in range(4): fold(X[n], vSA + 4 * n, True)
    e(f"v_max3_f32 {vr(vM2)}, {vr(vSA)}, {vr(vSA+1)}, {vr(vSA+2)}")
    for i in range(3, 15, 2):
        e(f"v_max3_f32 {vr(vM2)}, {vr(vM2)}, {vr(vSA+i)}, {vr(vSA+i+1)}")
    e(f"v_max_f32 {vr(vM2)}, {vr(vM2)}, {vr(vSA+15)}")
    gmax(vM2)
    e(f"v_mul_f32 {vr(vM2)}, {sr(sC)}, {vr(vM2)}")
    ret()
    g.lab(f"L_AV0")
    for n in range(4):
        if n == 2:
            ret()
            g.lab(f"L_AV1")
        probs(vSA + 4 * n, vM2, vL2)
        e("s_nop 1")
        pv(vVb + 16 * n, vO2)
    vAa, vAb, vPm, vPo = vSA, vSA + 1, vSA + 4, vQl
    e(f"v_lshlrev_b32 {vr(vAa)}, 4, v0")
    e(f"v_add_u32 {vr(vAa)}, {LDS_OT}, {vr(vAa)}")
    e(f"s_lshl4_add_u32 {sr(sT0)}, {sr(sW)}, {LDS_M}")
    e(f"v_and_b32 {vr(vAb)}, 8, {vr(vCc)}")
    e(f"v_add_u32 {vr(vAb)}, {sr(sT0)}, {vr(vAb)}")
    gmax(vL2, "v_add_f32")
    e(f"ds_write_b128 {vr(vAa)}, {vr(vO2,4)}")
    e(f"ds_write_b64 {vr(vAb)}, {vr(vM2,2)}")
    e(f"v_mov_b32 {vr(vAa)}, {LDS_CNT + 4}")
    e(f"v_mov_b32 {vr(vAb)}, 1")
    e("s_mov_b64 exec, 1")
    e("s_waitcnt lgkmcnt(0)")
    e(f"ds_add_rtn_u32 {vr(vAb)}, {vr(vAa)}, {vr(vAb)}")
    e("s_mov_b64 exec, -1")
    tail_setup()
    e("s_waitcnt lgkmcnt(0)")
    e(f"v_readfirstlane_b32 {sr(sT0)}, {vr(vAb)}")
    e(f"v_lshlrev_b32 {vr(vAa)}, 4, {vr(vLane)}")
    e(f"v_lshrrev_b32 {vr(vT1)}, 5, {vr(vLane)}")
    e(f"v_add_u32 {vr(vT0)}, {LDS_OT}, {vr(vAa)}")
    e(f"v_lshlrev_b32 {vr(vAb)}, 3, {vr(vT1)}")
    e(f"s_cmp_eq_u32 {sr(sT0)}, 3")
    e("s_cbranch_scc1 L_AM")
    ret()
    g.lab("L_AM")
    e(f"v_add_u32 {vr(vAb)}, {LDS_M}, {vr(vAb)}")
    for w in range(4):
        e(f"ds_read_b64 {vr(vPm+2*w,2)}, {vr(vAb)} offset:{16*w}")
    for w in range(4):
        e(f"ds_read_b128 {vr(vPo+4*w,4)}, {vr(vT0)} offset:{1024*w}")
    e(f"v_lshlrev_b32 {vr(vAb)}, 4, {vr(vCc)}")
    e(f"v_lshl_add_u32 {vr(vAb)}, {vr(vT1)}, 6, {vr(vAb)}")
    e(f"s_lshl_b32 {sr(sT0)}, {sr(sAr)}, 10")
    e(f"s_add_u32 {sr(sT0)}, {sr(sT0)}, {AR_OFF}")
    e(f"s_lshl_b32 {sr(sT1)}, {sr(sAr)}, 7")
    e(f"s_add_u32 {sr(sT1)}, {sr(sT1)}, {AF_OFF}")
    e("s_waitcnt lgkmcnt(4)")
    e(f"v_max3_f32 {vr(vE)}, {vr(vPm)}, {vr(vPm+2)}, {vr(vPm+4)}")
    e(f"v_max_f32 {vr(vE)}, {vr(vE)}, {vr(vPm+6)}")
    for w in range(4):
        e(f"v_sub_f32 {vr(vPm+2*w)}, {vr(vPm+2*w)}, {vr(vE)}")
    for w in range(4):
        e(f"v_exp_f32 {vr(vPm+2*w)}, {vr(vPm+2*w)}")
    e(f"v_xor_b32 {vr(vE+2)}, {sr(sNon)}, {vr(vE)}")
    e(f"v_mul_f32 {vr(vE+1)}, {vr(vPm)}, {vr(vPm+1)}")
    for w in range(1, 4):
        e(f"v_fmac_f32 {vr(vE+1)}, {vr(vPm+2*w)}, {vr(vPm+2*w+1)}")
    e("s_waitcnt lgkmcnt(0)")
    for i in range(4):
        e(f"v_mul_f32 {vr(vPo+i)}, {vr(vPm)}, {vr(vPo+i)}")
    e(f"v_xor_b32 {vr(vE+3)}, {sr(sNon)}, {vr(vE+1)}")
    for w in range(1, 4):
        for i in range(4):
            e(f"v_fmac_f32 {vr(vPo+i)}, {vr(vPm+2*w)}, {vr(vPo+4*w+i)}")
    for d in range(2):
        e(f"v_cvt_pk_bf16_f32 {vr(vO2+d)}, {vr(vPo+2*d)}, {vr(vPo+2*d+1)}")
    for d in range(2):
        e(f"v_xor_b32 {vr(vO2+2+d)}, {sr(sNon)}, {vr(vO2+d)}")
    if not opts.get("xs", 0):
        e(f"buffer_store_dwordx4 {vr(vO2,4)}, {vr(vAa)}, {sr(sWS,4)}, {sr(sT0)} offen sc1")
        e(f"s_mov_b32 exec_lo, 15"); e(f"s_mov_b32 exec_hi, 15")
        e(f"buffer_store_dwordx4 {vr(vE,4)}, {vr(vAb)}, {sr(sWS,4)}, {sr(sT1)} offen sc1")
        e("s_mov_b64 exec, -1")
    ret()
    g.lab("L_TR")
    e(f"v_mov_b32_dpp {vr(vM)}, {vr(vM)} quad_perm:[0,0,0,0] {DP}")
    gmax(vM)
    e(f"s_lshl2_add_u32 {sr(sT0)}, {sr(sW)}, {LDS_CNT + 16}")
    e(f"v_mul_f32 {vr(vM)}, {sr(sC)}, {vr(vM)}")
    e(f"v_mov_b32 {vr(vT0)}, {sr(sT0)}")
    e(f"s_mov_b32 {sr(sIt)}, 0")
    e(f"ds_write_b32 {vr(vT0)}, {vr(vM)}")
    ret()

    g.lab("L_T1")
    e(f"v_add_u32 {vr(vT0)}, 0x10000, {vr(vTR)}")
    e(f"v_add_u32 {vr(vT1)}, 0x20000, {vr(vTR)}")
    for t in range(9):
        for j in range(4):
            for hf in range(2):
                off = t*16384 + j*4096 + hf*2048
                a = (vTR, vT0, vT1)[off >> 16]
                e(f"ds_read_b64_tr_b16 {ar(aW+4*(t*4+j)+hf*2,2)}, {vr(a)} offset:{off & 0xffff}")
    e("s_waitcnt lgkmcnt(0)")
    ret()

    hdr = HEADER
    hdr += f"; @launch grid=(256,1,1) block=(256,1,1) lds={LDS_TOTAL}\n"
    hdr += '.amdgcn_target "amdgcn-amd-amdhsa--gfx950"\n.text\n'
    hdr += f".globl {KN}\n.p2align 8\n.type {KN},@function\n"
    tail = f""".section .rodata,"a"
.p2align 6
.amdhsa_kernel {KN}
  .amdhsa_next_free_vgpr 512
  .amdhsa_next_free_sgpr 102
  .amdhsa_accum_offset 256
  .amdhsa_group_segment_fixed_size 0
  .amdhsa_kernarg_size 104
  .amdhsa_user_sgpr_count 2
  .amdhsa_user_sgpr_kernarg_segment_ptr 1
  .amdhsa_system_sgpr_workgroup_id_x 1
.end_amdhsa_kernel
"""
    return hdr + g.text() + tail

if __name__ == "__main__":
    out = sys.argv[1]
    opts = {}
    for a in sys.argv[2:]:
        k, v = a.split("=")
        opts[k] = int(v, 0)
    open(out, "w").write(gen(opts))
```

```python
import sys, math, struct

KN = "concat_heads__sliding_block_cached__mha_block_cached__decode_kernel"

def f32bits(x):
    return struct.unpack("<I", struct.pack("<f", x))[0]

class Gen:
    def __init__(self):
        self.lines = []
        self.q = []
    def e(self, s):
        self.lines.append("    " + s)
    def lab(self, s):
        self.lines.append(s + ":")
    def vm(self, s, tag=None):
        self.e(s)
        self.q.append(tag)
    def wait_tag(self, tag):
        idx = max(i for i, t in enumerate(self.q) if t == tag)
        n = len(self.q) - 1 - idx
        assert n <= 63, n
        self.e(f"s_waitcnt vmcnt({n})")
    def text(self):
        return "\n".join(self.lines) + "\n"

def vr(a, n=1):
    return f"v{a}" if n == 1 else f"v[{a}:{a+n-1}]"
def ar(a, n=1):
    return f"a{a}" if n == 1 else f"a[{a}:{a+n-1}]"
def sr(a, n=1):
    return f"s{a}" if n == 1 else f"s[{a}:{a+n-1}]"

HEADER = open("concat_heads__sliding_block_cached__mha_block_cached__decode.s.ref").read().split("; Override launch")[0]

NROWS = 256
YROW = 4096
HF_OFF = 256
Q_OFF = 0x400000
LT_OFF = 1024
Y_OFF = 2048
ORG_OFF = Y_OFF + NROWS * YROW
AF_OFF = ORG_OFF + 2048
AR_OFF = AF_OFF + 32768
WS_END = Q_OFF + 16 * 32768
LDS_OT = 147456
OT_STRIDE = 272
OT_BYTES = 16 * OT_STRIDE
LDS_M = LDS_OT + OT_BYTES
LDS_CNT = LDS_M + 128
LDS_SC = LDS_CNT + 64
LDS_TOTAL = LDS_SC + 176 * 64
CSCALE = (128 ** -0.5) * math.log2(math.e)
OOB = 0x40000000
assert AR_OFF + 256 * 1024 <= 0x200000 and AF_OFF % 128 == 0 and LDS_TOTAL <= 163840

def gen(opts):
    U = opts.get("u", 4)
    NT = " nt"
    PROF = opts.get("prof", 0)
    SLEEP = opts.get("sleep", 16)
    SB = opts.get("sb", 37)
    WS_BYTES = WS_END
    QW = opts.get('qw', 3)
    RM = opts.get("rm", 25)
    RMA = opts.get("rma", 25)
    RB = [0, opts.get("r1", 171), opts.get("r2", 342), 512]
    assert all(4 * SB + 4 <= RB[i + 1] - RB[i] <= 176 for i in range(3))
    FLV = opts.get("flv", -1)
    PSPL = opts.get("pspl", 0)
    PSPV = opts.get("pspv", 0)
    MHV = 0x0f0f0f0f
    LW = [int(ch, 16) for ch in "%x" % opts.get("lw", 0x8642)]
    g = Gen()
    e = g.e
    sW, sRet, sE, sNon, sOut = 3, 4, 6, 7, 12
    sWoff, sSpin = 34, 35
    sK, sV, sWQ, sX, sWO, sWS = 36, 40, 44, 48, 52, 56
    sAK, sAV = sWQ, sX
    sRot, sAL, sT0, sT1, sT2, sT3 = 60, 61, 62, 63, 64, 65
    sOff, sIt, sC, sSelLo, sSelHi, sLdsW = 66, 67, 68, 69, 70, 71
    sRem, sR0, sAr, sQo, sIsH, sDt, sDoff, sDlds = 72, 73, 74, 75, 76, 77, 78, 79
    sKVo, sWoO, sAo, sPq, sQa, sL = 96, 97, 98, 99, 100, 101
    sX15 = 96
    sSt, sCl, sCi, sSrc = 44, 47, 45, 46
    sDyn, sLim, sL0, sBase = 48, 49, 50, 51
    sLev, sSch, sNow, sOff0 = 17, 18, 20, 22
    sTi, sPh = 26, 30
    sPub, sCor, sLimK = 16, 23, 24
    PM = [int(ch, 16) + 8 for ch in "%013x" % (opts.get("perm", 0x10712345689abc) & (16**13 - 1))]
    assert sorted(PM) == list(range(8, 21)) and PM[11:] == [19, 20] and PM[0] <= 11 and PM[3] <= 11 and PM[4:] == sorted(PM[4:]), PM
    HOLE = sum(1 << p for p in PM[:4] if p > PM[4])
    TMASK = sum(1 << p for p in PM[4:])
    def phys(src, add, mask=None):
        e(f"s_add_u32 {sr(sX15)}, {sr(src)}, {add}")
        runs = []
        for i in range(9):
            if runs and runs[-1][1] + runs[-1][2] == PM[4 + i]: runs[-1][2] += 1
            else: runs.append([i, PM[4 + i], 1])
        for n, (i, p, w) in enumerate(runs):
            d = sOff if n == 0 else sWoff
            e(f"s_bfe_u32 {sr(d)}, {sr(sX15)}, {(w << 16) | i}")
            e(f"s_lshl_b32 {sr(d)}, {sr(d)}, {p}")
            if n: e(f"s_or_b32 {sr(sOff)}, {sr(sOff)}, {sr(sWoff)}")
        if mask: e(f"s_and_b32 {sr(sOff)}, {sr(sOff)}, {mask}")
    def adv():
        e(f"s_add_u32 {sr(sOff)}, {sr(sOff)}, {HOLE + (1 << PM[6])}")
        e(f"s_and_b32 {sr(sOff)}, {sr(sOff)}, {TMASK}")
        e(f"s_add_u32 {sr(sL)}, {sr(sL)}, 256")
    assert all(p > PM[6] for p in PM[:4] if p > PM[4])
    vLane, vG, vCc = 1, 2, 3
    vK, vV, vSt0, vSt1, vTR, vU0 = 4, 5, 6, 7, 8, 9
    vT0, vT1 = 10, 11
    vM, vL, vM2, vL2 = 12, 13, 14, 15
    vS, vMk = 16, 20
    vE, vA, vMn = 24, 28, 29
    vSa, vSb = 30, 31
    vO, vO2 = 32, 36
    vP = 48
    vQ, vQA = 64, 68
    vVb = 96
    vWOj = 160
    vSA = 164
    vTk = 202
    vAw, vAm, vAr, vAx = 204, 205, 206, 207
    vYo, vMlo, vCw, vCr, vOa, vWm = 196, 197, 198, 199, 200, 201
    vEp = 152
    vHf, vHa = 162, 163
    vLt = 180
    vQa = 161
    vQl = 208
    vTmp = 240
    aW = 64
    aA = 64
    DP = "row_mask:0xf bank_mask:0xf"
    def stamp9(i):
        if PROF == 9: e(f"s_memrealtime s[{80+2*i}:{81+2*i}]")
    def stamp(i):
        if PROF in (9, 11):
            if i in (0, 5, 7): e(f"s_memrealtime s[{80+2*i}:{81+2*i}]")
            if i == 6: e(f"s_memrealtime s[86:87]")
        elif PROF in (1, 3) or (PROF == 2 and i in (0, 1, 2, 7)):
            e(f"s_memrealtime s[{80+2*i}:{81+2*i}]")
    def stamp2(i):
        if PROF == 2: e(f"s_memrealtime s[{80+2*i}:{81+2*i}]")
    def srd_tail(s, size):
        e(f"s_mov_b32 {sr(s+2)}, {size}")
        e(f"s_mov_b32 {sr(s+3)}, 0x00020000")
    def add64(d, s, off):
        e(f"s_add_u32 {sr(d)}, {sr(s)}, {off}")
        e(f"s_addc_u32 {sr(d+1)}, {sr(s+1)}, 0")
    def issue(isK, reg, srd, tag=None, split=0):
        for j in range(4):
            if isK: ld = f"buffer_load_dwordx4 {ar(reg+4*j,4)}, {vr(vK)}, {sr(srd,4)}, {sr(sOff)} offen offset:{((j&1) << PM[0]) + ((j>>1) << PM[3])}{NT}"
            else: ld = f"buffer_load_dwordx4 {vr(reg+4*j,4)}, {vr(vV)}, {sr(srd,4)}, {sr(sOff)} offen offset:{((j&1) << PM[0]) + ((j>>1) << PM[3])}{NT}"
            if j < split:
                m = 0x0000ffff if isK else MHV
                e(f"s_mov_b32 exec_lo, {m}"); e(f"s_mov_b32 exec_hi, {m}")
                g.vm(ld, tag)
                e("s_not_b64 exec, exec")
                g.vm(ld, tag)
                e("s_mov_b64 exec, -1")
            else:
                g.vm(ld, tag)
    def throttle(uid):
        if "pt" in opts:
            th = [int(ch, 16) for ch in "%04x" % opts["pt"]][int(uid[1:])]
            e(f"s_cmp_ge_i32 {sr(sLev)}, {th}")
            e(f"s_cbranch_scc1 L_th{uid}")
            e(f"s_waitcnt vmcnt({opts.get('pm', 4)})")
            e(f"s_cmp_ge_i32 {sr(sLev)}, {th - opts.get('ps', 8)}")
            e(f"s_cbranch_scc1 L_th{uid}")
            e(f"s_waitcnt vmcnt({opts.get('pq', 2)})")
            g.lab(f"L_th{uid}")
            return
        for n, w in enumerate(LW):
            e(f"s_cmp_ge_i32 {sr(sLev)}, {len(LW) - n}")
            e(f"s_cbranch_scc1 L_th{uid}")
            e(f"s_waitcnt vmcnt({w})")
        g.lab(f"L_th{uid}")

    g.lab(KN)
    e("s_cmp_ge_u32 s2, 256")
    e("s_cbranch_scc1 L_exit")
    stamp(0)
    e("s_memrealtime s[94:95]")
    e("s_load_dwordx16 s[8:23], s[0:1], 0")
    e("s_load_dwordx8 s[24:31], s[0:1], 64")
    e("s_load_dwordx2 s[32:33], s[0:1], 96")
    e(f"v_lshrrev_b32 {vr(vT0)}, 6, v0")
    e(f"v_mov_b32 {vr(vT1)}, {LDS_CNT}")
    for i in range(4):
        e(f"v_mov_b32 {vr(vO+i)}, 0")
    e(f"v_readfirstlane_b32 {sr(sW)}, {vr(vT0)}")
    e(f"ds_write_b128 {vr(vT1)}, {vr(vO,4)}")
    e(f"v_and_b32 {vr(vLane)}, 63, v0")
    e(f"v_bfe_u32 {vr(vG)}, v0, 4, 2")
    e(f"v_and_b32 {vr(vCc)}, 15, v0")
    vWQ, vX, vXs, vXo, vQs = 24, 25, 96, 120, 26
    e(f"s_and_b32 {sr(sT0)}, s2, 3")
    e(f"s_mul_i32 {sr(sT1)}, {sr(sT0)}, 144")
    e(f"v_mad_u32_u24 {vr(vX)}, {vr(vG)}, 36, {sr(sT1)}")
    e(f"s_bfe_u32 {sr(sT1)}, s2, 0x50002")
    e(f"s_lshl_b32 {sr(sT2)}, {sr(sT1)}, 8")
    e(f"v_lshl_add_u32 {vr(vWQ)}, {vr(vCc)}, 4, {sr(sT2)}")
    e(f"v_lshl_add_u32 {vr(vWQ)}, {vr(vX)}, 13, {vr(vWQ)}")
    e(f"v_lshrrev_b32 {vr(vT0)}, 3, {vr(vCc)}")
    e(f"v_mul_u32_u24 {vr(vT0)}, 1152, {vr(vT0)}")
    e(f"v_lshl_add_u32 {vr(vX)}, {vr(vX)}, 1, {vr(vT0)}")
    e(f"s_lshr_b32 {sr(sPq)}, s2, 7")
    srd_tail(sWQ, 576 * 8192)
    srd_tail(sX, 2304)
    srd_tail(sWS, WS_BYTES)
    e(f"s_cmp_eq_u32 {sr(sPq)}, 0")
    e("s_waitcnt lgkmcnt(0)")
    e(f"s_cselect_b64 {sr(sWQ,2)}, s[14:15], s[24:25]")
    e(f"s_cselect_b64 {sr(sX,2)}, s[8:9], s[18:19]")
    e(f"s_load_dword {sr(sE)}, s[32:33], 0")
    e(f"s_cmp_lg_u32 {sr(sW)}, {QW}")
    e("s_cbranch_scc1 L_nq0")
    g.q = []
    for i in range(4):
        g.vm(f"buffer_load_dwordx4 {vr(vXs+4*i,4)}, {vr(vX)}, {sr(sX,4)}, 0 offen offset:{16*i}", "x")
    g.vm(f"buffer_load_dwordx2 {vr(vXs+16,2)}, {vr(vX)}, {sr(sX,4)}, 0 offen offset:64", "x")
    for n in range(36):
        if n: e(f"s_mov_b32 {sr(sWoff)}, {n*8192}")
        g.vm(f"buffer_load_dwordx4 {ar(4*n,4)}, {vr(vWQ)}, {sr(sWQ,4)}, {sr(sWoff) if n else 0} offen" + (NT if opts.get("wqnt", 1) else ""), ("wq", n))
        if n == opts.get("qbar", 15): e("s_barrier")
    stamp2(3)
    e("s_branch L_nq1")
    g.lab("L_nq0")
    e("s_barrier")
    g.lab("L_nq1")
    e(f"s_mov_b32 {sr(sWS)}, s32"); e(f"s_mov_b32 {sr(sWS+1)}, s33")
    e(f"v_and_b32 {vr(vT0)}, 1, {vr(vLane)}")
    e(f"v_lshlrev_b32 {vr(vT0)}, 4, {vr(vT0)}")
    e(f"v_mov_b32 {vr(vT1)}, 0xffff")
    e(f"v_lshlrev_b32 {vr(vT0)}, {vr(vT0)}, {vr(vT1)}")
    e(f"v_bfe_u32 {vr(vT1)}, {vr(vLane)}, 1, 2")
    for d in range(4):
        e(f"v_cmp_eq_u32 vcc, {d}, {vr(vT1)}")
        e(f"v_cndmask_b32 {vr(vMk+d)}, 0, {vr(vT0)}, vcc")
    e(f"s_cbranch_scc1 L_nq2")
    e(f"s_lshl3_add_u32 {sr(sT0)}, {sr(sPq)}, {sr(sT0)}")
    e(f"s_lshl_b32 {sr(sT0)}, {sr(sT0)}, 15")
    e(f"s_lshl_b32 {sr(sT1)}, {sr(sT1)}, 10")
    e(f"s_add_u32 {sr(sT0)}, {sr(sT0)}, {sr(sT1)}")
    e(f"s_add_u32 {sr(sT0)}, {sr(sT0)}, {Q_OFF}")
    e(f"v_and_b32 {vr(vT0)}, 31, {vr(vLane)}")
    e(f"v_lshl_add_u32 {vr(vQs)}, {vr(vT0)}, 4, {sr(sT0)}")
    e(f"v_lshrrev_b32 {vr(vT0)}, 5, {vr(vLane)}")
    e(f"v_lshl_add_u32 {vr(vQs)}, {vr(vT0)}, 17, {vr(vQs)}")
    e(f"s_mov_b32 {sr(sSelLo)}, 0x01000100")
    e(f"s_mov_b32 {sr(sSelHi)}, 0x03020302")
    e("s_waitcnt lgkmcnt(0)")
    e(f"s_add_u32 {sr(sT2)}, {sr(sE)}, 1")
    e(f"s_mul_i32 {sr(sNon)}, {sr(sT2)}, 0x9E3779B1")
    e(f"s_or_b32 {sr(sNon)}, {sr(sNon)}, 1")
    stamp2(5)
    g.wait_tag("x")
    stamp2(6)
    def xop(n):
        t = vXo + 8 * (n & 3)
        e(f"v_perm_b32 {vr(t+4)}, {vr(vXs+(n>>1))}, {vr(vXs+(n>>1))}, {sr(sSelHi if n & 1 else sSelLo)}")
        for d in range(4):
            e(f"v_and_b32 {vr(t+d)}, {vr(t+4)}, {vr(vMk+d)}")
    xop(0)
    for n in range(36):
        if n < 35: xop(n + 1)
        g.wait_tag(("wq", n))
        acc = vr(vQ + 4 * (n & 1), 4)
        e(f"v_mfma_f32_16x16x32_bf16 {acc}, {vr(vXo+8*(n&3),4)}, {ar(4*n,4)}, {acc if n > 1 else 0}")
    e("s_nop 7")
    e("s_nop 0")
    for i in range(4):
        e(f"v_add_f32 {vr(vQ+i)}, {vr(vQ+i)}, {vr(vQ+4+i)}")
    for i in range(4):
        e(f"v_xor_b32 {vr(vQ+4+i)}, {sr(sNon)}, {vr(vQ+i)}")
    e(f"buffer_store_dwordx4 {vr(vQ,4)}, {vr(vQs)}, {sr(sWS,4)}, 0 offen sc1")
    e(f"buffer_store_dwordx4 {vr(vQ+4,4)}, {vr(vQs)}, {sr(sWS,4)}, 0 offen offset:512 sc1")
    stamp(1)
    OMX = opts.get("omax", 0)
    ORG = opts.get("org", 0)
    e(f"s_cmp_gt_u32 s2, {7 if ORG else 0}")
    e("s_cbranch_scc1 L_nq3")
    if ORG == 2:
        e(f"s_memrealtime {sr(sT2,2)}")
        e("s_waitcnt lgkmcnt(0)")
    else: e(f"s_mov_b32 {sr(sT2)}, s94")
    e(f"s_xor_b32 {sr(sT0)}, {sr(sT2)}, {sr(sNon)}")
    e(f"v_mov_b32 {vr(vS)}, {sr(sT2)}")
    e(f"v_mov_b32 {vr(vS+1)}, {sr(sT0)}")
    e(f"v_lshlrev_b32 {vr(vT0)}, 7, {vr(vCc)}")
    e(f"s_lshl3_add_u32 {sr(sT0)}, s2, {ORG_OFF}")
    e(f"s_mov_b64 exec, 0xffff")
    e(f"buffer_store_dwordx2 {vr(vS,2)}, {vr(vT0)}, {sr(sWS,4)}, {sr(sT0)} offen sc1")
    e(f"s_mov_b64 exec, -1")
    g.lab("L_nq3")
    g.lab("L_nq2")
    g.q = []
    e(f"v_and_b32 {vr(vK)}, 3, {vr(vCc)}")
    e(f"v_lshlrev_b32 {vr(vK)}, 4, {vr(vK)}")
    e(f"v_lshl_add_u32 {vr(vK)}, {vr(vG)}, 6, {vr(vK)}")
    e(f"v_lshrrev_b32 {vr(vT0)}, 2, {vr(vCc)}")
    e(f"v_lshl_add_u32 {vr(vQa)}, {vr(vT0)}, 15, {vr(vK)}")
    e(f"v_lshlrev_b32 {vr(vV)}, 4, {vr(vCc)}")
    for i in range(2):
        e(f"v_bfe_u32 {vr(vT1)}, {vr(vCc)}, {i+2}, 1")
        e(f"v_lshl_add_u32 {vr(vK)}, {vr(vT1)}, {PM[i+1]}, {vr(vK)}")
        e(f"v_bfe_u32 {vr(vT1)}, {vr(vG)}, {i}, 1")
        e(f"v_lshl_add_u32 {vr(vV)}, {vr(vT1)}, {PM[i+1]}, {vr(vV)}")
    e(f"s_and_b32 {sr(sT0)}, s2, 7")
    e(f"s_lshr_b32 {sr(sT1)}, s2, 3")
    e(f"s_bfe_u32 {sr(sT2)}, s2, 0x10004")
    e(f"s_lshl1_add_u32 {sr(sT2)}, {sr(sT0)}, {sr(sT2)}")
    e(f"s_bfe_u32 {sr(sT3)}, s2, 0x10003")
    e(f"s_lshl_b32 {sr(sQa)}, {sr(sT3)}, 17")
    e(f"s_lshl_b32 {sr(sAo)}, {sr(sT2)}, 11")
    e(f"s_add_u32 {sr(sQa)}, {sr(sQa)}, {sr(sAo)}")
    e(f"s_add_u32 {sr(sQa)}, {sr(sQa)}, {Q_OFF}")
    e(f"s_lshl4_add_u32 {sr(sT2)}, {sr(sT3)}, {sr(sT2)}")
    e(f"s_lshl_b32 {sr(sAo)}, {sr(sT2)}, 21")
    e(f"s_add_u32 {sr(sAo)}, {sr(sAo)}, 0x180000")
    e(f"s_lshr_b32 {sr(sT3)}, s2, 5")
    e(f"s_lshl3_add_u32 {sr(sAr)}, {sr(sT2)}, {sr(sT3)}")
    e(f"s_mul_i32 {sr(sAL)}, {sr(sT2)}, {RMA}")
    e(f"s_lshl4_add_u32 {sr(sAL)}, {sr(sT3)}, {sr(sAL)}")
    e(f"s_add_u32 {sr(sAL)}, {sr(sAL)}, {sr(sW)}")
    add64(sAK, 10, sr(sAo)); add64(sAV, 12, sr(sAo))
    e(f"s_mov_b32 {sr(sAK+2)}, 0x80000"); e(f"s_mov_b32 {sr(sAV+2)}, 0x80000")
    def a_unit(n):
        phys(sAL, 4 * (n & 3), 0x7ffff)
        if n < 4: issue(True, aA + 16 * n, sAK, "a", PSPL)
        else: issue(False, vVb + 16 * (n - 4), sAV, "a", PSPV)
    T0N = opts.get("t0n", 2)
    for n in range(T0N): a_unit(n)
    stamp2(4)
    e(f"s_cmp_ge_u32 {sr(sT1)}, 24")
    e("s_cbranch_scc1 L_setH")
    e(f"s_mov_b32 {sr(sIsH)}, 0")
    e(f"s_mul_i32 {sr(sT2)}, {sr(sT1)}, 171")
    e(f"s_lshr_b32 {sr(sT2)}, {sr(sT2)}, 9")
    e(f"s_mul_i32 {sr(sT3)}, {sr(sT2)}, 3")
    e(f"s_sub_u32 {sr(sT1)}, {sr(sT1)}, {sr(sT3)}")
    if "ra" in opts:
        if "rc" in opts:
            e(f"s_lshr_b32 {sr(sRot)}, {sr(sT2)}, 1")
            e(f"s_mul_i32 {sr(sRot)}, {sr(sRot)}, {opts['ra']}")
            e(f"s_and_b32 {sr(sT3)}, {sr(sT2)}, 1")
            e(f"s_mul_i32 {sr(sT3)}, {sr(sT3)}, {opts['rc']}")
            e(f"s_add_u32 {sr(sRot)}, {sr(sRot)}, {sr(sT3)}")
        else: e(f"s_mul_i32 {sr(sRot)}, {sr(sT2)}, {opts['ra']}")
        e(f"s_mul_i32 {sr(sT3)}, {sr(sT0)}, {opts.get('rb', 3)}")
        e(f"s_add_u32 {sr(sRot)}, {sr(sRot)}, {sr(sT3)}")
    e(f"s_lshr_b32 {sr(sT3)}, {sr(sT2)}, 1")
    e(f"s_lshl2_add_u32 {sr(sT0)}, {sr(sT0)}, {sr(sT3)}")
    e(f"s_and_b32 {sr(sT2)}, {sr(sT2)}, 1")
    e(f"s_lshl_b32 {sr(sQo)}, {sr(sT2)}, 17")
    e(f"s_lshl_b32 {sr(sT3)}, {sr(sT0)}, 10")
    e(f"s_add_u32 {sr(sQo)}, {sr(sQo)}, {sr(sT3)}")
    e(f"s_add_u32 {sr(sQo)}, {sr(sQo)}, {Q_OFF + 8*32768}")
    e(f"s_lshl_b32 {sr(sT2)}, {sr(sT2)}, 5")
    e(f"s_add_u32 {sr(sT2)}, {sr(sT2)}, {sr(sT0)}")
    e(f"s_lshl_b32 {sr(sKVo)}, {sr(sT2)}, 21")
    if "ra" not in opts: e(f"s_mul_i32 {sr(sRot)}, {sr(sT2)}, {RM}")
    e(f"s_mul_i32 {sr(sR0)}, {sr(sT2)}, 3")
    e(f"s_add_u32 {sr(sR0)}, {sr(sR0)}, {sr(sT1)}")
    e(f"s_cmp_eq_u32 {sr(sT1)}, 1")
    e(f"s_cselect_b32 {sr(sIt)}, {RB[1]}, 0")
    e(f"s_cselect_b32 {sr(sDoff)}, {RB[2]}, 0")
    e(f"s_cmp_eq_u32 {sr(sT1)}, 0")
    e(f"s_cselect_b32 {sr(sDoff)}, {RB[1]}, {sr(sDoff)}")
    e(f"s_cmp_eq_u32 {sr(sT1)}, 2")
    e(f"s_cselect_b32 {sr(sIt)}, {RB[2]}, {sr(sIt)}")
    e(f"s_cselect_b32 {sr(sDoff)}, 512, {sr(sDoff)}")
    e("s_branch L_common")
    g.lab("L_setH")
    e(f"s_mov_b32 {sr(sIsH)}, 1")
    e(f"s_bfe_u32 {sr(sT2)}, s2, 0x20004")
    e(f"s_lshl2_add_u32 {sr(sT0)}, {sr(sT0)}, {sr(sT2)}")
    e(f"s_bfe_u32 {sr(sT2)}, s2, 0x10003")
    e(f"s_lshl_b32 {sr(sT2)}, {sr(sT2)}, 5")
    e(f"s_add_u32 {sr(sIt)}, {sr(sT2)}, {sr(sT0)}")
    e(f"s_add_u32 {sr(sR0)}, {sr(sIt)}, 192")
    e(f"s_lshl_b32 {sr(sKVo)}, {sr(sIt)}, 21")
    e(f"s_mov_b32 {sr(sRot)}, 0")
    g.lab("L_common")
    e(f"s_mul_i32 {sr(sWoO)}, {sr(sT0)}, 147456")
    e(f"s_lshl_b32 {sr(sT0)}, {sr(sR0)}, 12")
    e(f"s_add_u32 {sr(sT0)}, {sr(sT0)}, {Y_OFF}")
    e(f"v_lshl_add_u32 {vr(vSt0)}, v0, 4, {sr(sT0)}")
    add64(sK, 20, sr(sKVo)); add64(sV, 22, sr(sKVo))
    srd_tail(sK, 0x200000); srd_tail(sV, 0x200000)
    e(f"s_cmp_eq_u32 {sr(sIsH)}, 1")
    e(f"s_cselect_b64 {sr(sWO,2)}, s[16:17], s[26:27]")
    add64(sWO, sWO, sr(sWoO))
    srd_tail(sWO, 147456)
    e(f"s_mov_b32 {sr(sC)}, 0x{f32bits(CSCALE):08x}")
    e(f"s_lshl_b32 {sr(sLdsW)}, {sr(sW)}, 10")
    e(f"v_bfe_u32 {vr(vT0)}, {vr(vLane)}, 3, 2")
    e(f"v_xor_b32 {vr(vT0)}, {sr(sW)}, {vr(vT0)}")
    e(f"v_lshlrev_b32 {vr(vT0)}, 5, {vr(vT0)}")
    e(f"v_lshrrev_b32 {vr(vT1)}, 2, {vr(vLane)}")
    e(f"v_lshl_add_u32 {vr(vT0)}, {vr(vT1)}, 7, {vr(vT0)}")
    e(f"v_and_b32 {vr(vT1)}, 3, {vr(vLane)}")
    e(f"v_lshl_add_u32 {vr(vTR)}, {vr(vT1)}, 3, {vr(vT0)}")
    e(f"s_mov_b32 {sr(sOut)}, s28"); e(f"s_mov_b32 {sr(sOut+1)}, s29"); srd_tail(sOut, 4608)
    e(f"v_bfe_u32 {vr(vT0)}, {vr(vLane)}, 3, 2")
    e(f"v_lshrrev_b32 {vr(vT1)}, 5, {vr(vLane)}")
    e(f"v_lshl_add_u32 {vr(vT0)}, {vr(vT1)}, 3, {vr(vT0)}")
    e(f"s_and_b32 {sr(sT0)}, {sr(sW)}, 1")
    e(f"s_lshl_b32 {sr(sT0)}, {sr(sT0)}, 4")
    e(f"s_lshr_b32 {sr(sT1)}, {sr(sW)}, 1")
    e(f"s_lshl_b32 {sr(sT1)}, {sr(sT1)}, 2")
    e(f"s_add_u32 {sr(sT0)}, {sr(sT0)}, {sr(sT1)}")
    e(f"v_add_u32 {vr(vT0)}, {sr(sT0)}, {vr(vT0)}")
    e(f"v_mul_u32_u24 {vr(vWOj)}, 1152, {vr(vT0)}")
    e(f"v_lshlrev_b32 {vr(vT1)}, 1, {vr(vG)}")
    e(f"v_and_b32 {vr(vT0)}, 7, {vr(vLane)}")
    e(f"v_xor_b32 {vr(vT1)}, {vr(vT1)}, {vr(vT0)}")
    e(f"v_lshl_add_u32 {vr(vWOj)}, {vr(vT1)}, 4, {vr(vWOj)}")
    e(f"v_lshlrev_b32 {vr(vHa)}, 2, {vr(vLane)}")
    e(f"v_lshlrev_b32 {vr(vSa)}, 4, {vr(vG)}")
    e(f"v_add_u32 {vr(vSa)}, {LDS_SC}, {vr(vSa)}")
    e("s_waitcnt lgkmcnt(0)")
    e(f"s_add_u32 {sr(sE)}, {sr(sE)}, 1")
    e(f"s_mul_i32 {sr(sNon)}, {sr(sE)}, 0x9E3779B1")
    e(f"s_or_b32 {sr(sNon)}, {sr(sNon)}, 1")
    QPOS = opts.get("qpos", 8)
    for n in range(T0N, QPOS): a_unit(n)
    def qloads(nh, so, tag, sc):
        for i in range(4 * nh):
            g.vm(f"buffer_load_dwordx4 {vr(vQl+4*i,4)}, {vr(vQa)}, {sr(sWS,4)}, {sr(so)} offen offset:{256*i}{sc}", tag)
    def qcheck(nh):
        for hd in range(nh):
            for i in range(8):
                e(f"v_bitop3_b32 {vr(vQl+16*hd+8+i)}, {vr(vQl+16*hd+i)}, {vr(vQl+16*hd+8+i)}, {sr(sNon)} bitop3:0x96")
        R = [vQl + 16 * hd + 8 + i for hd in range(nh) for i in range(8)]
        e(f"v_or_b32 {vr(vT0)}, {vr(R[0])}, {vr(R[1])}")
        for i in range(2, len(R), 2):
            e(f"v_or3_b32 {vr(vT0)}, {vr(vT0)}, {vr(R[i])}, {vr(R[i+1])}")
        e(f"v_cmp_ne_u32 vcc, 0, {vr(vT0)}")
    def qget(nh, so, qq, nm):
        qcheck(nh)
        e(f"s_cbranch_vccz L_qok{nm}")
        e(f"s_mov_b32 {sr(sSpin)}, 0x40000")
        g.lab(f"L_qretry{nm}")
        qloads(nh, so, None, " sc1")
        e(f"s_sub_u32 {sr(sSpin)}, {sr(sSpin)}, 1")
        e("s_waitcnt vmcnt(0)")
        e(f"s_cbranch_scc1 L_qok{nm}")
        qcheck(nh)
        e(f"s_cbranch_vccnz L_qretry{nm}")
        g.lab(f"L_qok{nm}")
        for hd in range(nh):
            for i in range(8):
                e(f"v_add_f32_dpp {vr(vQl+16*hd+8+i)}, {vr(vQl+16*hd+i)}, {vr(vQl+16*hd+i)} row_ror:4 {DP}")
        for hd in range(nh):
            bm = "0xf" if nh == 1 else ("0xc" if hd else "0x3")
            for i in range(8):
                e(f"v_add_f32_dpp {vr(vQl+i)}, {vr(vQl+16*hd+8+i)}, {vr(vQl+16*hd+8+i)} row_ror:8 row_mask:0xf bank_mask:{bm}")
        for d in range(4):
            e(f"v_cvt_pk_bf16_f32 {vr(qq+d)}, {vr(vQl+2*d)}, {vr(vQl+2*d+1)}")
    QSC = " sc1" if opts.get("qsc", 0) else ""
    e(f"s_cmp_eq_u32 {sr(sIsH)}, 1")
    e("s_cbranch_scc1 L_nqp")
    e(f"s_and_b32 {sr(sT0)}, s2, 15")
    e(f"s_lshl_b32 {sr(sT0)}, {sr(sT0)}, 7")
    e(f"s_add_u32 {sr(sT0)}, {sr(sT0)}, {ORG_OFF}")
    if ORG:
        e(f"v_lshlrev_b32 {vr(vT1)}, 3, {vr(vLane)}")
        e("s_mov_b64 exec, 0xff")
        g.vm(f"buffer_load_dwordx2 {vr(vS,2)}, {vr(vT1)}, {sr(sWS,4)}, {sr(sT0)} offen sc1", "org")
    else:
        e("s_mov_b64 exec, 1")
        g.vm(f"buffer_load_dwordx2 {vr(vS,2)}, off, {sr(sWS,4)}, {sr(sT0)} sc1", "org")
    e("s_mov_b64 exec, -1")
    qloads(1, sQo, "ql", QSC)
    g.lab("L_nqp")
    for n in range(QPOS, 8): a_unit(n)
    for i in range(4, 8):
        e(f"v_mov_b32 {vr(vO+i)}, 0")
    e(f"v_mov_b32 {vr(vM)}, 0xff800000")
    e(f"v_mov_b32 {vr(vL)}, 0")
    e(f"v_mov_b32 {vr(vL2)}, 0")
    e(f"s_mov_b32 {sr(sDlds)}, {sr(sLdsW)}")
    if PROF == 3:
        e(f"v_mov_b32 {vr(vTk)}, 0"); e(f"v_mov_b32 {vr(vTk+1)}, 0")
        e("s_mov_b32 s19, 0")
    if PROF == 11:
        for r in (82, 84, 88): e(f"s_mov_b32 s{r}, 0")
    e(f"s_add_u32 {sr(sBase)}, {sr(sIt)}, {sr(sRot)}")
    e(f"s_sub_u32 {sr(sLim)}, {sr(sDoff)}, {sr(sIt)}")
    e(f"s_lshl_b32 {sr(sLim)}, {sr(sLim)}, 6")
    e(f"s_lshl_b32 {sr(sL0)}, {sr(sW)}, 6")
    e(f"s_add_u32 {sr(sDyn)}, {sr(sBase)}, {4*SB}")
    e(f"s_mov_b32 {sr(sDoff)}, 0")
    e(f"s_mov_b32 {sr(sDt)}, {-opts.get('dm0', 0) if not opts.get('xd', 0) else 100}")
    e(f"s_cmp_eq_u32 {sr(sIsH)}, 1")
    e("s_cbranch_scc1 L_H")
    LT = [tuple(int(ch, 16) for ch in "%03x" % (opts.get("lt", 0) >> sh & 0xfff)) for sh in (36, 24, 12, 0)]
    LT = [t for t in LT if t != (0, 0, 0)]
    if LT:
        e(f"s_mul_i32 {sr(sPub)}, {sr(sR0)}, 43691")
        e(f"s_lshr_b32 {sr(sPub)}, {sr(sPub)}, 15")
        e(f"s_add_u32 {sr(sPub)}, {sr(sPub)}, {LT_OFF}")
        e(f"s_or_b32 {sr(sT0)}, {sr(sIt)}, {sr(sW)}")
        e(f"s_cselect_b32 {sr(sPub)}, 0, {sr(sPub)}")
        e(f"s_mov_b32 {sr(sCor)}, 0")
    phys(sBase, sr(sW))
    e(f"s_mov_b32 {sr(sOff0)}, {sr(sOff)}")
    e(f"s_mov_b32 {sr(sL)}, {sr(sL0)}")
    E3 = opts.get("ws3", 0)
    assert E3 < U and QW == 3 and all(4 * SB <= RB[i + 1] - RB[i] - 3 * E3 for i in range(3))
    e(f"s_sub_u32 {sr(sLimK)}, {sr(sLim)}, {192*E3}")
    if E3:
        e(f"s_cmp_eq_u32 {sr(sW)}, 3")
        e(f"s_cselect_b32 {sr(sT0)}, 0, {sr(sLimK)}")
        e(f"s_cselect_b32 {sr(sT2)}, 4, 3")
        e(f"s_lshl_b32 {sr(sT1)}, {sr(sT2)}, {PM[4]}")
        e(f"s_add_u32 {sr(sT1)}, {sr(sT1)}, {HOLE}")
        e(f"s_lshl_b32 {sr(sT2)}, {sr(sT2)}, 6")
        e(f"s_add_u32 {sr(sL)}, {sr(sL)}, {sr(sT0)}")
        e(f"s_lshr_b32 {sr(sT0)}, {sr(sL)}, 6")
        phys(sBase, sr(sT0))
    for d in range(U):
        issue(True, 16 * d, sK, "k")
        e(f"s_mov_b32 {sr(sTi+d)}, {sr(sL)}")
        if d < E3:
            e(f"s_add_u32 {sr(sOff)}, {sr(sOff)}, {sr(sT1)}")
            e(f"s_and_b32 {sr(sOff)}, {sr(sOff)}, {TMASK}")
            e(f"s_add_u32 {sr(sL)}, {sr(sL)}, {sr(sT2)}")
            if d == E3 - 1:
                e(f"s_cmp_eq_u32 {sr(sW)}, 3")
                e(f"s_cselect_b32 {sr(sOff)}, {sr(sOff)}, {sr(sOff0)}")
                e(f"s_cselect_b32 {sr(sL)}, {sr(sL)}, {sr(sL0)}")
        else: adv()
    e(f"s_bfe_u32 {sr(sIt)}, s2, 0x20003")
    e(f"s_mul_i32 {sr(sIt)}, {sr(sIt)}, {-opts.get('stg', 0)}")
    e(f"s_mov_b32 {sr(sPh)}, 0")
    e(f"s_mov_b32 {sr(sLev)}, {opts.get('lev0', 4)}")
    e(f"s_mov_b32 {sr(sSt)}, {SB - U}")
    e(f"s_mov_b32 {sr(sRem)}, 900")
    g.wait_tag("ql")
    if ORG:
        e(f"v_xor_b32 {vr(vS+1)}, {vr(vS)}, {vr(vS+1)}")
        e(f"v_subrev_u32 {vr(vS)}, s94, {vr(vS)}")
        e(f"v_cmp_ne_u32 {sr(sT2,2)}, {sr(sNon)}, {vr(vS+1)}")
        qget(1, sQo, vQ, "B")
        for m in ("quad_perm:[1,0,3,2]", "quad_perm:[2,3,0,1]", "row_half_mirror"):
            e(f"{'v_max_i32_dpp' if OMX else 'v_add_u32_dpp'} {vr(vS)}, {vr(vS)}, {vr(vS)} {m} {DP}")
            e("s_nop 1")
        e(f"v_readfirstlane_b32 {sr(sT0)}, {vr(vS)}")
        e(f"s_and_b32 {sr(sT2)}, {sr(sT2)}, 0xff")
        e(f"s_cselect_b32 {sr(sT0)}, {opts.get('orf', 3300 if ORG == 2 else 0)*(1 if OMX else 8)//10}, {sr(sT0)}")
        e(f"s_lshl_b32 {sr(sSch)}, s94, 4")
        e(f"s_mul_i32 {sr(sT0)}, {sr(sT0)}, {16 if OMX else 2}")
        e(f"s_add_u32 {sr(sSch)}, {sr(sSch)}, {sr(sT0)}")
    else:
        e(f"v_readfirstlane_b32 {sr(sT0)}, {vr(vS)}")
        e(f"v_readfirstlane_b32 {sr(sT1)}, {vr(vS+1)}")
        qget(1, sQo, vQ, "B")
        e(f"s_xor_b32 {sr(sT1)}, {sr(sT1)}, {sr(sT0)}")
        e(f"s_cmp_eq_u32 {sr(sT1)}, {sr(sNon)}")
        e(f"s_cselect_b32 s94, {sr(sT0)}, s94")
        e(f"s_lshl_b32 {sr(sSch)}, s94, 4")
    e(f"s_add_u32 {sr(sSch)}, {sr(sSch)}, {opts.get('t0', 7000)*16//10}")
    if opts.get("tq", 0):
        e(f"s_lshr_b32 {sr(sT0)}, {sr(sLim)}, 6")
        e(f"s_sub_i32 {sr(sT0)}, {sr(sT0)}, 171")
        e(f"s_mul_i32 {sr(sT0)}, {sr(sT0)}, {opts.get('tq')*16//10}")
        e(f"s_sub_i32 {sr(sSch)}, {sr(sSch)}, {sr(sT0)}")
    if opts.get("tw", 0):
        e(f"s_cmp_eq_u32 {sr(sW)}, {QW}")
        e(f"s_cselect_b32 {sr(sT0)}, {opts.get('tw')*16//10}, 0")
        e(f"s_add_u32 {sr(sSch)}, {sr(sSch)}, {sr(sT0)}")
    stamp(2)

    def qk(kr, qq, acc):
        for j in range(4):
            e(f"v_mfma_f32_16x16x32_bf16 {vr(acc+4*j,4)}, {ar(kr+4*j,4)}, {vr(qq,4)}, 0")
    def fold(acc, S, full):
        for k in range(0 if full else 1, 4):
            for r in range(4):
                qp = f"quad_perm:[{k},{k},{k},{k}] {DP}"
                if k == 0: e(f"v_mov_b32_dpp {vr(S+r)}, {vr(acc+4*r)} {qp}")
                else: e(f"v_add_f32_dpp {vr(S+r)}, {vr(acc+4*r+k)}, {vr(S+r if full or k > 1 else acc+4*r)} {qp}")
    def probs(S, M, L):
        for r in range(4):
            e(f"v_fma_f32 {vr(vE+r)}, {vr(S+r)}, {sr(sC)}, -{vr(M)}")
        for r in range(4):
            e(f"v_exp_f32 {vr(vE+r)}, {vr(vE+r)}")
        e(f"v_add_f32 {vr(vT0)}, {vr(vE)}, {vr(vE+1)}")
        e(f"v_add_f32 {vr(L)}, {vr(L)}, {vr(vE+2)}")
        e(f"v_add_f32 {vr(vT0)}, {vr(vT0)}, {vr(vE+3)}")
        for r in range(4):
            e(f"v_cvt_pk_bf16_f32 {vr(vE+r)}, {vr(vE+r)}, {vr(vE+r)}")
        e(f"v_add_f32 {vr(L)}, {vr(L)}, {vr(vT0)}")
        for r in range(4):
            for d in range(4):
                e(f"v_and_b32 {vr(vP+4*r+d)}, {vr(vE+r)}, {vr(vMk+d)}")
    def pv(reg, O):
        for r in range(4):
            e(f"v_mfma_f32_16x16x32_bf16 {vr(O,4)}, {vr(vP+4*r,4)}, {vr(reg+4*r,4)}, {vr(O,4)}")
    def gmax(M, op="v_max_f32"):
        for sw in ("v_permlane32_swap_b32", "v_permlane16_swap_b32"):
            e(f"v_mov_b32 {vr(vT0)}, {vr(M)}")
            e("s_nop 1")
            e(f"{sw} {vr(M)}, {vr(vT0)}")
            e("s_nop 1")
            e(f"{op} {vr(M)}, {vr(M)}, {vr(vT0)}")
    def dma_load(nt=opts.get("wont", 0) & 1, lbl=None):
        e(f"s_mov_b32 m0, {sr(sDlds)}")
        e(f"s_add_u32 {sr(sDlds)}, {sr(sDlds)}, 4096")
        e(f"buffer_load_dwordx4 {vr(vWOj)}, {sr(sWO,4)}, {sr(sDoff)} offen" + (" nt" if nt else "") + " lds")
        e(f"s_add_u32 {sr(sDoff)}, {sr(sDoff)}, 36864")
        e(f"s_cmp_ge_u32 {sr(sDoff)}, 147456")
        e(f"s_cselect_b32 {sr(sT0)}, {147456 - 128}, 0")
        e(f"s_sub_u32 {sr(sDoff)}, {sr(sDoff)}, {sr(sT0)}")
        if lbl:
            if opts.get('taud', 0): e(f"s_add_u32 {sr(sSch)}, {sr(sSch)}, {opts.get('taud', 0)*16//10}")
            g.lab(lbl)
        e(f"s_add_u32 {sr(sDt)}, {sr(sDt)}, 1")
    DMK = opts.get("dmk", 5); DMV = opts.get("dmv", 7)
    def dma_one(lbl):
        e(f"s_cmp_lt_u32 {sr(sDt)}, 36")
        e(f"s_cbranch_scc0 {lbl}")
        dma_load(lbl=lbl)
    def level(tau):
        BS = opts.get('bsh', 5) + 4
        e("s_waitcnt lgkmcnt(0)")
        e(f"s_add_u32 {sr(sSch)}, {sr(sSch)}, {tau*16//10}")
        e(f"s_lshl_b32 {sr(sNow)}, {sr(sNow)}, 4")
        e(f"s_sub_i32 {sr(sLev)}, {sr(sNow)}, {sr(sSch)}")
        if PROF == 11:
            e(f"s_lshl_b32 {sr(sT0)}, s94, 4")
            e(f"s_sub_u32 {sr(sT0)}, {sr(sNow)}, {sr(sT0)}")
            for r, T in ((82, 12000), (84, 24000), (88, 36000)):
                e(f"s_cmp_lt_u32 {sr(sT0)}, {T*16//10}")
                e(f"s_addc_u32 s{r}, s{r}, 0")
        if PROF == 3:
            n = len(g.lines)
            sTr = sLev
            if LT and opts.get("trb", 1):
                sTr = sT0
                e(f"s_add_i32 {sr(sT0)}, {sr(sLev)}, {sr(sCor)}")
            e(f"s_and_b32 m0, s19, 63")
            e(f"s_add_u32 s19, s19, 1")
            e(f"s_cmp_gt_u32 s19, 64")
            e(f"s_cbranch_scc1 L_tr{n}")
            e(f"v_writelane_b32 {vr(vTk)}, {sr(sTr)}, m0")
            g.lab(f"L_tr{n}")
            e(f"s_cbranch_scc0 L_ts{n}")
            e(f"v_writelane_b32 {vr(vTk+1)}, {sr(sTr)}, m0")
            g.lab(f"L_ts{n}")
        if FLV >= 0: e(f"s_mov_b32 {sr(sLev)}, {FLV}")
        else: e(f"s_ashr_i32 {sr(sLev)}, {sr(sLev)}, {BS}")
    def hook_dispatch(hooks, nm):
        e(f"s_bitcmp1_b32 {sum(1 << k for k in hooks)}, {sr(sIt)}")
        e(f"s_cbranch_scc0 L_body{nm}")
        ks = sorted(hooks)
        for n, k in enumerate(ks):
            if n < len(ks) - 1:
                e(f"s_cmp_lg_u32 {sr(sIt)}, {k}")
                e(f"s_cbranch_scc1 L_hk{nm}{n+1}")
            hooks[k]()
            if n < len(ks) - 1:
                e(f"s_branch L_body{nm}")
                g.lab(f"L_hk{nm}{n+1}")
        g.lab(f"L_body{nm}")
    def call(l): e(f"s_call_b64 {sr(sRet,2)}, {l}")
    def lt_w(p):
        e(f"s_cmp_eq_u32 {sr(sPub)}, 0")
        e(f"s_cbranch_scc1 L_lw{p}")
        e(f"s_sub_i32 {sr(sT0)}, {sr(sNow)}, {sr(sSch)}")
        e(f"s_add_i32 {sr(sT0)}, {sr(sT0)}, {sr(sCor)}")
        e(f"s_pack_ll_b32_b16 {sr(sT0)}, {sr(sNon)}, {sr(sT0)}")
        e(f"v_mov_b32 {vr(vLt)}, {sr(sT0)}")
        e("s_mov_b64 exec, 1")
        e(f"buffer_store_dword {vr(vLt)}, off, {sr(sWS,4)}, {sr(sPub)} offset:{256*p} sc1")
        e("s_mov_b64 exec, -1")
        g.lab(f"L_lw{p}")
    def lt_r(p):
        e(f"buffer_load_dword {vr(vLt)}, {vr(vHa)}, {sr(sWS,4)}, 0 offen offset:{LT_OFF + 256*p}" + (" sc1" if opts.get("ltsc", 0) else ""))
    def lt_a(p):
        e(f"s_waitcnt vmcnt({4*U})")
        call("L_LA")
    def lt_hooks(ph, hooks):
        for p, (f, w, r) in enumerate(LT):
            if f != ph: continue
            for it, fn in ((w, lt_w), (r, lt_r), (r + 1, lt_a)):
                hooks.setdefault(it, []).append(lambda fn=fn, p=p: fn(p))
        return {k: (lambda v=v: [f() for f in v]) for k, v in hooks.items()}
    TAUK = opts.get("tauk", opts.get("tau", 410)); TAUV = opts.get("tauv", opts.get("tau", 410))

    AH0 = opts.get("ah0", 1)
    hk = {AH0: ["L_AQ"], AH0 + 1: ["L_AK"], AH0 + 2: ["L_AV0"], AH0 + 3: ["L_AV1"]}
    assert (AH0 + 4 + 3 * opts.get('stg', 0) + 1) * U <= min(RB[i + 1] - RB[i] for i in range(3)) // 4
    if opts.get("xa", 0): hk = {AH0: ["L_AV1"]}
    def mkh(ls):
        def f():
            for l in ls:
                if l == "L_AK": e(f"s_waitcnt vmcnt({4*U})")
                call(l)
        return f
    g.lab("L_loopK")
    hook_dispatch(lt_hooks(1, {k: [mkh(v)] for k, v in hk.items()}), "K")
    for i in range(U):
        e(f"v_add_u32 {vr(vSb)}, {sr(sTi+i)}, {vr(vSa)}")
        e(f"s_mov_b32 {sr(sTi+i)}, {sr(sL)}")
        e(f"s_waitcnt vmcnt({4*(U-1)})")
        e(f"s_memrealtime {sr(sNow,2)}")
        qk(16 * i, vQ, vP)
        throttle(f"K{i}")
        e(f"s_cmp_lg_u32 {sr(sPh)}, 0")
        e(f"s_cbranch_scc1 L_Kv{i}")
        issue(True, 16 * i, sK)
        adv()
        e(f"s_cmp_lt_u32 {sr(sL)}, {sr(sLimK)}")
        e(f"s_cbranch_scc1 L_Kc{i}")
        e(f"s_mov_b32 {sr(sPh)}, 1")
        e(f"s_mov_b32 {sr(sL)}, {sr(sL0)}")
        e(f"s_mov_b32 {sr(sOff)}, {sr(sOff0)}")
        e(f"s_branch L_Kc{i}")
        g.lab(f"L_Kv{i}")
        issue(False, vVb + 16 * i, sV)
        adv()
        e(f"s_add_u32 {sr(sPh)}, {sr(sPh)}, 1")
        g.lab(f"L_Kc{i}")
        fold(vP, vS, False)
        e(f"s_mov_b32 exec_lo, 0x00010001"); e(f"s_mov_b32 exec_hi, 0x00010001")
        e(f"ds_write_b128 {vr(vSb)}, {vr(vS,4)}")
        e("s_mov_b64 exec, -1")
        e(f"v_max3_f32 {vr(vM)}, {vr(vM)}, {vr(vS)}, {vr(vS+1)}")
        e(f"v_max3_f32 {vr(vM)}, {vr(vM)}, {vr(vS+2)}, {vr(vS+3)}")
        level(TAUK)
        if DMK >> i & 1: dma_one(f"L_dma{i}")
        e(f"s_cmp_lg_u32 {sr(sPh)}, {U+1}")
        e(f"s_cbranch_scc1 L_Kn{i}")
        call("L_TR")
        e(f"s_branch L_V{(i+1) % U}")
        g.lab(f"L_Kn{i}")
    e(f"s_add_u32 {sr(sIt)}, {sr(sIt)}, 1")
    e(f"s_branch L_loopK")

    def tail_setup():
        e(f"s_mul_i32 {sr(sT0)}, {sr(sW)}, {OT_STRIDE}")
        e(f"s_add_u32 {sr(sT0)}, {sr(sT0)}, {LDS_OT}")
        e(f"v_lshl_add_u32 {vr(vAw)}, {vr(vCc)}, 4, {sr(sT0)}")
        e(f"v_and_b32 {vr(vT0)}, 1, {vr(vG)}")
        e(f"v_lshl_add_u32 {vr(vAw)}, {vr(vT0)}, 3, {vr(vAw)}")
        e(f"s_lshl_b32 {sr(sT0)}, {sr(sW)}, 4")
        e(f"s_add_u32 {sr(sT0)}, {sr(sT0)}, {LDS_M}")
        e(f"v_lshl_add_u32 {vr(vAm)}, {vr(vG)}, 2, {sr(sT0)}")
        e(f"v_and_b32 {vr(vT0)}, 3, {vr(vCc)}")
        e(f"v_mul_u32_u24 {vr(vAr)}, {OT_STRIDE}, {vr(vT0)}")
        e(f"v_lshl_add_u32 {vr(vAr)}, {vr(vG)}, 4, {vr(vAr)}")
        e(f"v_add_u32 {vr(vAr)}, {LDS_OT}, {vr(vAr)}")
        e(f"v_lshlrev_b32 {vr(vAx)}, 2, {vr(vCc)}")
        e(f"v_add_u32 {vr(vAx)}, {LDS_M}, {vr(vAx)}")
    def h_arr():
        g.lab("L_ar0")
        e(f"s_cmp_lt_u32 {sr(sDt)}, 36")
        e(f"s_cbranch_scc0 L_ar1")
        dma_load()
        e("s_branch L_ar0")
        g.lab("L_ar1")
    def dry():
        n = len(g.lines)
        e(f"s_cmp_eq_u32 {sr(sW)}, {opts.get('dryw', 0)}")
        e(f"s_cbranch_scc0 L_dry{n}")
        call("L_T2b")
        g.lab(f"L_dry{n}")
    def h_arr2():
        if opts.get("dry", 1) & 2: dry()
        e(f"s_waitcnt vmcnt({4*U})")
        e(f"v_mov_b32 {vr(vT0)}, {LDS_CNT}")
        e(f"v_mov_b32 {vr(vT1)}, 1")
        e("s_mov_b64 exec, 1")
        e(f"ds_add_u32 {vr(vT0)}, {vr(vT1)}")
        e("s_mov_b64 exec, -1")
        e(f"buffer_load_dword {vr(vHf)}, {vr(vHa)}, {sr(sWS,4)}, 0 offen offset:{HF_OFF}")
    def h_t1():
        stamp(3)
        if opts.get("taut", 0): e(f"s_add_u32 {sr(sSch)}, {sr(sSch)}, {opts.get('taut')*16//10}")
        e(f"v_mov_b32 {vr(vT0)}, {LDS_CNT}")
        g.lab(f"L_wa")
        e(f"ds_read_b32 {vr(vT1)}, {vr(vT0)}")
        e("s_waitcnt lgkmcnt(0)")
        e(f"v_readfirstlane_b32 {sr(sT0)}, {vr(vT1)}")
        e("s_nop 3")
        e(f"s_cmp_lt_u32 {sr(sT0)}, 4")
        e(f"s_cbranch_scc1 L_wa")
        e(f"ds_read_b128 {vr(vS,4)}, {vr(vT0)} offset:16")
        call("L_T1")
        e(f"v_max3_f32 {vr(vT0)}, {vr(vS)}, {vr(vS+1)}, {vr(vS+2)}")
        e(f"v_max_f32 {vr(vT0)}, {vr(vT0)}, {vr(vS+3)}")
        e(f"v_sub_f32 {vr(vT1)}, {vr(vM)}, {vr(vT0)}")
        e(f"v_exp_f32 {vr(vT1)}, {vr(vT1)}")
        e(f"v_mov_b32 {vr(vM)}, {vr(vT0)}")
        e(f"v_mul_f32 {vr(vL)}, {vr(vT1)}, {vr(vL)}")
        for i in range(4):
            e(f"v_mul_f32 {vr(vO+i)}, {vr(vT1)}, {vr(vO+i)}")
        e(f"s_waitcnt vmcnt({4*U})")
        e(f"s_mov_b32 {sr(sSpin)}, 0x40000")
        g.lab("L_hc")
        e(f"v_cmp_ne_u32 vcc, {sr(sNon)}, {vr(vHf)}")
        e("s_cbranch_vccz L_hc1")
        e(f"s_sleep {SLEEP}")
        e(f"buffer_load_dword {vr(vHf)}, {vr(vHa)}, {sr(sWS,4)}, 0 offen offset:{HF_OFF} sc1")
        e(f"s_sub_u32 {sr(sSpin)}, {sr(sSpin)}, {1 if not opts.get('xq', 0) else 0x40001}")
        e("s_waitcnt vmcnt(0)")
        e("s_cbranch_scc0 L_hc")
        g.lab("L_hc1")
        if opts.get("dry", 1) & 1: dry()
        stamp(4)
    HA = opts.get("ha", 6); HT = opts.get("ht", 7)
    assert 2 <= HA < HT and (HT + 1) * U <= SB - U
    pc = lambda m: bin(m & ((1 << U) - 1)).count("1")
    g.lab("L_loopV")
    hook_dispatch(lt_hooks(2, {HA - 1: [h_arr], HA: [h_arr2], HT: [h_t1]}), "V")
    for i in range(U):
        g.lab(f"L_V{i}")
        e(f"v_add_u32 {vr(vSb)}, {sr(sTi+i)}, {vr(vSa)}")
        e(f"ds_read_b128 {vr(vS,4)}, {vr(vSb)}")
        e(f"v_mov_b32 {vr(vSb)}, {LDS_CNT + 12}")
        e(f"v_mov_b32 {vr(vT1)}, 1")
        e("s_waitcnt lgkmcnt(0)")
        probs(vS, vM, vL)
        CE = opts.get("ce", 0)
        def claim():
            e(f"s_cmp_gt_i32 {sr(sSt)}, 0")
            e(f"s_cbranch_scc1 L_c1{i}")
            e("s_mov_b64 exec, 1")
            e(f"ds_add_rtn_u32 {vr(vT1)}, {vr(vSb)}, {vr(vT1)}")
            e("s_mov_b64 exec, -1")
            g.lab(f"L_c1{i}")
        if CE: claim()
        e(f"s_waitcnt vmcnt({4*(U-1)})")
        for r in range(U - 1, 0, -1):
            e(f"s_cmp_ge_u32 {sr(sRem)}, {r}")
            e(f"s_cbranch_scc1 L_v1{i}")
            e(f"s_waitcnt vmcnt({4*(r-1)})")
        g.lab(f"L_v1{i}")
        pv(vVb + 16 * i, vO)
        e(f"s_sub_u32 {sr(sRem)}, {sr(sRem)}, 1")
        e(f"s_cbranch_scc1 L_end")
        e(f"s_cmp_lt_u32 {sr(sRem)}, {U}")
        e(f"s_cbranch_scc1 L_nv{i}")
        e(f"s_memrealtime {sr(sNow,2)}")
        throttle(f"V{i}")
        if not CE: claim()
        else: e(f"s_cmp_gt_i32 {sr(sSt)}, 0")
        e(f"s_cbranch_scc1 L_c2{i}")
        e("s_waitcnt lgkmcnt(0)")
        e(f"v_readfirstlane_b32 {sr(sCl)}, {vr(vT1)}")
        e(f"s_add_u32 {sr(sL)}, {sr(sCl)}, {4*SB}")
        e(f"s_lshl_b32 {sr(sL)}, {sr(sL)}, 6")
        phys(sCl, sr(sDyn))
        e(f"s_cmp_ge_u32 {sr(sL)}, {sr(sLim)}")
        e(f"s_cselect_b32 {sr(sRem)}, {U-2}, {sr(sRem)}")
        e(f"s_cselect_b32 {sr(sSt)}, 1000, {sr(sSt)}")
        e(f"s_cbranch_scc1 L_nv{i}")
        g.lab(f"L_c2{i}")
        issue(False, vVb + 16 * i, sV)
        e(f"s_mov_b32 {sr(sTi+i)}, {sr(sL)}")
        e(f"s_sub_u32 {sr(sSt)}, {sr(sSt)}, 1")
        adv()
        level(TAUV)
        if DMV >> i & 1: dma_one(f"L_dmv{i}")
        g.lab(f"L_nv{i}")
    e(f"s_add_u32 {sr(sIt)}, {sr(sIt)}, 1")
    e(f"s_branch L_loopV")
    g.lab("L_end")
    stamp(5)

    NSL = opts.get("nsl", 1)
    def schedule(main, ops, per=2):
        pos = [0]; hist = []
        mpos = {}
        def emit(text, kind, wr=(), rd=(), n=1):
            e(text); hist.append((pos[0] + n - 1, kind, set(wr), set(rd))); pos[0] += n
        def need(op):
            t = 0
            if op.get("after") is not None:
                if op["after"] not in mpos: return None
                t = mpos[op["after"]] + 1 + (2 if op["kind"] == "dpp" else 0)
            for (p, k, wr, rd) in hist:
                d = None
                if k == "mfma":
                    if wr & (op["rd"] | op["wr"]): d = 8
                elif k in ("valu", "dpp", "swap", "trans"):
                    if wr & op["rd"]:
                        d = 0
                        if op["kind"] in ("dpp", "swap"): d = 2
                        elif k == "trans": d = 1
                elif k == "store":
                    if rd & op["wr"]: d = 2
                if d is not None: t = max(t, p + 1 + d)
            return t
        done = [False] * len(ops)
        mw = {}
        for i, (t_, k_, w_) in enumerate(main):
            for r in w_: mw[r] = i
        def ready(i):
            op = ops[i]
            for j in range(i):
                if not done[j]:
                    o = ops[j]
                    if (o["wr"] & (op["rd"] | op["wr"])) or (o["rd"] & op["wr"]) or (o["kind"] == "store" and op["kind"] == "store"): return None
            for r in op["rd"] | op["wr"]:
                if r in mw and mw[r] not in mpos: return None
            return need(op)
        def fill(n):
            k = 0
            while k < n:
                c = [i for i in range(len(ops)) if not done[i] and ready(i) is not None and ready(i) <= pos[0]]
                if not c:
                    w = [ready(i) - pos[0] for i in range(len(ops)) if not done[i] and ready(i) is not None]
                    if w and min(w) <= 2 and k + min(w) < n + NSL:
                        emit(f"s_nop {min(w)-1}", "nop", n=min(w)); k += min(w); n = max(n, k + 1)
                        continue
                    break
                i = c[0]
                emit(ops[i]["text"], ops[i]["kind"], ops[i]["wr"], ops[i]["rd"], ops[i].get("n", 1)); done[i] = True
                k += 2 if ops[i]["kind"] == "trans" else 1
        for i, (text, kind, wr) in enumerate(main):
            mpos[i] = pos[0]
            emit(text, kind, wr)
            if kind in ("mfma", "wait0"): fill(per)
        stamp9(2)
        while not all(done):
            fill(1000)
            if all(done): break
            c = [ready(i) for i in range(len(ops)) if not done[i] and ready(i) is not None]
            w = min(c) - pos[0]
            assert w > 0
            emit(f"s_nop {w-1}", "nop", n=w)
    def T2():
        vAcc, vLr, vPk, t0, t1, Out = 208, 181, 56, 48, 49, 16
        if PROF == 3:
            e(f"s_lshl_b32 s88, s2, 10")
            e(f"s_add_u32 s88, s88, 0x300000")
            e(f"v_lshlrev_b32 {vr(vV)}, 1, v0")
            e(f"buffer_store_short {vr(vTk)}, {vr(vV)}, {sr(sWS,4)}, s88 offen")
            e(f"buffer_store_short {vr(vTk+1)}, {vr(vV)}, {sr(sWS,4)}, s88 offen offset:512")
        e(f"ds_write_b32 {vr(vAm)}, {vr(vL)}")
        e(f"s_cmp_lg_u32 {sr(sW)}, {sr(sW)}")
        e("s_nop 4")
        for d in range(2):
            e(f"v_cvt_pk_bf16_f32 {vr(vPk+d)}, {vr(vO+2*d)}, {vr(vO+2*d+1)}")
        e(f"ds_write_b64 {vr(vAw)}, {vr(vPk,2)}")
        e("s_waitcnt lgkmcnt(0)")
        e("s_barrier")
        g.lab("L_T2b")
        stamp9(1)
        for j in range(4):
            e(f"ds_read_b128 {ar(4*j,4)}, {vr(vAr)} offset:{64*j}")
        e(f"ds_read_b32 {vr(vLr)}, {vr(vAx)}")
        nrd = 5
        main = []; ops = []
        TO = [8, 0, 1, 2, 3, 4, 5, 6, 7]
        def op(text, rd, wr, kind="valu", **kw):
            ops.append(dict(text=text, rd=set(rd), wr=set(wr), kind=kind, **kw))
        for n, t in enumerate(TO):
            for j in range(4):
                if n == 0:
                    main.append((f"s_waitcnt lgkmcnt({nrd - j - 1})", "wait", ()))
                if n == 1 and j == 0:
                    main.append((f"s_waitcnt lgkmcnt(0)", "wait", ())); mlw = len(main) - 1
                a = vAcc + 4 * t
                cc = "0" if j == 0 else vr(a, 4)
                main.append((f"v_mfma_f32_16x16x32_bf16 {vr(a,4)}, {ar(4*j,4)}, {ar(aW+4*(t*4+j),4)}, {cc}", "mfma", range(a, a + 4)))
        for src, dst, rot in ((vLr, t0, 8), (t0, t1, 4), (t1, t0, 2), (t0, t1, 1)):
            op(f"v_add_f32_dpp {vr(dst)}, {vr(src)}, {vr(src)} row_ror:{rot} {DP}", [src], [dst], "dpp", after=mlw)
        op(f"v_rcp_f32 {vr(t0)}, {vr(t1)}", [t1], [t0], "trans")
        op(f"v_log_f32 {vr(Out+3)}, {vr(t1)}", [t1], [Out + 3], "trans")
        op(f"v_add_f32 {vr(Out+3)}, {vr(Out+3)}, {vr(vM)}", [Out + 3], [Out + 3])
        op(f"v_min_u32 {vr(Out+3)}, -2, {vr(Out+3)}", [Out + 3], [Out + 3])
        def comb(t):
            a = vAcc + 4 * t; o = Out + (t >> 2)
            op(f"v_add_f32 {vr(a)}, {vr(a)}, {vr(a+1)}", [a, a + 1], [a])
            op(f"v_add_f32 {vr(a+2)}, {vr(a+2)}, {vr(a+3)}", [a + 2, a + 3], [a + 2])
            if t == 8: op(f"v_add_f32 {vr(o)}, {vr(a)}, {vr(a+2)}", [a, a + 2], [o])
            else: op(f"v_add_f32_dpp {vr(o)}, {vr(a)}, {vr(a+2)} quad_perm:[0,1,2,3] row_mask:{1 << (t & 3)} bank_mask:0xf", [a, a + 2], [o], "dpp")
            if t in (3, 7, 8):
                op(f"v_mul_f32 {vr(o)}, {vr(t0)}, {vr(o)}", [o, t0], [o])
                op(f"v_min_u32 {vr(o)}, -2, {vr(o)}", [o], [o])
        comb(8)
        for t in range(8): comb(t)
        schedule(main, ops, opts.get("per", 2))
        e("s_cbranch_scc1 L_ret")
        e(f"buffer_store_dwordx4 {vr(Out,4)}, {vr(vSt0)}, {sr(sWS,4)}, 0 offen sc1")
    g.lab("L_T2")
    T2()
    e(f"s_cmp_eq_u32 {sr(sIsH)}, 1")
    e("s_cbranch_scc1 L_H2")
    stamp(6)
    if PROF: e("s_branch L_done")
    else: e("s_endpgm")

    g.lab("L_H")
    call("L_AQ")
    e("s_waitcnt vmcnt(0)")
    call("L_AK"); call("L_AV0"); call("L_AV1")
    e(f"s_sub_u32 {sr(sT0)}, s2, 192")
    e(f"s_mul_i32 {sr(sT1)}, {sr(sT0)}, {3*YROW}")
    e(f"s_add_u32 {sr(sT1)}, {sr(sT1)}, {Y_OFF}")
    e(f"v_lshlrev_b32 {vr(vT0)}, 4, v0")
    for i in range(4):
        e(f"v_mov_b32 {vr(vTmp+i)}, -1")
    for i in range(3):
        e(f"buffer_store_dwordx4 {vr(vTmp,4)}, {vr(vT0)}, {sr(sWS,4)}, {sr(sT1)} offen sc1")
        if i < 2: e(f"s_add_u32 {sr(sT1)}, {sr(sT1)}, {YROW}")
    if opts.get("xq", 0) == 1: e("s_branch L_done")
    if opts.get("pf", 1):
        e(f"s_bfe_u32 {sr(sT0)}, s2, 0x10003")
        e(f"s_mul_i32 {sr(sT0)}, {sr(sT0)}, 73728")
        e(f"s_add_u32 {sr(sT0)}, {sr(sT0)}, {sr(sWoO)}")
        add64(sK, 26, sr(sT0))
        e(f"s_mov_b32 {sr(sK+2)}, 73728")
        e(f"s_mov_b32 {sr(sT1)}, 0")
        g.lab("L_hpf")
        e(f"buffer_load_dwordx4 {vr(vVb,4)}, {vr(vT0)}, {sr(sK,4)}, {sr(sT1)} offen")
        e(f"s_waitcnt vmcnt({opts.get('pfd', 4)})")
        e(f"s_add_u32 {sr(sT1)}, {sr(sT1)}, 4096")
        e(f"s_cmp_lt_u32 {sr(sT1)}, 73728")
        e("s_cbranch_scc1 L_hpf")
    e(f"s_mov_b32 {sr(sDt)}, 0")
    g.lab("L_hdma")
    dma_load(opts.get("wont", 0) & 2)
    e(f"s_waitcnt vmcnt({opts.get('hd', 2)})")
    e(f"s_cmp_lt_u32 {sr(sDt)}, 36")
    e("s_cbranch_scc1 L_hdma")
    if opts.get("xq", 0) == 2: e("s_branch L_done")
    vFa, vFb, vDa, vF0, vFn, vD0 = 96, 97, 98, 100, 104, 108
    e(f"s_lshr_b32 {sr(sT0)}, {sr(sBase)}, 1")
    e(f"s_and_b32 {sr(sT1)}, {sr(sBase)}, 1")
    e(f"s_lshl4_add_u32 {sr(sT0)}, {sr(sT0)}, {sr(sT1)}")
    e(f"s_lshl_b32 {sr(sT2)}, {sr(sT0)}, 6")
    e(f"s_add_u32 {sr(sT2)}, {sr(sT2)}, {AF_OFF}")
    e(f"v_and_b32 {vr(vT0)}, 7, {vr(vLane)}")
    e(f"v_lshl_add_u32 {vr(vFa)}, {vr(vT0)}, 7, {sr(sT2)}")
    e(f"v_lshrrev_b32 {vr(vT0)}, 5, v0")
    e(f"v_lshl_add_u32 {vr(vFb)}, {vr(vT0)}, 7, {sr(sT2)}")
    e(f"s_lshl_b32 {sr(sT2)}, {sr(sT0)}, 9")
    e(f"s_add_u32 {sr(sT2)}, {sr(sT2)}, {AR_OFF}")
    e(f"v_lshl_add_u32 {vr(vDa)}, {vr(vT0)}, 10, {sr(sT2)}")
    e(f"v_and_b32 {vr(vT0)}, 31, {vr(vLane)}")
    e(f"v_lshl_add_u32 {vr(vDa)}, {vr(vT0)}, 4, {vr(vDa)}")
    e("s_waitcnt vmcnt(0)")
    e("s_barrier")
    call("L_T1")
    e(f"s_mov_b32 {sr(sSpin)}, 0x40000")
    g.lab("L_hp")
    for r, a in ((vF0, vFa), (vFn, vFb), (vD0, vDa)):
        e(f"buffer_load_dwordx4 {vr(r,4)}, {vr(a)}, {sr(sWS,4)}, 0 offen sc1")
    e(f"s_sub_u32 {sr(sSpin)}, {sr(sSpin)}, 1")
    e("s_waitcnt vmcnt(0)")
    e("s_cbranch_scc1 L_hp1")
    for r in (vF0, vFn, vD0):
        for i in range(2):
            e(f"v_bitop3_b32 {vr(r+2+i)}, {vr(r+i)}, {vr(r+2+i)}, {sr(sNon)} bitop3:0x96")
    e(f"v_or3_b32 {vr(vT0)}, {vr(vF0+2)}, {vr(vF0+3)}, {vr(vFn+2)}")
    e(f"v_or3_b32 {vr(vT1)}, {vr(vFn+3)}, {vr(vD0+2)}, {vr(vD0+3)}")
    e(f"v_or_b32 {vr(vT0)}, {vr(vT0)}, {vr(vT1)}")
    e(f"v_cmp_ne_u32 vcc, 0, {vr(vT0)}")
    e("s_cbranch_vccz L_hp1")
    e(f"s_sleep {opts.get('hsl', 64)}")
    e("s_branch L_hp")
    g.lab("L_hp1")
    for src, dst, rot in ((vF0, vM, 4), (vM, vT1, 2), (vT1, vM, 1)):
        e(f"v_max_f32_dpp {vr(dst)}, {vr(src)}, {vr(src)} row_ror:{rot} {DP}")
        e("s_nop 1")
    e(f"v_sub_f32 {vr(vT1)}, {vr(vF0)}, {vr(vM)}")
    e(f"v_sub_f32 {vr(vFn)}, {vr(vFn)}, {vr(vM)}")
    e(f"v_exp_f32 {vr(vT1)}, {vr(vT1)}")
    e(f"v_exp_f32 {vr(vFn)}, {vr(vFn)}")
    for i in range(2):
        e(f"v_lshlrev_b32 {vr(vO+2*i)}, 16, {vr(vD0+i)}")
        e(f"v_and_b32 {vr(vO+2*i+1)}, 0xffff0000, {vr(vD0+i)}")
    e(f"v_mul_f32 {vr(vT1)}, {vr(vT1)}, {vr(vF0+1)}")
    for i in range(4):
        e(f"v_mul_f32 {vr(vO+i)}, {vr(vFn)}, {vr(vO+i)}")
    for src, dst, rot in ((vT1, vL, 4), (vL, vT1, 2), (vT1, vL, 1)):
        e(f"v_add_f32_dpp {vr(dst)}, {vr(src)}, {vr(src)} row_ror:{rot} {DP}")
        e("s_nop 1")
    e(f"v_mul_f32 {vr(vL)}, 0x3d800000, {vr(vL)}")
    for i in range(4):
        e(f"v_mov_b32 {vr(vO2+i)}, {vr(vO+i)}")
    e("s_nop 1")
    for i in range(4):
        e(f"v_permlane32_swap_b32 {vr(vO+i)}, {vr(vO2+i)}")
    e("s_nop 1")
    for i in range(4):
        e(f"v_add_f32 {vr(vO+i)}, {vr(vO+i)}, {vr(vO2+i)}")
    if opts.get("xq", 0) == 4: e("s_branch L_done")
    e("s_branch L_T2")
    g.lab("L_H2")
    e("s_waitcnt vmcnt(0)")
    e("s_barrier")
    e(f"s_cmp_lg_u32 {sr(sW)}, 0")
    e("s_cbranch_scc1 L_H3")
    e(f"s_lshl_b32 {sr(sT0)}, s2, 2")
    e(f"s_add_u32 {sr(sT0)}, {sr(sT0)}, {HF_OFF - 192*4}")
    e(f"v_mov_b32 {vr(vEp)}, {sr(sNon)}")
    e(f"v_lshlrev_b32 {vr(vT0)}, 2, {vr(vLane)}")
    e("s_mov_b64 exec, 1")
    e(f"buffer_store_dword {vr(vEp)}, off, {sr(sWS,4)}, {sr(sT0)} sc1")
    e("s_mov_b64 exec, -1")
    e(f"s_mov_b32 {sr(sSpin)}, 0x40000")
    g.lab("L_hf")
    e(f"s_sleep {opts.get('hsf', 100)}")
    e(f"buffer_load_dword {vr(vEp+1)}, {vr(vT0)}, {sr(sWS,4)}, 0 offen offset:{HF_OFF} sc1")
    e(f"s_sub_u32 {sr(sSpin)}, {sr(sSpin)}, 1")
    e("s_waitcnt vmcnt(0)")
    e("s_cbranch_scc1 L_H3")
    e(f"v_cmp_ne_u32 vcc, {sr(sNon)}, {vr(vEp+1)}")
    e("s_cbranch_vccnz L_hf")
    e(f"s_cmp_lg_u32 s2, 255")
    e("s_cbranch_scc1 L_H3")
    e(f"v_mov_b32 {vr(vEp+1)}, {sr(sE)}")
    e("s_mov_b64 exec, 1")
    e(f"buffer_store_dword {vr(vEp+1)}, off, {sr(sWS,4)}, 0 sc1")
    e("s_mov_b64 exec, -1")
    g.lab("L_H3")
    e("s_barrier")
    if opts.get("xq", 0) == 6: e("s_branch L_done")
    sP, sCb, sSl, sRow = sCi, sT1, sT2, sT3
    e(f"s_mov_b32 {sr(sP)}, 0")
    g.lab("L_cons")
    e(f"s_bfe_u32 {sr(sCb)}, s2, 0x10005")
    e(f"s_and_b32 {sr(sSl)}, s2, 31")
    e(f"s_lshl_b32 {sr(sRow)}, {sr(sCb)}, 5")
    e(f"v_lshrrev_b32 {vr(vT0)}, 3, v0")
    e(f"v_add_u32 {vr(vT0)}, {sr(sRow)}, {vr(vT0)}")
    e(f"s_lshl1_add_u32 {sr(sRow)}, {sr(sP)}, 1")
    e(f"v_mul_u32_u24 {vr(vT0)}, {sr(sRow)}, {vr(vT0)}")
    e(f"s_cmp_eq_u32 {sr(sP)}, 0")
    e(f"s_cselect_b32 {sr(sRow)}, 192, 0")
    e(f"v_add_u32 {vr(vT0)}, {sr(sRow)}, {vr(vT0)}")
    e(f"v_and_b32 {vr(vT1)}, 7, v0")
    e(f"s_lshl_b32 {sr(sRow)}, {sr(sSl)}, 7")
    e(f"s_add_u32 {sr(sRow)}, {sr(sRow)}, {Y_OFF}")
    e(f"v_lshl_add_u32 {vr(vYo)}, {vr(vT0)}, 12, {sr(sRow)}")
    e(f"v_lshl_add_u32 {vr(vYo)}, {vr(vT1)}, 4, {vr(vYo)}")
    e(f"v_and_b32 {vr(vT0)}, 1, {vr(vG)}")
    e(f"v_lshlrev_b32 {vr(vT0)}, 1, {vr(vT0)}")
    e(f"v_lshrrev_b32 {vr(vCw)}, 1, {vr(vG)}")
    e(f"v_or_b32 {vr(vT0)}, {vr(vT0)}, {vr(vCw)}")
    e(f"v_lshl_add_u32 {vr(vT0)}, {vr(vT1)}, 2, {vr(vT0)}")
    e(f"s_lshl_b32 {sr(sWoff)}, {sr(sP)}, 10")
    e(f"s_add_u32 {sr(sWoff)}, {sr(sWoff)}, {LDS_SC}")
    e(f"s_lshl_b32 {sr(sRow)}, {sr(sW)}, 7")
    e(f"s_add_u32 {sr(sRow)}, {sr(sRow)}, {sr(sWoff)}")
    e(f"v_lshl_add_u32 {vr(vCw)}, {vr(vT0)}, 2, {sr(sRow)}")
    e(f"v_lshl_add_u32 {vr(vCr)}, v0, 2, {sr(sWoff)}")
    e(f"s_mul_i32 {sr(sCb)}, {sr(sCb)}, 1152")
    e(f"s_mul_i32 {sr(sT0)}, {sr(sP)}, 576")
    e(f"s_add_u32 {sr(sCb)}, {sr(sCb)}, {sr(sT0)}")
    e(f"s_bfe_u32 {sr(sT0)}, {sr(sSl)}, 0x20001")
    e(f"s_lshl_b32 {sr(sT0)}, {sr(sT0)}, 6")
    e(f"s_lshr_b32 {sr(sRow)}, {sr(sSl)}, 3")
    e(f"s_lshl4_add_u32 {sr(sT0)}, {sr(sRow)}, {sr(sT0)}")
    e(f"s_and_b32 {sr(sRow)}, {sr(sSl)}, 1")
    e(f"s_lshl3_add_u32 {sr(sT0)}, {sr(sRow)}, {sr(sT0)}")
    e(f"v_and_b32 {vr(vOa)}, 3, v0")
    e(f"v_lshl_add_u32 {vr(vOa)}, {vr(vOa)}, 8, {sr(sT0)}")
    e(f"v_lshrrev_b32 {vr(vT0)}, 2, v0")
    e(f"v_add_u32 {vr(vOa)}, {vr(vOa)}, {vr(vT0)}")
    e(f"v_mov_b32 {vr(vT0)}, {OOB}")
    e(f"v_cmp_gt_u32 vcc, 576, {vr(vOa)}")
    e(f"v_add_lshl_u32 {vr(vOa)}, {vr(vOa)}, {sr(sCb)}, 1")
    e(f"v_cndmask_b32 {vr(vOa)}, {vr(vT0)}, {vr(vOa)}, vcc")
    vMx, vRes, vWt = 48, 40, 56
    vY, vZc = 64, 80
    e(f"s_mov_b32 {sr(sSpin)}, 0x100000")
    e(f"s_movk_i32 {sr(sWoff)}, {YROW}")
    e(f"s_movk_i32 {sr(sT0)}, {2*YROW}")
    e(f"s_cmp_eq_u32 {sr(sP)}, 0")
    e("s_cbranch_scc1 L_finA")
    SM = opts.get("psm", 0x00010001)
    e(f"s_mov_b32 exec_lo, {SM}"); e(f"s_mov_b32 exec_hi, {SM}")
    g.lab("L_pollc")
    e(f"s_sleep {opts.get('csl', 16)}")
    e(f"buffer_load_dword {vr(vMx)}, {vr(vYo)}, {sr(sWS,4)}, {sr(sT0)} offen sc1")
    e(f"s_sub_u32 {sr(sSpin)}, {sr(sSpin)}, 1")
    e("s_waitcnt vmcnt(0)")
    e("s_cbranch_scc1 L_pollc_done")
    e(f"v_cmp_ne_u32 vcc, -1, {vr(vMx)}")
    e("s_cbranch_vccz L_pollc")
    g.lab("L_pollc_done")
    e("s_mov_b64 exec, -1")
    e(f"s_mov_b32 {sr(sSpin)}, 0x100000")
    PD = opts.get("pd", 2)
    VS = [64, 84, 96, 108][:PD]; MS = [16, 22, 84, 36][:PD]
    if PROF: MS = [16, 22, 36, 48][:PD]
    def poll(n, first=False):
        for i in range(3):
            if PD == 1:
                e(f"s_mov_b64 exec, {sr(MS[n]+2*i,2)}")
                e(f"s_cbranch_execz L_pd{i}")
            elif not first: e(f"s_or_b64 exec, {sr(MS[n]+2*i,2)}, 1")
            e(f"buffer_load_dwordx4 {vr(VS[n]+4*i,4)}, {vr(vYo)}, {sr(sWS,4)}, {['0', sr(sWoff), sr(sT0)][i]} offen sc1")
            if PD == 1: g.lab(f"L_pd{i}")
        e("s_mov_b64 exec, -1")
    for i in range(3):
        e(f"s_mov_b64 {sr(MS[PD-1]+2*i,2)}, -1")
    for n in range(PD - 1):
        poll(n, True)
        e(f"s_sleep {opts.get('pds', 8)}")
    g.lab("L_polld")
    for n in range(PD):
        vD = VS[n]
        poll((n - 1) % PD)
        e(f"s_waitcnt vmcnt({3*(PD-1)})")
        for i in range(3):
            e(f"v_max3_u32 {vr(vMx+i)}, {vr(vD+4*i)}, {vr(vD+4*i+1)}, {vr(vD+4*i+2)}")
        e(f"v_max3_f32 {vr(vWt)}, {vr(vD+3)}, {vr(vD+7)}, {vr(vD+11)}")
        for i in range(3):
            e(f"v_max_u32 {vr(vMx+i)}, {vr(vMx+i)}, {vr(vD+4*i+3)}")
        e(f"v_max3_u32 {vr(vMx+5)}, {vr(vMx)}, {vr(vMx+1)}, {vr(vMx+2)}")
        for i in range(3): e(f"v_sub_f32 {vr(vWt+1+i)}, {vr(vD+4*i+3)}, {vr(vWt)}")
        e(f"v_cmp_eq_u32 vcc, -1, {vr(vMx+5)}")
        for i in range(3): e(f"v_exp_f32 {vr(vWt+1+i)}, {vr(vWt+1+i)}")
        e(f"s_cbranch_vccz L_polld_done{n}")
        for i in range(3):
            e(f"v_cmp_eq_u32 {sr(MS[n]+2*i,2)}, -1, {vr(vMx+i)}")
    e(f"s_sub_u32 {sr(sSpin)}, {sr(sSpin)}, 1")
    e(f"s_cbranch_scc0 L_polld")
    for n in range(PD - 1, -1, -1):
        vD = VS[n]
        g.lab(f"L_polld_done{n}")
        stamp9(4)
        e(f"v_add_f32 {vr(vWt)}, {vr(vWt+1)}, {vr(vWt+2)}")
        for k in range(3):
            e(f"v_mul_f32 {vr(vZc+k)}, {vr(vWt+1)}, {vr(vD+k)}")
        e(f"v_add_f32 {vr(vWt)}, {vr(vWt)}, {vr(vWt+3)}")
        for k in range(3):
            e(f"v_fmac_f32 {vr(vZc+k)}, {vr(vWt+2)}, {vr(vD+4+k)}")
        e(f"v_rcp_f32 {vr(vWt)}, {vr(vWt)}")
        for k in range(3):
            e(f"v_fmac_f32 {vr(vZc+k)}, {vr(vWt+3)}, {vr(vD+8+k)}")
        for k in range(3):
            e(f"v_mul_f32 {vr(vZc+k)}, {vr(vWt)}, {vr(vZc+k)}")
        if n: e("s_branch L_fin2")
    g.lab("L_fin2")
    for k in range(4):
        e(f"v_add_f32_dpp {vr(vRes+k)}, {vr(vZc+k)}, {vr(vZc+k)} row_ror:8 {DP}")
    e(f"v_permlane32_swap_b32 {vr(vRes)}, {vr(vRes+1)}")
    e("s_nop 0")
    e(f"v_permlane32_swap_b32 {vr(vRes+2)}, {vr(vRes+3)}")
    e(f"v_add_f32 {vr(vRes)}, {vr(vRes)}, {vr(vRes+1)}")
    e(f"v_add_f32 {vr(vRes+2)}, {vr(vRes+2)}, {vr(vRes+3)}")
    e("s_nop 1")
    e(f"v_permlane16_swap_b32 {vr(vRes)}, {vr(vRes+2)}")
    e(f"v_add_f32 {vr(vRes)}, {vr(vRes)}, {vr(vRes+2)}")
    e(f"ds_write_b32 {vr(vCw)}, {vr(vRes)}")
    e(f"s_cmp_lg_u32 {sr(sW)}, 0")
    e("s_mov_b32 exec_hi, 0")
    e("s_waitcnt lgkmcnt(0)")
    e("s_barrier")
    stamp9(6)
    e("s_cbranch_scc1 L_done0")
    for w in range(4):
        e(f"ds_read_b32 {vr(vRes+w)}, {vr(vCr)} offset:{128*w}")
    e("s_waitcnt lgkmcnt(0)")
    e(f"v_add_f32 {vr(vRes)}, {vr(vRes)}, {vr(vRes+1)}")
    e(f"v_add_f32 {vr(vRes+2)}, {vr(vRes+2)}, {vr(vRes+3)}")
    e(f"v_add_f32 {vr(vRes)}, {vr(vRes)}, {vr(vRes+2)}")
    e(f"v_cvt_pk_bf16_f32 {vr(vRes)}, {vr(vRes)}, {vr(vRes)}")
    e(f"buffer_store_short {vr(vRes)}, {vr(vOa)}, {sr(sOut,4)}, 0 offen")
    g.lab("L_done0")
    e("s_mov_b64 exec, -1")
    e(f"s_xor_b32 {sr(sP)}, {sr(sP)}, 1")
    e("s_cbranch_scc1 L_cons")
    g.lab("L_done")
    if PROF:
        e("s_waitcnt vmcnt(0)")
        stamp(7)
        e("s_getreg_b32 s96, hwreg(HW_REG_XCC_ID)")
        e("s_getreg_b32 s97, hwreg(HW_REG_HW_ID)")
        e("s_waitcnt lgkmcnt(0)")
        e(f"s_lshl_b32 {sr(sT0)}, s2, 2")
        e(f"s_add_u32 {sr(sT0)}, {sr(sT0)}, {sr(sW)}")
        e(f"s_lshl_b32 {sr(sT0)}, {sr(sT0)}, 6")
        e(f"s_add_u32 {sr(sT0)}, {sr(sT0)}, 0x200000")
        e(f"v_mov_b32 v20, {sr(sT0)}")
        for i in range(8):
            e(f"v_mov_b32 v{24+i}, s{80+2*i}")
        e("v_mov_b32 v32, s96")
        e("v_mov_b32 v33, s97")
        e("s_mov_b64 exec, 1")
        e(f"buffer_store_dwordx4 v[24:27], v20, {sr(sWS,4)}, 0 offen")
        e(f"buffer_store_dwordx4 v[28:31], v20, {sr(sWS,4)}, 0 offen offset:16")
        e(f"buffer_store_dwordx2 v[32:33], v20, {sr(sWS,4)}, 0 offen offset:32")
    g.lab("L_exit")
    e("s_endpgm")
    g.lab("L_finA")
    e(f"buffer_load_dwordx4 {vr(vZc,4)}, {vr(vYo)}, {sr(sWS,4)}, 0 offen sc1")
    e("s_waitcnt vmcnt(0)")
    e("s_branch L_fin2")

    ret = lambda: e(f"s_setpc_b64 {sr(sRet,2)}")
    g.lab("L_AQ")
    qloads(2, sQa, None, QSC)
    ret()
    g.lab("L_AK")
    qget(2, sQa, vQA, "A")
    e("s_nop 1")
    X = [vP, 72, vQl, vQl + 16]
    for n in range(4): qk(aA + 16 * n, vQA, X[n])
    for n in range(4): fold(X[n], vSA + 4 * n, True)
    e(f"v_max3_f32 {vr(vM2)}, {vr(vSA)}, {vr(vSA+1)}, {vr(vSA+2)}")
    for i in range(3, 15, 2):
        e(f"v_max3_f32 {vr(vM2)}, {vr(vM2)}, {vr(vSA+i)}, {vr(vSA+i+1)}")
    e(f"v_max_f32 {vr(vM2)}, {vr(vM2)}, {vr(vSA+15)}")
    gmax(vM2)
    e(f"v_mul_f32 {vr(vM2)}, {sr(sC)}, {vr(vM2)}")
    ret()
    g.lab(f"L_AV0")
    for n in range(4):
        if n == 2:
            ret()
            g.lab(f"L_AV1")
        probs(vSA + 4 * n, vM2, vL2)
        e("s_nop 1")
        pv(vVb + 16 * n, vO2)
    vAa, vAb, vPm, vPo = vSA, vSA + 1, vSA + 4, vQl
    e(f"v_lshlrev_b32 {vr(vAa)}, 4, v0")
    e(f"v_add_u32 {vr(vAa)}, {LDS_OT}, {vr(vAa)}")
    e(f"s_lshl4_add_u32 {sr(sT0)}, {sr(sW)}, {LDS_M}")
    e(f"v_and_b32 {vr(vAb)}, 8, {vr(vCc)}")
    e(f"v_add_u32 {vr(vAb)}, {sr(sT0)}, {vr(vAb)}")
    gmax(vL2, "v_add_f32")
    e(f"ds_write_b128 {vr(vAa)}, {vr(vO2,4)}")
    e(f"ds_write_b64 {vr(vAb)}, {vr(vM2,2)}")
    e(f"v_mov_b32 {vr(vAa)}, {LDS_CNT + 4}")
    e(f"v_mov_b32 {vr(vAb)}, 1")
    e("s_mov_b64 exec, 1")
    e("s_waitcnt lgkmcnt(0)")
    e(f"ds_add_rtn_u32 {vr(vAb)}, {vr(vAa)}, {vr(vAb)}")
    e("s_mov_b64 exec, -1")
    tail_setup()
    e("s_waitcnt lgkmcnt(0)")
    e(f"v_readfirstlane_b32 {sr(sT0)}, {vr(vAb)}")
    e(f"v_lshlrev_b32 {vr(vAa)}, 4, {vr(vLane)}")
    e(f"v_lshrrev_b32 {vr(vT1)}, 5, {vr(vLane)}")
    e(f"v_add_u32 {vr(vT0)}, {LDS_OT}, {vr(vAa)}")
    e(f"v_lshlrev_b32 {vr(vAb)}, 3, {vr(vT1)}")
    e(f"s_cmp_eq_u32 {sr(sT0)}, 3")
    e("s_cbranch_scc1 L_AM")
    ret()
    g.lab("L_AM")
    e(f"v_add_u32 {vr(vAb)}, {LDS_M}, {vr(vAb)}")
    for w in range(4):
        e(f"ds_read_b64 {vr(vPm+2*w,2)}, {vr(vAb)} offset:{16*w}")
    for w in range(4):
        e(f"ds_read_b128 {vr(vPo+4*w,4)}, {vr(vT0)} offset:{1024*w}")
    e(f"v_lshlrev_b32 {vr(vAb)}, 4, {vr(vCc)}")
    e(f"v_lshl_add_u32 {vr(vAb)}, {vr(vT1)}, 6, {vr(vAb)}")
    e(f"s_lshl_b32 {sr(sT0)}, {sr(sAr)}, 10")
    e(f"s_add_u32 {sr(sT0)}, {sr(sT0)}, {AR_OFF}")
    e(f"s_lshl_b32 {sr(sT1)}, {sr(sAr)}, 7")
    e(f"s_add_u32 {sr(sT1)}, {sr(sT1)}, {AF_OFF}")
    e("s_waitcnt lgkmcnt(4)")
    e(f"v_max3_f32 {vr(vE)}, {vr(vPm)}, {vr(vPm+2)}, {vr(vPm+4)}")
    e(f"v_max_f32 {vr(vE)}, {vr(vE)}, {vr(vPm+6)}")
    for w in range(4):
        e(f"v_sub_f32 {vr(vPm+2*w)}, {vr(vPm+2*w)}, {vr(vE)}")
    for w in range(4):
        e(f"v_exp_f32 {vr(vPm+2*w)}, {vr(vPm+2*w)}")
    e(f"v_xor_b32 {vr(vE+2)}, {sr(sNon)}, {vr(vE)}")
    e(f"v_mul_f32 {vr(vE+1)}, {vr(vPm)}, {vr(vPm+1)}")
    for w in range(1, 4):
        e(f"v_fmac_f32 {vr(vE+1)}, {vr(vPm+2*w)}, {vr(vPm+2*w+1)}")
    e("s_waitcnt lgkmcnt(0)")
    for i in range(4):
        e(f"v_mul_f32 {vr(vPo+i)}, {vr(vPm)}, {vr(vPo+i)}")
    e(f"v_xor_b32 {vr(vE+3)}, {sr(sNon)}, {vr(vE+1)}")
    for w in range(1, 4):
        for i in range(4):
            e(f"v_fmac_f32 {vr(vPo+i)}, {vr(vPm+2*w)}, {vr(vPo+4*w+i)}")
    for d in range(2):
        e(f"v_cvt_pk_bf16_f32 {vr(vO2+d)}, {vr(vPo+2*d)}, {vr(vPo+2*d+1)}")
    for d in range(2):
        e(f"v_xor_b32 {vr(vO2+2+d)}, {sr(sNon)}, {vr(vO2+d)}")
    if not opts.get("xs", 0):
        e(f"buffer_store_dwordx4 {vr(vO2,4)}, {vr(vAa)}, {sr(sWS,4)}, {sr(sT0)} offen sc1")
        e(f"s_mov_b32 exec_lo, 15"); e(f"s_mov_b32 exec_hi, 15")
        e(f"buffer_store_dwordx4 {vr(vE,4)}, {vr(vAb)}, {sr(sWS,4)}, {sr(sT1)} offen sc1")
        e("s_mov_b64 exec, -1")
    ret()
    if LT:
        g.lab("L_LA")
        e(f"v_xor_b32 {vr(vT1)}, {sr(sNon)}, {vr(vLt)}")
        e(f"v_ashrrev_i32 {vr(vLt)}, 16, {vr(vLt)}")
        e(f"v_cmp_eq_u16 vcc, 0, {vr(vT1)}")
        e(f"v_cvt_f32_i32 {vr(vLt)}, {vr(vLt)}")
        e(f"s_bcnt1_i32_b64 {sr(sT0)}, vcc")
        e(f"v_cndmask_b32 {vr(vLt)}, 0, {vr(vLt)}, vcc")
        e(f"v_cvt_f32_u32 {vr(vT1)}, {sr(sT0)}")
        e(f"s_cmp_lt_u32 {sr(sT0)}, {opts.get('ltn', 24)}")
        e(f"v_rcp_f32 {vr(vT1)}, {vr(vT1)}")
        for rot in (8, 4, 2, 1):
            e(f"v_add_f32_dpp {vr(vLt)}, {vr(vLt)}, {vr(vLt)} row_ror:{rot} {DP}")
            e("s_nop 1")
        gmax(vLt, "v_add_f32")
        e(f"v_mul_f32 {vr(vLt)}, {vr(vLt)}, {vr(vT1)}")
        e(f"v_cvt_i32_f32 {vr(vLt)}, {vr(vLt)}")
        e("s_nop 0")
        e(f"v_readfirstlane_b32 {sr(sT0)}, {vr(vLt)}")
        e(f"s_cbranch_scc1 L_LA1")
        e(f"s_sub_i32 {sr(sT0)}, {sr(sT0)}, {opts.get('tg', 800)*16//10}")
        e(f"s_sub_i32 {sr(sSch)}, {sr(sSch)}, {sr(sCor)}")
        e(f"s_add_i32 {sr(sSch)}, {sr(sSch)}, {sr(sT0)}")
        e(f"s_mov_b32 {sr(sCor)}, {sr(sT0)}")
        g.lab("L_LA1")
        ret()
    g.lab("L_TR")
    e(f"v_mov_b32_dpp {vr(vM)}, {vr(vM)} quad_perm:[0,0,0,0] {DP}")
    gmax(vM)
    e(f"s_lshl2_add_u32 {sr(sT0)}, {sr(sW)}, {LDS_CNT + 16}")
    e(f"v_mul_f32 {vr(vM)}, {sr(sC)}, {vr(vM)}")
    e(f"v_mov_b32 {vr(vT0)}, {sr(sT0)}")
    e(f"s_mov_b32 {sr(sIt)}, 0")
    e(f"ds_write_b32 {vr(vT0)}, {vr(vM)}")
    ret()

    g.lab("L_T1")
    e(f"v_add_u32 {vr(vT0)}, 0x10000, {vr(vTR)}")
    e(f"v_add_u32 {vr(vT1)}, 0x20000, {vr(vTR)}")
    for t in range(9):
        for j in range(4):
            for hf in range(2):
                off = t*16384 + j*4096 + hf*2048
                a = (vTR, vT0, vT1)[off >> 16]
                e(f"ds_read_b64_tr_b16 {ar(aW+4*(t*4+j)+hf*2,2)}, {vr(a)} offset:{off & 0xffff}")
    e("s_waitcnt lgkmcnt(0)")
    g.lab("L_ret")
    ret()

    hdr = HEADER
    hdr += f"; @launch grid=(256,1,1) block=(256,1,1) lds={LDS_TOTAL}\n"
    hdr += '.amdgcn_target "amdgcn-amd-amdhsa--gfx950"\n.text\n'
    hdr += f".globl {KN}\n.p2align 8\n.type {KN},@function\n"
    tail = f""".section .rodata,"a"
.p2align 6
.amdhsa_kernel {KN}
  .amdhsa_next_free_vgpr 512
  .amdhsa_next_free_sgpr 102
  .amdhsa_accum_offset 256
  .amdhsa_group_segment_fixed_size 0
  .amdhsa_kernarg_size 104
  .amdhsa_user_sgpr_count 2
  .amdhsa_user_sgpr_kernarg_segment_ptr 1
  .amdhsa_system_sgpr_workgroup_id_x 1
.end_amdhsa_kernel
"""
    return hdr + g.text() + tail

if __name__ == "__main__":
    out = sys.argv[1]
    opts = {}
    for a in sys.argv[2:]:
        k, v = a.split("=")
        opts[k] = int(v, 0)
    open(out, "w").write(gen(opts))
```

```python
import sys, math, struct

KN = "concat_heads__sliding_block_cached__mha_block_cached__decode_kernel"

def f32bits(x):
    return struct.unpack("<I", struct.pack("<f", x))[0]

class Gen:
    def __init__(self):
        self.lines = []
        self.q = []
    def e(self, s):
        self.lines.append("    " + s)
    def lab(self, s):
        self.lines.append(s + ":")
    def vm(self, s, tag=None):
        self.e(s)
        self.q.append(tag)
    def wait_tag(self, tag):
        idx = max(i for i, t in enumerate(self.q) if t == tag)
        n = len(self.q) - 1 - idx
        assert n <= 63, n
        self.e(f"s_waitcnt vmcnt({n})")
    def text(self):
        return "\n".join(self.lines) + "\n"

def vr(a, n=1):
    return f"v{a}" if n == 1 else f"v[{a}:{a+n-1}]"
def ar(a, n=1):
    return f"a{a}" if n == 1 else f"a[{a}:{a+n-1}]"
def sr(a, n=1):
    return f"s{a}" if n == 1 else f"s[{a}:{a+n-1}]"

HEADER = open("concat_heads__sliding_block_cached__mha_block_cached__decode.s.ref").read().split("; Override launch")[0]

NROWS = 256
YROW = 1536
HF_OFF = 256
Q_OFF = 0x400000
LT_OFF = 1024
Y_OFF = 2048
ORG_OFF = Y_OFF + NROWS * YROW
AF_OFF = ORG_OFF + 2048
AR_OFF = AF_OFF + 32768
WS_END = Q_OFF + 16 * 32768
LDS_OT = 147456
OT_STRIDE = 272
OT_BYTES = 16 * OT_STRIDE
LDS_M = LDS_OT + OT_BYTES
LDS_CNT = LDS_M + 128
LDS_SC = LDS_CNT + 64
LDS_TOTAL = LDS_SC + 176 * 64
CSCALE = (128 ** -0.5) * math.log2(math.e)
OOB = 0x40000000
assert AR_OFF + 256 * 1024 <= 0x200000 and AF_OFF % 128 == 0 and LDS_TOTAL <= 163840

def gen(opts):
    U = opts.get("u", 4)
    NT = " nt"
    PROF = opts.get("prof", 0)
    SLEEP = opts.get("sleep", 16)
    SB = opts.get("sb", 37)
    WS_BYTES = WS_END
    global Y_OFF, AR_OFF, AF_OFF
    YS, ARS, AFS = YROW, 1024, 128
    RS = opts.get("rs", 0)
    if RS:
        WS_BYTES = 0x800000 + 256 * RS
        Y_OFF, YS = 0x800000, RS
        if opts.get("rsa", 1): AR_OFF, AF_OFF, ARS, AFS = Y_OFF + 4096, Y_OFF + 5120, RS, RS
    QW = opts.get('qw', 3)
    RM = opts.get("rm", 25)
    RMA = opts.get("rma", 25)
    RB = [0, opts.get("r1", 171), opts.get("r2", 342), 512]
    assert all(4 * SB + 4 <= RB[i + 1] - RB[i] <= 176 for i in range(3))
    FLV = opts.get("flv", -1)
    PSPL = opts.get("pspl", 0)
    PSPV = opts.get("pspv", 0)
    MHV = 0x0f0f0f0f
    LW = [int(ch, 16) for ch in "%x" % opts.get("lw", 0x8642)]
    g = Gen()
    e = g.e
    sW, sRet, sE, sNon, sOut = 3, 4, 6, 7, 12
    sWoff, sSpin = 34, 35
    sK, sV, sWQ, sX, sWO, sWS = 36, 40, 44, 48, 52, 56
    sAK, sAV = sWQ, sX
    sRot, sAL, sT0, sT1, sT2, sT3 = 60, 61, 62, 63, 64, 65
    sOff, sIt, sC, sSelLo, sSelHi, sLdsW = 66, 67, 68, 69, 70, 71
    sRem, sR0, sAr, sQo, sIsH, sDt, sDoff, sDlds = 72, 73, 74, 75, 76, 77, 78, 79
    sKVo, sWoO, sAo, sPq, sQa, sL = 96, 97, 98, 99, 100, 101
    sX15 = 96
    sSt, sCl, sCi, sSrc = 44, 47, 45, 46
    sDyn, sLim, sL0, sBase = 48, 49, 50, 51
    sLev, sSch, sNow, sOff0 = 17, 18, 20, 22
    sTi, sPh = 26, 30
    sPub, sCor, sLimK, sTau = 16, 23, 24, 25
    PM = [int(ch, 16) + 8 for ch in "%013x" % (opts.get("perm", 0x10712345689abc) & (16**13 - 1))]
    assert sorted(PM) == list(range(8, 21)) and PM[11:] == [19, 20] and PM[0] <= 11 and PM[3] <= 11 and PM[4:] == sorted(PM[4:]), PM
    HOLE = sum(1 << p for p in PM[:4] if p > PM[4])
    TMASK = sum(1 << p for p in PM[4:])
    def phys(src, add, mask=None):
        e(f"s_add_u32 {sr(sX15)}, {sr(src)}, {add}")
        runs = []
        for i in range(9):
            if runs and runs[-1][1] + runs[-1][2] == PM[4 + i]: runs[-1][2] += 1
            else: runs.append([i, PM[4 + i], 1])
        for n, (i, p, w) in enumerate(runs):
            d = sOff if n == 0 else sWoff
            e(f"s_bfe_u32 {sr(d)}, {sr(sX15)}, {(w << 16) | i}")
            e(f"s_lshl_b32 {sr(d)}, {sr(d)}, {p}")
            if n: e(f"s_or_b32 {sr(sOff)}, {sr(sOff)}, {sr(sWoff)}")
        if mask: e(f"s_and_b32 {sr(sOff)}, {sr(sOff)}, {mask}")
    def adv():
        e(f"s_add_u32 {sr(sOff)}, {sr(sOff)}, {HOLE + (1 << PM[6])}")
        e(f"s_and_b32 {sr(sOff)}, {sr(sOff)}, {TMASK}")
        e(f"s_add_u32 {sr(sL)}, {sr(sL)}, 256")
    assert all(p > PM[6] for p in PM[:4] if p > PM[4])
    vLane, vG, vCc = 1, 2, 3
    vK, vV, vSt0, vSt1, vTR, vU0 = 4, 5, 6, 7, 8, 9
    vT0, vT1 = 10, 11
    vM, vL, vM2, vL2 = 12, 13, 14, 15
    vS, vMk = 16, 20
    vE, vA, vMn = 24, 28, 29
    vSa, vSb = 30, 31
    vO, vO2 = 32, 36
    vP = 48
    vQ, vQA = 64, 68
    vVb = 96
    vWOj = 160
    vSA = 164
    vTk = 202
    vAw, vAm, vAr, vAx = 204, 205, 206, 207
    vYo, vMlo, vCw, vCr, vOa, vWm = 196, 197, 198, 199, 200, 201
    vEp = 152
    vHf, vHa = 162, 163
    vLt = 180
    vNl = 182
    vQa = 161
    vQl = 208
    vTmp = 240
    aW = 64
    aA = 64
    DP = "row_mask:0xf bank_mask:0xf"
    def stamp9(i):
        if PROF == 9: e(f"s_memrealtime s[{80+2*i}:{81+2*i}]")
    def stamp(i):
        if PROF in (9, 11):
            if i in (0, 5, 7): e(f"s_memrealtime s[{80+2*i}:{81+2*i}]")
            if i == 6: e(f"s_memrealtime s[86:87]")
        elif PROF in (1, 3) or (PROF == 2 and i in (0, 1, 2, 7)):
            e(f"s_memrealtime s[{80+2*i}:{81+2*i}]")
    def stamp2(i):
        if PROF == 2: e(f"s_memrealtime s[{80+2*i}:{81+2*i}]")
    def srd_tail(s, size):
        e(f"s_mov_b32 {sr(s+2)}, {size}")
        e(f"s_mov_b32 {sr(s+3)}, 0x00020000")
    def add64(d, s, off):
        e(f"s_add_u32 {sr(d)}, {sr(s)}, {off}")
        e(f"s_addc_u32 {sr(d+1)}, {sr(s+1)}, 0")
    def issue(isK, reg, srd, tag=None, split=0):
        for j in range(4):
            if isK: ld = f"buffer_load_dwordx4 {ar(reg+4*j,4)}, {vr(vK)}, {sr(srd,4)}, {sr(sOff)} offen offset:{((j&1) << PM[0]) + ((j>>1) << PM[3])}{NT}"
            else: ld = f"buffer_load_dwordx4 {vr(reg+4*j,4)}, {vr(vV)}, {sr(srd,4)}, {sr(sOff)} offen offset:{((j&1) << PM[0]) + ((j>>1) << PM[3])}{NT}"
            if j < split:
                m = 0x0000ffff if isK else MHV
                e(f"s_mov_b32 exec_lo, {m}"); e(f"s_mov_b32 exec_hi, {m}")
                g.vm(ld, tag)
                e("s_not_b64 exec, exec")
                g.vm(ld, tag)
                e("s_mov_b64 exec, -1")
            else:
                g.vm(ld, tag)
    def throttle(uid):
        if "pt" in opts:
            th = [int(ch, 16) for ch in "%04x" % opts["pt"]][int(uid[1:])]
            e(f"s_cmp_ge_i32 {sr(sLev)}, {th}")
            e(f"s_cbranch_scc1 L_th{uid}")
            e(f"s_waitcnt vmcnt({opts.get('pm', 4)})")
            e(f"s_cmp_ge_i32 {sr(sLev)}, {th - opts.get('ps', 8)}")
            e(f"s_cbranch_scc1 L_th{uid}")
            e(f"s_waitcnt vmcnt({opts.get('pq', 2)})")
            g.lab(f"L_th{uid}")
            return
        for n, w in enumerate(LW):
            e(f"s_cmp_ge_i32 {sr(sLev)}, {len(LW) - n}")
            e(f"s_cbranch_scc1 L_th{uid}")
            e(f"s_waitcnt vmcnt({w})")
        g.lab(f"L_th{uid}")

    g.lab(KN)
    e("s_cmp_ge_u32 s2, 256")
    e("s_cbranch_scc1 L_exit")
    stamp(0)
    e("s_memrealtime s[94:95]")
    e("s_load_dwordx16 s[8:23], s[0:1], 0")
    e("s_load_dwordx8 s[24:31], s[0:1], 64")
    e("s_load_dwordx2 s[32:33], s[0:1], 96")
    e(f"v_lshrrev_b32 {vr(vT0)}, 6, v0")
    e(f"v_mov_b32 {vr(vT1)}, {LDS_CNT}")
    for i in range(4):
        e(f"v_mov_b32 {vr(vO+i)}, 0")
    e(f"v_readfirstlane_b32 {sr(sW)}, {vr(vT0)}")
    e(f"ds_write_b128 {vr(vT1)}, {vr(vO,4)}")
    e(f"v_and_b32 {vr(vLane)}, 63, v0")
    e(f"v_bfe_u32 {vr(vG)}, v0, 4, 2")
    e(f"v_and_b32 {vr(vCc)}, 15, v0")
    vWQ, vX, vXs, vXo, vQs = 24, 25, 96, 120, 26
    e(f"s_and_b32 {sr(sT0)}, s2, 3")
    e(f"s_mul_i32 {sr(sT1)}, {sr(sT0)}, 144")
    e(f"v_mad_u32_u24 {vr(vX)}, {vr(vG)}, 36, {sr(sT1)}")
    e(f"s_bfe_u32 {sr(sT1)}, s2, 0x50002")
    e(f"s_lshl_b32 {sr(sT2)}, {sr(sT1)}, 8")
    e(f"v_lshl_add_u32 {vr(vWQ)}, {vr(vCc)}, 4, {sr(sT2)}")
    e(f"v_lshl_add_u32 {vr(vWQ)}, {vr(vX)}, 13, {vr(vWQ)}")
    e(f"v_lshrrev_b32 {vr(vT0)}, 3, {vr(vCc)}")
    e(f"v_mul_u32_u24 {vr(vT0)}, 1152, {vr(vT0)}")
    e(f"v_lshl_add_u32 {vr(vX)}, {vr(vX)}, 1, {vr(vT0)}")
    e(f"s_lshr_b32 {sr(sPq)}, s2, 7")
    srd_tail(sWQ, 576 * 8192)
    srd_tail(sX, 2304)
    srd_tail(sWS, WS_BYTES)
    e(f"s_cmp_eq_u32 {sr(sPq)}, 0")
    e("s_waitcnt lgkmcnt(0)")
    e(f"s_cselect_b64 {sr(sWQ,2)}, s[14:15], s[24:25]")
    e(f"s_cselect_b64 {sr(sX,2)}, s[8:9], s[18:19]")
    e(f"s_load_dword {sr(sE)}, s[32:33], 0")
    e(f"s_cmp_lg_u32 {sr(sW)}, {QW}")
    e("s_cbranch_scc1 L_nq0")
    g.q = []
    for i in range(4):
        g.vm(f"buffer_load_dwordx4 {vr(vXs+4*i,4)}, {vr(vX)}, {sr(sX,4)}, 0 offen offset:{16*i}", "x")
    g.vm(f"buffer_load_dwordx2 {vr(vXs+16,2)}, {vr(vX)}, {sr(sX,4)}, 0 offen offset:64", "x")
    for n in range(36):
        if n: e(f"s_mov_b32 {sr(sWoff)}, {n*8192}")
        g.vm(f"buffer_load_dwordx4 {ar(4*n,4)}, {vr(vWQ)}, {sr(sWQ,4)}, {sr(sWoff) if n else 0} offen" + (NT if opts.get("wqnt", 1) else ""), ("wq", n))
        if n == opts.get("qbar", 15): e("s_barrier")
    stamp2(3)
    e("s_branch L_nq1")
    g.lab("L_nq0")
    e("s_barrier")
    g.lab("L_nq1")
    e(f"s_mov_b32 {sr(sWS)}, s32"); e(f"s_mov_b32 {sr(sWS+1)}, s33")
    e(f"v_and_b32 {vr(vT0)}, 1, {vr(vLane)}")
    e(f"v_lshlrev_b32 {vr(vT0)}, 4, {vr(vT0)}")
    e(f"v_mov_b32 {vr(vT1)}, 0xffff")
    e(f"v_lshlrev_b32 {vr(vT0)}, {vr(vT0)}, {vr(vT1)}")
    e(f"v_bfe_u32 {vr(vT1)}, {vr(vLane)}, 1, 2")
    for d in range(4):
        e(f"v_cmp_eq_u32 vcc, {d}, {vr(vT1)}")
        e(f"v_cndmask_b32 {vr(vMk+d)}, 0, {vr(vT0)}, vcc")
    e(f"s_cbranch_scc1 L_nq2")
    e(f"s_lshl3_add_u32 {sr(sT0)}, {sr(sPq)}, {sr(sT0)}")
    e(f"s_lshl_b32 {sr(sT0)}, {sr(sT0)}, 15")
    e(f"s_lshl_b32 {sr(sT1)}, {sr(sT1)}, 10")
    e(f"s_add_u32 {sr(sT0)}, {sr(sT0)}, {sr(sT1)}")
    e(f"s_add_u32 {sr(sT0)}, {sr(sT0)}, {Q_OFF}")
    e(f"v_and_b32 {vr(vT0)}, 31, {vr(vLane)}")
    e(f"v_lshl_add_u32 {vr(vQs)}, {vr(vT0)}, 4, {sr(sT0)}")
    e(f"v_lshrrev_b32 {vr(vT0)}, 5, {vr(vLane)}")
    e(f"v_lshl_add_u32 {vr(vQs)}, {vr(vT0)}, 17, {vr(vQs)}")
    e(f"s_mov_b32 {sr(sSelLo)}, 0x01000100")
    e(f"s_mov_b32 {sr(sSelHi)}, 0x03020302")
    e("s_waitcnt lgkmcnt(0)")
    e(f"s_add_u32 {sr(sT2)}, {sr(sE)}, 1")
    e(f"s_mul_i32 {sr(sNon)}, {sr(sT2)}, 0x9E3779B1")
    e(f"s_or_b32 {sr(sNon)}, {sr(sNon)}, 1")
    stamp2(5)
    g.wait_tag("x")
    stamp2(6)
    def xop(n):
        t = vXo + 8 * (n & 3)
        e(f"v_perm_b32 {vr(t+4)}, {vr(vXs+(n>>1))}, {vr(vXs+(n>>1))}, {sr(sSelHi if n & 1 else sSelLo)}")
        for d in range(4):
            e(f"v_and_b32 {vr(t+d)}, {vr(t+4)}, {vr(vMk+d)}")
    xop(0)
    for n in range(36):
        if n < 35: xop(n + 1)
        g.wait_tag(("wq", n))
        acc = vr(vQ + 4 * (n & 1), 4)
        e(f"v_mfma_f32_16x16x32_bf16 {acc}, {vr(vXo+8*(n&3),4)}, {ar(4*n,4)}, {acc if n > 1 else 0}")
    e("s_nop 7")
    e("s_nop 0")
    for i in range(4):
        e(f"v_add_f32 {vr(vQ+i)}, {vr(vQ+i)}, {vr(vQ+4+i)}")
    for i in range(4):
        e(f"v_xor_b32 {vr(vQ+4+i)}, {sr(sNon)}, {vr(vQ+i)}")
    e(f"buffer_store_dwordx4 {vr(vQ,4)}, {vr(vQs)}, {sr(sWS,4)}, 0 offen sc1")
    e(f"buffer_store_dwordx4 {vr(vQ+4,4)}, {vr(vQs)}, {sr(sWS,4)}, 0 offen offset:512 sc1")
    stamp(1)
    OMX = opts.get("omax", 0)
    ORG = opts.get("org", 0)
    e(f"s_cmp_gt_u32 s2, {7 if ORG else 0}")
    e("s_cbranch_scc1 L_nq3")
    if ORG == 2:
        e(f"s_memrealtime {sr(sT2,2)}")
        e("s_waitcnt lgkmcnt(0)")
    else: e(f"s_mov_b32 {sr(sT2)}, s94")
    e(f"s_xor_b32 {sr(sT0)}, {sr(sT2)}, {sr(sNon)}")
    e(f"v_mov_b32 {vr(vS)}, {sr(sT2)}")
    e(f"v_mov_b32 {vr(vS+1)}, {sr(sT0)}")
    e(f"v_lshlrev_b32 {vr(vT0)}, 7, {vr(vCc)}")
    e(f"s_lshl3_add_u32 {sr(sT0)}, s2, {ORG_OFF}")
    e(f"s_mov_b64 exec, 0xffff")
    e(f"buffer_store_dwordx2 {vr(vS,2)}, {vr(vT0)}, {sr(sWS,4)}, {sr(sT0)} offen sc1")
    e(f"s_mov_b64 exec, -1")
    g.lab("L_nq3")
    g.lab("L_nq2")
    g.q = []
    e(f"v_and_b32 {vr(vK)}, 3, {vr(vCc)}")
    e(f"v_lshlrev_b32 {vr(vK)}, 4, {vr(vK)}")
    e(f"v_lshl_add_u32 {vr(vK)}, {vr(vG)}, 6, {vr(vK)}")
    e(f"v_lshrrev_b32 {vr(vT0)}, 2, {vr(vCc)}")
    e(f"v_lshl_add_u32 {vr(vQa)}, {vr(vT0)}, 15, {vr(vK)}")
    e(f"v_lshlrev_b32 {vr(vV)}, 4, {vr(vCc)}")
    for i in range(2):
        e(f"v_bfe_u32 {vr(vT1)}, {vr(vCc)}, {i+2}, 1")
        e(f"v_lshl_add_u32 {vr(vK)}, {vr(vT1)}, {PM[i+1]}, {vr(vK)}")
        e(f"v_bfe_u32 {vr(vT1)}, {vr(vG)}, {i}, 1")
        e(f"v_lshl_add_u32 {vr(vV)}, {vr(vT1)}, {PM[i+1]}, {vr(vV)}")
    e(f"s_and_b32 {sr(sT0)}, s2, 7")
    e(f"s_lshr_b32 {sr(sT1)}, s2, 3")
    e(f"s_bfe_u32 {sr(sT2)}, s2, 0x10004")
    HM = opts.get("hm", 0)
    if HM & 1:
        e(f"s_and_b32 {sr(sT3)}, {sr(sT0)}, 6")
        e(f"s_add_u32 {sr(sT3)}, {sr(sT3)}, {sr(sT0)}")
        e(f"s_lshl1_add_u32 {sr(sT2)}, {sr(sT2)}, {sr(sT3)}")
    else: e(f"s_lshl1_add_u32 {sr(sT2)}, {sr(sT0)}, {sr(sT2)}")
    def head(ii):
        if HM & 2:
            e(f"s_and_b32 {sr(sWoO)}, {sr(ii)}, 2")
            e(f"s_add_u32 {sr(ii)}, {sr(ii)}, {sr(sWoO)}")
            e(f"s_and_b32 {sr(sWoO)}, {sr(sT0)}, 6")
            e(f"s_add_u32 {sr(sT0)}, {sr(sT0)}, {sr(sWoO)}")
            e(f"s_lshl1_add_u32 {sr(sT0)}, {sr(sT0)}, {sr(ii)}")
        else: e(f"s_lshl2_add_u32 {sr(sT0)}, {sr(sT0)}, {sr(ii)}")
    e(f"s_bfe_u32 {sr(sT3)}, s2, 0x10003")
    e(f"s_lshl_b32 {sr(sQa)}, {sr(sT3)}, 17")
    e(f"s_lshl_b32 {sr(sAo)}, {sr(sT2)}, 11")
    e(f"s_add_u32 {sr(sQa)}, {sr(sQa)}, {sr(sAo)}")
    e(f"s_add_u32 {sr(sQa)}, {sr(sQa)}, {Q_OFF}")
    e(f"s_lshl4_add_u32 {sr(sT2)}, {sr(sT3)}, {sr(sT2)}")
    e(f"s_lshl_b32 {sr(sAo)}, {sr(sT2)}, 21")
    e(f"s_add_u32 {sr(sAo)}, {sr(sAo)}, 0x180000")
    e(f"s_lshr_b32 {sr(sT3)}, s2, 5")
    e(f"s_lshl3_add_u32 {sr(sAr)}, {sr(sT2)}, {sr(sT3)}")
    e(f"s_mul_i32 {sr(sAL)}, {sr(sT2)}, {RMA}")
    e(f"s_lshl4_add_u32 {sr(sAL)}, {sr(sT3)}, {sr(sAL)}")
    e(f"s_add_u32 {sr(sAL)}, {sr(sAL)}, {sr(sW)}")
    add64(sAK, 10, sr(sAo)); add64(sAV, 12, sr(sAo))
    e(f"s_mov_b32 {sr(sAK+2)}, 0x80000"); e(f"s_mov_b32 {sr(sAV+2)}, 0x80000")
    def a_unit(n):
        phys(sAL, 4 * (n & 3), 0x7ffff)
        if n < 4: issue(True, aA + 16 * n, sAK, "a", PSPL)
        else: issue(False, vVb + 16 * (n - 4), sAV, "a", PSPV)
    T0N = opts.get("t0n", 2)
    HW = opts.get("hw", 0)
    if HW:
        e(f"s_cmp_ge_u32 {sr(sT1)}, 24")
        e("s_cbranch_scc1 L_setH")
    for n in range(T0N): a_unit(n)
    stamp2(4)
    if not HW:
        e(f"s_cmp_ge_u32 {sr(sT1)}, 24")
        e("s_cbranch_scc1 L_setH")
    e(f"s_mov_b32 {sr(sIsH)}, 0")
    e(f"s_mul_i32 {sr(sT2)}, {sr(sT1)}, 171")
    e(f"s_lshr_b32 {sr(sT2)}, {sr(sT2)}, 9")
    e(f"s_mul_i32 {sr(sT3)}, {sr(sT2)}, 3")
    e(f"s_sub_u32 {sr(sT1)}, {sr(sT1)}, {sr(sT3)}")
    if "ra" in opts:
        if "rc" in opts:
            e(f"s_lshr_b32 {sr(sRot)}, {sr(sT2)}, 1")
            e(f"s_mul_i32 {sr(sRot)}, {sr(sRot)}, {opts['ra']}")
            e(f"s_and_b32 {sr(sT3)}, {sr(sT2)}, 1")
            e(f"s_mul_i32 {sr(sT3)}, {sr(sT3)}, {opts['rc']}")
            e(f"s_add_u32 {sr(sRot)}, {sr(sRot)}, {sr(sT3)}")
        else: e(f"s_mul_i32 {sr(sRot)}, {sr(sT2)}, {opts['ra']}")
        e(f"s_mul_i32 {sr(sT3)}, {sr(sT0)}, {opts.get('rb', 3)}")
        e(f"s_add_u32 {sr(sRot)}, {sr(sRot)}, {sr(sT3)}")
    e(f"s_lshr_b32 {sr(sT3)}, {sr(sT2)}, 1")
    head(sT3)
    e(f"s_and_b32 {sr(sT2)}, {sr(sT2)}, 1")
    e(f"s_lshl_b32 {sr(sQo)}, {sr(sT2)}, 17")
    e(f"s_lshl_b32 {sr(sT3)}, {sr(sT0)}, 10")
    e(f"s_add_u32 {sr(sQo)}, {sr(sQo)}, {sr(sT3)}")
    e(f"s_add_u32 {sr(sQo)}, {sr(sQo)}, {Q_OFF + 8*32768}")
    e(f"s_lshl_b32 {sr(sT2)}, {sr(sT2)}, 5")
    e(f"s_add_u32 {sr(sT2)}, {sr(sT2)}, {sr(sT0)}")
    e(f"s_lshl_b32 {sr(sKVo)}, {sr(sT2)}, 21")
    if "ra" not in opts: e(f"s_mul_i32 {sr(sRot)}, {sr(sT2)}, {RM}")
    e(f"s_mul_i32 {sr(sR0)}, {sr(sT2)}, 3")
    e(f"s_add_u32 {sr(sR0)}, {sr(sR0)}, {sr(sT1)}")
    e(f"s_cmp_eq_u32 {sr(sT1)}, 1")
    e(f"s_cselect_b32 {sr(sIt)}, {RB[1]}, 0")
    e(f"s_cselect_b32 {sr(sDoff)}, {RB[2]}, 0")
    e(f"s_cmp_eq_u32 {sr(sT1)}, 0")
    e(f"s_cselect_b32 {sr(sDoff)}, {RB[1]}, {sr(sDoff)}")
    e(f"s_cmp_eq_u32 {sr(sT1)}, 2")
    e(f"s_cselect_b32 {sr(sIt)}, {RB[2]}, {sr(sIt)}")
    e(f"s_cselect_b32 {sr(sDoff)}, 512, {sr(sDoff)}")
    e("s_branch L_common")
    g.lab("L_setH")
    e(f"s_mov_b32 {sr(sIsH)}, 1")
    e(f"s_bfe_u32 {sr(sT2)}, s2, 0x20004")
    head(sT2)
    e(f"s_bfe_u32 {sr(sT2)}, s2, 0x10003")
    e(f"s_lshl_b32 {sr(sT2)}, {sr(sT2)}, 5")
    e(f"s_add_u32 {sr(sIt)}, {sr(sT2)}, {sr(sT0)}")
    e(f"s_add_u32 {sr(sR0)}, {sr(sIt)}, 192")
    e(f"s_lshl_b32 {sr(sKVo)}, {sr(sIt)}, 21")
    e(f"s_mov_b32 {sr(sRot)}, 0")
    g.lab("L_common")
    e(f"s_mul_i32 {sr(sWoO)}, {sr(sT0)}, 147456")
    e(f"s_mul_i32 {sr(sT0)}, {sr(sR0)}, {YS}")
    e(f"s_add_u32 {sr(sT0)}, {sr(sT0)}, {Y_OFF}")
    e(f"s_mul_i32 {sr(sT2)}, {sr(sW)}, 384")
    e(f"s_add_u32 {sr(sT0)}, {sr(sT0)}, {sr(sT2)}")
    e(f"v_mov_b32 {vr(vSt0)}, {OOB}")
    e(f"v_mov_b32 {vr(vSt1)}, {OOB}")
    e(f"s_mov_b64 exec, 0xffff")
    e(f"v_lshl_add_u32 {vr(vSt0)}, {vr(vLane)}, 4, {sr(sT0)}")
    e(f"s_mov_b64 exec, 0xff")
    e(f"v_mov_b32 {vr(vSt1)}, {vr(vSt0)}")
    e(f"s_mov_b64 exec, -1")
    add64(sK, 20, sr(sKVo)); add64(sV, 22, sr(sKVo))
    srd_tail(sK, 0x200000); srd_tail(sV, 0x200000)
    e(f"s_cmp_eq_u32 {sr(sIsH)}, 1")
    e(f"s_cselect_b64 {sr(sWO,2)}, s[16:17], s[26:27]")
    add64(sWO, sWO, sr(sWoO))
    srd_tail(sWO, 147456)
    e(f"s_mov_b32 {sr(sC)}, 0x{f32bits(CSCALE):08x}")
    e(f"s_lshl_b32 {sr(sLdsW)}, {sr(sW)}, 10")
    e(f"v_bfe_u32 {vr(vT0)}, {vr(vLane)}, 3, 2")
    e(f"v_xor_b32 {vr(vT0)}, {sr(sW)}, {vr(vT0)}")
    e(f"v_lshlrev_b32 {vr(vT0)}, 5, {vr(vT0)}")
    e(f"v_lshrrev_b32 {vr(vT1)}, 2, {vr(vLane)}")
    e(f"v_lshl_add_u32 {vr(vT0)}, {vr(vT1)}, 7, {vr(vT0)}")
    e(f"v_and_b32 {vr(vT1)}, 3, {vr(vLane)}")
    e(f"v_lshl_add_u32 {vr(vTR)}, {vr(vT1)}, 3, {vr(vT0)}")
    e(f"s_mov_b32 {sr(sOut)}, s28"); e(f"s_mov_b32 {sr(sOut+1)}, s29"); srd_tail(sOut, 4608)
    e(f"v_bfe_u32 {vr(vT0)}, {vr(vLane)}, 3, 2")
    e(f"v_lshrrev_b32 {vr(vT1)}, 5, {vr(vLane)}")
    e(f"v_lshl_add_u32 {vr(vT0)}, {vr(vT1)}, 3, {vr(vT0)}")
    e(f"s_and_b32 {sr(sT0)}, {sr(sW)}, 1")
    e(f"s_lshl_b32 {sr(sT0)}, {sr(sT0)}, 4")
    e(f"s_lshr_b32 {sr(sT1)}, {sr(sW)}, 1")
    e(f"s_lshl_b32 {sr(sT1)}, {sr(sT1)}, 2")
    e(f"s_add_u32 {sr(sT0)}, {sr(sT0)}, {sr(sT1)}")
    e(f"v_add_u32 {vr(vT0)}, {sr(sT0)}, {vr(vT0)}")
    e(f"v_mul_u32_u24 {vr(vWOj)}, 1152, {vr(vT0)}")
    e(f"v_lshlrev_b32 {vr(vT1)}, 1, {vr(vG)}")
    e(f"v_and_b32 {vr(vT0)}, 7, {vr(vLane)}")
    e(f"v_xor_b32 {vr(vT1)}, {vr(vT1)}, {vr(vT0)}")
    e(f"v_lshl_add_u32 {vr(vWOj)}, {vr(vT1)}, 4, {vr(vWOj)}")
    e(f"v_lshlrev_b32 {vr(vHa)}, 2, {vr(vLane)}")
    e(f"v_lshlrev_b32 {vr(vSa)}, 4, {vr(vG)}")
    e(f"v_add_u32 {vr(vSa)}, {LDS_SC}, {vr(vSa)}")
    e("s_waitcnt lgkmcnt(0)")
    e(f"s_add_u32 {sr(sE)}, {sr(sE)}, 1")
    e(f"s_mul_i32 {sr(sNon)}, {sr(sE)}, 0x9E3779B1")
    e(f"s_or_b32 {sr(sNon)}, {sr(sNon)}, 1")
    e(f"v_bfe_i32 {vr(vNl)}, v0, 0, 1")
    e(f"v_and_b32 {vr(vNl)}, {sr(sNon)}, {vr(vNl)}")
    QPOS = opts.get("qpos", 8)
    if HW:
        assert QPOS == 8
        e(f"s_cmp_eq_u32 {sr(sIsH)}, 1")
        e("s_cbranch_scc1 L_nqp")
    DPN = [0]
    doff = lambda n: (n & 3) * 36864 + (n >> 2) * 128
    def dma_pre(k):
        for _ in range(k):
            n = DPN[0]
            if n >= 36: return
            e(f"s_add_u32 m0, {sr(sLdsW)}, {4096*n}")
            e(f"s_mov_b32 {sr(sWoff)}, {doff(n)}")
            g.vm(f"buffer_load_dwordx4 {vr(vWOj)}, {sr(sWO,4)}, {sr(sWoff)} offen lds", "d")
            DPN[0] += 1
    DPA = opts.get("dpa", 0); DPK = opts.get("dpk", 0)
    assert HW or not DPA
    NPRE = min(36, DPA * (QPOS - max(T0N, opts.get("dp0", 2))) + DPK * U)
    for n in range(T0N, QPOS):
        a_unit(n)
        if n >= opts.get("dp0", 2): dma_pre(DPA)
    def qloads(nh, so, tag, sc):
        for i in range(4 * nh):
            g.vm(f"buffer_load_dwordx4 {vr(vQl+4*i,4)}, {vr(vQa)}, {sr(sWS,4)}, {sr(so)} offen offset:{256*i}{sc}", tag)
    def qcheck(nh):
        for hd in range(nh):
            for i in range(8):
                e(f"v_bitop3_b32 {vr(vQl+16*hd+8+i)}, {vr(vQl+16*hd+i)}, {vr(vQl+16*hd+8+i)}, {sr(sNon)} bitop3:0x96")
        R = [vQl + 16 * hd + 8 + i for hd in range(nh) for i in range(8)]
        e(f"v_or_b32 {vr(vT0)}, {vr(R[0])}, {vr(R[1])}")
        for i in range(2, len(R), 2):
            e(f"v_or3_b32 {vr(vT0)}, {vr(vT0)}, {vr(R[i])}, {vr(R[i+1])}")
        e(f"v_cmp_ne_u32 vcc, 0, {vr(vT0)}")
    def qget(nh, so, qq, nm):
        qcheck(nh)
        e(f"s_cbranch_vccz L_qok{nm}")
        e(f"s_mov_b32 {sr(sSpin)}, 0x40000")
        g.lab(f"L_qretry{nm}")
        qloads(nh, so, None, " sc1")
        e(f"s_sub_u32 {sr(sSpin)}, {sr(sSpin)}, 1")
        e("s_waitcnt vmcnt(0)")
        e(f"s_cbranch_scc1 L_qok{nm}")
        qcheck(nh)
        e(f"s_cbranch_vccnz L_qretry{nm}")
        g.lab(f"L_qok{nm}")
        for hd in range(nh):
            for i in range(8):
                e(f"v_add_f32_dpp {vr(vQl+16*hd+8+i)}, {vr(vQl+16*hd+i)}, {vr(vQl+16*hd+i)} row_ror:4 {DP}")
        for hd in range(nh):
            bm = "0xf" if nh == 1 else ("0xc" if hd else "0x3")
            for i in range(8):
                e(f"v_add_f32_dpp {vr(vQl+i)}, {vr(vQl+16*hd+8+i)}, {vr(vQl+16*hd+8+i)} row_ror:8 row_mask:0xf bank_mask:{bm}")
        for d in range(4):
            e(f"v_cvt_pk_bf16_f32 {vr(qq+d)}, {vr(vQl+2*d)}, {vr(vQl+2*d+1)}")
    QSC = " sc1" if opts.get("qsc", 0) else ""
    e(f"s_cmp_eq_u32 {sr(sIsH)}, 1")
    e("s_cbranch_scc1 L_nqp")
    e(f"s_and_b32 {sr(sT0)}, s2, 15")
    e(f"s_lshl_b32 {sr(sT0)}, {sr(sT0)}, 7")
    e(f"s_add_u32 {sr(sT0)}, {sr(sT0)}, {ORG_OFF}")
    if ORG:
        e(f"v_lshlrev_b32 {vr(vT1)}, 3, {vr(vLane)}")
        e("s_mov_b64 exec, 0xff")
        g.vm(f"buffer_load_dwordx2 {vr(vS,2)}, {vr(vT1)}, {sr(sWS,4)}, {sr(sT0)} offen sc1", "org")
    else:
        e("s_mov_b64 exec, 1")
        g.vm(f"buffer_load_dwordx2 {vr(vS,2)}, off, {sr(sWS,4)}, {sr(sT0)} sc1", "org")
    e("s_mov_b64 exec, -1")
    qloads(1, sQo, "ql", QSC)
    g.lab("L_nqp")
    for n in range(QPOS, 8): a_unit(n)
    for i in range(4, 8):
        e(f"v_mov_b32 {vr(vO+i)}, 0")
    e(f"v_mov_b32 {vr(vM)}, 0xff800000")
    e(f"v_mov_b32 {vr(vL)}, 0")
    e(f"v_mov_b32 {vr(vL2)}, 0")
    e(f"s_mov_b32 {sr(sDlds)}, {sr(sLdsW)}")
    if PROF == 3:
        e(f"v_mov_b32 {vr(vTk)}, 0"); e(f"v_mov_b32 {vr(vTk+1)}, 0")
        e("s_mov_b32 s19, 0")
    if PROF == 11:
        for r in (82, 84, 88): e(f"s_mov_b32 s{r}, 0")
    e(f"s_cmp_eq_u32 {sr(sIsH)}, 1")
    e("s_cbranch_scc1 L_H")
    e(f"s_add_u32 {sr(sBase)}, {sr(sIt)}, {sr(sRot)}")
    e(f"s_sub_u32 {sr(sLim)}, {sr(sDoff)}, {sr(sIt)}")
    e(f"s_lshl_b32 {sr(sLim)}, {sr(sLim)}, 6")
    e(f"s_lshl_b32 {sr(sL0)}, {sr(sW)}, 6")
    e(f"s_add_u32 {sr(sDyn)}, {sr(sBase)}, {4*SB}")
    e(f"s_mov_b32 {sr(sDoff)}, {doff(NPRE)}")
    e(f"s_add_u32 {sr(sDlds)}, {sr(sDlds)}, {4096*NPRE}")
    assert not (NPRE and opts.get('dm0', 0))
    e(f"s_mov_b32 {sr(sDt)}, {NPRE - opts.get('dm0', 0) if not opts.get('xd', 0) else 100}")
    LT = [tuple(int(ch, 16) for ch in "%03x" % (opts.get("lt", 0) >> sh & 0xfff)) for sh in (36, 24, 12, 0)]
    LT = [t for t in LT if t != (0, 0, 0)]
    if LT:
        e(f"s_mul_i32 {sr(sPub)}, {sr(sR0)}, 43691")
        e(f"s_lshr_b32 {sr(sPub)}, {sr(sPub)}, 15")
        e(f"s_add_u32 {sr(sPub)}, {sr(sPub)}, {LT_OFF}")
        e(f"s_or_b32 {sr(sT0)}, {sr(sIt)}, {sr(sW)}")
        e(f"s_cselect_b32 {sr(sPub)}, 0, {sr(sPub)}")
        e(f"s_mov_b32 {sr(sCor)}, 0")
    phys(sBase, sr(sW))
    e(f"s_mov_b32 {sr(sOff0)}, {sr(sOff)}")
    e(f"s_mov_b32 {sr(sL)}, {sr(sL0)}")
    E3 = opts.get("ws3", 0)
    assert E3 < U and QW == 3 and all(4 * SB <= RB[i + 1] - RB[i] - 3 * E3 for i in range(3))
    e(f"s_sub_u32 {sr(sLimK)}, {sr(sLim)}, {192*E3}")
    if E3:
        e(f"s_cmp_eq_u32 {sr(sW)}, 3")
        e(f"s_cselect_b32 {sr(sT0)}, 0, {sr(sLimK)}")
        e(f"s_cselect_b32 {sr(sT2)}, 4, 3")
        e(f"s_lshl_b32 {sr(sT1)}, {sr(sT2)}, {PM[4]}")
        e(f"s_add_u32 {sr(sT1)}, {sr(sT1)}, {HOLE}")
        e(f"s_lshl_b32 {sr(sT2)}, {sr(sT2)}, 6")
        e(f"s_add_u32 {sr(sL)}, {sr(sL)}, {sr(sT0)}")
        e(f"s_lshr_b32 {sr(sT0)}, {sr(sL)}, 6")
        phys(sBase, sr(sT0))
    for d in range(U):
        dma_pre(DPK)
        issue(True, 16 * d, sK, "k")
        e(f"s_mov_b32 {sr(sTi+d)}, {sr(sL)}")
        if d < E3:
            e(f"s_add_u32 {sr(sOff)}, {sr(sOff)}, {sr(sT1)}")
            e(f"s_and_b32 {sr(sOff)}, {sr(sOff)}, {TMASK}")
            e(f"s_add_u32 {sr(sL)}, {sr(sL)}, {sr(sT2)}")
            if d == E3 - 1:
                e(f"s_cmp_eq_u32 {sr(sW)}, 3")
                e(f"s_cselect_b32 {sr(sOff)}, {sr(sOff)}, {sr(sOff0)}")
                e(f"s_cselect_b32 {sr(sL)}, {sr(sL)}, {sr(sL0)}")
        else: adv()
    e(f"s_bfe_u32 {sr(sIt)}, s2, 0x20003")
    e(f"s_mul_i32 {sr(sIt)}, {sr(sIt)}, {-opts.get('stg', 0)}")
    e(f"s_mov_b32 {sr(sPh)}, 0")
    e(f"s_mov_b32 {sr(sLev)}, {opts.get('lev0', 4)}")
    e(f"s_mov_b32 {sr(sSt)}, {SB - U}")
    e(f"s_mov_b32 {sr(sRem)}, 900")
    g.wait_tag("ql")
    if ORG:
        e(f"v_xor_b32 {vr(vS+1)}, {vr(vS)}, {vr(vS+1)}")
        e(f"v_subrev_u32 {vr(vS)}, s94, {vr(vS)}")
        e(f"v_cmp_ne_u32 {sr(sT2,2)}, {sr(sNon)}, {vr(vS+1)}")
        qget(1, sQo, vQ, "B")
        for m in ("quad_perm:[1,0,3,2]", "quad_perm:[2,3,0,1]", "row_half_mirror"):
            e(f"{'v_max_i32_dpp' if OMX else 'v_add_u32_dpp'} {vr(vS)}, {vr(vS)}, {vr(vS)} {m} {DP}")
            e("s_nop 1")
        e(f"v_readfirstlane_b32 {sr(sT0)}, {vr(vS)}")
        e(f"s_and_b32 {sr(sT2)}, {sr(sT2)}, 0xff")
        e(f"s_cselect_b32 {sr(sT0)}, {opts.get('orf', 3300 if ORG == 2 else 0)*(1 if OMX else 8)//10}, {sr(sT0)}")
        e(f"s_lshl_b32 {sr(sSch)}, s94, 4")
        e(f"s_mul_i32 {sr(sT0)}, {sr(sT0)}, {16 if OMX else 2}")
        e(f"s_add_u32 {sr(sSch)}, {sr(sSch)}, {sr(sT0)}")
    else:
        e(f"v_readfirstlane_b32 {sr(sT0)}, {vr(vS)}")
        e(f"v_readfirstlane_b32 {sr(sT1)}, {vr(vS+1)}")
        qget(1, sQo, vQ, "B")
        e(f"s_xor_b32 {sr(sT1)}, {sr(sT1)}, {sr(sT0)}")
        e(f"s_cmp_eq_u32 {sr(sT1)}, {sr(sNon)}")
        e(f"s_cselect_b32 s94, {sr(sT0)}, s94")
        e(f"s_lshl_b32 {sr(sSch)}, s94, 4")
    e(f"s_add_u32 {sr(sSch)}, {sr(sSch)}, {opts.get('t0', 7000)*16//10}")
    if opts.get("tq", 0):
        e(f"s_lshr_b32 {sr(sT0)}, {sr(sLim)}, 6")
        e(f"s_sub_i32 {sr(sT0)}, {sr(sT0)}, 171")
        e(f"s_mul_i32 {sr(sT0)}, {sr(sT0)}, {opts.get('tq')*16//10}")
        e(f"s_sub_i32 {sr(sSch)}, {sr(sSch)}, {sr(sT0)}")
    if opts.get("tw", 0):
        e(f"s_cmp_eq_u32 {sr(sW)}, {QW}")
        e(f"s_cselect_b32 {sr(sT0)}, {opts.get('tw')*16//10}, 0")
        e(f"s_add_u32 {sr(sSch)}, {sr(sSch)}, {sr(sT0)}")
    stamp(2)

    def qk(kr, qq, acc):
        for j in range(4):
            e(f"v_mfma_f32_16x16x32_bf16 {vr(acc+4*j,4)}, {ar(kr+4*j,4)}, {vr(qq,4)}, 0")
    def fold(acc, S, full):
        for k in range(0 if full else 1, 4):
            for r in range(4):
                qp = f"quad_perm:[{k},{k},{k},{k}] {DP}"
                if k == 0: e(f"v_mov_b32_dpp {vr(S+r)}, {vr(acc+4*r)} {qp}")
                else: e(f"v_add_f32_dpp {vr(S+r)}, {vr(acc+4*r+k)}, {vr(S+r if full or k > 1 else acc+4*r)} {qp}")
    def probs(S, M, L):
        for r in range(4):
            e(f"v_fma_f32 {vr(vE+r)}, {vr(S+r)}, {sr(sC)}, -{vr(M)}")
        for r in range(4):
            e(f"v_exp_f32 {vr(vE+r)}, {vr(vE+r)}")
        e(f"v_add_f32 {vr(vT0)}, {vr(vE)}, {vr(vE+1)}")
        e(f"v_add_f32 {vr(L)}, {vr(L)}, {vr(vE+2)}")
        e(f"v_add_f32 {vr(vT0)}, {vr(vT0)}, {vr(vE+3)}")
        for r in range(4):
            e(f"v_cvt_pk_bf16_f32 {vr(vE+r)}, {vr(vE+r)}, {vr(vE+r)}")
        e(f"v_add_f32 {vr(L)}, {vr(L)}, {vr(vT0)}")
        for r in range(4):
            for d in range(4):
                e(f"v_and_b32 {vr(vP+4*r+d)}, {vr(vE+r)}, {vr(vMk+d)}")
    def pv(reg, O):
        for r in range(4):
            e(f"v_mfma_f32_16x16x32_bf16 {vr(O,4)}, {vr(vP+4*r,4)}, {vr(reg+4*r,4)}, {vr(O,4)}")
    def gmax(M, op="v_max_f32"):
        for sw in ("v_permlane32_swap_b32", "v_permlane16_swap_b32"):
            e(f"v_mov_b32 {vr(vT0)}, {vr(M)}")
            e("s_nop 1")
            e(f"{sw} {vr(M)}, {vr(vT0)}")
            e("s_nop 1")
            e(f"{op} {vr(M)}, {vr(M)}, {vr(vT0)}")
    def dma_load(nt=opts.get("wont", 0) & 1, lbl=None):
        e(f"s_mov_b32 m0, {sr(sDlds)}")
        e(f"s_add_u32 {sr(sDlds)}, {sr(sDlds)}, 4096")
        e(f"buffer_load_dwordx4 {vr(vWOj)}, {sr(sWO,4)}, {sr(sDoff)} offen" + (" nt" if nt else "") + " lds")
        e(f"s_add_u32 {sr(sDoff)}, {sr(sDoff)}, 36864")
        e(f"s_cmp_ge_u32 {sr(sDoff)}, 147456")
        e(f"s_cselect_b32 {sr(sT0)}, {147456 - 128}, 0")
        e(f"s_sub_u32 {sr(sDoff)}, {sr(sDoff)}, {sr(sT0)}")
        if lbl:
            if opts.get('taud', 0): e(f"s_add_u32 {sr(sSch)}, {sr(sSch)}, {opts.get('taud', 0)*16//10}")
            g.lab(lbl)
        e(f"s_add_u32 {sr(sDt)}, {sr(sDt)}, 1")
    DMK = opts.get("dmk", 5); DMV = opts.get("dmv", 7)
    def dma_one(lbl):
        e(f"s_cmp_lt_u32 {sr(sDt)}, 36")
        e(f"s_cbranch_scc0 {lbl}")
        dma_load(lbl=lbl)
    def level(tau):
        BS = opts.get('bsh', 5) + 4
        e("s_waitcnt lgkmcnt(0)")
        e(f"s_add_u32 {sr(sSch)}, {sr(sSch)}, {tau*16//10 if tau else sr(sTau)}")
        e(f"s_lshl_b32 {sr(sNow)}, {sr(sNow)}, 4")
        e(f"s_sub_i32 {sr(sLev)}, {sr(sNow)}, {sr(sSch)}")
        if PROF == 11:
            e(f"s_lshl_b32 {sr(sT0)}, s94, 4")
            e(f"s_sub_u32 {sr(sT0)}, {sr(sNow)}, {sr(sT0)}")
            for r, T in ((82, 12000), (84, 24000), (88, 36000)):
                e(f"s_cmp_lt_u32 {sr(sT0)}, {T*16//10}")
                e(f"s_addc_u32 s{r}, s{r}, 0")
        if PROF == 3:
            n = len(g.lines)
            sTr = sLev
            if LT and opts.get("trb", 1):
                sTr = sT0
                e(f"s_add_i32 {sr(sT0)}, {sr(sLev)}, {sr(sCor)}")
            e(f"s_and_b32 m0, s19, 63")
            e(f"s_add_u32 s19, s19, 1")
            e(f"s_cmp_gt_u32 s19, 64")
            e(f"s_cbranch_scc1 L_tr{n}")
            e(f"v_writelane_b32 {vr(vTk)}, {sr(sTr)}, m0")
            g.lab(f"L_tr{n}")
            e(f"s_cbranch_scc0 L_ts{n}")
            e(f"v_writelane_b32 {vr(vTk+1)}, {sr(sTr)}, m0")
            g.lab(f"L_ts{n}")
        if FLV >= 0: e(f"s_mov_b32 {sr(sLev)}, {FLV}")
        else: e(f"s_ashr_i32 {sr(sLev)}, {sr(sLev)}, {BS}")
    def hook_dispatch(hooks, nm):
        e(f"s_bitcmp1_b32 {sum(1 << k for k in hooks)}, {sr(sIt)}")
        e(f"s_cbranch_scc0 L_body{nm}")
        ks = sorted(hooks)
        for n, k in enumerate(ks):
            if n < len(ks) - 1:
                e(f"s_cmp_lg_u32 {sr(sIt)}, {k}")
                e(f"s_cbranch_scc1 L_hk{nm}{n+1}")
            hooks[k]()
            if n < len(ks) - 1:
                e(f"s_branch L_body{nm}")
                g.lab(f"L_hk{nm}{n+1}")
        g.lab(f"L_body{nm}")
    def call(l): e(f"s_call_b64 {sr(sRet,2)}, {l}")
    def lt_w(p):
        e(f"s_cmp_eq_u32 {sr(sPub)}, 0")
        e(f"s_cbranch_scc1 L_lw{p}")
        e(f"s_sub_i32 {sr(sT0)}, {sr(sNow)}, {sr(sSch)}")
        e(f"s_add_i32 {sr(sT0)}, {sr(sT0)}, {sr(sCor)}")
        e(f"s_pack_ll_b32_b16 {sr(sT0)}, {sr(sNon)}, {sr(sT0)}")
        e(f"v_mov_b32 {vr(vLt)}, {sr(sT0)}")
        e("s_mov_b64 exec, 1")
        e(f"buffer_store_dword {vr(vLt)}, off, {sr(sWS,4)}, {sr(sPub)} offset:{256*p} sc1")
        e("s_mov_b64 exec, -1")
        g.lab(f"L_lw{p}")
    def lt_r(p):
        e(f"buffer_load_dword {vr(vLt)}, {vr(vHa)}, {sr(sWS,4)}, 0 offen offset:{LT_OFF + 256*p}" + (" sc1" if opts.get("ltsc", 0) else ""))
    def lt_a(p):
        e(f"s_waitcnt vmcnt({4*U})")
        call("L_LA")
    def lt_hooks(ph, hooks):
        for p, (f, w, r) in enumerate(LT):
            if f != ph: continue
            for it, fn in ((w, lt_w), (r, lt_r), (r + 1, lt_a)):
                hooks.setdefault(it, []).append(lambda fn=fn, p=p: fn(p))
        return {k: (lambda v=v: [f() for f in v]) for k, v in hooks.items()}
    TAUK = opts.get("tauk", opts.get("tau", 410)); TAUV = opts.get("tauv", opts.get("tau", 410))

    AH0 = opts.get("ah0", 1)
    hk = {AH0: ["L_AQ"], AH0 + 1: ["L_AK"], AH0 + 2: ["L_AV0"], AH0 + 3: ["L_AV1"]}
    assert (AH0 + 4 + 3 * opts.get('stg', 0) + 1) * U <= min(RB[i + 1] - RB[i] for i in range(3)) // 4
    if opts.get("xa", 0): hk = {AH0: ["L_AV1"]}
    def mkh(ls):
        def f():
            for l in ls:
                if l == "L_AK": e(f"s_waitcnt vmcnt({4*U})")
                call(l)
        return f
    e(f"s_movk_i32 {sr(sTau)}, {opts.get('tau0', TAUK)*16//10}")
    g.lab("L_loopK")
    HK = {k: [mkh(v)] for k, v in hk.items()}
    for it, t in ((opts.get("i1", 3), opts.get("tau1", TAUK)), (opts.get("i2", 5), TAUK)):
        HK.setdefault(it, []).append(lambda t=t: e(f"s_movk_i32 {sr(sTau)}, {t*16//10}"))
    hook_dispatch(lt_hooks(1, HK), "K")
    for i in range(U):
        e(f"v_add_u32 {vr(vSb)}, {sr(sTi+i)}, {vr(vSa)}")
        e(f"s_mov_b32 {sr(sTi+i)}, {sr(sL)}")
        e(f"s_waitcnt vmcnt({4*(U-1)})")
        e(f"s_memrealtime {sr(sNow,2)}")
        qk(16 * i, vQ, vP)
        throttle(f"K{i}")
        e(f"s_cmp_lg_u32 {sr(sPh)}, 0")
        e(f"s_cbranch_scc1 L_Kv{i}")
        issue(True, 16 * i, sK)
        adv()
        e(f"s_cmp_lt_u32 {sr(sL)}, {sr(sLimK)}")
        e(f"s_cbranch_scc1 L_Kc{i}")
        e(f"s_mov_b32 {sr(sPh)}, 1")
        e(f"s_mov_b32 {sr(sL)}, {sr(sL0)}")
        e(f"s_mov_b32 {sr(sOff)}, {sr(sOff0)}")
        e(f"s_branch L_Kc{i}")
        g.lab(f"L_Kv{i}")
        issue(False, vVb + 16 * i, sV)
        adv()
        e(f"s_add_u32 {sr(sPh)}, {sr(sPh)}, 1")
        g.lab(f"L_Kc{i}")
        fold(vP, vS, False)
        e(f"s_mov_b32 exec_lo, 0x00010001"); e(f"s_mov_b32 exec_hi, 0x00010001")
        e(f"ds_write_b128 {vr(vSb)}, {vr(vS,4)}")
        e("s_mov_b64 exec, -1")
        e(f"v_max3_f32 {vr(vM)}, {vr(vM)}, {vr(vS)}, {vr(vS+1)}")
        e(f"v_max3_f32 {vr(vM)}, {vr(vM)}, {vr(vS+2)}, {vr(vS+3)}")
        level(0)
        if DMK >> i & 1:
            for m in range(opts.get("dmn", 1)): dma_one(f"L_dma{i}_{m}")
        e(f"s_cmp_lg_u32 {sr(sPh)}, {U+1}")
        e(f"s_cbranch_scc1 L_Kn{i}")
        call("L_TR")
        e(f"s_branch L_V{(i+1) % U}")
        g.lab(f"L_Kn{i}")
    e(f"s_add_u32 {sr(sIt)}, {sr(sIt)}, 1")
    e(f"s_branch L_loopK")

    def tail_setup():
        e(f"s_mul_i32 {sr(sT0)}, {sr(sW)}, {OT_STRIDE}")
        e(f"s_add_u32 {sr(sT0)}, {sr(sT0)}, {LDS_OT}")
        e(f"v_lshl_add_u32 {vr(vAw)}, {vr(vCc)}, 4, {sr(sT0)}")
        e(f"v_and_b32 {vr(vT0)}, 1, {vr(vG)}")
        e(f"v_lshl_add_u32 {vr(vAw)}, {vr(vT0)}, 3, {vr(vAw)}")
        e(f"s_lshl_b32 {sr(sT0)}, {sr(sW)}, 4")
        e(f"s_add_u32 {sr(sT0)}, {sr(sT0)}, {LDS_M}")
        e(f"v_lshl_add_u32 {vr(vAm)}, {vr(vG)}, 2, {sr(sT0)}")
        e(f"v_and_b32 {vr(vT0)}, 3, {vr(vCc)}")
        e(f"v_mul_u32_u24 {vr(vAr)}, {OT_STRIDE}, {vr(vT0)}")
        e(f"v_lshl_add_u32 {vr(vAr)}, {vr(vG)}, 4, {vr(vAr)}")
        e(f"v_add_u32 {vr(vAr)}, {LDS_OT}, {vr(vAr)}")
        e(f"v_lshlrev_b32 {vr(vAx)}, 2, {vr(vCc)}")
        e(f"v_add_u32 {vr(vAx)}, {LDS_M}, {vr(vAx)}")
    def h_arr():
        g.lab("L_ar0")
        e(f"s_cmp_lt_u32 {sr(sDt)}, 36")
        e(f"s_cbranch_scc0 L_ar1")
        dma_load()
        e("s_branch L_ar0")
        g.lab("L_ar1")
    def dry():
        n = len(g.lines)
        e(f"s_cmp_eq_u32 {sr(sW)}, {opts.get('dryw', 0)}")
        e(f"s_cbranch_scc0 L_dry{n}")
        call("L_T2b")
        g.lab(f"L_dry{n}")
    def h_arr2():
        if opts.get("dry", 0) & 2: dry()
        e(f"s_waitcnt vmcnt({4*U})")
        e(f"v_mov_b32 {vr(vT0)}, {LDS_CNT}")
        e(f"v_mov_b32 {vr(vT1)}, 1")
        e("s_mov_b64 exec, 1")
        e(f"ds_add_u32 {vr(vT0)}, {vr(vT1)}")
        e("s_mov_b64 exec, -1")
    def h_t1():
        stamp(3)
        if opts.get("taut", 0): e(f"s_add_u32 {sr(sSch)}, {sr(sSch)}, {opts.get('taut')*16//10}")
        e(f"v_mov_b32 {vr(vT0)}, {LDS_CNT}")
        g.lab(f"L_wa")
        e(f"ds_read_b32 {vr(vT1)}, {vr(vT0)}")
        e("s_waitcnt lgkmcnt(0)")
        e(f"v_readfirstlane_b32 {sr(sT0)}, {vr(vT1)}")
        e("s_nop 3")
        e(f"s_cmp_lt_u32 {sr(sT0)}, 4")
        e(f"s_cbranch_scc1 L_wa")
        e(f"ds_read_b128 {vr(vS,4)}, {vr(vT0)} offset:16")
        call("L_T1")
        e(f"v_max3_f32 {vr(vT0)}, {vr(vS)}, {vr(vS+1)}, {vr(vS+2)}")
        e(f"v_max_f32 {vr(vT0)}, {vr(vT0)}, {vr(vS+3)}")
        e(f"v_sub_f32 {vr(vT1)}, {vr(vM)}, {vr(vT0)}")
        e(f"v_exp_f32 {vr(vT1)}, {vr(vT1)}")
        e(f"v_mov_b32 {vr(vM)}, {vr(vT0)}")
        e(f"v_mul_f32 {vr(vL)}, {vr(vT1)}, {vr(vL)}")
        for i in range(4):
            e(f"v_mul_f32 {vr(vO+i)}, {vr(vT1)}, {vr(vO+i)}")
        if opts.get("dry", 0) & 1: dry()
        stamp(4)
    HA = opts.get("ha", 6); HT = opts.get("ht", 7)
    assert 2 <= HA < HT and (HT + 1) * U <= SB - U
    pc = lambda m: bin(m & ((1 << U) - 1)).count("1")
    g.lab("L_loopV")
    hook_dispatch(lt_hooks(2, {HA - 1: [h_arr], HA: [h_arr2], HT: [h_t1]}), "V")
    for i in range(U):
        g.lab(f"L_V{i}")
        e(f"v_add_u32 {vr(vSb)}, {sr(sTi+i)}, {vr(vSa)}")
        e(f"ds_read_b128 {vr(vS,4)}, {vr(vSb)}")
        e(f"v_mov_b32 {vr(vSb)}, {LDS_CNT + 12}")
        e(f"v_mov_b32 {vr(vT1)}, 1")
        e("s_waitcnt lgkmcnt(0)")
        probs(vS, vM, vL)
        CE = opts.get("ce", 0)
        def claim():
            e(f"s_cmp_gt_i32 {sr(sSt)}, 0")
            e(f"s_cbranch_scc1 L_c1{i}")
            e("s_mov_b64 exec, 1")
            e(f"ds_add_rtn_u32 {vr(vT1)}, {vr(vSb)}, {vr(vT1)}")
            e("s_mov_b64 exec, -1")
            g.lab(f"L_c1{i}")
        if CE: claim()
        e(f"s_waitcnt vmcnt({4*(U-1)})")
        for r in range(U - 1, 0, -1):
            e(f"s_cmp_ge_u32 {sr(sRem)}, {r}")
            e(f"s_cbranch_scc1 L_v1{i}")
            e(f"s_waitcnt vmcnt({4*(r-1)})")
        g.lab(f"L_v1{i}")
        pv(vVb + 16 * i, vO)
        e(f"s_sub_u32 {sr(sRem)}, {sr(sRem)}, 1")
        e(f"s_cbranch_scc1 L_end")
        e(f"s_cmp_lt_u32 {sr(sRem)}, {U}")
        e(f"s_cbranch_scc1 L_nv{i}")
        e(f"s_memrealtime {sr(sNow,2)}")
        throttle(f"V{i}")
        if not CE: claim()
        else: e(f"s_cmp_gt_i32 {sr(sSt)}, 0")
        e(f"s_cbranch_scc1 L_c2{i}")
        e("s_waitcnt lgkmcnt(0)")
        e(f"v_readfirstlane_b32 {sr(sCl)}, {vr(vT1)}")
        e(f"s_add_u32 {sr(sL)}, {sr(sCl)}, {4*SB}")
        e(f"s_lshl_b32 {sr(sL)}, {sr(sL)}, 6")
        phys(sCl, sr(sDyn))
        e(f"s_cmp_ge_u32 {sr(sL)}, {sr(sLim)}")
        e(f"s_cselect_b32 {sr(sRem)}, {U-2}, {sr(sRem)}")
        e(f"s_cselect_b32 {sr(sSt)}, 1000, {sr(sSt)}")
        e(f"s_cbranch_scc1 L_nv{i}")
        g.lab(f"L_c2{i}")
        issue(False, vVb + 16 * i, sV)
        e(f"s_mov_b32 {sr(sTi+i)}, {sr(sL)}")
        e(f"s_sub_u32 {sr(sSt)}, {sr(sSt)}, 1")
        adv()
        level(TAUV)
        if DMV >> i & 1: dma_one(f"L_dmv{i}")
        g.lab(f"L_nv{i}")
    e(f"s_add_u32 {sr(sIt)}, {sr(sIt)}, 1")
    e(f"s_branch L_loopV")
    g.lab("L_end")
    stamp(5)

    NSL = opts.get("nsl", 1)
    def schedule(main, ops, per=2):
        pos = [0]; hist = []
        mpos = {}
        def emit(text, kind, wr=(), rd=(), n=1):
            e(text); hist.append((pos[0] + n - 1, kind, set(wr), set(rd))); pos[0] += n
        def need(op):
            t = 0
            if op.get("after") is not None:
                if op["after"] not in mpos: return None
                t = mpos[op["after"]] + 1 + (2 if op["kind"] == "dpp" else 0)
            for (p, k, wr, rd) in hist:
                d = None
                if k == "mfma":
                    if wr & (op["rd"] | op["wr"]): d = 8
                elif k in ("valu", "dpp", "swap", "trans"):
                    if wr & op["rd"]:
                        d = 0
                        if op["kind"] in ("dpp", "swap"): d = 2
                        elif k == "trans": d = 1
                elif k == "store":
                    if rd & op["wr"]: d = 2
                if d is not None: t = max(t, p + 1 + d)
            return t
        done = [False] * len(ops)
        mw = {}
        for i, (t_, k_, w_) in enumerate(main):
            for r in w_: mw[r] = i
        def ready(i):
            op = ops[i]
            for j in range(i):
                if not done[j]:
                    o = ops[j]
                    if (o["wr"] & (op["rd"] | op["wr"])) or (o["rd"] & op["wr"]) or (o["kind"] == "store" and op["kind"] == "store"): return None
            for r in op["rd"] | op["wr"]:
                if r in mw and mw[r] not in mpos: return None
            return need(op)
        def fill(n):
            k = 0
            while k < n:
                c = [i for i in range(len(ops)) if not done[i] and ready(i) is not None and ready(i) <= pos[0]]
                if not c:
                    w = [ready(i) - pos[0] for i in range(len(ops)) if not done[i] and ready(i) is not None]
                    if w and min(w) <= 2 and k + min(w) < n + NSL:
                        emit(f"s_nop {min(w)-1}", "nop", n=min(w)); k += min(w); n = max(n, k + 1)
                        continue
                    break
                i = c[0]
                emit(ops[i]["text"], ops[i]["kind"], ops[i]["wr"], ops[i]["rd"], ops[i].get("n", 1)); done[i] = True
                k += 2 if ops[i]["kind"] == "trans" else 1
        for i, (text, kind, wr) in enumerate(main):
            mpos[i] = pos[0]
            emit(text, kind, wr)
            if kind in ("mfma", "wait0"): fill(per)
        stamp9(2)
        while not all(done):
            fill(1000)
            if all(done): break
            c = [ready(i) for i in range(len(ops)) if not done[i] and ready(i) is not None]
            w = min(c) - pos[0]
            assert w > 0
            emit(f"s_nop {w-1}", "nop", n=w)
    def T2():
        vAcc, vLr, vPk, t0, t1, Out = 208, 181, 56, 48, 49, 16
        if PROF == 3:
            e(f"s_lshl_b32 s88, s2, 10")
            e(f"s_add_u32 s88, s88, 0x300000")
            e(f"v_lshlrev_b32 {vr(vV)}, 1, v0")
            e(f"buffer_store_short {vr(vTk)}, {vr(vV)}, {sr(sWS,4)}, s88 offen")
            e(f"buffer_store_short {vr(vTk+1)}, {vr(vV)}, {sr(sWS,4)}, s88 offen offset:512")
        e(f"ds_write_b32 {vr(vAm)}, {vr(vL)}")
        e("s_nop 5")
        for d in range(2):
            e(f"v_cvt_pk_bf16_f32 {vr(vPk+d)}, {vr(vO+2*d)}, {vr(vO+2*d+1)}")
        e(f"ds_write_b64 {vr(vAw)}, {vr(vPk,2)}")
        e("s_waitcnt lgkmcnt(0)")
        e("s_barrier")
        g.lab("L_T2b")
        stamp9(1)
        for j in range(4):
            e(f"ds_read_b128 {ar(4*j,4)}, {vr(vAr)} offset:{64*j}")
        e(f"ds_read_b32 {vr(vLr)}, {vr(vAx)}")
        nrd = 5
        main = []; ops = []
        TO = [6, 7, 8, 0, 1, 2, 3, 4, 5]
        def op(text, rd, wr, kind="valu", **kw):
            ops.append(dict(text=text, rd=set(rd), wr=set(wr), kind=kind, **kw))
        for n, t in enumerate(TO):
            for j in range(4):
                if n == 0:
                    main.append((f"s_waitcnt lgkmcnt({nrd - j - 1})", "wait", ()))
                if n == 1 and j == 0:
                    main.append((f"s_waitcnt lgkmcnt(0)", "wait", ())); mlw = len(main) - 1
                a = vAcc + 4 * t
                cc = "0" if j == 0 else vr(a, 4)
                main.append((f"v_mfma_f32_16x16x32_bf16 {vr(a,4)}, {ar(4*j,4)}, {ar(aW+4*(t*4+j),4)}, {cc}", "mfma", range(a, a + 4)))
        for src, dst, rot in ((vLr, t0, 8), (t0, t1, 4), (t1, t0, 2), (t0, t1, 1)):
            op(f"v_add_f32_dpp {vr(dst)}, {vr(src)}, {vr(src)} row_ror:{rot} {DP}", [src], [dst], "dpp", after=mlw)
        op(f"v_rcp_f32 {vr(t0)}, {vr(t1)}", [t1], [t0], "trans")
        K, R, t2 = 50, 52, 51
        op(f"v_log_f32 {vr(K)}, {vr(t1)}", [t1], [K], "trans")
        op(f"v_add_f32 {vr(K)}, {vr(K)}, {vr(vM)}", [K], [K])
        op(f"v_xor_b32 {vr(K)}, {vr(K)}, {vr(vNl)}", [K], [K])
        S = lambda t: vAcc + 4 * t
        def comb(t):
            a = S(t)
            op(f"v_pk_add_f32 {vr(a,2)}, {vr(a,2)}, {vr(a+2,2)}", range(a, a + 4), [a, a + 1])
            op(f"v_add_f32 {vr(a)}, {vr(a)}, {vr(a+1)}", [a, a + 1], [a])
            op(f"v_mul_f32 {vr(a)}, {vr(t0)}, {vr(a)}", [a, t0], [a])
        def pk(d, x, y): op(f"v_cvt_pk_bf16_f32 {vr(d)}, {vr(x)}, {vr(y)}", [x, y], [d])
        comb(6); comb(7); pk(R, S(6), S(7))
        op(f"v_mov_b32_dpp {vr(R+2)}, {vr(R)} row_ror:8 {DP}", [R], [R + 2], "dpp")
        op(f"v_bitop3_b32 {vr(R+3)}, {vr(R)}, {vr(R+2)}, {vr(K)} bitop3:0x96", [R, R + 2, K], [R + 3])
        comb(8)
        op(f"v_mov_b32_dpp {vr(t2)}, {vr(S(8))} row_ror:8 {DP}", [S(8)], [t2], "dpp")
        pk(R + 1, S(8), t2)
        op(f"v_xor_b32 {vr(R+3)}, {vr(R+3)}, {vr(R+1)}", [R + 3, R + 1], [R + 3])
        op(f"buffer_store_dwordx4 {vr(R,4)}, {vr(vSt1)}, {sr(sWS,4)}, 0 offen offset:256 sc1", range(R, R + 4), [], "store")
        for d in range(3):
            comb(2 * d); comb(2 * d + 1); pk(Out + d, S(2 * d), S(2 * d + 1))
            if d == 1: op(f"v_bitop3_b32 {vr(Out+3)}, {vr(Out)}, {vr(Out+1)}, {vr(K)} bitop3:0x96", [Out, Out + 1, K], [Out + 3])
        op(f"v_xor_b32 {vr(Out+3)}, {vr(Out+3)}, {vr(Out+2)}", [Out + 3, Out + 2], [Out + 3])
        schedule(main, ops, opts.get("per", 2))
        e(f"buffer_store_dwordx4 {vr(Out,4)}, {vr(vSt0)}, {sr(sWS,4)}, 0 offen sc1")
    g.lab("L_T2")
    T2()
    e(f"s_cmp_eq_u32 {sr(sIsH)}, 1")
    e("s_cbranch_scc1 L_H2")
    stamp(6)
    if PROF: e("s_branch L_done")
    else: e("s_endpgm")

    g.lab("L_H")
    e(f"s_mov_b32 {sr(sDoff)}, 0")
    e(f"v_lshlrev_b32 {vr(vSb)}, 4, v0")
    def h_a():
        if HW:
            for n in range(8): a_unit(n)
        call("L_AQ")
        e("s_waitcnt vmcnt(0)")
        call("L_AK"); call("L_AV0"); call("L_AV1")
        if opts.get("xq", 0) == 1: e("s_branch L_done")
    def h_pf():
        e(f"s_bfe_u32 {sr(sT0)}, s2, 0x10003")
        e(f"s_mul_i32 {sr(sT0)}, {sr(sT0)}, 73728")
        e(f"s_add_u32 {sr(sT0)}, {sr(sT0)}, {sr(sWoO)}")
        add64(sK, 26, sr(sT0))
        e(f"s_mov_b32 {sr(sK+2)}, 73728")
        e(f"s_mov_b32 {sr(sT1)}, 0")
        g.lab("L_hpf")
        e(f"buffer_load_dwordx4 {vr(vTmp+4,4)}, {vr(vSb)}, {sr(sK,4)}, {sr(sT1)} offen")
        e(f"s_waitcnt vmcnt({opts.get('pfd', 4)})")
        e(f"s_add_u32 {sr(sT1)}, {sr(sT1)}, 4096")
        e(f"s_cmp_lt_u32 {sr(sT1)}, 73728")
        e("s_cbranch_scc1 L_hpf")
    def h_dma():
        e(f"s_mov_b32 {sr(sDt)}, 0")
        g.lab("L_hdma")
        dma_load(opts.get("wont", 0) & 2)
        e(f"s_waitcnt vmcnt({opts.get('hd', 2)})")
        e(f"s_cmp_lt_u32 {sr(sDt)}, 36")
        e("s_cbranch_scc1 L_hdma")
    if not opts.get("pf", 1): h_pf = lambda: None
    for f in [(h_a, h_pf, h_dma), (h_pf, h_dma, h_a), (h_pf, h_a, h_dma), (h_dma, h_pf, h_a), (h_dma, h_a, h_pf)][HW]: f()
    if opts.get("xq", 0) == 2: e("s_branch L_done")
    vFa, vFb, vDa, vF0, vFn, vD0 = 96, 97, 98, 100, 104, 108
    e(f"s_lshr_b32 {sr(sT0)}, {sr(sIt)}, 1")
    e(f"s_and_b32 {sr(sT1)}, {sr(sIt)}, 1")
    e(f"s_mul_i32 {sr(sT2)}, {sr(sT0)}, {8*AFS}")
    e(f"s_lshl_b32 {sr(sT3)}, {sr(sT1)}, 6")
    e(f"s_add_u32 {sr(sT2)}, {sr(sT2)}, {sr(sT3)}")
    e(f"s_add_u32 {sr(sT2)}, {sr(sT2)}, {AF_OFF}")
    e(f"v_mov_b32 {vr(vT1)}, {AFS}")
    e(f"v_and_b32 {vr(vT0)}, 7, {vr(vLane)}")
    e(f"v_mad_u32_u24 {vr(vFa)}, {vr(vT0)}, {vr(vT1)}, {sr(sT2)}")
    e(f"v_lshrrev_b32 {vr(vT0)}, 5, v0")
    e(f"v_mad_u32_u24 {vr(vFb)}, {vr(vT0)}, {vr(vT1)}, {sr(sT2)}")
    e(f"s_mul_i32 {sr(sT2)}, {sr(sT0)}, {8*ARS}")
    e(f"s_lshl_b32 {sr(sT3)}, {sr(sT1)}, 9")
    e(f"s_add_u32 {sr(sT2)}, {sr(sT2)}, {sr(sT3)}")
    e(f"s_add_u32 {sr(sT2)}, {sr(sT2)}, {AR_OFF}")
    e(f"v_mov_b32 {vr(vT1)}, {ARS}")
    e(f"v_mad_u32_u24 {vr(vDa)}, {vr(vT0)}, {vr(vT1)}, {sr(sT2)}")
    e(f"v_and_b32 {vr(vT0)}, 31, {vr(vLane)}")
    e(f"v_lshl_add_u32 {vr(vDa)}, {vr(vT0)}, 4, {vr(vDa)}")
    e("s_waitcnt vmcnt(0)")
    e("s_barrier")
    call("L_T1")
    if opts.get("xq", 0) == 3: e("s_branch L_done")
    e(f"s_mov_b32 {sr(sSpin)}, 0x8000")
    g.lab("L_hp")
    for i in range(opts.get("hsn", 3 if HW else 0)): e("s_sleep 127")
    for r, a in ((vF0, vFa), (vFn, vFb), (vD0, vDa)):
        e(f"buffer_load_dwordx4 {vr(r,4)}, {vr(a)}, {sr(sWS,4)}, 0 offen sc1")
    e(f"s_sub_u32 {sr(sSpin)}, {sr(sSpin)}, 1")
    e("s_waitcnt vmcnt(0)")
    e("s_cbranch_scc1 L_hp1")
    for r in (vF0, vFn, vD0):
        for i in range(2):
            e(f"v_bitop3_b32 {vr(r+2+i)}, {vr(r+i)}, {vr(r+2+i)}, {sr(sNon)} bitop3:0x96")
    e(f"v_or3_b32 {vr(vT0)}, {vr(vF0+2)}, {vr(vF0+3)}, {vr(vFn+2)}")
    e(f"v_or3_b32 {vr(vT1)}, {vr(vFn+3)}, {vr(vD0+2)}, {vr(vD0+3)}")
    e(f"v_or_b32 {vr(vT0)}, {vr(vT0)}, {vr(vT1)}")
    e(f"v_cmp_ne_u32 vcc, 0, {vr(vT0)}")
    e("s_cbranch_vccz L_hp1")
    if not opts.get("hsn", 3 if HW else 0): e(f"s_sleep {opts.get('hsl', 64)}")
    e("s_branch L_hp")
    g.lab("L_hp1")
    for src, dst, rot in ((vF0, vM, 4), (vM, vT1, 2), (vT1, vM, 1)):
        e(f"v_max_f32_dpp {vr(dst)}, {vr(src)}, {vr(src)} row_ror:{rot} {DP}")
        e("s_nop 1")
    e(f"v_sub_f32 {vr(vT1)}, {vr(vF0)}, {vr(vM)}")
    e(f"v_sub_f32 {vr(vFn)}, {vr(vFn)}, {vr(vM)}")
    e(f"v_exp_f32 {vr(vT1)}, {vr(vT1)}")
    e(f"v_exp_f32 {vr(vFn)}, {vr(vFn)}")
    for i in range(2):
        e(f"v_lshlrev_b32 {vr(vO+2*i)}, 16, {vr(vD0+i)}")
        e(f"v_and_b32 {vr(vO+2*i+1)}, 0xffff0000, {vr(vD0+i)}")
    e(f"v_mul_f32 {vr(vT1)}, {vr(vT1)}, {vr(vF0+1)}")
    for i in range(4):
        e(f"v_mul_f32 {vr(vO+i)}, {vr(vFn)}, {vr(vO+i)}")
    for src, dst, rot in ((vT1, vL, 4), (vL, vT1, 2), (vT1, vL, 1)):
        e(f"v_add_f32_dpp {vr(dst)}, {vr(src)}, {vr(src)} row_ror:{rot} {DP}")
        e("s_nop 1")
    e(f"v_mul_f32 {vr(vL)}, 0x3d800000, {vr(vL)}")
    for i in range(4):
        e(f"v_mov_b32 {vr(vO2+i)}, {vr(vO+i)}")
    e("s_nop 1")
    for i in range(4):
        e(f"v_permlane32_swap_b32 {vr(vO+i)}, {vr(vO2+i)}")
    e("s_nop 1")
    for i in range(4):
        e(f"v_add_f32 {vr(vO+i)}, {vr(vO+i)}, {vr(vO2+i)}")
    if opts.get("xq", 0) == 4: e("s_branch L_done")
    e("s_branch L_T2")
    g.lab("L_H2")
    if opts.get("xq", 0) == 5: e("s_branch L_done")
    e("s_waitcnt vmcnt(0)")
    e("s_barrier")
    sP, sCb, sSl, sRow = sCi, sT1, sT2, sT3
    e(f"s_cmp_lt_u32 s2, {192 + 40}")
    e(f"s_cselect_b32 {sr(sP)}, 1, 0")
    e(f"s_cmp_lg_u32 {sr(sW)}, 0")
    e("s_cbranch_scc1 L_H3")
    e(f"s_lshl_b32 {sr(sT0)}, s2, 2")
    e(f"s_add_u32 {sr(sT0)}, {sr(sT0)}, {HF_OFF - 192*4}")
    e(f"v_mov_b32 {vr(vEp)}, {sr(sNon)}")
    e("s_mov_b64 exec, 1")
    e(f"buffer_store_dword {vr(vEp)}, off, {sr(sWS,4)}, {sr(sT0)} sc1")
    e("s_mov_b64 exec, -1")
    e(f"s_cmp_eq_u32 {sr(sP)}, 1")
    e("s_cbranch_scc1 L_H3")
    e(f"s_mov_b32 {sr(sSpin)}, 0x40000")
    g.lab("L_hf")
    e(f"s_sleep {opts.get('hsf', 100)}")
    e(f"buffer_load_dword {vr(vEp+1)}, {vr(vHa)}, {sr(sWS,4)}, 0 offen offset:{HF_OFF} sc1")
    e(f"s_sub_u32 {sr(sSpin)}, {sr(sSpin)}, 1")
    e("s_waitcnt vmcnt(0)")
    e("s_cbranch_scc1 L_H3")
    e(f"v_cmp_ne_u32 vcc, {sr(sNon)}, {vr(vEp+1)}")
    e("s_cbranch_vccnz L_hf")
    e(f"s_cmp_lg_u32 s2, 255")
    e("s_cbranch_scc1 L_H3")
    e(f"v_mov_b32 {vr(vEp+1)}, {sr(sE)}")
    e("s_mov_b64 exec, 1")
    e(f"buffer_store_dword {vr(vEp+1)}, off, {sr(sWS,4)}, 0 sc1")
    e("s_mov_b64 exec, -1")
    g.lab("L_H3")
    if opts.get("xq", 0) == 6: e("s_branch L_done")
    e(f"s_mul_i32 {sr(sT0)}, {sr(sP)}, 40")
    e(f"s_add_u32 {sr(sSl)}, s2, {sr(sT0)}")
    e(f"s_sub_u32 {sr(sSl)}, {sr(sSl)}, {192 + 40}")
    e(f"s_cmp_ge_u32 {sr(sSl)}, 24")
    e("s_cbranch_scc1 L_done")
    e(f"s_cmp_ge_u32 {sr(sSl)}, 12")
    e(f"s_cselect_b32 {sr(sCb)}, 1, 0")
    e(f"s_cselect_b32 {sr(sRow)}, 12, 0")
    e(f"s_sub_u32 {sr(sSl)}, {sr(sSl)}, {sr(sRow)}")
    e(f"s_lshl_b32 {sr(sRow)}, {sr(sCb)}, 5")
    e(f"v_lshrrev_b32 {vr(vT0)}, 3, v0")
    e(f"v_add_u32 {vr(vT0)}, {sr(sRow)}, {vr(vT0)}")
    e(f"s_lshl1_add_u32 {sr(sRow)}, {sr(sP)}, 1")
    e(f"v_mul_u32_u24 {vr(vT0)}, {sr(sRow)}, {vr(vT0)}")
    e(f"s_cmp_eq_u32 {sr(sP)}, 0")
    e(f"s_cselect_b32 {sr(sRow)}, 192, 0")
    e(f"v_add_u32 {vr(vT0)}, {sr(sRow)}, {vr(vT0)}")
    e(f"v_and_b32 {vr(vT1)}, 7, v0")
    e(f"s_lshl_b32 {sr(sRow)}, {sr(sSl)}, 7")
    e(f"s_add_u32 {sr(sRow)}, {sr(sRow)}, {Y_OFF}")
    e(f"v_mov_b32 {vr(vYo)}, {YS}")
    e(f"v_mad_u32_u24 {vr(vYo)}, {vr(vT0)}, {vr(vYo)}, {sr(sRow)}")
    e(f"v_lshl_add_u32 {vr(vYo)}, {vr(vT1)}, 4, {vr(vYo)}")
    vCx = vMlo
    e(f"s_lshl_b32 {sr(sRow)}, {sr(sW)}, 8")
    e(f"s_add_u32 {sr(sRow)}, {sr(sRow)}, {LDS_SC}")
    e(f"v_lshl_add_u32 {vr(vCx)}, {vr(vT1)}, 2, {sr(sRow)}")
    e(f"v_lshrrev_b32 {vr(vT0)}, 1, {vr(vG)}")
    e(f"v_lshl_add_u32 {vr(vCx)}, {vr(vT0)}, 5, {vr(vCx)}")
    e(f"v_and_b32 {vr(vT0)}, 1, {vr(vG)}")
    e(f"v_lshl_add_u32 {vr(vCw)}, {vr(vT0)}, 6, {vr(vCx)}")
    e(f"v_lshlrev_b32 {vr(vCr)}, 2, v0")
    e(f"v_add_u32 {vr(vCr)}, {LDS_SC}, {vr(vCr)}")
    e(f"s_mul_i32 {sr(sCb)}, {sr(sCb)}, 1152")
    e(f"s_mul_i32 {sr(sT0)}, {sr(sP)}, 576")
    e(f"s_add_u32 {sr(sCb)}, {sr(sCb)}, {sr(sT0)}")
    e(f"s_mul_i32 {sr(sT0)}, {sr(sSl)}, 11")
    e(f"s_lshr_b32 {sr(sT0)}, {sr(sT0)}, 5")
    e(f"s_lshl4_add_u32 {sr(sCb)}, {sr(sT0)}, {sr(sCb)}")
    e(f"s_mul_i32 {sr(sT0)}, {sr(sT0)}, 3")
    e(f"s_sub_u32 {sr(sSl)}, {sr(sSl)}, {sr(sT0)}")
    e(f"s_mov_b32 {sr(sT0)}, 0x18100800")
    e(f"s_mov_b32 {sr(sRow)}, 0x2820")
    e(f"s_cmp_eq_u32 {sr(sSl)}, 2")
    e(f"s_cselect_b32 {sr(sT0)}, 0x41403830, {sr(sT0)}")
    e(f"s_cselect_b32 {sr(sRow)}, 0x3931, {sr(sRow)}")
    e(f"s_cselect_b32 {sr(sSl)}, 0, {sr(sSl)}")
    e(f"s_lshl3_add_u32 {sr(sCb)}, {sr(sSl)}, {sr(sCb)}")
    e(f"v_bfe_u32 {vr(vT0)}, v0, 3, 3")
    e(f"v_or_b32 {vr(vT0)}, 0x0c0c0c00, {vr(vT0)}")
    e(f"v_mov_b32 {vr(vOa)}, {sr(sRow)}")
    e(f"v_perm_b32 {vr(vOa)}, {vr(vOa)}, {sr(sT0)}, {vr(vT0)}")
    e(f"v_lshl_add_u32 {vr(vOa)}, {vr(vOa)}, 3, {vr(vT1)}")
    e(f"v_add_lshl_u32 {vr(vOa)}, {vr(vOa)}, {sr(sCb)}, 1")
    vMx, vRes, vWt = 48, 40, 56
    vZc, vUn = 76, 120
    assert 2 * YS < 4096
    e(f"s_mov_b32 {sr(sSpin)}, 0x100000")
    e(f"s_cmp_eq_u32 {sr(sP)}, 0")
    e("s_cbranch_scc1 L_finA")
    def check(vD, n):
        for i in range(n):
            e(f"v_bitop3_b32 {vr(vMx+i)}, {vr(vD+4*i)}, {vr(vD+4*i+1)}, {vr(vD+4*i+2)} bitop3:0x96")
        for i in range(n):
            e(f"v_bitop3_b32 {vr(vWt+1+i)}, {vr(vMx+i)}, {vr(vD+4*i+3)}, {vr(vNl)} bitop3:0x96")
        if n == 1: e("s_nop 1")
        for i in range(n):
            e(f"v_xor_b32_dpp {vr(vMx+i)}, {vr(vWt+1+i)}, {vr(vWt+1+i)} quad_perm:[1,0,3,2] {DP}")
        for i in range(n):
            e(f"v_xor_b32_dpp {vr(vMx+3+i)}, {vr(vWt+1+i)}, {vr(vWt+1+i)} quad_perm:[2,3,0,1] {DP}")
        for i in range(n):
            e(f"v_or_b32 {vr(vMx+i)}, {vr(vMx+i)}, {vr(vMx+3+i)}")
    PD = opts.get("pd", 2)
    VS = [64, 84, 96, 108][:PD]; MS = [16, 22, 36, 48][:PD]
    SM = opts.get("psm", 0x000f000f)
    e(f"s_mov_b32 exec_lo, {SM}"); e(f"s_mov_b32 exec_hi, {SM}")
    g.lab("L_pollc")
    e(f"s_sleep {opts.get('csl', 16)}")
    e(f"buffer_load_dwordx4 {vr(VS[0],4)}, {vr(vYo)}, {sr(sWS,4)}, 0 offen offset:{2*YS} sc1")
    e(f"s_sub_u32 {sr(sSpin)}, {sr(sSpin)}, 1")
    e("s_waitcnt vmcnt(0)")
    e("s_cbranch_scc1 L_pollc_done")
    check(VS[0], 1)
    e(f"v_cmp_eq_u32 vcc, 0, {vr(vMx)}")
    if opts.get("pth", 1) > 1:
        e(f"s_bcnt1_i32_b64 {sr(sT2)}, vcc")
        e(f"s_cmp_lt_u32 {sr(sT2)}, {4*opts['pth']}")
        e("s_cbranch_scc1 L_pollc")
    else: e("s_cbranch_vccz L_pollc")
    g.lab("L_pollc_done")
    e("s_mov_b64 exec, -1")
    e(f"s_mov_b32 {sr(sSpin)}, 0x100000")
    def poll(n, first=False):
        for i in range(3):
            if not first: e(f"s_or_b64 exec, {sr(MS[n]+2*i,2)}, 1")
            e(f"buffer_load_dwordx4 {vr(VS[n]+4*i,4)}, {vr(vYo)}, {sr(sWS,4)}, 0 offen offset:{YS*i} sc1")
        e("s_mov_b64 exec, -1")
    for i in range(3):
        e(f"s_mov_b64 {sr(MS[PD-1]+2*i,2)}, -1")
    for n in range(PD - 1):
        poll(n, True)
        e(f"s_sleep {opts.get('pds', 8)}")
    g.lab("L_polld")
    for n in range(PD):
        vD = VS[n]
        poll((n - 1) % PD)
        e(f"s_waitcnt vmcnt({3*(PD-1)})")
        check(vD, 3)
        e(f"v_max3_f32 {vr(vWt)}, {vr(vWt+1)}, {vr(vWt+2)}, {vr(vWt+3)}")
        e(f"v_or3_b32 {vr(vMx+3)}, {vr(vMx)}, {vr(vMx+1)}, {vr(vMx+2)}")
        for i in range(3): e(f"v_sub_f32 {vr(vWt+1+i)}, {vr(vWt+1+i)}, {vr(vWt)}")
        e(f"v_cmp_ne_u32 vcc, 0, {vr(vMx+3)}")
        for i in range(3): e(f"v_exp_f32 {vr(vWt+1+i)}, {vr(vWt+1+i)}")
        e(f"s_cbranch_vccz L_polld_done{n}")
        for i in range(3):
            e(f"v_cmp_ne_u32 {sr(MS[n]+2*i,2)}, 0, {vr(vMx+i)}")
    e(f"s_sub_u32 {sr(sSpin)}, {sr(sSpin)}, 1")
    e(f"s_cbranch_scc0 L_polld")
    def unpack(d, s_):
        for m in range(3):
            e(f"v_lshlrev_b32 {vr(d+2*m)}, 16, {vr(s_+m)}")
            e(f"v_and_b32 {vr(d+2*m+1)}, 0xffff0000, {vr(s_+m)}")
    for n in range(PD - 1, -1, -1):
        vD = VS[n]
        g.lab(f"L_polld_done{n}")
        stamp9(4)
        e(f"v_add_f32 {vr(vWt)}, {vr(vWt+1)}, {vr(vWt+2)}")
        unpack(vZc, vD)
        e(f"v_add_f32 {vr(vWt)}, {vr(vWt)}, {vr(vWt+3)}")
        unpack(vUn, vD + 4)
        e(f"v_rcp_f32 {vr(vWt)}, {vr(vWt)}")
        unpack(vUn + 6, vD + 8)
        if n: e("s_branch L_fin1")
    g.lab("L_fin1")
    for i in range(3): e(f"v_mul_f32 {vr(vWt+2+2*i)}, {vr(vWt+3-i)}, {vr(vWt)}" if False else f"v_mul_f32 {vr(vMx+2*i)}, {vr(vWt+1+i)}, {vr(vWt)}")
    for m in range(3):
        e(f"v_pk_mul_f32 {vr(vZc+2*m,2)}, {vr(vZc+2*m,2)}, {vr(vMx,2)} op_sel_hi:[1,0]")
    for i in range(2):
        for m in range(3):
            e(f"v_pk_fma_f32 {vr(vZc+2*m,2)}, {vr(vUn+6*i+2*m,2)}, {vr(vMx+2+2*i,2)}, {vr(vZc+2*m,2)} op_sel_hi:[1,0,1]")
    g.lab("L_fin2")
    for k in range(6):
        e(f"v_add_f32_dpp {vr(vRes+k)}, {vr(vZc+k)}, {vr(vZc+k)} row_ror:8 {DP}")
    for m in range(3):
        e(f"v_permlane32_swap_b32 {vr(vRes+2*m)}, {vr(vRes+2*m+1)}")
    for m in (2, 0, 1):
        e(f"v_add_f32 {vr(vRes+2*m)}, {vr(vRes+2*m)}, {vr(vRes+2*m+1)}")
    e(f"v_mov_b32 {vr(vRes+5)}, {vr(vRes+4)}")
    e("s_nop 0")
    e(f"v_permlane16_swap_b32 {vr(vRes)}, {vr(vRes+2)}")
    e(f"v_permlane16_swap_b32 {vr(vRes+4)}, {vr(vRes+5)}")
    e(f"v_add_f32 {vr(vRes)}, {vr(vRes)}, {vr(vRes+2)}")
    e(f"v_add_f32 {vr(vRes+4)}, {vr(vRes+4)}, {vr(vRes+5)}")
    e(f"ds_write_b32 {vr(vCw)}, {vr(vRes)}")
    e(f"ds_write_b32 {vr(vCx)}, {vr(vRes+4)} offset:128")
    e(f"s_cmp_lg_u32 {sr(sW)}, 0")
    e("s_mov_b32 exec_hi, 0xffff")
    e("s_waitcnt lgkmcnt(0)")
    e("s_barrier")
    stamp9(6)
    e("s_cbranch_scc1 L_done0")
    for w in range(4):
        e(f"ds_read_b32 {vr(vRes+w)}, {vr(vCr)} offset:{256*w}")
    e("s_waitcnt lgkmcnt(0)")
    e(f"v_add_f32 {vr(vRes)}, {vr(vRes)}, {vr(vRes+1)}")
    e(f"v_add_f32 {vr(vRes+2)}, {vr(vRes+2)}, {vr(vRes+3)}")
    e(f"v_add_f32 {vr(vRes)}, {vr(vRes)}, {vr(vRes+2)}")
    e(f"v_cvt_pk_bf16_f32 {vr(vRes)}, {vr(vRes)}, {vr(vRes)}")
    e(f"buffer_store_short {vr(vRes)}, {vr(vOa)}, {sr(sOut,4)}, 0 offen")
    g.lab("L_done0")
    e("s_mov_b64 exec, -1")
    g.lab("L_done")
    if PROF:
        e("s_waitcnt vmcnt(0)")
        stamp(7)
        e("s_getreg_b32 s96, hwreg(HW_REG_XCC_ID)")
        e("s_getreg_b32 s97, hwreg(HW_REG_HW_ID)")
        e("s_waitcnt lgkmcnt(0)")
        e(f"s_lshl_b32 {sr(sT0)}, s2, 2")
        e(f"s_add_u32 {sr(sT0)}, {sr(sT0)}, {sr(sW)}")
        e(f"s_lshl_b32 {sr(sT0)}, {sr(sT0)}, 6")
        e(f"s_add_u32 {sr(sT0)}, {sr(sT0)}, 0x200000")
        e(f"v_mov_b32 v20, {sr(sT0)}")
        for i in range(8):
            e(f"v_mov_b32 v{24+i}, s{80+2*i}")
        e("v_mov_b32 v32, s96")
        e("v_mov_b32 v33, s97")
        e("s_mov_b64 exec, 1")
        e(f"buffer_store_dwordx4 v[24:27], v20, {sr(sWS,4)}, 0 offen")
        e(f"buffer_store_dwordx4 v[28:31], v20, {sr(sWS,4)}, 0 offen offset:16")
        e(f"buffer_store_dwordx2 v[32:33], v20, {sr(sWS,4)}, 0 offen offset:32")
    g.lab("L_exit")
    e("s_endpgm")
    g.lab("L_finA")
    e("s_barrier")
    e(f"buffer_load_dwordx4 {vr(vUn,4)}, {vr(vYo)}, {sr(sWS,4)}, 0 offen sc1")
    e("s_waitcnt vmcnt(0)")
    unpack(vZc, vUn)
    e("s_nop 0")
    e("s_branch L_fin2")

    ret = lambda: e(f"s_setpc_b64 {sr(sRet,2)}")
    g.lab("L_AQ")
    qloads(2, sQa, None, QSC)
    ret()
    g.lab("L_AK")
    qget(2, sQa, vQA, "A")
    e("s_nop 1")
    X = [vP, 72, vQl, vQl + 16]
    for n in range(4): qk(aA + 16 * n, vQA, X[n])
    for n in range(4): fold(X[n], vSA + 4 * n, True)
    e(f"v_max3_f32 {vr(vM2)}, {vr(vSA)}, {vr(vSA+1)}, {vr(vSA+2)}")
    for i in range(3, 15, 2):
        e(f"v_max3_f32 {vr(vM2)}, {vr(vM2)}, {vr(vSA+i)}, {vr(vSA+i+1)}")
    e(f"v_max_f32 {vr(vM2)}, {vr(vM2)}, {vr(vSA+15)}")
    gmax(vM2)
    e(f"v_mul_f32 {vr(vM2)}, {sr(sC)}, {vr(vM2)}")
    ret()
    g.lab(f"L_AV0")
    for n in range(4):
        if n == 2:
            ret()
            g.lab(f"L_AV1")
        probs(vSA + 4 * n, vM2, vL2)
        e("s_nop 1")
        pv(vVb + 16 * n, vO2)
    vAa, vAb, vPm, vPo = vSA, vSA + 1, vSA + 4, vQl
    e(f"v_lshlrev_b32 {vr(vAa)}, 4, v0")
    e(f"v_add_u32 {vr(vAa)}, {LDS_OT}, {vr(vAa)}")
    e(f"s_lshl4_add_u32 {sr(sT0)}, {sr(sW)}, {LDS_M}")
    e(f"v_and_b32 {vr(vAb)}, 8, {vr(vCc)}")
    e(f"v_add_u32 {vr(vAb)}, {sr(sT0)}, {vr(vAb)}")
    gmax(vL2, "v_add_f32")
    e(f"ds_write_b128 {vr(vAa)}, {vr(vO2,4)}")
    e(f"ds_write_b64 {vr(vAb)}, {vr(vM2,2)}")
    e(f"v_mov_b32 {vr(vAa)}, {LDS_CNT + 4}")
    e(f"v_mov_b32 {vr(vAb)}, 1")
    e("s_mov_b64 exec, 1")
    e("s_waitcnt lgkmcnt(0)")
    e(f"ds_add_rtn_u32 {vr(vAb)}, {vr(vAa)}, {vr(vAb)}")
    e("s_mov_b64 exec, -1")
    tail_setup()
    e("s_waitcnt lgkmcnt(0)")
    e(f"v_readfirstlane_b32 {sr(sT0)}, {vr(vAb)}")
    e(f"v_lshlrev_b32 {vr(vAa)}, 4, {vr(vLane)}")
    e(f"v_lshrrev_b32 {vr(vT1)}, 5, {vr(vLane)}")
    e(f"v_add_u32 {vr(vT0)}, {LDS_OT}, {vr(vAa)}")
    e(f"v_lshlrev_b32 {vr(vAb)}, 3, {vr(vT1)}")
    e(f"s_cmp_eq_u32 {sr(sT0)}, 3")
    e("s_cbranch_scc1 L_AM")
    ret()
    g.lab("L_AM")
    e(f"v_add_u32 {vr(vAb)}, {LDS_M}, {vr(vAb)}")
    for w in range(4):
        e(f"ds_read_b64 {vr(vPm+2*w,2)}, {vr(vAb)} offset:{16*w}")
    for w in range(4):
        e(f"ds_read_b128 {vr(vPo+4*w,4)}, {vr(vT0)} offset:{1024*w}")
    e(f"v_lshlrev_b32 {vr(vAb)}, 4, {vr(vCc)}")
    e(f"v_lshl_add_u32 {vr(vAb)}, {vr(vT1)}, 6, {vr(vAb)}")
    e(f"s_mul_i32 {sr(sT0)}, {sr(sAr)}, {ARS}")
    e(f"s_add_u32 {sr(sT0)}, {sr(sT0)}, {AR_OFF}")
    e(f"s_mul_i32 {sr(sT1)}, {sr(sAr)}, {AFS}")
    e(f"s_add_u32 {sr(sT1)}, {sr(sT1)}, {AF_OFF}")
    e("s_waitcnt lgkmcnt(4)")
    e(f"v_max3_f32 {vr(vE)}, {vr(vPm)}, {vr(vPm+2)}, {vr(vPm+4)}")
    e(f"v_max_f32 {vr(vE)}, {vr(vE)}, {vr(vPm+6)}")
    for w in range(4):
        e(f"v_sub_f32 {vr(vPm+2*w)}, {vr(vPm+2*w)}, {vr(vE)}")
    for w in range(4):
        e(f"v_exp_f32 {vr(vPm+2*w)}, {vr(vPm+2*w)}")
    e(f"v_xor_b32 {vr(vE+2)}, {sr(sNon)}, {vr(vE)}")
    e(f"v_mul_f32 {vr(vE+1)}, {vr(vPm)}, {vr(vPm+1)}")
    for w in range(1, 4):
        e(f"v_fmac_f32 {vr(vE+1)}, {vr(vPm+2*w)}, {vr(vPm+2*w+1)}")
    e("s_waitcnt lgkmcnt(0)")
    for i in range(4):
        e(f"v_mul_f32 {vr(vPo+i)}, {vr(vPm)}, {vr(vPo+i)}")
    e(f"v_xor_b32 {vr(vE+3)}, {sr(sNon)}, {vr(vE+1)}")
    for w in range(1, 4):
        for i in range(4):
            e(f"v_fmac_f32 {vr(vPo+i)}, {vr(vPm+2*w)}, {vr(vPo+4*w+i)}")
    for d in range(2):
        e(f"v_cvt_pk_bf16_f32 {vr(vO2+d)}, {vr(vPo+2*d)}, {vr(vPo+2*d+1)}")
    for d in range(2):
        e(f"v_xor_b32 {vr(vO2+2+d)}, {sr(sNon)}, {vr(vO2+d)}")
    if not opts.get("xs", 0):
        XP = opts.get("xp", 0)
        e(f"buffer_store_dwordx4 {vr(vO2,4)}, {vr(vAa)}, {sr(sWS,4)}, {sr(sT0)} offen" + ("" if XP & 1 else " sc1"))
        e(f"s_mov_b32 exec_lo, 15"); e(f"s_mov_b32 exec_hi, 15")
        e(f"buffer_store_dwordx4 {vr(vE,4)}, {vr(vAb)}, {sr(sWS,4)}, {sr(sT1)} offen" + ("" if XP & 2 else " sc1"))
        e("s_mov_b64 exec, -1")
    ret()
    if LT:
        g.lab("L_LA")
        e(f"v_xor_b32 {vr(vT1)}, {sr(sNon)}, {vr(vLt)}")
        e(f"v_ashrrev_i32 {vr(vLt)}, 16, {vr(vLt)}")
        e(f"v_cmp_eq_u16 vcc, 0, {vr(vT1)}")
        e(f"v_cvt_f32_i32 {vr(vLt)}, {vr(vLt)}")
        e(f"s_bcnt1_i32_b64 {sr(sT0)}, vcc")
        e(f"v_cndmask_b32 {vr(vLt)}, 0, {vr(vLt)}, vcc")
        e(f"v_cvt_f32_u32 {vr(vT1)}, {sr(sT0)}")
        e(f"s_cmp_lt_u32 {sr(sT0)}, {opts.get('ltn', 24)}")
        e(f"v_rcp_f32 {vr(vT1)}, {vr(vT1)}")
        for rot in (8, 4, 2, 1):
            e(f"v_add_f32_dpp {vr(vLt)}, {vr(vLt)}, {vr(vLt)} row_ror:{rot} {DP}")
            e("s_nop 1")
        gmax(vLt, "v_add_f32")
        e(f"v_mul_f32 {vr(vLt)}, {vr(vLt)}, {vr(vT1)}")
        e(f"v_cvt_i32_f32 {vr(vLt)}, {vr(vLt)}")
        e("s_nop 0")
        e(f"v_readfirstlane_b32 {sr(sT0)}, {vr(vLt)}")
        e(f"s_cbranch_scc1 L_LA1")
        e(f"s_sub_i32 {sr(sT0)}, {sr(sT0)}, {opts.get('tg', 800)*16//10}")
        e(f"s_sub_i32 {sr(sSch)}, {sr(sSch)}, {sr(sCor)}")
        e(f"s_add_i32 {sr(sSch)}, {sr(sSch)}, {sr(sT0)}")
        e(f"s_mov_b32 {sr(sCor)}, {sr(sT0)}")
        g.lab("L_LA1")
        ret()
    g.lab("L_TR")
    e(f"v_mov_b32_dpp {vr(vM)}, {vr(vM)} quad_perm:[0,0,0,0] {DP}")
    gmax(vM)
    e(f"s_lshl2_add_u32 {sr(sT0)}, {sr(sW)}, {LDS_CNT + 16}")
    e(f"v_mul_f32 {vr(vM)}, {sr(sC)}, {vr(vM)}")
    e(f"v_mov_b32 {vr(vT0)}, {sr(sT0)}")
    e(f"s_mov_b32 {sr(sIt)}, 0")
    if opts.get("tx", 0): e(f"s_add_i32 {sr(sSch)}, {sr(sSch)}, {opts['tx']*16//10}")
    e(f"ds_write_b32 {vr(vT0)}, {vr(vM)}")
    ret()

    g.lab("L_T1")
    e(f"v_add_u32 {vr(vT0)}, 0x10000, {vr(vTR)}")
    e(f"v_add_u32 {vr(vT1)}, 0x20000, {vr(vTR)}")
    for t in range(9):
        for j in range(4):
            for hf in range(2):
                off = t*16384 + j*4096 + hf*2048
                a = (vTR, vT0, vT1)[off >> 16]
                e(f"ds_read_b64_tr_b16 {ar(aW+4*(t*4+j)+hf*2,2)}, {vr(a)} offset:{off & 0xffff}")
    e("s_waitcnt lgkmcnt(0)")
    g.lab("L_ret")
    ret()

    hdr = HEADER
    hdr += f"; @launch grid=(256,1,1) block=(256,1,1) lds={LDS_TOTAL}\n"
    hdr += '.amdgcn_target "amdgcn-amd-amdhsa--gfx950"\n.text\n'
    hdr += f".globl {KN}\n.p2align 8\n.type {KN},@function\n"
    tail = f""".section .rodata,"a"
.p2align 6
.amdhsa_kernel {KN}
  .amdhsa_next_free_vgpr 512
  .amdhsa_next_free_sgpr 102
  .amdhsa_accum_offset 256
  .amdhsa_group_segment_fixed_size 0
  .amdhsa_kernarg_size 104
  .amdhsa_user_sgpr_count 2
  .amdhsa_user_sgpr_kernarg_segment_ptr 1
  .amdhsa_system_sgpr_workgroup_id_x 1
.end_amdhsa_kernel
"""
    return hdr + g.text() + tail

if __name__ == "__main__":
    out = sys.argv[1]
    opts = {}
    for a in sys.argv[2:]:
        k, v = a.split("=")
        opts[k] = int(v, 0)
    open(out, "w").write(gen(opts))
```

```python
import sys, math, struct

KN = "concat_heads__sliding_block_cached__mha_block_cached__decode_kernel"

def f32bits(x):
    return struct.unpack("<I", struct.pack("<f", x))[0]

class Gen:
    def __init__(self):
        self.lines = []
        self.q = []
    def e(self, s):
        self.lines.append("    " + s)
    def lab(self, s):
        self.lines.append(s + ":")
    def vm(self, s, tag=None):
        self.e(s)
        self.q.append(tag)
    def wait_tag(self, tag):
        idx = max(i for i, t in enumerate(self.q) if t == tag)
        n = len(self.q) - 1 - idx
        assert n <= 63, n
        self.e(f"s_waitcnt vmcnt({n})")
    def text(self):
        return "\n".join(self.lines) + "\n"

def vr(a, n=1):
    return f"v{a}" if n == 1 else f"v[{a}:{a+n-1}]"
def ar(a, n=1):
    return f"a{a}" if n == 1 else f"a[{a}:{a+n-1}]"
def sr(a, n=1):
    return f"s{a}" if n == 1 else f"s[{a}:{a+n-1}]"

HEADER = open("concat_heads__sliding_block_cached__mha_block_cached__decode.s.ref").read().split("; Override launch")[0]

NROWS = 256
YROW = 1536
HF_OFF = 256
Q_OFF = 0x400000
LT_OFF = 1024
Y_OFF = 2048
ORG_OFF = Y_OFF + NROWS * YROW
AF_OFF = ORG_OFF + 2048
AR_OFF = AF_OFF + 32768
WS_END = Q_OFF + 16 * 32768
LDS_OT = 147456
OT_STRIDE = 272
OT_BYTES = 16 * OT_STRIDE
LDS_M = LDS_OT + OT_BYTES
LDS_CNT = LDS_M + 128
LDS_SC = LDS_CNT + 64
LDS_TOTAL = LDS_SC + 176 * 64
CSCALE = (128 ** -0.5) * math.log2(math.e)
OOB = 0x40000000
assert AR_OFF + 256 * 1024 <= 0x200000 and AF_OFF % 128 == 0 and LDS_TOTAL <= 163840

def gen(opts):
    U = opts.get("u", 4)
    NT = " nt"
    PROF = opts.get("prof", 0)
    SLEEP = opts.get("sleep", 16)
    SB = opts.get("sb", 37)
    WS_BYTES = WS_END
    global Y_OFF, AR_OFF, AF_OFF
    YS, ARS, AFS = YROW, 1024, 128
    RS = opts.get("rs", 0)
    if RS:
        WS_BYTES = 0x800000 + 256 * RS
        Y_OFF, YS = 0x800000, RS
        if opts.get("rsa", 1): AR_OFF, AF_OFF, ARS, AFS = Y_OFF + 4096, Y_OFF + 5120, RS, RS
    QW = opts.get('qw', 3)
    RM = opts.get("rm", 25)
    RMA = opts.get("rma", 25)
    RB = [0, opts.get("r1", 171), opts.get("r2", 342), 512]
    assert all(4 * SB + 4 <= RB[i + 1] - RB[i] <= 176 for i in range(3))
    FLV = opts.get("flv", -1)
    PSPL = opts.get("pspl", 0)
    PSPV = opts.get("pspv", 0)
    MHV = 0x0f0f0f0f
    LW = [int(ch, 16) for ch in "%x" % opts.get("lw", 0x8642)]
    g = Gen()
    e = g.e
    sW, sRet, sE, sNon, sOut = 3, 4, 6, 7, 12
    sWoff, sSpin = 34, 35
    sK, sV, sWQ, sX, sWO, sWS = 36, 40, 44, 48, 52, 56
    sAK, sAV = sWQ, sX
    sRot, sAL, sT0, sT1, sT2, sT3 = 60, 61, 62, 63, 64, 65
    sOff, sIt, sC, sSelLo, sSelHi, sLdsW = 66, 67, 68, 69, 70, 71
    sRem, sR0, sAr, sQo, sIsH, sDt, sDoff, sDlds = 72, 73, 74, 75, 76, 77, 78, 79
    sKVo, sWoO, sAo, sPq, sQa, sL = 96, 97, 98, 99, 100, 101
    sX15 = 96
    sSt, sCl, sCi, sSrc = 44, 47, 45, 46
    sDyn, sLim, sL0, sBase = 48, 49, 50, 51
    sLev, sSch, sNow, sOff0 = 17, 18, 20, 22
    sTi, sPh = 26, 30
    sPub, sCor, sLimK, sTau = 16, 23, 24, 25
    PM = [int(ch, 16) + 8 for ch in "%013x" % (opts.get("perm", 0x10712345689abc) & (16**13 - 1))]
    assert sorted(PM) == list(range(8, 21)) and PM[11:] == [19, 20] and PM[0] <= 11 and PM[3] <= 11 and PM[4:] == sorted(PM[4:]), PM
    HOLE = sum(1 << p for p in PM[:4] if p > PM[4])
    TMASK = sum(1 << p for p in PM[4:])
    def phys(src, add, mask=None):
        e(f"s_add_u32 {sr(sX15)}, {sr(src)}, {add}")
        runs = []
        for i in range(9):
            if runs and runs[-1][1] + runs[-1][2] == PM[4 + i]: runs[-1][2] += 1
            else: runs.append([i, PM[4 + i], 1])
        for n, (i, p, w) in enumerate(runs):
            d = sOff if n == 0 else sWoff
            e(f"s_bfe_u32 {sr(d)}, {sr(sX15)}, {(w << 16) | i}")
            e(f"s_lshl_b32 {sr(d)}, {sr(d)}, {p}")
            if n: e(f"s_or_b32 {sr(sOff)}, {sr(sOff)}, {sr(sWoff)}")
        if mask: e(f"s_and_b32 {sr(sOff)}, {sr(sOff)}, {mask}")
    def adv():
        e(f"s_add_u32 {sr(sOff)}, {sr(sOff)}, {HOLE + (1 << PM[6])}")
        e(f"s_and_b32 {sr(sOff)}, {sr(sOff)}, {TMASK}")
        e(f"s_add_u32 {sr(sL)}, {sr(sL)}, 256")
    assert all(p > PM[6] for p in PM[:4] if p > PM[4])
    vLane, vG, vCc = 1, 2, 3
    vK, vV, vSt0, vSt1, vTR, vU0 = 4, 5, 6, 7, 8, 9
    vT0, vT1 = 10, 11
    vM, vL, vM2, vL2 = 12, 13, 14, 15
    vS, vMk = 16, 20
    vE, vA, vMn = 24, 28, 29
    vSa, vSb = 30, 31
    vO, vO2 = 32, 36
    vP = 48
    vQ, vQA = 64, 68
    vVb = 96
    vWOj = 160
    vSA = 164
    vTk = 202
    vAw, vAm, vAr, vAx = 204, 205, 206, 207
    vYo, vMlo, vCw, vCr, vOa, vWm = 196, 197, 198, 199, 200, 201
    vEp = 152
    vHf, vHa = 162, 163
    vLt = 180
    vNl = 182
    vQa = 161
    vQl = 208
    vTmp = 240
    aW = 64
    aA = 64
    DP = "row_mask:0xf bank_mask:0xf"
    def stamp9(i):
        if PROF == 9: e(f"s_memrealtime s[{80+2*i}:{81+2*i}]")
    def stamp(i):
        if PROF in (9, 11):
            if i in (0, 5, 7): e(f"s_memrealtime s[{80+2*i}:{81+2*i}]")
            if i == 6: e(f"s_memrealtime s[86:87]")
        elif PROF in (1, 3) or (PROF == 2 and i in (0, 1, 2, 7)):
            e(f"s_memrealtime s[{80+2*i}:{81+2*i}]")
    def stamp2(i):
        if PROF == 2: e(f"s_memrealtime s[{80+2*i}:{81+2*i}]")
    def srd_tail(s, size):
        e(f"s_mov_b32 {sr(s+2)}, {size}")
        e(f"s_mov_b32 {sr(s+3)}, 0x00020000")
    def add64(d, s, off):
        e(f"s_add_u32 {sr(d)}, {sr(s)}, {off}")
        e(f"s_addc_u32 {sr(d+1)}, {sr(s+1)}, 0")
    def issue(isK, reg, srd, tag=None, split=0):
        for j in range(4):
            if isK: ld = f"buffer_load_dwordx4 {ar(reg+4*j,4)}, {vr(vK)}, {sr(srd,4)}, {sr(sOff)} offen offset:{((j&1) << PM[0]) + ((j>>1) << PM[3])}{NT}"
            else: ld = f"buffer_load_dwordx4 {vr(reg+4*j,4)}, {vr(vV)}, {sr(srd,4)}, {sr(sOff)} offen offset:{((j&1) << PM[0]) + ((j>>1) << PM[3])}{NT}"
            if j < split:
                m = 0x0000ffff if isK else MHV
                e(f"s_mov_b32 exec_lo, {m}"); e(f"s_mov_b32 exec_hi, {m}")
                g.vm(ld, tag)
                e("s_not_b64 exec, exec")
                g.vm(ld, tag)
                e("s_mov_b64 exec, -1")
            else:
                g.vm(ld, tag)
    def throttle(uid):
        if "pt" in opts:
            th = [int(ch, 16) for ch in "%04x" % opts["pt"]][int(uid[1:])]
            e(f"s_cmp_ge_i32 {sr(sLev)}, {th}")
            e(f"s_cbranch_scc1 L_th{uid}")
            e(f"s_waitcnt vmcnt({opts.get('pm', 4)})")
            e(f"s_cmp_ge_i32 {sr(sLev)}, {th - opts.get('ps', 8)}")
            e(f"s_cbranch_scc1 L_th{uid}")
            e(f"s_waitcnt vmcnt({opts.get('pq', 2)})")
            g.lab(f"L_th{uid}")
            return
        for n, w in enumerate(LW):
            e(f"s_cmp_ge_i32 {sr(sLev)}, {len(LW) - n}")
            e(f"s_cbranch_scc1 L_th{uid}")
            e(f"s_waitcnt vmcnt({w})")
        g.lab(f"L_th{uid}")

    g.lab(KN)
    e("s_cmp_ge_u32 s2, 256")
    e("s_cbranch_scc1 L_exit")
    stamp(0)
    e("s_memrealtime s[94:95]")
    e("s_load_dwordx16 s[8:23], s[0:1], 0")
    e("s_load_dwordx8 s[24:31], s[0:1], 64")
    e("s_load_dwordx2 s[32:33], s[0:1], 96")
    e(f"v_lshrrev_b32 {vr(vT0)}, 6, v0")
    e(f"v_mov_b32 {vr(vT1)}, {LDS_CNT}")
    for i in range(4):
        e(f"v_mov_b32 {vr(vO+i)}, 0")
    e(f"v_readfirstlane_b32 {sr(sW)}, {vr(vT0)}")
    e(f"ds_write_b128 {vr(vT1)}, {vr(vO,4)}")
    e(f"v_and_b32 {vr(vLane)}, 63, v0")
    e(f"v_bfe_u32 {vr(vG)}, v0, 4, 2")
    e(f"v_and_b32 {vr(vCc)}, 15, v0")
    vWQ, vX, vXs, vXo, vQs = 24, 25, 96, 120, 26
    e(f"s_and_b32 {sr(sT0)}, s2, 3")
    e(f"s_mul_i32 {sr(sT1)}, {sr(sT0)}, 144")
    e(f"v_mad_u32_u24 {vr(vX)}, {vr(vG)}, 36, {sr(sT1)}")
    e(f"s_bfe_u32 {sr(sT1)}, s2, 0x50002")
    e(f"s_lshl_b32 {sr(sT2)}, {sr(sT1)}, 8")
    e(f"v_lshl_add_u32 {vr(vWQ)}, {vr(vCc)}, 4, {sr(sT2)}")
    e(f"v_lshl_add_u32 {vr(vWQ)}, {vr(vX)}, 13, {vr(vWQ)}")
    e(f"v_lshrrev_b32 {vr(vT0)}, 3, {vr(vCc)}")
    e(f"v_mul_u32_u24 {vr(vT0)}, 1152, {vr(vT0)}")
    e(f"v_lshl_add_u32 {vr(vX)}, {vr(vX)}, 1, {vr(vT0)}")
    e(f"s_lshr_b32 {sr(sPq)}, s2, 7")
    srd_tail(sWQ, 576 * 8192)
    srd_tail(sX, 2304)
    srd_tail(sWS, WS_BYTES)
    e(f"s_cmp_eq_u32 {sr(sPq)}, 0")
    e("s_waitcnt lgkmcnt(0)")
    e(f"s_cselect_b64 {sr(sWQ,2)}, s[14:15], s[24:25]")
    e(f"s_cselect_b64 {sr(sX,2)}, s[8:9], s[18:19]")
    e(f"s_load_dword {sr(sE)}, s[32:33], 0")
    e(f"s_cmp_lg_u32 {sr(sW)}, {QW}")
    e("s_cbranch_scc1 L_nq0")
    g.q = []
    for i in range(4):
        g.vm(f"buffer_load_dwordx4 {vr(vXs+4*i,4)}, {vr(vX)}, {sr(sX,4)}, 0 offen offset:{16*i}", "x")
    g.vm(f"buffer_load_dwordx2 {vr(vXs+16,2)}, {vr(vX)}, {sr(sX,4)}, 0 offen offset:64", "x")
    for n in range(36):
        if n: e(f"s_mov_b32 {sr(sWoff)}, {n*8192}")
        g.vm(f"buffer_load_dwordx4 {ar(4*n,4)}, {vr(vWQ)}, {sr(sWQ,4)}, {sr(sWoff) if n else 0} offen" + (NT if opts.get("wqnt", 1) else ""), ("wq", n))
        if n == opts.get("qbar", 15): e("s_barrier")
    stamp2(3)
    e("s_branch L_nq1")
    g.lab("L_nq0")
    e("s_barrier")
    g.lab("L_nq1")
    e(f"s_mov_b32 {sr(sWS)}, s32"); e(f"s_mov_b32 {sr(sWS+1)}, s33")
    e(f"v_and_b32 {vr(vT0)}, 1, {vr(vLane)}")
    e(f"v_lshlrev_b32 {vr(vT0)}, 4, {vr(vT0)}")
    e(f"v_mov_b32 {vr(vT1)}, 0xffff")
    e(f"v_lshlrev_b32 {vr(vT0)}, {vr(vT0)}, {vr(vT1)}")
    e(f"v_bfe_u32 {vr(vT1)}, {vr(vLane)}, 1, 2")
    for d in range(4):
        e(f"v_cmp_eq_u32 vcc, {d}, {vr(vT1)}")
        e(f"v_cndmask_b32 {vr(vMk+d)}, 0, {vr(vT0)}, vcc")
    e(f"s_cbranch_scc1 L_nq2")
    e(f"s_lshl3_add_u32 {sr(sT0)}, {sr(sPq)}, {sr(sT0)}")
    e(f"s_lshl_b32 {sr(sT0)}, {sr(sT0)}, 15")
    e(f"s_lshl_b32 {sr(sT1)}, {sr(sT1)}, 10")
    e(f"s_add_u32 {sr(sT0)}, {sr(sT0)}, {sr(sT1)}")
    e(f"s_add_u32 {sr(sT0)}, {sr(sT0)}, {Q_OFF}")
    e(f"v_and_b32 {vr(vT0)}, 31, {vr(vLane)}")
    e(f"v_lshl_add_u32 {vr(vQs)}, {vr(vT0)}, 4, {sr(sT0)}")
    e(f"v_lshrrev_b32 {vr(vT0)}, 5, {vr(vLane)}")
    e(f"v_lshl_add_u32 {vr(vQs)}, {vr(vT0)}, 17, {vr(vQs)}")
    e(f"s_mov_b32 {sr(sSelLo)}, 0x01000100")
    e(f"s_mov_b32 {sr(sSelHi)}, 0x03020302")
    e("s_waitcnt lgkmcnt(0)")
    e(f"s_add_u32 {sr(sT2)}, {sr(sE)}, 1")
    e(f"s_mul_i32 {sr(sNon)}, {sr(sT2)}, 0x9E3779B1")
    e(f"s_or_b32 {sr(sNon)}, {sr(sNon)}, 1")
    OE = opts.get("oe", 0)
    def org_store(lbl):
        e(f"s_cmp_gt_u32 s2, {7 if opts.get('org', 0) else 0}")
        e(f"s_cbranch_scc1 {lbl}")
        if opts.get("org", 0) == 2:
            e(f"s_memrealtime {sr(sT2,2)}")
            e("s_waitcnt lgkmcnt(0)")
        else: e(f"s_mov_b32 {sr(sT2)}, s94")
        e(f"s_xor_b32 {sr(sT0)}, {sr(sT2)}, {sr(sNon)}")
        e(f"v_mov_b32 {vr(vS)}, {sr(sT2)}")
        e(f"v_mov_b32 {vr(vS+1)}, {sr(sT0)}")
        e(f"v_lshlrev_b32 {vr(vT0)}, 7, {vr(vCc)}")
        e(f"s_lshl3_add_u32 {sr(sT0)}, s2, {ORG_OFF}")
        e(f"s_mov_b64 exec, 0xffff")
        e(f"buffer_store_dwordx2 {vr(vS,2)}, {vr(vT0)}, {sr(sWS,4)}, {sr(sT0)} offen sc1")
        e(f"s_mov_b64 exec, -1")
        g.lab(lbl)
    if OE: org_store("L_nq3")
    stamp2(5)
    g.wait_tag("x")
    stamp2(6)
    def xop(n):
        t = vXo + 8 * (n & 3)
        e(f"v_perm_b32 {vr(t+4)}, {vr(vXs+(n>>1))}, {vr(vXs+(n>>1))}, {sr(sSelHi if n & 1 else sSelLo)}")
        for d in range(4):
            e(f"v_and_b32 {vr(t+d)}, {vr(t+4)}, {vr(vMk+d)}")
    xop(0)
    for n in range(36):
        if n < 35: xop(n + 1)
        g.wait_tag(("wq", n))
        acc = vr(vQ + 4 * (n & 1), 4)
        e(f"v_mfma_f32_16x16x32_bf16 {acc}, {vr(vXo+8*(n&3),4)}, {ar(4*n,4)}, {acc if n > 1 else 0}")
    e("s_nop 7")
    e("s_nop 0")
    for i in range(4):
        e(f"v_add_f32 {vr(vQ+i)}, {vr(vQ+i)}, {vr(vQ+4+i)}")
    for i in range(4):
        e(f"v_xor_b32 {vr(vQ+4+i)}, {sr(sNon)}, {vr(vQ+i)}")
    e(f"buffer_store_dwordx4 {vr(vQ,4)}, {vr(vQs)}, {sr(sWS,4)}, 0 offen sc1")
    e(f"buffer_store_dwordx4 {vr(vQ+4,4)}, {vr(vQs)}, {sr(sWS,4)}, 0 offen offset:512 sc1")
    stamp(1)
    OMX = opts.get("omax", 0)
    ORG = opts.get("org", 0)
    if not OE: org_store("L_nq3")
    g.lab("L_nq2")
    g.q = []
    e(f"v_and_b32 {vr(vK)}, 3, {vr(vCc)}")
    e(f"v_lshlrev_b32 {vr(vK)}, 4, {vr(vK)}")
    e(f"v_lshl_add_u32 {vr(vK)}, {vr(vG)}, 6, {vr(vK)}")
    e(f"v_lshrrev_b32 {vr(vT0)}, 2, {vr(vCc)}")
    e(f"v_lshl_add_u32 {vr(vQa)}, {vr(vT0)}, 15, {vr(vK)}")
    e(f"v_lshlrev_b32 {vr(vV)}, 4, {vr(vCc)}")
    for i in range(2):
        e(f"v_bfe_u32 {vr(vT1)}, {vr(vCc)}, {i+2}, 1")
        e(f"v_lshl_add_u32 {vr(vK)}, {vr(vT1)}, {PM[i+1]}, {vr(vK)}")
        e(f"v_bfe_u32 {vr(vT1)}, {vr(vG)}, {i}, 1")
        e(f"v_lshl_add_u32 {vr(vV)}, {vr(vT1)}, {PM[i+1]}, {vr(vV)}")
    e(f"s_and_b32 {sr(sT0)}, s2, 7")
    e(f"s_lshr_b32 {sr(sT1)}, s2, 3")
    e(f"s_bfe_u32 {sr(sT2)}, s2, 0x10004")
    HM = opts.get("hm", 0)
    if HM & 1:
        e(f"s_and_b32 {sr(sT3)}, {sr(sT0)}, 6")
        e(f"s_add_u32 {sr(sT3)}, {sr(sT3)}, {sr(sT0)}")
        e(f"s_lshl1_add_u32 {sr(sT2)}, {sr(sT2)}, {sr(sT3)}")
    else: e(f"s_lshl1_add_u32 {sr(sT2)}, {sr(sT0)}, {sr(sT2)}")
    def head(ii):
        if HM & 2:
            e(f"s_and_b32 {sr(sWoO)}, {sr(ii)}, 2")
            e(f"s_add_u32 {sr(ii)}, {sr(ii)}, {sr(sWoO)}")
            e(f"s_and_b32 {sr(sWoO)}, {sr(sT0)}, 6")
            e(f"s_add_u32 {sr(sT0)}, {sr(sT0)}, {sr(sWoO)}")
            e(f"s_lshl1_add_u32 {sr(sT0)}, {sr(sT0)}, {sr(ii)}")
        else: e(f"s_lshl2_add_u32 {sr(sT0)}, {sr(sT0)}, {sr(ii)}")
    e(f"s_bfe_u32 {sr(sT3)}, s2, 0x10003")
    e(f"s_lshl_b32 {sr(sQa)}, {sr(sT3)}, 17")
    e(f"s_lshl_b32 {sr(sAo)}, {sr(sT2)}, 11")
    e(f"s_add_u32 {sr(sQa)}, {sr(sQa)}, {sr(sAo)}")
    e(f"s_add_u32 {sr(sQa)}, {sr(sQa)}, {Q_OFF}")
    e(f"s_lshl4_add_u32 {sr(sT2)}, {sr(sT3)}, {sr(sT2)}")
    e(f"s_lshl_b32 {sr(sAo)}, {sr(sT2)}, 21")
    e(f"s_add_u32 {sr(sAo)}, {sr(sAo)}, 0x180000")
    e(f"s_lshr_b32 {sr(sT3)}, s2, 5")
    e(f"s_lshl3_add_u32 {sr(sAr)}, {sr(sT2)}, {sr(sT3)}")
    e(f"s_mul_i32 {sr(sAL)}, {sr(sT2)}, {RMA}")
    e(f"s_lshl4_add_u32 {sr(sAL)}, {sr(sT3)}, {sr(sAL)}")
    e(f"s_add_u32 {sr(sAL)}, {sr(sAL)}, {sr(sW)}")
    add64(sAK, 10, sr(sAo)); add64(sAV, 12, sr(sAo))
    e(f"s_mov_b32 {sr(sAK+2)}, 0x80000"); e(f"s_mov_b32 {sr(sAV+2)}, 0x80000")
    def a_unit(n):
        phys(sAL, 4 * (n & 3), 0x7ffff)
        if n < 4: issue(True, aA + 16 * n, sAK, "a", PSPL)
        else: issue(False, vVb + 16 * (n - 4), sAV, "a", PSPV)
    T0N = opts.get("t0n", 2)
    HW = opts.get("hw", 0)
    if HW:
        e(f"s_cmp_ge_u32 {sr(sT1)}, 24")
        e("s_cbranch_scc1 L_setH")
    for n in range(T0N): a_unit(n)
    stamp2(4)
    if not HW:
        e(f"s_cmp_ge_u32 {sr(sT1)}, 24")
        e("s_cbranch_scc1 L_setH")
    e(f"s_mov_b32 {sr(sIsH)}, 0")
    e(f"s_mul_i32 {sr(sT2)}, {sr(sT1)}, 171")
    e(f"s_lshr_b32 {sr(sT2)}, {sr(sT2)}, 9")
    e(f"s_mul_i32 {sr(sT3)}, {sr(sT2)}, 3")
    e(f"s_sub_u32 {sr(sT1)}, {sr(sT1)}, {sr(sT3)}")
    if "ra" in opts:
        if "rc" in opts:
            e(f"s_lshr_b32 {sr(sRot)}, {sr(sT2)}, 1")
            e(f"s_mul_i32 {sr(sRot)}, {sr(sRot)}, {opts['ra']}")
            e(f"s_and_b32 {sr(sT3)}, {sr(sT2)}, 1")
            e(f"s_mul_i32 {sr(sT3)}, {sr(sT3)}, {opts['rc']}")
            e(f"s_add_u32 {sr(sRot)}, {sr(sRot)}, {sr(sT3)}")
        else: e(f"s_mul_i32 {sr(sRot)}, {sr(sT2)}, {opts['ra']}")
        e(f"s_mul_i32 {sr(sT3)}, {sr(sT0)}, {opts.get('rb', 3)}")
        e(f"s_add_u32 {sr(sRot)}, {sr(sRot)}, {sr(sT3)}")
    e(f"s_lshr_b32 {sr(sT3)}, {sr(sT2)}, 1")
    head(sT3)
    e(f"s_and_b32 {sr(sT2)}, {sr(sT2)}, 1")
    e(f"s_lshl_b32 {sr(sQo)}, {sr(sT2)}, 17")
    e(f"s_lshl_b32 {sr(sT3)}, {sr(sT0)}, 10")
    e(f"s_add_u32 {sr(sQo)}, {sr(sQo)}, {sr(sT3)}")
    e(f"s_add_u32 {sr(sQo)}, {sr(sQo)}, {Q_OFF + 8*32768}")
    e(f"s_lshl_b32 {sr(sT2)}, {sr(sT2)}, 5")
    e(f"s_add_u32 {sr(sT2)}, {sr(sT2)}, {sr(sT0)}")
    e(f"s_lshl_b32 {sr(sKVo)}, {sr(sT2)}, 21")
    if "ra" not in opts: e(f"s_mul_i32 {sr(sRot)}, {sr(sT2)}, {RM}")
    e(f"s_mul_i32 {sr(sR0)}, {sr(sT2)}, 3")
    e(f"s_add_u32 {sr(sR0)}, {sr(sR0)}, {sr(sT1)}")
    e(f"s_cmp_eq_u32 {sr(sT1)}, 1")
    e(f"s_cselect_b32 {sr(sIt)}, {RB[1]}, 0")
    e(f"s_cselect_b32 {sr(sDoff)}, {RB[2]}, 0")
    e(f"s_cmp_eq_u32 {sr(sT1)}, 0")
    e(f"s_cselect_b32 {sr(sDoff)}, {RB[1]}, {sr(sDoff)}")
    e(f"s_cmp_eq_u32 {sr(sT1)}, 2")
    e(f"s_cselect_b32 {sr(sIt)}, {RB[2]}, {sr(sIt)}")
    e(f"s_cselect_b32 {sr(sDoff)}, 512, {sr(sDoff)}")
    e("s_branch L_common")
    g.lab("L_setH")
    e(f"s_mov_b32 {sr(sIsH)}, 1")
    e(f"s_bfe_u32 {sr(sT2)}, s2, 0x20004")
    head(sT2)
    e(f"s_bfe_u32 {sr(sT2)}, s2, 0x10003")
    e(f"s_lshl_b32 {sr(sT2)}, {sr(sT2)}, 5")
    e(f"s_add_u32 {sr(sIt)}, {sr(sT2)}, {sr(sT0)}")
    e(f"s_add_u32 {sr(sR0)}, {sr(sIt)}, 192")
    e(f"s_lshl_b32 {sr(sKVo)}, {sr(sIt)}, 21")
    e(f"s_mov_b32 {sr(sRot)}, 0")
    g.lab("L_common")
    e(f"s_mul_i32 {sr(sWoO)}, {sr(sT0)}, 147456")
    e(f"s_mul_i32 {sr(sT0)}, {sr(sR0)}, {YS}")
    e(f"s_add_u32 {sr(sT0)}, {sr(sT0)}, {Y_OFF}")
    e(f"s_mul_i32 {sr(sT2)}, {sr(sW)}, 384")
    e(f"s_add_u32 {sr(sT0)}, {sr(sT0)}, {sr(sT2)}")
    e(f"v_mov_b32 {vr(vSt0)}, {OOB}")
    e(f"v_mov_b32 {vr(vSt1)}, {OOB}")
    SPM = opts.get("sm", 0)
    vIx = 183
    e(f"s_mov_b64 exec, {0xffffff if SPM else 0xffff}")
    e(f"v_lshl_add_u32 {vr(vSt0)}, {vr(vLane)}, 4, {sr(sT0)}")
    e(f"s_mov_b64 exec, 0xff")
    e(f"v_mov_b32 {vr(vSt1)}, {vr(vSt0)}")
    e(f"s_mov_b64 exec, -1")
    add64(sK, 20, sr(sKVo)); add64(sV, 22, sr(sKVo))
    srd_tail(sK, 0x200000); srd_tail(sV, 0x200000)
    e(f"s_cmp_eq_u32 {sr(sIsH)}, 1")
    e(f"s_cselect_b64 {sr(sWO,2)}, s[16:17], s[26:27]")
    add64(sWO, sWO, sr(sWoO))
    srd_tail(sWO, 147456)
    e(f"s_mov_b32 {sr(sC)}, 0x{f32bits(CSCALE):08x}")
    e(f"s_lshl_b32 {sr(sLdsW)}, {sr(sW)}, 10")
    e(f"v_bfe_u32 {vr(vT0)}, {vr(vLane)}, 3, 2")
    e(f"v_xor_b32 {vr(vT0)}, {sr(sW)}, {vr(vT0)}")
    e(f"v_lshlrev_b32 {vr(vT0)}, 5, {vr(vT0)}")
    e(f"v_lshrrev_b32 {vr(vT1)}, 2, {vr(vLane)}")
    e(f"v_lshl_add_u32 {vr(vT0)}, {vr(vT1)}, 7, {vr(vT0)}")
    e(f"v_and_b32 {vr(vT1)}, 3, {vr(vLane)}")
    e(f"v_lshl_add_u32 {vr(vTR)}, {vr(vT1)}, 3, {vr(vT0)}")
    e(f"s_mov_b32 {sr(sOut)}, s28"); e(f"s_mov_b32 {sr(sOut+1)}, s29"); srd_tail(sOut, 4608)
    e(f"v_bfe_u32 {vr(vT0)}, {vr(vLane)}, 3, 2")
    e(f"v_lshrrev_b32 {vr(vT1)}, 5, {vr(vLane)}")
    e(f"v_lshl_add_u32 {vr(vT0)}, {vr(vT1)}, 3, {vr(vT0)}")
    e(f"s_and_b32 {sr(sT0)}, {sr(sW)}, 1")
    e(f"s_lshl_b32 {sr(sT0)}, {sr(sT0)}, 4")
    e(f"s_lshr_b32 {sr(sT1)}, {sr(sW)}, 1")
    e(f"s_lshl_b32 {sr(sT1)}, {sr(sT1)}, 2")
    e(f"s_add_u32 {sr(sT0)}, {sr(sT0)}, {sr(sT1)}")
    e(f"v_add_u32 {vr(vT0)}, {sr(sT0)}, {vr(vT0)}")
    e(f"v_mul_u32_u24 {vr(vWOj)}, 1152, {vr(vT0)}")
    e(f"v_lshlrev_b32 {vr(vT1)}, 1, {vr(vG)}")
    e(f"v_and_b32 {vr(vT0)}, 7, {vr(vLane)}")
    e(f"v_xor_b32 {vr(vT1)}, {vr(vT1)}, {vr(vT0)}")
    e(f"v_lshl_add_u32 {vr(vWOj)}, {vr(vT1)}, 4, {vr(vWOj)}")
    e(f"v_lshlrev_b32 {vr(vHa)}, 2, {vr(vLane)}")
    e(f"v_lshlrev_b32 {vr(vSa)}, 4, {vr(vG)}")
    e(f"v_add_u32 {vr(vSa)}, {LDS_SC}, {vr(vSa)}")
    e("s_waitcnt lgkmcnt(0)")
    e(f"s_add_u32 {sr(sE)}, {sr(sE)}, 1")
    e(f"s_mul_i32 {sr(sNon)}, {sr(sE)}, 0x9E3779B1")
    e(f"s_or_b32 {sr(sNon)}, {sr(sNon)}, 1")
    e(f"v_bfe_i32 {vr(vNl)}, v0, 0, 1")
    e(f"v_and_b32 {vr(vNl)}, {sr(sNon)}, {vr(vNl)}")
    QPOS = opts.get("qpos", 8)
    if HW:
        assert QPOS == 8
        e(f"s_cmp_eq_u32 {sr(sIsH)}, 1")
        e("s_cbranch_scc1 L_nqp")
    DPN = [0]
    doff = lambda n: (n & 3) * 36864 + (n >> 2) * 128
    def dma_pre(k):
        for _ in range(k):
            n = DPN[0]
            if n >= 36: return
            e(f"s_add_u32 m0, {sr(sLdsW)}, {4096*n}")
            e(f"s_mov_b32 {sr(sWoff)}, {doff(n)}")
            g.vm(f"buffer_load_dwordx4 {vr(vWOj)}, {sr(sWO,4)}, {sr(sWoff)} offen lds", "d")
            DPN[0] += 1
    DPA = opts.get("dpa", 0); DPK = opts.get("dpk", 0)
    assert HW or not DPA
    NPRE = min(36, DPA * (QPOS - max(T0N, opts.get("dp0", 2))) + DPK * U)
    for n in range(T0N, QPOS):
        a_unit(n)
        if n >= opts.get("dp0", 2): dma_pre(DPA)
    def qloads(nh, so, tag, sc):
        for i in range(4 * nh):
            g.vm(f"buffer_load_dwordx4 {vr(vQl+4*i,4)}, {vr(vQa)}, {sr(sWS,4)}, {sr(so)} offen offset:{256*i}{sc}", tag)
    def qcheck(nh):
        for hd in range(nh):
            for i in range(8):
                e(f"v_bitop3_b32 {vr(vQl+16*hd+8+i)}, {vr(vQl+16*hd+i)}, {vr(vQl+16*hd+8+i)}, {sr(sNon)} bitop3:0x96")
        R = [vQl + 16 * hd + 8 + i for hd in range(nh) for i in range(8)]
        e(f"v_or_b32 {vr(vT0)}, {vr(R[0])}, {vr(R[1])}")
        for i in range(2, len(R), 2):
            e(f"v_or3_b32 {vr(vT0)}, {vr(vT0)}, {vr(R[i])}, {vr(R[i+1])}")
        e(f"v_cmp_ne_u32 vcc, 0, {vr(vT0)}")
    def qget(nh, so, qq, nm):
        qcheck(nh)
        e(f"s_cbranch_vccz L_qok{nm}")
        e(f"s_mov_b32 {sr(sSpin)}, 0x40000")
        g.lab(f"L_qretry{nm}")
        qloads(nh, so, None, " sc1")
        e(f"s_sub_u32 {sr(sSpin)}, {sr(sSpin)}, 1")
        e("s_waitcnt vmcnt(0)")
        e(f"s_cbranch_scc1 L_qok{nm}")
        qcheck(nh)
        e(f"s_cbranch_vccnz L_qretry{nm}")
        g.lab(f"L_qok{nm}")
        for hd in range(nh):
            for i in range(8):
                e(f"v_add_f32_dpp {vr(vQl+16*hd+8+i)}, {vr(vQl+16*hd+i)}, {vr(vQl+16*hd+i)} row_ror:4 {DP}")
        for hd in range(nh):
            bm = "0xf" if nh == 1 else ("0xc" if hd else "0x3")
            for i in range(8):
                e(f"v_add_f32_dpp {vr(vQl+i)}, {vr(vQl+16*hd+8+i)}, {vr(vQl+16*hd+8+i)} row_ror:8 row_mask:0xf bank_mask:{bm}")
        for d in range(4):
            e(f"v_cvt_pk_bf16_f32 {vr(qq+d)}, {vr(vQl+2*d)}, {vr(vQl+2*d+1)}")
    QSC = " sc1" if opts.get("qsc", 0) else ""
    e(f"s_cmp_eq_u32 {sr(sIsH)}, 1")
    e("s_cbranch_scc1 L_nqp")
    def org_load():
        e(f"s_and_b32 {sr(sT3)}, s2, 15")
        e(f"s_lshl_b32 {sr(sT3)}, {sr(sT3)}, 7")
        e(f"s_add_u32 {sr(sT3)}, {sr(sT3)}, {ORG_OFF}")
        if ORG:
            e(f"v_lshlrev_b32 {vr(vT1)}, 3, {vr(vLane)}")
            e("s_mov_b64 exec, 0xff")
            g.vm(f"buffer_load_dwordx2 {vr(vS,2)}, {vr(vT1)}, {sr(sWS,4)}, {sr(sT3)} offen sc1", "org")
        else:
            e("s_mov_b64 exec, 1")
            g.vm(f"buffer_load_dwordx2 {vr(vS,2)}, off, {sr(sWS,4)}, {sr(sT3)} sc1", "org")
        e("s_mov_b64 exec, -1")
    if not OE: org_load()
    qloads(1, sQo, "ql", QSC)
    g.lab("L_nqp")
    for n in range(QPOS, 8): a_unit(n)
    for i in range(4, 8):
        e(f"v_mov_b32 {vr(vO+i)}, 0")
    e(f"v_mov_b32 {vr(vM)}, 0xff800000")
    e(f"v_mov_b32 {vr(vL)}, 0")
    e(f"v_mov_b32 {vr(vL2)}, 0")
    e(f"s_mov_b32 {sr(sDlds)}, {sr(sLdsW)}")
    if PROF == 3:
        e(f"v_mov_b32 {vr(vTk)}, 0"); e(f"v_mov_b32 {vr(vTk+1)}, 0")
        e("s_mov_b32 s19, 0")
    if PROF == 11:
        for r in (82, 84, 88): e(f"s_mov_b32 s{r}, 0")
    e(f"s_cmp_eq_u32 {sr(sIsH)}, 1")
    e("s_cbranch_scc1 L_H")
    e(f"s_add_u32 {sr(sBase)}, {sr(sIt)}, {sr(sRot)}")
    e(f"s_sub_u32 {sr(sLim)}, {sr(sDoff)}, {sr(sIt)}")
    e(f"s_lshl_b32 {sr(sLim)}, {sr(sLim)}, 6")
    e(f"s_lshl_b32 {sr(sL0)}, {sr(sW)}, 6")
    e(f"s_add_u32 {sr(sDyn)}, {sr(sBase)}, {4*SB}")
    e(f"s_mov_b32 {sr(sDoff)}, {doff(NPRE)}")
    e(f"s_add_u32 {sr(sDlds)}, {sr(sDlds)}, {4096*NPRE}")
    assert not (NPRE and opts.get('dm0', 0))
    e(f"s_mov_b32 {sr(sDt)}, {NPRE - opts.get('dm0', 0) if not opts.get('xd', 0) else 100}")
    LT = [tuple(int(ch, 16) for ch in "%03x" % (opts.get("lt", 0) >> sh & 0xfff)) for sh in (36, 24, 12, 0)]
    LT = [t for t in LT if t != (0, 0, 0)]
    if LT:
        e(f"s_mul_i32 {sr(sPub)}, {sr(sR0)}, 43691")
        e(f"s_lshr_b32 {sr(sPub)}, {sr(sPub)}, 15")
        e(f"s_add_u32 {sr(sPub)}, {sr(sPub)}, {LT_OFF}")
        e(f"s_or_b32 {sr(sT0)}, {sr(sIt)}, {sr(sW)}")
        e(f"s_cselect_b32 {sr(sPub)}, 0, {sr(sPub)}")
        e(f"s_mov_b32 {sr(sCor)}, 0")
    phys(sBase, sr(sW))
    e(f"s_mov_b32 {sr(sOff0)}, {sr(sOff)}")
    e(f"s_mov_b32 {sr(sL)}, {sr(sL0)}")
    E3 = opts.get("ws3", 0)
    assert E3 < U and QW == 3 and all(4 * SB <= RB[i + 1] - RB[i] - 3 * E3 for i in range(3))
    e(f"s_sub_u32 {sr(sLimK)}, {sr(sLim)}, {192*E3}")
    if E3:
        e(f"s_cmp_eq_u32 {sr(sW)}, 3")
        e(f"s_cselect_b32 {sr(sT0)}, 0, {sr(sLimK)}")
        e(f"s_cselect_b32 {sr(sT2)}, 4, 3")
        e(f"s_lshl_b32 {sr(sT1)}, {sr(sT2)}, {PM[4]}")
        e(f"s_add_u32 {sr(sT1)}, {sr(sT1)}, {HOLE}")
        e(f"s_lshl_b32 {sr(sT2)}, {sr(sT2)}, 6")
        e(f"s_add_u32 {sr(sL)}, {sr(sL)}, {sr(sT0)}")
        e(f"s_lshr_b32 {sr(sT0)}, {sr(sL)}, 6")
        phys(sBase, sr(sT0))
    for d in range(U):
        if OE and d == OE - 1: org_load()
        dma_pre(DPK)
        issue(True, 16 * d, sK, "k")
        e(f"s_mov_b32 {sr(sTi+d)}, {sr(sL)}")
        if d < E3:
            e(f"s_add_u32 {sr(sOff)}, {sr(sOff)}, {sr(sT1)}")
            e(f"s_and_b32 {sr(sOff)}, {sr(sOff)}, {TMASK}")
            e(f"s_add_u32 {sr(sL)}, {sr(sL)}, {sr(sT2)}")
            if d == E3 - 1:
                e(f"s_cmp_eq_u32 {sr(sW)}, 3")
                e(f"s_cselect_b32 {sr(sOff)}, {sr(sOff)}, {sr(sOff0)}")
                e(f"s_cselect_b32 {sr(sL)}, {sr(sL)}, {sr(sL0)}")
        else: adv()
    e(f"s_bfe_u32 {sr(sIt)}, s2, 0x20003")
    e(f"s_mul_i32 {sr(sIt)}, {sr(sIt)}, {-opts.get('stg', 0)}")
    e(f"s_mov_b32 {sr(sPh)}, 0")
    e(f"s_mov_b32 {sr(sLev)}, {opts.get('lev0', 4)}")
    e(f"s_mov_b32 {sr(sSt)}, {SB - U}")
    e(f"s_mov_b32 {sr(sRem)}, 900")
    g.wait_tag("ql")
    if ORG:
        if OE:
            nw = len(g.q) - 1 - g.q.index("org")
            qget(1, sQo, vQ, "B")
            e(f"s_waitcnt vmcnt({nw})")
        e(f"v_xor_b32 {vr(vS+1)}, {vr(vS)}, {vr(vS+1)}")
        e(f"v_subrev_u32 {vr(vS)}, s94, {vr(vS)}")
        e(f"v_cmp_ne_u32 {sr(sT2,2)}, {sr(sNon)}, {vr(vS+1)}")
        if OE: e("s_nop 1")
        else: qget(1, sQo, vQ, "B")
        for m in ("quad_perm:[1,0,3,2]", "quad_perm:[2,3,0,1]", "row_half_mirror"):
            e(f"{'v_max_i32_dpp' if OMX else 'v_add_u32_dpp'} {vr(vS)}, {vr(vS)}, {vr(vS)} {m} {DP}")
            e("s_nop 1")
        e(f"v_readfirstlane_b32 {sr(sT0)}, {vr(vS)}")
        e(f"s_and_b32 {sr(sT2)}, {sr(sT2)}, 0xff")
        e(f"s_cselect_b32 {sr(sT0)}, {opts.get('orf', 3300 if ORG == 2 else 0)*(1 if OMX else 8)//10}, {sr(sT0)}")
        e(f"s_lshl_b32 {sr(sSch)}, s94, 4")
        e(f"s_mul_i32 {sr(sT0)}, {sr(sT0)}, {16 if OMX else 2}")
        e(f"s_add_u32 {sr(sSch)}, {sr(sSch)}, {sr(sT0)}")
    else:
        e(f"v_readfirstlane_b32 {sr(sT0)}, {vr(vS)}")
        e(f"v_readfirstlane_b32 {sr(sT1)}, {vr(vS+1)}")
        qget(1, sQo, vQ, "B")
        e(f"s_xor_b32 {sr(sT1)}, {sr(sT1)}, {sr(sT0)}")
        e(f"s_cmp_eq_u32 {sr(sT1)}, {sr(sNon)}")
        e(f"s_cselect_b32 s94, {sr(sT0)}, s94")
        e(f"s_lshl_b32 {sr(sSch)}, s94, 4")
    e(f"s_add_u32 {sr(sSch)}, {sr(sSch)}, {opts.get('t0', 7000)*16//10}")
    if opts.get("tq", 0):
        e(f"s_lshr_b32 {sr(sT0)}, {sr(sLim)}, 6")
        e(f"s_sub_i32 {sr(sT0)}, {sr(sT0)}, 171")
        e(f"s_mul_i32 {sr(sT0)}, {sr(sT0)}, {opts.get('tq')*16//10}")
        e(f"s_sub_i32 {sr(sSch)}, {sr(sSch)}, {sr(sT0)}")
    if opts.get("xb", 0):
        e(f"s_and_b32 {sr(sT0)}, s2, 7")
        e(f"s_lshl2_add_u32 {sr(sT0)}, {sr(sT0)}, 0x40000")
        e(f"s_bfe_i32 {sr(sT0)}, {opts['xb']}, {sr(sT0)}")
        e(f"s_mul_i32 {sr(sT0)}, {sr(sT0)}, 80")
        e(f"s_add_i32 {sr(sSch)}, {sr(sSch)}, {sr(sT0)}")
    if opts.get("tw", 0):
        e(f"s_cmp_eq_u32 {sr(sW)}, {QW}")
        e(f"s_cselect_b32 {sr(sT0)}, {opts.get('tw')*16//10}, 0")
        e(f"s_add_u32 {sr(sSch)}, {sr(sSch)}, {sr(sT0)}")
    stamp(2)

    def qk(kr, qq, acc):
        for j in range(4):
            e(f"v_mfma_f32_16x16x32_bf16 {vr(acc+4*j,4)}, {ar(kr+4*j,4)}, {vr(qq,4)}, 0")
    def fold(acc, S, full):
        for k in range(0 if full else 1, 4):
            for r in range(4):
                qp = f"quad_perm:[{k},{k},{k},{k}] {DP}"
                if k == 0: e(f"v_mov_b32_dpp {vr(S+r)}, {vr(acc+4*r)} {qp}")
                else: e(f"v_add_f32_dpp {vr(S+r)}, {vr(acc+4*r+k)}, {vr(S+r if full or k > 1 else acc+4*r)} {qp}")
    def probs(S, M, L):
        for r in range(4):
            e(f"v_fma_f32 {vr(vE+r)}, {vr(S+r)}, {sr(sC)}, -{vr(M)}")
        for r in range(4):
            e(f"v_exp_f32 {vr(vE+r)}, {vr(vE+r)}")
        e(f"v_add_f32 {vr(vT0)}, {vr(vE)}, {vr(vE+1)}")
        e(f"v_add_f32 {vr(L)}, {vr(L)}, {vr(vE+2)}")
        e(f"v_add_f32 {vr(vT0)}, {vr(vT0)}, {vr(vE+3)}")
        for r in range(4):
            e(f"v_cvt_pk_bf16_f32 {vr(vE+r)}, {vr(vE+r)}, {vr(vE+r)}")
        e(f"v_add_f32 {vr(L)}, {vr(L)}, {vr(vT0)}")
        for r in range(4):
            for d in range(4):
                e(f"v_and_b32 {vr(vP+4*r+d)}, {vr(vE+r)}, {vr(vMk+d)}")
    def pv(reg, O):
        for r in range(4):
            e(f"v_mfma_f32_16x16x32_bf16 {vr(O,4)}, {vr(vP+4*r,4)}, {vr(reg+4*r,4)}, {vr(O,4)}")
    def gmax(M, op="v_max_f32"):
        for sw in ("v_permlane32_swap_b32", "v_permlane16_swap_b32"):
            e(f"v_mov_b32 {vr(vT0)}, {vr(M)}")
            e("s_nop 1")
            e(f"{sw} {vr(M)}, {vr(vT0)}")
            e("s_nop 1")
            e(f"{op} {vr(M)}, {vr(M)}, {vr(vT0)}")
    def dma_load(nt=opts.get("wont", 0) & 1, lbl=None):
        e(f"s_mov_b32 m0, {sr(sDlds)}")
        e(f"s_add_u32 {sr(sDlds)}, {sr(sDlds)}, 4096")
        e(f"buffer_load_dwordx4 {vr(vWOj)}, {sr(sWO,4)}, {sr(sDoff)} offen" + (" nt" if nt else "") + " lds")
        e(f"s_add_u32 {sr(sDoff)}, {sr(sDoff)}, 36864")
        e(f"s_cmp_ge_u32 {sr(sDoff)}, 147456")
        e(f"s_cselect_b32 {sr(sT0)}, {147456 - 128}, 0")
        e(f"s_sub_u32 {sr(sDoff)}, {sr(sDoff)}, {sr(sT0)}")
        if lbl:
            if opts.get('taud', 0): e(f"s_add_u32 {sr(sSch)}, {sr(sSch)}, {opts.get('taud', 0)*16//10}")
            g.lab(lbl)
        e(f"s_add_u32 {sr(sDt)}, {sr(sDt)}, 1")
    DMK = opts.get("dmk", 5); DMV = opts.get("dmv", 7)
    def dma_one(lbl):
        e(f"s_cmp_lt_u32 {sr(sDt)}, 36")
        e(f"s_cbranch_scc0 {lbl}")
        dma_load(lbl=lbl)
    def level(tau):
        BS = opts.get('bsh', 5) + 4
        e("s_waitcnt lgkmcnt(0)")
        e(f"s_add_u32 {sr(sSch)}, {sr(sSch)}, {tau*16//10 if tau else sr(sTau)}")
        e(f"s_lshl_b32 {sr(sNow)}, {sr(sNow)}, 4")
        e(f"s_sub_i32 {sr(sLev)}, {sr(sNow)}, {sr(sSch)}")
        if PROF == 11:
            e(f"s_lshl_b32 {sr(sT0)}, s94, 4")
            e(f"s_sub_u32 {sr(sT0)}, {sr(sNow)}, {sr(sT0)}")
            for r, T in ((82, 12000), (84, 24000), (88, 36000)):
                e(f"s_cmp_lt_u32 {sr(sT0)}, {T*16//10}")
                e(f"s_addc_u32 s{r}, s{r}, 0")
        if PROF == 3:
            n = len(g.lines)
            sTr = sLev
            if LT and opts.get("trb", 1):
                sTr = sT0
                e(f"s_add_i32 {sr(sT0)}, {sr(sLev)}, {sr(sCor)}")
            e(f"s_and_b32 m0, s19, 63")
            e(f"s_add_u32 s19, s19, 1")
            e(f"s_cmp_gt_u32 s19, 64")
            e(f"s_cbranch_scc1 L_tr{n}")
            e(f"v_writelane_b32 {vr(vTk)}, {sr(sTr)}, m0")
            g.lab(f"L_tr{n}")
            e(f"s_cbranch_scc0 L_ts{n}")
            e(f"v_writelane_b32 {vr(vTk+1)}, {sr(sTr)}, m0")
            g.lab(f"L_ts{n}")
        if FLV >= 0: e(f"s_mov_b32 {sr(sLev)}, {FLV}")
        else: e(f"s_ashr_i32 {sr(sLev)}, {sr(sLev)}, {BS}")
    def hook_dispatch(hooks, nm):
        e(f"s_bitcmp1_b32 {sum(1 << k for k in hooks)}, {sr(sIt)}")
        e(f"s_cbranch_scc0 L_body{nm}")
        ks = sorted(hooks)
        for n, k in enumerate(ks):
            if n < len(ks) - 1:
                e(f"s_cmp_lg_u32 {sr(sIt)}, {k}")
                e(f"s_cbranch_scc1 L_hk{nm}{n+1}")
            hooks[k]()
            if n < len(ks) - 1:
                e(f"s_branch L_body{nm}")
                g.lab(f"L_hk{nm}{n+1}")
        g.lab(f"L_body{nm}")
    def call(l): e(f"s_call_b64 {sr(sRet,2)}, {l}")
    def lt_w(p):
        e(f"s_cmp_eq_u32 {sr(sPub)}, 0")
        e(f"s_cbranch_scc1 L_lw{p}")
        e(f"s_sub_i32 {sr(sT0)}, {sr(sNow)}, {sr(sSch)}")
        e(f"s_add_i32 {sr(sT0)}, {sr(sT0)}, {sr(sCor)}")
        e(f"s_pack_ll_b32_b16 {sr(sT0)}, {sr(sNon)}, {sr(sT0)}")
        e(f"v_mov_b32 {vr(vLt)}, {sr(sT0)}")
        e("s_mov_b64 exec, 1")
        e(f"buffer_store_dword {vr(vLt)}, off, {sr(sWS,4)}, {sr(sPub)} offset:{256*p} sc1")
        e("s_mov_b64 exec, -1")
        g.lab(f"L_lw{p}")
    def lt_r(p):
        e(f"buffer_load_dword {vr(vLt)}, {vr(vHa)}, {sr(sWS,4)}, 0 offen offset:{LT_OFF + 256*p}" + (" sc1" if opts.get("ltsc", 0) else ""))
    def lt_a(p):
        e(f"s_waitcnt vmcnt({4*U})")
        call("L_LA")
    def lt_hooks(ph, hooks):
        for p, (f, w, r) in enumerate(LT):
            if f != ph: continue
            for it, fn in ((w, lt_w), (r, lt_r), (r + 1, lt_a)):
                hooks.setdefault(it, []).append(lambda fn=fn, p=p: fn(p))
        return {k: (lambda v=v: [f() for f in v]) for k, v in hooks.items()}
    TAUK = opts.get("tauk", opts.get("tau", 410)); TAUV = opts.get("tauv", opts.get("tau", 410))

    AH0 = opts.get("ah0", 1)
    hk = {AH0: ["L_AQ"], AH0 + 1: ["L_AK"], AH0 + 2: ["L_AV0"], AH0 + 3: ["L_AV1"]}
    assert (AH0 + 4 + 3 * opts.get('stg', 0) + 1) * U <= min(RB[i + 1] - RB[i] for i in range(3)) // 4
    if opts.get("xa", 0): hk = {AH0: ["L_AV1"]}
    def mkh(ls):
        def f():
            for l in ls:
                if l == "L_AK": e(f"s_waitcnt vmcnt({4*U})")
                call(l)
        return f
    e(f"s_movk_i32 {sr(sTau)}, {opts.get('tau0', TAUK)*16//10}")
    g.lab("L_loopK")
    HK = {k: [mkh(v)] for k, v in hk.items()}
    for it, t in ((opts.get("i1", 3), opts.get("tau1", TAUK)), (opts.get("i2", 5), TAUK)):
        HK.setdefault(it, []).append(lambda t=t: e(f"s_movk_i32 {sr(sTau)}, {t*16//10}"))
    hook_dispatch(lt_hooks(1, HK), "K")
    for i in range(U):
        e(f"v_add_u32 {vr(vSb)}, {sr(sTi+i)}, {vr(vSa)}")
        e(f"s_mov_b32 {sr(sTi+i)}, {sr(sL)}")
        e(f"s_waitcnt vmcnt({4*(U-1)})")
        e(f"s_memrealtime {sr(sNow,2)}")
        qk(16 * i, vQ, vP)
        throttle(f"K{i}")
        e(f"s_cmp_lg_u32 {sr(sPh)}, 0")
        e(f"s_cbranch_scc1 L_Kv{i}")
        issue(True, 16 * i, sK)
        adv()
        e(f"s_cmp_lt_u32 {sr(sL)}, {sr(sLimK)}")
        e(f"s_cbranch_scc1 L_Kc{i}")
        e(f"s_mov_b32 {sr(sPh)}, 1")
        e(f"s_mov_b32 {sr(sL)}, {sr(sL0)}")
        e(f"s_mov_b32 {sr(sOff)}, {sr(sOff0)}")
        e(f"s_branch L_Kc{i}")
        g.lab(f"L_Kv{i}")
        issue(False, vVb + 16 * i, sV)
        adv()
        e(f"s_add_u32 {sr(sPh)}, {sr(sPh)}, 1")
        g.lab(f"L_Kc{i}")
        fold(vP, vS, False)
        e(f"s_mov_b32 exec_lo, 0x00010001"); e(f"s_mov_b32 exec_hi, 0x00010001")
        e(f"ds_write_b128 {vr(vSb)}, {vr(vS,4)}")
        e("s_mov_b64 exec, -1")
        e(f"v_max3_f32 {vr(vM)}, {vr(vM)}, {vr(vS)}, {vr(vS+1)}")
        e(f"v_max3_f32 {vr(vM)}, {vr(vM)}, {vr(vS+2)}, {vr(vS+3)}")
        level(0)
        if DMK >> i & 1:
            for m in range(opts.get("dmn", 1)): dma_one(f"L_dma{i}_{m}")
        e(f"s_cmp_lg_u32 {sr(sPh)}, {U+1}")
        e(f"s_cbranch_scc1 L_Kn{i}")
        call("L_TR")
        e(f"s_branch L_V{(i+1) % U}")
        g.lab(f"L_Kn{i}")
    e(f"s_add_u32 {sr(sIt)}, {sr(sIt)}, 1")
    e(f"s_branch L_loopK")

    def tail_setup():
        e(f"s_mul_i32 {sr(sT0)}, {sr(sW)}, {OT_STRIDE}")
        e(f"s_add_u32 {sr(sT0)}, {sr(sT0)}, {LDS_OT}")
        if SPM:
            e(f"v_lshrrev_b32 {vr(vT0)}, 1, {vr(vCc)}")
            e(f"v_lshl_add_u32 {vr(vAw)}, {vr(vT0)}, 5, {sr(sT0)}")
            e(f"v_and_b32 {vr(vT0)}, 1, {vr(vCc)}")
            e(f"v_lshl_add_u32 {vr(vAw)}, {vr(vT0)}, 3, {vr(vAw)}")
            e(f"v_and_b32 {vr(vT0)}, 1, {vr(vG)}")
            e(f"v_lshl_add_u32 {vr(vAw)}, {vr(vT0)}, 2, {vr(vAw)}")
        else:
            e(f"v_lshl_add_u32 {vr(vAw)}, {vr(vCc)}, 4, {sr(sT0)}")
            e(f"v_and_b32 {vr(vT0)}, 1, {vr(vG)}")
            e(f"v_lshl_add_u32 {vr(vAw)}, {vr(vT0)}, 3, {vr(vAw)}")
        e(f"s_lshl_b32 {sr(sT0)}, {sr(sW)}, 4")
        e(f"s_add_u32 {sr(sT0)}, {sr(sT0)}, {LDS_M}")
        e(f"v_lshl_add_u32 {vr(vAm)}, {vr(vG)}, 2, {sr(sT0)}")
        e(f"v_and_b32 {vr(vT0)}, 3, {vr(vCc)}")
        e(f"v_mul_u32_u24 {vr(vAr)}, {OT_STRIDE}, {vr(vT0)}")
        e(f"v_lshl_add_u32 {vr(vAr)}, {vr(vG)}, {5 if SPM else 4}, {vr(vAr)}")
        if SPM:
            e(f"v_and_b32 {vr(vT0)}, 4, {vr(vCc)}")
            e(f"v_lshl_add_u32 {vr(vAr)}, {vr(vT0)}, 2, {vr(vAr)}")
            e(f"v_bfe_i32 {vr(vT0)}, {vr(vCc)}, 2, 1")
            e(f"v_and_b32 {vr(vIx)}, 0xaaaaaaaa, {vr(vT0)}")
            e(f"v_or_b32 {vr(vIx)}, 0x44444444, {vr(vIx)}")
        e(f"v_add_u32 {vr(vAr)}, {LDS_OT}, {vr(vAr)}")
        e(f"v_lshlrev_b32 {vr(vAx)}, 2, {vr(vCc)}")
        e(f"v_add_u32 {vr(vAx)}, {LDS_M}, {vr(vAx)}")
    def h_arr():
        g.lab("L_ar0")
        e(f"s_cmp_lt_u32 {sr(sDt)}, 36")
        e(f"s_cbranch_scc0 L_ar1")
        dma_load()
        e("s_branch L_ar0")
        g.lab("L_ar1")
    def dry():
        n = len(g.lines)
        e(f"s_cmp_eq_u32 {sr(sW)}, {opts.get('dryw', 0)}")
        e(f"s_cbranch_scc0 L_dry{n}")
        e(f"v_mov_b32 {vr(184)}, {vr(vSt0)}")
        e(f"v_mov_b32 {vr(185)}, {vr(vSt1)}")
        e(f"v_mov_b32 {vr(vSt0)}, {OOB}")
        e(f"v_mov_b32 {vr(vSt1)}, {OOB}")
        e(f"s_mov_b32 {sr(sIsH)}, 2")
        call("L_T2b")
        e(f"s_mov_b32 {sr(sIsH)}, 0")
        e(f"v_mov_b32 {vr(vSt0)}, {vr(184)}")
        e(f"v_mov_b32 {vr(vSt1)}, {vr(185)}")
        if SPM:
            for i in range(18): e(f"v_mov_b64 {vr(208+2*i,2)}, 0")
        g.lab(f"L_dry{n}")
    def h_arr2():
        if opts.get("dry", 0) & 2: dry()
        e(f"s_waitcnt vmcnt({4*U})")
        e(f"v_mov_b32 {vr(vT0)}, {LDS_CNT}")
        e(f"v_mov_b32 {vr(vT1)}, 1")
        e("s_mov_b64 exec, 1")
        e(f"ds_add_u32 {vr(vT0)}, {vr(vT1)}")
        e("s_mov_b64 exec, -1")
    def h_t1():
        stamp(3)
        if opts.get("taut", 0): e(f"s_add_u32 {sr(sSch)}, {sr(sSch)}, {opts.get('taut')*16//10}")
        e(f"v_mov_b32 {vr(vT0)}, {LDS_CNT}")
        g.lab(f"L_wa")
        e(f"ds_read_b32 {vr(vT1)}, {vr(vT0)}")
        e("s_waitcnt lgkmcnt(0)")
        e(f"v_readfirstlane_b32 {sr(sT0)}, {vr(vT1)}")
        e("s_nop 3")
        e(f"s_cmp_lt_u32 {sr(sT0)}, 4")
        e(f"s_cbranch_scc1 L_wa")
        e(f"ds_read_b128 {vr(vS,4)}, {vr(vT0)} offset:16")
        call("L_T1")
        e(f"v_max3_f32 {vr(vT0)}, {vr(vS)}, {vr(vS+1)}, {vr(vS+2)}")
        e(f"v_max_f32 {vr(vT0)}, {vr(vT0)}, {vr(vS+3)}")
        e(f"v_sub_f32 {vr(vT1)}, {vr(vM)}, {vr(vT0)}")
        e(f"v_exp_f32 {vr(vT1)}, {vr(vT1)}")
        e(f"v_mov_b32 {vr(vM)}, {vr(vT0)}")
        e(f"v_mul_f32 {vr(vL)}, {vr(vT1)}, {vr(vL)}")
        for i in range(4):
            e(f"v_mul_f32 {vr(vO+i)}, {vr(vT1)}, {vr(vO+i)}")
        if opts.get("dry", 0) & 1: dry()
        stamp(4)
    HA = opts.get("ha", 6); HT = opts.get("ht", 7)
    assert 2 <= HA < HT and (HT + 1) * U <= SB - U
    pc = lambda m: bin(m & ((1 << U) - 1)).count("1")
    g.lab("L_loopV")
    hook_dispatch(lt_hooks(2, {HA - 1: [h_arr], HA: [h_arr2], HT: [h_t1]}), "V")
    for i in range(U):
        g.lab(f"L_V{i}")
        e(f"v_add_u32 {vr(vSb)}, {sr(sTi+i)}, {vr(vSa)}")
        e(f"ds_read_b128 {vr(vS,4)}, {vr(vSb)}")
        e(f"v_mov_b32 {vr(vSb)}, {LDS_CNT + 12}")
        e(f"v_mov_b32 {vr(vT1)}, 1")
        e("s_waitcnt lgkmcnt(0)")
        probs(vS, vM, vL)
        CE = opts.get("ce", 0)
        def claim():
            e(f"s_cmp_gt_i32 {sr(sSt)}, 0")
            e(f"s_cbranch_scc1 L_c1{i}")
            e("s_mov_b64 exec, 1")
            e(f"ds_add_rtn_u32 {vr(vT1)}, {vr(vSb)}, {vr(vT1)}")
            e("s_mov_b64 exec, -1")
            g.lab(f"L_c1{i}")
        if CE: claim()
        e(f"s_waitcnt vmcnt({4*(U-1)})")
        for r in range(U - 1, 0, -1):
            e(f"s_cmp_ge_u32 {sr(sRem)}, {r}")
            e(f"s_cbranch_scc1 L_v1{i}")
            e(f"s_waitcnt vmcnt({4*(r-1)})")
        g.lab(f"L_v1{i}")
        pv(vVb + 16 * i, vO)
        e(f"s_sub_u32 {sr(sRem)}, {sr(sRem)}, 1")
        e(f"s_cbranch_scc1 L_end")
        e(f"s_cmp_lt_u32 {sr(sRem)}, {U}")
        e(f"s_cbranch_scc1 L_nv{i}")
        e(f"s_memrealtime {sr(sNow,2)}")
        throttle(f"V{i}")
        if not CE: claim()
        else: e(f"s_cmp_gt_i32 {sr(sSt)}, 0")
        e(f"s_cbranch_scc1 L_c2{i}")
        e("s_waitcnt lgkmcnt(0)")
        e(f"v_readfirstlane_b32 {sr(sCl)}, {vr(vT1)}")
        e(f"s_add_u32 {sr(sL)}, {sr(sCl)}, {4*SB}")
        e(f"s_lshl_b32 {sr(sL)}, {sr(sL)}, 6")
        phys(sCl, sr(sDyn))
        e(f"s_cmp_ge_u32 {sr(sL)}, {sr(sLim)}")
        e(f"s_cselect_b32 {sr(sRem)}, {U-2}, {sr(sRem)}")
        e(f"s_cselect_b32 {sr(sSt)}, 1000, {sr(sSt)}")
        e(f"s_cbranch_scc1 L_nv{i}")
        g.lab(f"L_c2{i}")
        issue(False, vVb + 16 * i, sV)
        e(f"s_mov_b32 {sr(sTi+i)}, {sr(sL)}")
        e(f"s_sub_u32 {sr(sSt)}, {sr(sSt)}, 1")
        adv()
        level(TAUV)
        if DMV >> i & 1: dma_one(f"L_dmv{i}")
        g.lab(f"L_nv{i}")
    e(f"s_add_u32 {sr(sIt)}, {sr(sIt)}, 1")
    e(f"s_branch L_loopV")
    g.lab("L_end")
    stamp(5)

    NSL = opts.get("nsl", 1)
    def schedule(main, ops, per=2):
        pos = [0]; hist = []
        mpos = {}
        def emit(text, kind, wr=(), rd=(), n=1):
            e(text); hist.append((pos[0] + n - 1, kind, set(wr), set(rd))); pos[0] += n
        def need(op):
            t = 0
            if op.get("after") is not None:
                if op["after"] not in mpos: return None
                t = mpos[op["after"]] + 1 + (2 if op["kind"] == "dpp" else 0)
            for (p, k, wr, rd) in hist:
                d = None
                if k == "mfma":
                    if wr & (op["rd"] | op["wr"]): d = 8
                elif k in ("valu", "dpp", "swap", "trans"):
                    if wr & op["rd"]:
                        d = 0
                        if op["kind"] in ("dpp", "swap"): d = 2
                        elif k == "trans": d = 1
                elif k == "store":
                    if rd & op["wr"]: d = 2
                if d is not None: t = max(t, p + 1 + d)
            return t
        done = [False] * len(ops)
        mw = {}
        for i, (t_, k_, w_) in enumerate(main):
            for r in w_: mw[r] = i
        def ready(i):
            op = ops[i]
            for j in range(i):
                if not done[j]:
                    o = ops[j]
                    if (o["wr"] & (op["rd"] | op["wr"])) or (o["rd"] & op["wr"]) or (o["kind"] == "store" and op["kind"] == "store"): return None
            for r in op["rd"] | op["wr"]:
                if r in mw and mw[r] not in mpos: return None
            return need(op)
        def fill(n):
            k = 0
            while k < n:
                c = [i for i in range(len(ops)) if not done[i] and ready(i) is not None and ready(i) <= pos[0]]
                if not c:
                    w = [ready(i) - pos[0] for i in range(len(ops)) if not done[i] and ready(i) is not None]
                    if w and min(w) <= 2 and k + min(w) < n + NSL:
                        emit(f"s_nop {min(w)-1}", "nop", n=min(w)); k += min(w); n = max(n, k + 1)
                        continue
                    break
                i = c[0]
                emit(ops[i]["text"], ops[i]["kind"], ops[i]["wr"], ops[i]["rd"], ops[i].get("n", 1)); done[i] = True
                k += 2 if ops[i]["kind"] == "trans" else 1
        for i, (text, kind, wr) in enumerate(main):
            mpos[i] = pos[0]
            emit(text, kind, wr)
            if kind in ("mfma", "wait0"): fill(per)
        stamp9(2)
        while not all(done):
            fill(1000)
            if all(done): break
            c = [ready(i) for i in range(len(ops)) if not done[i] and ready(i) is not None]
            w = min(c) - pos[0]
            assert w > 0
            emit(f"s_nop {w-1}", "nop", n=w)
    def T2():
        vAcc, vLr, vPk, t0, t1, Out = 208, 181, 56, 48, 49, 16
        if PROF == 3:
            e(f"s_lshl_b32 s88, s2, 10")
            e(f"s_add_u32 s88, s88, 0x300000")
            e(f"v_lshlrev_b32 {vr(vV)}, 1, v0")
            e(f"buffer_store_short {vr(vTk)}, {vr(vV)}, {sr(sWS,4)}, s88 offen")
            e(f"buffer_store_short {vr(vTk+1)}, {vr(vV)}, {sr(sWS,4)}, s88 offen offset:512")
        e(f"ds_write_b32 {vr(vAm)}, {vr(vL)}")
        e("s_nop 5")
        for d in range(2):
            e(f"v_cvt_pk_bf16_f32 {vr(vPk+d)}, {vr(vO+2*d)}, {vr(vO+2*d+1)}")
        if SPM: e(f"ds_write2_b32 {vr(vAw)}, {vr(vPk)}, {vr(vPk+1)} offset1:4")
        else: e(f"ds_write_b64 {vr(vAw)}, {vr(vPk,2)}")
        e("s_waitcnt lgkmcnt(0)")
        e("s_barrier")
        g.lab("L_T2b")
        stamp9(1)
        NJ = 2 if SPM else 4
        for j in range(NJ):
            e(f"ds_read_b128 {ar(4*j,4)}, {vr(vAr)} offset:{256//NJ*j}")
        e(f"ds_read_b32 {vr(vLr)}, {vr(vAx)}")
        nrd = NJ + 1
        main = []; ops = []
        TO = [0, 6, 2, 8, 3, 4, 7, 1, 5] if SPM else [6, 7, 8, 0, 1, 2, 3, 4, 5]
        def op(text, rd, wr, kind="valu", **kw):
            ops.append(dict(text=text, rd=set(rd), wr=set(wr), kind=kind, **kw))
        for n, t in enumerate(TO):
            for j in range(NJ):
                if n == 0:
                    main.append((f"s_waitcnt lgkmcnt({nrd - j - 1})", "wait", ()))
                if n == 1 and j == 0:
                    main.append((f"s_waitcnt lgkmcnt(0)", "wait", ())); mlw = len(main) - 1
                a = vAcc + 4 * t
                cc = "0" if j == 0 else vr(a, 4)
                if SPM: main.append((f"v_smfmac_f32_16x16x64_bf16 {vr(a,4)}, {ar(4*j,4)}, {ar(aW+8*(t*2+j),8)}, {vr(vIx)}", "mfma", range(a, a + 4)))
                else: main.append((f"v_mfma_f32_16x16x32_bf16 {vr(a,4)}, {ar(4*j,4)}, {ar(aW+4*(t*4+j),4)}, {cc}", "mfma", range(a, a + 4)))
        for src, dst, rot in ((vLr, t0, 8), (t0, t1, 4), (t1, t0, 2), (t0, t1, 1)):
            op(f"v_add_f32_dpp {vr(dst)}, {vr(src)}, {vr(src)} row_ror:{rot} {DP}", [src], [dst], "dpp", after=mlw)
        op(f"v_rcp_f32 {vr(t0)}, {vr(t1)}", [t1], [t0], "trans")
        K, R, t2 = 50, 52, 51
        op(f"v_log_f32 {vr(K)}, {vr(t1)}", [t1], [K], "trans")
        op(f"v_add_f32 {vr(K)}, {vr(K)}, {vr(vM)}", [K], [K])
        op(f"v_xor_b32 {vr(K)}, {vr(K)}, {vr(vNl)}", [K], [K])
        S = lambda t: vAcc + 4 * t
        def comb(t):
            a = S(t)
            op(f"v_pk_add_f32 {vr(a,2)}, {vr(a,2)}, {vr(a+2,2)}", range(a, a + 4), [a, a + 1])
            op(f"v_add_f32 {vr(a)}, {vr(a)}, {vr(a+1)}", [a, a + 1], [a])
            op(f"v_mul_f32 {vr(a)}, {vr(t0)}, {vr(a)}", [a, t0], [a])
        def pk(d, x, y): op(f"v_cvt_pk_bf16_f32 {vr(d)}, {vr(x)}, {vr(y)}", [x, y], [d])
        if SPM:
            def inl(t):
                a = S(t)
                op(f"v_pk_add_f32 {vr(a,2)}, {vr(a,2)}, {vr(a+2,2)}", range(a, a + 4), [a, a + 1])
                op(f"v_add_f32 {vr(a)}, {vr(a)}, {vr(a+1)}", [a, a + 1], [a])
            def swp(a, b): op(f"v_permlane16_swap_b32 {vr(a)}, {vr(b)}", [a, b], [a, b], "swap")
            def pair(a, b):
                swp(a, b)
                op(f"v_add_f32 {vr(a)}, {vr(a)}, {vr(b)}", [a, b], [a])
                op(f"v_mul_f32 {vr(a)}, {vr(t0)}, {vr(a)}", [a, t0], [a])
            Z, D = R, R + 1
            inl(0); inl(6); pair(S(0), S(6))
            op(f"v_mov_b32_dpp {vr(Z)}, {vr(S(0))} row_ror:8 {DP}", [S(0)], [Z], "dpp")
            inl(2); inl(8); pair(S(2), S(8))
            inl(3); inl(4); pair(S(3), S(4))
            swp(S(3), Z)
            op(f"v_mov_b32_dpp {vr(S(3))}, {vr(S(2))} row_ror:8 row_mask:0xa bank_mask:0xf", [S(2), S(3)], [S(3)], "dpp")
            pk(Out + 1, S(2), S(3))
            inl(7)
            op(f"v_mov_b32_dpp {vr(D)}, {vr(S(7))} row_ror:8 {DP}", [S(7)], [D], "dpp")
            inl(1)
            pair(S(1), S(7)); pk(Out, S(0), S(1))
            op(f"v_bitop3_b32 {vr(Out+3)}, {vr(Out)}, {vr(Out+1)}, {vr(K)} bitop3:0x96", [Out, Out + 1, K], [Out + 3])
            inl(5); pair(S(5), D); pk(Out + 2, Z, S(5))
            op(f"v_xor_b32 {vr(Out+3)}, {vr(Out+3)}, {vr(Out+2)}", [Out + 3, Out + 2], [Out + 3])
            schedule(main, ops, opts.get("per", 3))
            e(f"buffer_store_dwordx4 {vr(Out,4)}, {vr(vSt0)}, {sr(sWS,4)}, 0 offen sc1")
            return
        comb(6); comb(7); pk(R, S(6), S(7))
        op(f"v_mov_b32_dpp {vr(R+2)}, {vr(R)} row_ror:8 {DP}", [R], [R + 2], "dpp")
        op(f"v_bitop3_b32 {vr(R+3)}, {vr(R)}, {vr(R+2)}, {vr(K)} bitop3:0x96", [R, R + 2, K], [R + 3])
        comb(8)
        op(f"v_mov_b32_dpp {vr(t2)}, {vr(S(8))} row_ror:8 {DP}", [S(8)], [t2], "dpp")
        pk(R + 1, S(8), t2)
        op(f"v_xor_b32 {vr(R+3)}, {vr(R+3)}, {vr(R+1)}", [R + 3, R + 1], [R + 3])
        op(f"buffer_store_dwordx4 {vr(R,4)}, {vr(vSt1)}, {sr(sWS,4)}, 0 offen offset:256 sc1", range(R, R + 4), [], "store")
        for d in range(3):
            comb(2 * d); comb(2 * d + 1); pk(Out + d, S(2 * d), S(2 * d + 1))
            if d == 1: op(f"v_bitop3_b32 {vr(Out+3)}, {vr(Out)}, {vr(Out+1)}, {vr(K)} bitop3:0x96", [Out, Out + 1, K], [Out + 3])
        op(f"v_xor_b32 {vr(Out+3)}, {vr(Out+3)}, {vr(Out+2)}", [Out + 3, Out + 2], [Out + 3])
        schedule(main, ops, opts.get("per", 2))
        e(f"buffer_store_dwordx4 {vr(Out,4)}, {vr(vSt0)}, {sr(sWS,4)}, 0 offen sc1")
    g.lab("L_T2")
    T2()
    e(f"s_cmp_eq_u32 {sr(sIsH)}, 1")
    e("s_cbranch_scc1 L_H2")
    if opts.get("dry", 0):
        e(f"s_cmp_eq_u32 {sr(sIsH)}, 2")
        e("s_cbranch_scc1 L_ret")
    stamp(6)
    if PROF: e("s_branch L_done")
    else: e("s_endpgm")

    g.lab("L_H")
    e(f"s_mov_b32 {sr(sDoff)}, 0")
    e(f"v_lshlrev_b32 {vr(vSb)}, 4, v0")
    def h_a():
        if HW:
            for n in range(8): a_unit(n)
        call("L_AQ")
        e("s_waitcnt vmcnt(0)")
        call("L_AK"); call("L_AV0"); call("L_AV1")
        if opts.get("xq", 0) == 1: e("s_branch L_done")
    def h_pf():
        e(f"s_bfe_u32 {sr(sT0)}, s2, 0x10003")
        e(f"s_mul_i32 {sr(sT0)}, {sr(sT0)}, 73728")
        e(f"s_add_u32 {sr(sT0)}, {sr(sT0)}, {sr(sWoO)}")
        add64(sK, 26, sr(sT0))
        e(f"s_mov_b32 {sr(sK+2)}, 73728")
        e(f"s_mov_b32 {sr(sT1)}, 0")
        g.lab("L_hpf")
        e(f"buffer_load_dwordx4 {vr(vTmp+4,4)}, {vr(vSb)}, {sr(sK,4)}, {sr(sT1)} offen")
        e(f"s_waitcnt vmcnt({opts.get('pfd', 4)})")
        e(f"s_add_u32 {sr(sT1)}, {sr(sT1)}, 4096")
        e(f"s_cmp_lt_u32 {sr(sT1)}, 73728")
        e("s_cbranch_scc1 L_hpf")
    def h_dma():
        e(f"s_mov_b32 {sr(sDt)}, 0")
        g.lab("L_hdma")
        dma_load(opts.get("wont", 0) & 2)
        e(f"s_waitcnt vmcnt({opts.get('hd', 2)})")
        e(f"s_cmp_lt_u32 {sr(sDt)}, 36")
        e("s_cbranch_scc1 L_hdma")
    if not opts.get("pf", 1): h_pf = lambda: None
    for f in [(h_a, h_pf, h_dma), (h_pf, h_dma, h_a), (h_pf, h_a, h_dma), (h_dma, h_pf, h_a), (h_dma, h_a, h_pf)][HW]: f()
    if opts.get("xq", 0) == 2: e("s_branch L_done")
    vFa, vFb, vDa, vF0, vFn, vD0 = 96, 97, 98, 100, 104, 108
    e(f"s_lshr_b32 {sr(sT0)}, {sr(sIt)}, 1")
    e(f"s_and_b32 {sr(sT1)}, {sr(sIt)}, 1")
    e(f"s_mul_i32 {sr(sT2)}, {sr(sT0)}, {8*AFS}")
    e(f"s_lshl_b32 {sr(sT3)}, {sr(sT1)}, 6")
    e(f"s_add_u32 {sr(sT2)}, {sr(sT2)}, {sr(sT3)}")
    e(f"s_add_u32 {sr(sT2)}, {sr(sT2)}, {AF_OFF}")
    e(f"v_mov_b32 {vr(vT1)}, {AFS}")
    e(f"v_and_b32 {vr(vT0)}, 7, {vr(vLane)}")
    e(f"v_mad_u32_u24 {vr(vFa)}, {vr(vT0)}, {vr(vT1)}, {sr(sT2)}")
    e(f"v_lshrrev_b32 {vr(vT0)}, 5, v0")
    e(f"v_mad_u32_u24 {vr(vFb)}, {vr(vT0)}, {vr(vT1)}, {sr(sT2)}")
    e(f"s_mul_i32 {sr(sT2)}, {sr(sT0)}, {8*ARS}")
    e(f"s_lshl_b32 {sr(sT3)}, {sr(sT1)}, 9")
    e(f"s_add_u32 {sr(sT2)}, {sr(sT2)}, {sr(sT3)}")
    e(f"s_add_u32 {sr(sT2)}, {sr(sT2)}, {AR_OFF}")
    e(f"v_mov_b32 {vr(vT1)}, {ARS}")
    e(f"v_mad_u32_u24 {vr(vDa)}, {vr(vT0)}, {vr(vT1)}, {sr(sT2)}")
    e(f"v_and_b32 {vr(vT0)}, 31, {vr(vLane)}")
    e(f"v_lshl_add_u32 {vr(vDa)}, {vr(vT0)}, 4, {vr(vDa)}")
    e("s_waitcnt vmcnt(0)")
    e("s_barrier")
    call("L_T1")
    if opts.get("xq", 0) == 3: e("s_branch L_done")
    e(f"s_mov_b32 {sr(sSpin)}, 0x8000")
    g.lab("L_hp")
    for i in range(opts.get("hsn", 3 if HW else 0)): e("s_sleep 127")
    for r, a in ((vF0, vFa), (vFn, vFb), (vD0, vDa)):
        e(f"buffer_load_dwordx4 {vr(r,4)}, {vr(a)}, {sr(sWS,4)}, 0 offen sc1")
    e(f"s_sub_u32 {sr(sSpin)}, {sr(sSpin)}, 1")
    e("s_waitcnt vmcnt(0)")
    e("s_cbranch_scc1 L_hp1")
    for r in (vF0, vFn, vD0):
        for i in range(2):
            e(f"v_bitop3_b32 {vr(r+2+i)}, {vr(r+i)}, {vr(r+2+i)}, {sr(sNon)} bitop3:0x96")
    e(f"v_or3_b32 {vr(vT0)}, {vr(vF0+2)}, {vr(vF0+3)}, {vr(vFn+2)}")
    e(f"v_or3_b32 {vr(vT1)}, {vr(vFn+3)}, {vr(vD0+2)}, {vr(vD0+3)}")
    e(f"v_or_b32 {vr(vT0)}, {vr(vT0)}, {vr(vT1)}")
    e(f"v_cmp_ne_u32 vcc, 0, {vr(vT0)}")
    e("s_cbranch_vccz L_hp1")
    if not opts.get("hsn", 3 if HW else 0): e(f"s_sleep {opts.get('hsl', 64)}")
    e("s_branch L_hp")
    g.lab("L_hp1")
    for src, dst, rot in ((vF0, vM, 4), (vM, vT1, 2), (vT1, vM, 1)):
        e(f"v_max_f32_dpp {vr(dst)}, {vr(src)}, {vr(src)} row_ror:{rot} {DP}")
        e("s_nop 1")
    e(f"v_sub_f32 {vr(vT1)}, {vr(vF0)}, {vr(vM)}")
    e(f"v_sub_f32 {vr(vFn)}, {vr(vFn)}, {vr(vM)}")
    e(f"v_exp_f32 {vr(vT1)}, {vr(vT1)}")
    e(f"v_exp_f32 {vr(vFn)}, {vr(vFn)}")
    for i in range(2):
        e(f"v_lshlrev_b32 {vr(vO+2*i)}, 16, {vr(vD0+i)}")
        e(f"v_and_b32 {vr(vO+2*i+1)}, 0xffff0000, {vr(vD0+i)}")
    e(f"v_mul_f32 {vr(vT1)}, {vr(vT1)}, {vr(vF0+1)}")
    for i in range(4):
        e(f"v_mul_f32 {vr(vO+i)}, {vr(vFn)}, {vr(vO+i)}")
    for src, dst, rot in ((vT1, vL, 4), (vL, vT1, 2), (vT1, vL, 1)):
        e(f"v_add_f32_dpp {vr(dst)}, {vr(src)}, {vr(src)} row_ror:{rot} {DP}")
        e("s_nop 1")
    e(f"v_mul_f32 {vr(vL)}, 0x3d800000, {vr(vL)}")
    for i in range(4):
        e(f"v_mov_b32 {vr(vO2+i)}, {vr(vO+i)}")
    e("s_nop 1")
    for i in range(4):
        e(f"v_permlane32_swap_b32 {vr(vO+i)}, {vr(vO2+i)}")
    e("s_nop 1")
    for i in range(4):
        e(f"v_add_f32 {vr(vO+i)}, {vr(vO+i)}, {vr(vO2+i)}")
    if opts.get("xq", 0) == 4: e("s_branch L_done")
    e("s_branch L_T2")
    g.lab("L_H2")
    if opts.get("xq", 0) == 5: e("s_branch L_done")
    e("s_waitcnt vmcnt(0)")
    e("s_barrier")
    sP, sCb, sSl, sRow = sCi, sT1, sT2, sT3
    e(f"s_cmp_lt_u32 s2, {192 + 40}")
    e(f"s_cselect_b32 {sr(sP)}, 1, 0")
    e(f"s_cmp_lg_u32 {sr(sW)}, 0")
    e("s_cbranch_scc1 L_H3")
    e(f"s_lshl_b32 {sr(sT0)}, s2, 2")
    e(f"s_add_u32 {sr(sT0)}, {sr(sT0)}, {HF_OFF - 192*4}")
    e(f"v_mov_b32 {vr(vEp)}, {sr(sNon)}")
    e("s_mov_b64 exec, 1")
    e(f"buffer_store_dword {vr(vEp)}, off, {sr(sWS,4)}, {sr(sT0)} sc1")
    e("s_mov_b64 exec, -1")
    e(f"s_cmp_eq_u32 {sr(sP)}, 1")
    e("s_cbranch_scc1 L_H3")
    e(f"s_mov_b32 {sr(sSpin)}, 0x40000")
    g.lab("L_hf")
    e(f"s_sleep {opts.get('hsf', 100)}")
    e(f"buffer_load_dword {vr(vEp+1)}, {vr(vHa)}, {sr(sWS,4)}, 0 offen offset:{HF_OFF} sc1")
    e(f"s_sub_u32 {sr(sSpin)}, {sr(sSpin)}, 1")
    e("s_waitcnt vmcnt(0)")
    e("s_cbranch_scc1 L_H3")
    e(f"v_cmp_ne_u32 vcc, {sr(sNon)}, {vr(vEp+1)}")
    e("s_cbranch_vccnz L_hf")
    e(f"s_cmp_lg_u32 s2, 255")
    e("s_cbranch_scc1 L_H3")
    e(f"v_mov_b32 {vr(vEp+1)}, {sr(sE)}")
    e("s_mov_b64 exec, 1")
    e(f"buffer_store_dword {vr(vEp+1)}, off, {sr(sWS,4)}, 0 sc1")
    e("s_mov_b64 exec, -1")
    g.lab("L_H3")
    if opts.get("xq", 0) == 6: e("s_branch L_done")
    e(f"s_mul_i32 {sr(sT0)}, {sr(sP)}, 40")
    e(f"s_add_u32 {sr(sSl)}, s2, {sr(sT0)}")
    e(f"s_sub_u32 {sr(sSl)}, {sr(sSl)}, {192 + 40}")
    e(f"s_cmp_ge_u32 {sr(sSl)}, 24")
    e("s_cbranch_scc1 L_done")
    e(f"s_cmp_ge_u32 {sr(sSl)}, 12")
    e(f"s_cselect_b32 {sr(sCb)}, 1, 0")
    e(f"s_cselect_b32 {sr(sRow)}, 12, 0")
    e(f"s_sub_u32 {sr(sSl)}, {sr(sSl)}, {sr(sRow)}")
    e(f"s_lshl_b32 {sr(sRow)}, {sr(sCb)}, 5")
    e(f"v_lshrrev_b32 {vr(vT0)}, 3, v0")
    e(f"v_add_u32 {vr(vT0)}, {sr(sRow)}, {vr(vT0)}")
    e(f"s_lshl1_add_u32 {sr(sRow)}, {sr(sP)}, 1")
    e(f"v_mul_u32_u24 {vr(vT0)}, {sr(sRow)}, {vr(vT0)}")
    e(f"s_cmp_eq_u32 {sr(sP)}, 0")
    e(f"s_cselect_b32 {sr(sRow)}, 192, 0")
    e(f"v_add_u32 {vr(vT0)}, {sr(sRow)}, {vr(vT0)}")
    e(f"v_and_b32 {vr(vT1)}, 7, v0")
    e(f"s_lshl_b32 {sr(sRow)}, {sr(sSl)}, 7")
    e(f"s_add_u32 {sr(sRow)}, {sr(sRow)}, {Y_OFF}")
    e(f"v_mov_b32 {vr(vYo)}, {YS}")
    e(f"v_mad_u32_u24 {vr(vYo)}, {vr(vT0)}, {vr(vYo)}, {sr(sRow)}")
    e(f"v_lshl_add_u32 {vr(vYo)}, {vr(vT1)}, 4, {vr(vYo)}")
    vCx = vMlo
    e(f"s_lshl_b32 {sr(sRow)}, {sr(sW)}, 8")
    e(f"s_add_u32 {sr(sRow)}, {sr(sRow)}, {LDS_SC}")
    e(f"v_lshl_add_u32 {vr(vCx)}, {vr(vT1)}, 2, {sr(sRow)}")
    e(f"v_lshrrev_b32 {vr(vT0)}, 1, {vr(vG)}")
    e(f"v_lshl_add_u32 {vr(vCx)}, {vr(vT0)}, 5, {vr(vCx)}")
    e(f"v_and_b32 {vr(vT0)}, 1, {vr(vG)}")
    e(f"v_lshl_add_u32 {vr(vCw)}, {vr(vT0)}, 6, {vr(vCx)}")
    e(f"v_lshlrev_b32 {vr(vCr)}, 2, v0")
    e(f"v_add_u32 {vr(vCr)}, {LDS_SC}, {vr(vCr)}")
    e(f"s_mul_i32 {sr(sCb)}, {sr(sCb)}, 1152")
    e(f"s_mul_i32 {sr(sT0)}, {sr(sP)}, 576")
    e(f"s_add_u32 {sr(sCb)}, {sr(sCb)}, {sr(sT0)}")
    e(f"s_mul_i32 {sr(sT0)}, {sr(sSl)}, 11")
    e(f"s_lshr_b32 {sr(sT0)}, {sr(sT0)}, 5")
    e(f"s_lshl4_add_u32 {sr(sCb)}, {sr(sT0)}, {sr(sCb)}")
    e(f"s_mul_i32 {sr(sT0)}, {sr(sT0)}, 3")
    e(f"s_sub_u32 {sr(sSl)}, {sr(sSl)}, {sr(sT0)}")
    e(f"s_mov_b32 {sr(sT0)}, 0x18100800")
    e(f"s_mov_b32 {sr(sRow)}, 0x2820")
    e(f"s_cmp_eq_u32 {sr(sSl)}, 2")
    e(f"s_cselect_b32 {sr(sT0)}, 0x41403830, {sr(sT0)}")
    e(f"s_cselect_b32 {sr(sRow)}, 0x3931, {sr(sRow)}")
    e(f"s_cselect_b32 {sr(sSl)}, 0, {sr(sSl)}")
    e(f"s_lshl3_add_u32 {sr(sCb)}, {sr(sSl)}, {sr(sCb)}")
    e(f"v_bfe_u32 {vr(vT0)}, v0, 3, 3")
    e(f"v_or_b32 {vr(vT0)}, 0x0c0c0c00, {vr(vT0)}")
    e(f"v_mov_b32 {vr(vOa)}, {sr(sRow)}")
    e(f"v_perm_b32 {vr(vOa)}, {vr(vOa)}, {sr(sT0)}, {vr(vT0)}")
    e(f"v_lshl_add_u32 {vr(vOa)}, {vr(vOa)}, 3, {vr(vT1)}")
    e(f"v_add_lshl_u32 {vr(vOa)}, {vr(vOa)}, {sr(sCb)}, 1")
    vMx, vRes, vWt = 48, 40, 56
    vZc, vUn = 76, 120
    assert 2 * YS < 4096
    e(f"s_mov_b32 {sr(sSpin)}, 0x100000")
    e(f"s_cmp_eq_u32 {sr(sP)}, 0")
    e("s_cbranch_scc1 L_finA")
    def check(vD, n):
        for i in range(n):
            e(f"v_bitop3_b32 {vr(vMx+i)}, {vr(vD+4*i)}, {vr(vD+4*i+1)}, {vr(vD+4*i+2)} bitop3:0x96")
        for i in range(n):
            e(f"v_bitop3_b32 {vr(vWt+1+i)}, {vr(vMx+i)}, {vr(vD+4*i+3)}, {vr(vNl)} bitop3:0x96")
        if n == 1: e("s_nop 1")
        for i in range(n):
            e(f"v_xor_b32_dpp {vr(vMx+i)}, {vr(vWt+1+i)}, {vr(vWt+1+i)} quad_perm:[1,0,3,2] {DP}")
        for i in range(n):
            e(f"v_xor_b32_dpp {vr(vMx+3+i)}, {vr(vWt+1+i)}, {vr(vWt+1+i)} quad_perm:[2,3,0,1] {DP}")
        for i in range(n):
            e(f"v_or_b32 {vr(vMx+i)}, {vr(vMx+i)}, {vr(vMx+3+i)}")
    PD = opts.get("pd", 2)
    VS = [64, 84, 96, 108][:PD]; MS = [16, 22, 36, 48][:PD]
    SM = opts.get("psm", 0x000f000f)
    TC = opts.get("tc", 0)
    if TC:
        assert ORG == 1 and not OMX
        org_load()
        e("s_waitcnt vmcnt(0)")
        e(f"v_xor_b32 {vr(vS+1)}, {vr(vS)}, {vr(vS+1)}")
        e(f"v_subrev_u32 {vr(vS)}, s94, {vr(vS)}")
        e(f"v_cmp_ne_u32 {sr(sT2,2)}, {sr(sNon)}, {vr(vS+1)}")
        for m in ("quad_perm:[1,0,3,2]", "quad_perm:[2,3,0,1]", "row_half_mirror"):
            e("s_nop 1")
            e(f"v_add_u32_dpp {vr(vS)}, {vr(vS)}, {vr(vS)} {m} {DP}")
        e("s_nop 1")
        e(f"v_readfirstlane_b32 {sr(sT0)}, {vr(vS)}")
        e(f"s_and_b32 {sr(sT2)}, {sr(sT2)}, 0xff")
        e(f"s_cselect_b32 {sr(sT0)}, 0, {sr(sT0)}")
        e(f"s_ashr_i32 {sr(sT0)}, {sr(sT0)}, 3")
        e(f"s_add_u32 {sr(sSch)}, s94, {sr(sT0)}")
        e(f"s_add_u32 {sr(sSch)}, {sr(sSch)}, {TC // 10}")
    e(f"s_mov_b32 exec_lo, {SM}"); e(f"s_mov_b32 exec_hi, {SM}")
    g.lab("L_pollc")
    e(f"s_sleep {opts.get('csl', 16)}")
    e(f"buffer_load_dwordx4 {vr(VS[0],4)}, {vr(vYo)}, {sr(sWS,4)}, 0 offen offset:{2*YS} sc1")
    if TC: e(f"s_memrealtime {sr(sNow,2)}")
    e(f"s_sub_u32 {sr(sSpin)}, {sr(sSpin)}, 1")
    e("s_cbranch_scc1 L_pollc_done")
    if TC:
        e("s_waitcnt lgkmcnt(0)")
        e(f"s_sub_u32 {sr(sT0)}, {sr(sNow)}, {sr(sSch)}")
        e(f"s_cmp_ge_i32 {sr(sT0)}, 0")
        if not opts.get("tcw", 0): e("s_cbranch_scc1 L_pollc_done")
    e("s_waitcnt vmcnt(0)")
    if TC and opts.get("tcw", 0): e("s_cbranch_scc1 L_pollc_done")
    check(VS[0], 1)
    e(f"v_cmp_eq_u32 vcc, 0, {vr(vMx)}")
    if opts.get("pth", 1) > 1:
        e(f"s_bcnt1_i32_b64 {sr(sT2)}, vcc")
        e(f"s_cmp_lt_u32 {sr(sT2)}, {4*opts['pth']}")
        e("s_cbranch_scc1 L_pollc")
    else: e("s_cbranch_vccz L_pollc")
    g.lab("L_pollc_done")
    stamp9(3)
    e("s_mov_b64 exec, -1")
    e(f"s_mov_b32 {sr(sSpin)}, 0x100000")
    def poll(n, first=False):
        for i in range(3):
            if not first: e(f"s_or_b64 exec, {sr(MS[n]+2*i,2)}, 1")
            e(f"buffer_load_dwordx4 {vr(VS[n]+4*i,4)}, {vr(vYo)}, {sr(sWS,4)}, 0 offen offset:{YS*i} sc1")
        e("s_mov_b64 exec, -1")
    for i in range(3):
        e(f"s_mov_b64 {sr(MS[PD-1]+2*i,2)}, -1")
    for n in range(PD - 1):
        poll(n, True)
        e(f"s_sleep {opts.get('pds', 8)}")
    g.lab("L_polld")
    for n in range(PD):
        vD = VS[n]
        poll((n - 1) % PD)
        e(f"s_waitcnt vmcnt({3*(PD-1)})")
        check(vD, 3)
        e(f"v_max3_f32 {vr(vWt)}, {vr(vWt+1)}, {vr(vWt+2)}, {vr(vWt+3)}")
        e(f"v_or3_b32 {vr(vMx+3)}, {vr(vMx)}, {vr(vMx+1)}, {vr(vMx+2)}")
        for i in range(3): e(f"v_sub_f32 {vr(vWt+1+i)}, {vr(vWt+1+i)}, {vr(vWt)}")
        e(f"v_cmp_ne_u32 vcc, 0, {vr(vMx+3)}")
        for i in range(3): e(f"v_exp_f32 {vr(vWt+1+i)}, {vr(vWt+1+i)}")
        e(f"s_cbranch_vccz L_polld_done{n}")
        for i in range(3):
            e(f"v_cmp_ne_u32 {sr(MS[n]+2*i,2)}, 0, {vr(vMx+i)}")
    e(f"s_sub_u32 {sr(sSpin)}, {sr(sSpin)}, 1")
    e(f"s_cbranch_scc0 L_polld")
    def unpack(d, s_):
        for m in range(3):
            e(f"v_lshlrev_b32 {vr(d+2*m)}, 16, {vr(s_+m)}")
            e(f"v_and_b32 {vr(d+2*m+1)}, 0xffff0000, {vr(s_+m)}")
    for n in range(PD - 1, -1, -1):
        vD = VS[n]
        g.lab(f"L_polld_done{n}")
        stamp9(4)
        if PROF == 9:
            e(f"s_sub_u32 s90, 0x100000, {sr(sSpin)}")
            e(f"s_mul_i32 s90, s90, {PD}")
            e(f"s_add_u32 s90, s90, {n}")
        e(f"v_add_f32 {vr(vWt)}, {vr(vWt+1)}, {vr(vWt+2)}")
        unpack(vZc, vD)
        e(f"v_add_f32 {vr(vWt)}, {vr(vWt)}, {vr(vWt+3)}")
        unpack(vUn, vD + 4)
        e(f"v_rcp_f32 {vr(vWt)}, {vr(vWt)}")
        unpack(vUn + 6, vD + 8)
        if n: e("s_branch L_fin1")
    g.lab("L_fin1")
    for i in range(3): e(f"v_mul_f32 {vr(vWt+2+2*i)}, {vr(vWt+3-i)}, {vr(vWt)}" if False else f"v_mul_f32 {vr(vMx+2*i)}, {vr(vWt+1+i)}, {vr(vWt)}")
    for m in range(3):
        e(f"v_pk_mul_f32 {vr(vZc+2*m,2)}, {vr(vZc+2*m,2)}, {vr(vMx,2)} op_sel_hi:[1,0]")
    for i in range(2):
        for m in range(3):
            e(f"v_pk_fma_f32 {vr(vZc+2*m,2)}, {vr(vUn+6*i+2*m,2)}, {vr(vMx+2+2*i,2)}, {vr(vZc+2*m,2)} op_sel_hi:[1,0,1]")
    g.lab("L_fin2")
    for k in range(6):
        e(f"v_add_f32_dpp {vr(vRes+k)}, {vr(vZc+k)}, {vr(vZc+k)} row_ror:8 {DP}")
    for m in range(3):
        e(f"v_permlane32_swap_b32 {vr(vRes+2*m)}, {vr(vRes+2*m+1)}")
    for m in (2, 0, 1):
        e(f"v_add_f32 {vr(vRes+2*m)}, {vr(vRes+2*m)}, {vr(vRes+2*m+1)}")
    e(f"v_mov_b32 {vr(vRes+5)}, {vr(vRes+4)}")
    e("s_nop 0")
    e(f"v_permlane16_swap_b32 {vr(vRes)}, {vr(vRes+2)}")
    e(f"v_permlane16_swap_b32 {vr(vRes+4)}, {vr(vRes+5)}")
    e(f"v_add_f32 {vr(vRes)}, {vr(vRes)}, {vr(vRes+2)}")
    e(f"v_add_f32 {vr(vRes+4)}, {vr(vRes+4)}, {vr(vRes+5)}")
    e(f"ds_write_b32 {vr(vCw)}, {vr(vRes)}")
    e(f"ds_write_b32 {vr(vCx)}, {vr(vRes+4)} offset:128")
    e(f"s_cmp_lg_u32 {sr(sW)}, 0")
    e("s_mov_b32 exec_hi, 0xffff")
    e("s_waitcnt lgkmcnt(0)")
    e("s_barrier")
    stamp9(6)
    e("s_cbranch_scc1 L_done0")
    for w in range(4):
        e(f"ds_read_b32 {vr(vRes+w)}, {vr(vCr)} offset:{256*w}")
    e("s_waitcnt lgkmcnt(0)")
    e(f"v_add_f32 {vr(vRes)}, {vr(vRes)}, {vr(vRes+1)}")
    e(f"v_add_f32 {vr(vRes+2)}, {vr(vRes+2)}, {vr(vRes+3)}")
    e(f"v_add_f32 {vr(vRes)}, {vr(vRes)}, {vr(vRes+2)}")
    e(f"v_cvt_pk_bf16_f32 {vr(vRes)}, {vr(vRes)}, {vr(vRes)}")
    e(f"buffer_store_short {vr(vRes)}, {vr(vOa)}, {sr(sOut,4)}, 0 offen")
    g.lab("L_done0")
    e("s_mov_b64 exec, -1")
    g.lab("L_done")
    if PROF:
        e("s_waitcnt vmcnt(0)")
        stamp(7)
        e("s_getreg_b32 s96, hwreg(HW_REG_XCC_ID)")
        e("s_getreg_b32 s97, hwreg(HW_REG_HW_ID)")
        e("s_waitcnt lgkmcnt(0)")
        e(f"s_lshl_b32 {sr(sT0)}, s2, 2")
        e(f"s_add_u32 {sr(sT0)}, {sr(sT0)}, {sr(sW)}")
        e(f"s_lshl_b32 {sr(sT0)}, {sr(sT0)}, 6")
        e(f"s_add_u32 {sr(sT0)}, {sr(sT0)}, 0x200000")
        e(f"v_mov_b32 v20, {sr(sT0)}")
        for i in range(8):
            e(f"v_mov_b32 v{24+i}, s{80+2*i}")
        e("v_mov_b32 v32, s96")
        e("v_mov_b32 v33, s97")
        e("s_mov_b64 exec, 1")
        e(f"buffer_store_dwordx4 v[24:27], v20, {sr(sWS,4)}, 0 offen")
        e(f"buffer_store_dwordx4 v[28:31], v20, {sr(sWS,4)}, 0 offen offset:16")
        e(f"buffer_store_dwordx2 v[32:33], v20, {sr(sWS,4)}, 0 offen offset:32")
    g.lab("L_exit")
    e("s_endpgm")
    g.lab("L_finA")
    e("s_barrier")
    e(f"buffer_load_dwordx4 {vr(vUn,4)}, {vr(vYo)}, {sr(sWS,4)}, 0 offen sc1")
    e("s_waitcnt vmcnt(0)")
    unpack(vZc, vUn)
    e("s_nop 0")
    e("s_branch L_fin2")

    ret = lambda: e(f"s_setpc_b64 {sr(sRet,2)}")
    g.lab("L_AQ")
    qloads(2, sQa, None, QSC)
    ret()
    g.lab("L_AK")
    qget(2, sQa, vQA, "A")
    e("s_nop 1")
    X = [vP, 72, vQl, vQl + 16]
    for n in range(4): qk(aA + 16 * n, vQA, X[n])
    for n in range(4): fold(X[n], vSA + 4 * n, True)
    e(f"v_max3_f32 {vr(vM2)}, {vr(vSA)}, {vr(vSA+1)}, {vr(vSA+2)}")
    for i in range(3, 15, 2):
        e(f"v_max3_f32 {vr(vM2)}, {vr(vM2)}, {vr(vSA+i)}, {vr(vSA+i+1)}")
    e(f"v_max_f32 {vr(vM2)}, {vr(vM2)}, {vr(vSA+15)}")
    gmax(vM2)
    e(f"v_mul_f32 {vr(vM2)}, {sr(sC)}, {vr(vM2)}")
    ret()
    g.lab(f"L_AV0")
    for n in range(4):
        if n == 2:
            ret()
            g.lab(f"L_AV1")
        probs(vSA + 4 * n, vM2, vL2)
        e("s_nop 1")
        pv(vVb + 16 * n, vO2)
    vAa, vAb, vPm, vPo = vSA, vSA + 1, vSA + 4, vQl
    e(f"v_lshlrev_b32 {vr(vAa)}, 4, v0")
    e(f"v_add_u32 {vr(vAa)}, {LDS_OT}, {vr(vAa)}")
    e(f"s_lshl4_add_u32 {sr(sT0)}, {sr(sW)}, {LDS_M}")
    e(f"v_and_b32 {vr(vAb)}, 8, {vr(vCc)}")
    e(f"v_add_u32 {vr(vAb)}, {sr(sT0)}, {vr(vAb)}")
    gmax(vL2, "v_add_f32")
    e(f"ds_write_b128 {vr(vAa)}, {vr(vO2,4)}")
    e(f"ds_write_b64 {vr(vAb)}, {vr(vM2,2)}")
    e(f"v_mov_b32 {vr(vAa)}, {LDS_CNT + 4}")
    e(f"v_mov_b32 {vr(vAb)}, 1")
    e("s_mov_b64 exec, 1")
    e("s_waitcnt lgkmcnt(0)")
    e(f"ds_add_rtn_u32 {vr(vAb)}, {vr(vAa)}, {vr(vAb)}")
    e("s_mov_b64 exec, -1")
    tail_setup()
    e("s_waitcnt lgkmcnt(0)")
    e(f"v_readfirstlane_b32 {sr(sT0)}, {vr(vAb)}")
    e(f"v_lshlrev_b32 {vr(vAa)}, 4, {vr(vLane)}")
    e(f"v_lshrrev_b32 {vr(vT1)}, 5, {vr(vLane)}")
    e(f"v_add_u32 {vr(vT0)}, {LDS_OT}, {vr(vAa)}")
    e(f"v_lshlrev_b32 {vr(vAb)}, 3, {vr(vT1)}")
    e(f"s_cmp_eq_u32 {sr(sT0)}, 3")
    e("s_cbranch_scc1 L_AM")
    ret()
    g.lab("L_AM")
    e(f"v_add_u32 {vr(vAb)}, {LDS_M}, {vr(vAb)}")
    for w in range(4):
        e(f"ds_read_b64 {vr(vPm+2*w,2)}, {vr(vAb)} offset:{16*w}")
    for w in range(4):
        e(f"ds_read_b128 {vr(vPo+4*w,4)}, {vr(vT0)} offset:{1024*w}")
    e(f"v_lshlrev_b32 {vr(vAb)}, 4, {vr(vCc)}")
    e(f"v_lshl_add_u32 {vr(vAb)}, {vr(vT1)}, 6, {vr(vAb)}")
    e(f"s_mul_i32 {sr(sT0)}, {sr(sAr)}, {ARS}")
    e(f"s_add_u32 {sr(sT0)}, {sr(sT0)}, {AR_OFF}")
    e(f"s_mul_i32 {sr(sT1)}, {sr(sAr)}, {AFS}")
    e(f"s_add_u32 {sr(sT1)}, {sr(sT1)}, {AF_OFF}")
    e("s_waitcnt lgkmcnt(4)")
    e(f"v_max3_f32 {vr(vE)}, {vr(vPm)}, {vr(vPm+2)}, {vr(vPm+4)}")
    e(f"v_max_f32 {vr(vE)}, {vr(vE)}, {vr(vPm+6)}")
    for w in range(4):
        e(f"v_sub_f32 {vr(vPm+2*w)}, {vr(vPm+2*w)}, {vr(vE)}")
    for w in range(4):
        e(f"v_exp_f32 {vr(vPm+2*w)}, {vr(vPm+2*w)}")
    e(f"v_xor_b32 {vr(vE+2)}, {sr(sNon)}, {vr(vE)}")
    e(f"v_mul_f32 {vr(vE+1)}, {vr(vPm)}, {vr(vPm+1)}")
    for w in range(1, 4):
        e(f"v_fmac_f32 {vr(vE+1)}, {vr(vPm+2*w)}, {vr(vPm+2*w+1)}")
    e("s_waitcnt lgkmcnt(0)")
    for i in range(4):
        e(f"v_mul_f32 {vr(vPo+i)}, {vr(vPm)}, {vr(vPo+i)}")
    e(f"v_xor_b32 {vr(vE+3)}, {sr(sNon)}, {vr(vE+1)}")
    for w in range(1, 4):
        for i in range(4):
            e(f"v_fmac_f32 {vr(vPo+i)}, {vr(vPm+2*w)}, {vr(vPo+4*w+i)}")
    for d in range(2):
        e(f"v_cvt_pk_bf16_f32 {vr(vO2+d)}, {vr(vPo+2*d)}, {vr(vPo+2*d+1)}")
    for d in range(2):
        e(f"v_xor_b32 {vr(vO2+2+d)}, {sr(sNon)}, {vr(vO2+d)}")
    if not opts.get("xs", 0):
        XP = opts.get("xp", 0)
        e(f"buffer_store_dwordx4 {vr(vO2,4)}, {vr(vAa)}, {sr(sWS,4)}, {sr(sT0)} offen" + ("" if XP & 1 else " sc1"))
        e(f"s_mov_b32 exec_lo, 15"); e(f"s_mov_b32 exec_hi, 15")
        e(f"buffer_store_dwordx4 {vr(vE,4)}, {vr(vAb)}, {sr(sWS,4)}, {sr(sT1)} offen" + ("" if XP & 2 else " sc1"))
        e("s_mov_b64 exec, -1")
    ret()
    if LT:
        g.lab("L_LA")
        e(f"v_xor_b32 {vr(vT1)}, {sr(sNon)}, {vr(vLt)}")
        e(f"v_ashrrev_i32 {vr(vLt)}, 16, {vr(vLt)}")
        e(f"v_cmp_eq_u16 vcc, 0, {vr(vT1)}")
        e(f"v_cvt_f32_i32 {vr(vLt)}, {vr(vLt)}")
        e(f"s_bcnt1_i32_b64 {sr(sT0)}, vcc")
        e(f"v_cndmask_b32 {vr(vLt)}, 0, {vr(vLt)}, vcc")
        e(f"v_cvt_f32_u32 {vr(vT1)}, {sr(sT0)}")
        e(f"s_cmp_lt_u32 {sr(sT0)}, {opts.get('ltn', 24)}")
        e(f"v_rcp_f32 {vr(vT1)}, {vr(vT1)}")
        for rot in (8, 4, 2, 1):
            e(f"v_add_f32_dpp {vr(vLt)}, {vr(vLt)}, {vr(vLt)} row_ror:{rot} {DP}")
            e("s_nop 1")
        gmax(vLt, "v_add_f32")
        e(f"v_mul_f32 {vr(vLt)}, {vr(vLt)}, {vr(vT1)}")
        e(f"v_cvt_i32_f32 {vr(vLt)}, {vr(vLt)}")
        e("s_nop 0")
        e(f"v_readfirstlane_b32 {sr(sT0)}, {vr(vLt)}")
        e(f"s_cbranch_scc1 L_LA1")
        e(f"s_sub_i32 {sr(sT0)}, {sr(sT0)}, {opts.get('tg', 800)*16//10}")
        if opts.get("lt1", 1): e(f"s_max_i32 {sr(sT0)}, {sr(sT0)}, 0")
        e(f"s_sub_i32 {sr(sSch)}, {sr(sSch)}, {sr(sCor)}")
        e(f"s_add_i32 {sr(sSch)}, {sr(sSch)}, {sr(sT0)}")
        e(f"s_mov_b32 {sr(sCor)}, {sr(sT0)}")
        g.lab("L_LA1")
        ret()
    g.lab("L_TR")
    e(f"v_mov_b32_dpp {vr(vM)}, {vr(vM)} quad_perm:[0,0,0,0] {DP}")
    gmax(vM)
    e(f"s_lshl2_add_u32 {sr(sT0)}, {sr(sW)}, {LDS_CNT + 16}")
    e(f"v_mul_f32 {vr(vM)}, {sr(sC)}, {vr(vM)}")
    e(f"v_mov_b32 {vr(vT0)}, {sr(sT0)}")
    e(f"s_mov_b32 {sr(sIt)}, 0")
    if opts.get("tx", 0): e(f"s_add_i32 {sr(sSch)}, {sr(sSch)}, {opts['tx']*16//10}")
    e(f"ds_write_b32 {vr(vT0)}, {vr(vM)}")
    ret()

    g.lab("L_T1")
    e(f"v_add_u32 {vr(vT0)}, 0x10000, {vr(vTR)}")
    e(f"v_add_u32 {vr(vT1)}, 0x20000, {vr(vTR)}")
    for t in range(9):
        for j in range(4):
            for hf in range(2):
                off = t*16384 + j*4096 + hf*2048
                a = (vTR, vT0, vT1)[off >> 16]
                e(f"ds_read_b64_tr_b16 {ar(aW+4*(t*4+j)+hf*2,2)}, {vr(a)} offset:{off & 0xffff}")
    if SPM:
        for i in range(18): e(f"v_mov_b64 {vr(208+2*i,2)}, 0")
    e("s_waitcnt lgkmcnt(0)")
    g.lab("L_ret")
    ret()

    hdr = HEADER
    hdr += f"; @launch grid=(256,1,1) block=(256,1,1) lds={LDS_TOTAL}\n"
    hdr += '.amdgcn_target "amdgcn-amd-amdhsa--gfx950"\n.text\n'
    hdr += f".globl {KN}\n.p2align 8\n.type {KN},@function\n"
    tail = f""".section .rodata,"a"
.p2align 6
.amdhsa_kernel {KN}
  .amdhsa_next_free_vgpr 512
  .amdhsa_next_free_sgpr 102
  .amdhsa_accum_offset 256
  .amdhsa_group_segment_fixed_size 0
  .amdhsa_kernarg_size 104
  .amdhsa_user_sgpr_count 2
  .amdhsa_user_sgpr_kernarg_segment_ptr 1
  .amdhsa_system_sgpr_workgroup_id_x 1
.end_amdhsa_kernel
"""
    return hdr + g.text() + tail

if __name__ == "__main__":
    out = sys.argv[1]
    opts = {}
    for a in sys.argv[2:]:
        k, v = a.split("=")
        opts[k] = int(v, 0)
    open(out, "w").write(gen(opts))
```

```python
import sys, math, struct

KN = "concat_heads__sliding_block_cached__mha_block_cached__decode_kernel"

def f32bits(x):
    return struct.unpack("<I", struct.pack("<f", x))[0]

class Gen:
    def __init__(self):
        self.lines = []
        self.q = []
    def e(self, s):
        self.lines.append("    " + s)
    def lab(self, s):
        self.lines.append(s + ":")
    def vm(self, s, tag=None):
        self.e(s)
        self.q.append(tag)
    def wait_tag(self, tag):
        idx = max(i for i, t in enumerate(self.q) if t == tag)
        n = len(self.q) - 1 - idx
        assert n <= 63, n
        self.e(f"s_waitcnt vmcnt({n})")
    def text(self):
        return "\n".join(self.lines) + "\n"

def vr(a, n=1):
    return f"v{a}" if n == 1 else f"v[{a}:{a+n-1}]"
def ar(a, n=1):
    return f"a{a}" if n == 1 else f"a[{a}:{a+n-1}]"
def sr(a, n=1):
    return f"s{a}" if n == 1 else f"s[{a}:{a+n-1}]"

HEADER = open("concat_heads__sliding_block_cached__mha_block_cached__decode.s.ref").read().split("; Override launch")[0]

NROWS = 256
YROW = 1536
HF_OFF = 256
Q_OFF = 0x400000
LT_OFF = 1024
Y_OFF = 2048
ORG_OFF = Y_OFF + NROWS * YROW
AF_OFF = ORG_OFF + 2048
AR_OFF = AF_OFF + 32768
WS_END = Q_OFF + 16 * 32768
LDS_OT = 147456
OT_STRIDE = 272
OT_BYTES = 16 * OT_STRIDE
LDS_M = LDS_OT + OT_BYTES
LDS_CNT = LDS_M + 128
LDS_SC = LDS_CNT + 64
LDS_TOTAL = LDS_SC + 176 * 64
CSCALE = (128 ** -0.5) * math.log2(math.e)
OOB = 0x40000000
assert AR_OFF + 256 * 1024 <= 0x200000 and AF_OFF % 128 == 0 and LDS_TOTAL <= 163840

def gen(opts):
    U = opts.get("u", 4)
    NT = " nt"
    PROF = opts.get("prof", 0)
    SLEEP = opts.get("sleep", 16)
    SB = opts.get("sb", 37)
    WS_BYTES = WS_END
    global Y_OFF, AR_OFF, AF_OFF
    YS, ARS, AFS = YROW, 1024, 128
    RS = opts.get("rs", 0)
    if RS:
        WS_BYTES = 0x800000 + 256 * RS
        Y_OFF, YS = 0x800000, RS
        if opts.get("rsa", 1): AR_OFF, AF_OFF, ARS, AFS = Y_OFF + 4096, Y_OFF + 5120, RS, RS
    QW = opts.get('qw', 3)
    RM = opts.get("rm", 25)
    RMA = opts.get("rma", 25)
    RB = [0, opts.get("r1", 171), opts.get("r2", 342), 512]
    assert all(4 * SB + 4 <= RB[i + 1] - RB[i] <= 176 for i in range(3))
    FLV = opts.get("flv", -1)
    PSPL = opts.get("pspl", 0)
    PSPV = opts.get("pspv", 0)
    MHV = 0x0f0f0f0f
    LW = [int(ch, 16) for ch in "%x" % opts.get("lw", 0x8642)]
    g = Gen()
    e = g.e
    sW, sRet, sE, sNon, sOut = 3, 4, 6, 7, 12
    sWoff, sSpin = 34, 35
    sK, sV, sWQ, sX, sWO, sWS = 36, 40, 44, 48, 52, 56
    sAK, sAV = sWQ, sX
    sRot, sAL, sT0, sT1, sT2, sT3 = 60, 61, 62, 63, 64, 65
    sOff, sIt, sC, sSelLo, sSelHi, sLdsW = 66, 67, 68, 69, 70, 71
    sRem, sR0, sAr, sQo, sIsH, sDt, sDoff, sDlds = 72, 73, 74, 75, 76, 77, 78, 79
    sKVo, sWoO, sAo, sPq, sQa, sL = 96, 97, 98, 99, 100, 101
    sX15 = 96
    sSt, sCl, sCi, sSrc = 44, 47, 45, 46
    sDyn, sLim, sL0, sBase = 48, 49, 50, 51
    sLev, sSch, sNow, sOff0 = 17, 18, 20, 22
    sTi, sPh = 26, 30
    sPub, sCor, sLimK, sTau = 16, 23, 24, 25
    PM = [int(ch, 16) + 8 for ch in "%013x" % (opts.get("perm", 0x10712345689abc) & (16**13 - 1))]
    assert sorted(PM) == list(range(8, 21)) and PM[11:] == [19, 20] and PM[0] <= 11 and PM[3] <= 11 and PM[4:] == sorted(PM[4:]), PM
    HOLE = sum(1 << p for p in PM[:4] if p > PM[4])
    TMASK = sum(1 << p for p in PM[4:])
    def phys(src, add, mask=None):
        e(f"s_add_u32 {sr(sX15)}, {sr(src)}, {add}")
        runs = []
        for i in range(9):
            if runs and runs[-1][1] + runs[-1][2] == PM[4 + i]: runs[-1][2] += 1
            else: runs.append([i, PM[4 + i], 1])
        for n, (i, p, w) in enumerate(runs):
            d = sOff if n == 0 else sWoff
            e(f"s_bfe_u32 {sr(d)}, {sr(sX15)}, {(w << 16) | i}")
            e(f"s_lshl_b32 {sr(d)}, {sr(d)}, {p}")
            if n: e(f"s_or_b32 {sr(sOff)}, {sr(sOff)}, {sr(sWoff)}")
        if mask: e(f"s_and_b32 {sr(sOff)}, {sr(sOff)}, {mask}")
    def adv():
        e(f"s_add_u32 {sr(sOff)}, {sr(sOff)}, {HOLE + (1 << PM[6])}")
        e(f"s_and_b32 {sr(sOff)}, {sr(sOff)}, {TMASK}")
        e(f"s_add_u32 {sr(sL)}, {sr(sL)}, 256")
    assert all(p > PM[6] for p in PM[:4] if p > PM[4])
    vLane, vG, vCc = 1, 2, 3
    vK, vV, vSt0, vSt1, vTR, vU0 = 4, 5, 6, 7, 8, 9
    vT0, vT1 = 10, 11
    vM, vL, vM2, vL2 = 12, 13, 14, 15
    vS, vMk = 16, 20
    vE, vA, vMn = 24, 28, 29
    vSa, vSb = 30, 31
    vO, vO2 = 32, 36
    vP = 48
    vQ, vQA = 64, 68
    vVb = 96
    vWOj = 160
    vSA = 164
    vTk = 202
    vAw, vAm, vAr, vAx = 204, 205, 206, 207
    vYo, vMlo, vCw, vCr, vOa, vWm = 196, 197, 198, 199, 200, 201
    vEp = 152
    vHf, vHa = 162, 163
    vLt = 180
    vNl = 182
    vQa = 161
    vQl = 208
    vTmp = 240
    aW = 64
    aA = 64
    DP = "row_mask:0xf bank_mask:0xf"
    def stamp9(i):
        if PROF == 9: e(f"s_memrealtime s[{80+2*i}:{81+2*i}]")
    def stamp(i):
        if PROF in (9, 11):
            if i in (0, 5, 7): e(f"s_memrealtime s[{80+2*i}:{81+2*i}]")
            if i == 6: e(f"s_memrealtime s[86:87]")
        elif PROF in (1, 3) or (PROF == 2 and i in (0, 1, 2, 7)):
            e(f"s_memrealtime s[{80+2*i}:{81+2*i}]")
    def stamp2(i):
        if PROF == 2: e(f"s_memrealtime s[{80+2*i}:{81+2*i}]")
    def srd_tail(s, size):
        e(f"s_mov_b32 {sr(s+2)}, {size}")
        e(f"s_mov_b32 {sr(s+3)}, 0x00020000")
    def add64(d, s, off):
        e(f"s_add_u32 {sr(d)}, {sr(s)}, {off}")
        e(f"s_addc_u32 {sr(d+1)}, {sr(s+1)}, 0")
    def issue(isK, reg, srd, tag=None, split=0):
        for j in range(4):
            if isK: ld = f"buffer_load_dwordx4 {ar(reg+4*j,4)}, {vr(vK)}, {sr(srd,4)}, {sr(sOff)} offen offset:{((j&1) << PM[0]) + ((j>>1) << PM[3])}{NT}"
            else: ld = f"buffer_load_dwordx4 {vr(reg+4*j,4)}, {vr(vV)}, {sr(srd,4)}, {sr(sOff)} offen offset:{((j&1) << PM[0]) + ((j>>1) << PM[3])}{NT}"
            if j < split:
                m = 0x0000ffff if isK else MHV
                e(f"s_mov_b32 exec_lo, {m}"); e(f"s_mov_b32 exec_hi, {m}")
                g.vm(ld, tag)
                e("s_not_b64 exec, exec")
                g.vm(ld, tag)
                e("s_mov_b64 exec, -1")
            else:
                g.vm(ld, tag)
    def throttle(uid):
        if "pt" in opts:
            th = [int(ch, 16) for ch in "%04x" % opts["pt"]][int(uid[1:])]
            e(f"s_cmp_ge_i32 {sr(sLev)}, {th}")
            e(f"s_cbranch_scc1 L_th{uid}")
            e(f"s_waitcnt vmcnt({opts.get('pm', 4)})")
            e(f"s_cmp_ge_i32 {sr(sLev)}, {th - opts.get('ps', 8)}")
            e(f"s_cbranch_scc1 L_th{uid}")
            e(f"s_waitcnt vmcnt({opts.get('pq', 2)})")
            g.lab(f"L_th{uid}")
            return
        for n, w in enumerate(LW):
            e(f"s_cmp_ge_i32 {sr(sLev)}, {len(LW) - n}")
            e(f"s_cbranch_scc1 L_th{uid}")
            e(f"s_waitcnt vmcnt({w})")
        g.lab(f"L_th{uid}")

    g.lab(KN)
    e("s_cmp_ge_u32 s2, 256")
    e("s_cbranch_scc1 L_exit")
    stamp(0)
    e("s_memrealtime s[94:95]")
    e("s_load_dwordx16 s[8:23], s[0:1], 0")
    e("s_load_dwordx8 s[24:31], s[0:1], 64")
    e("s_load_dwordx2 s[32:33], s[0:1], 96")
    e(f"v_lshrrev_b32 {vr(vT0)}, 6, v0")
    e(f"v_mov_b32 {vr(vT1)}, {LDS_CNT}")
    for i in range(4):
        e(f"v_mov_b32 {vr(vO+i)}, 0")
    e(f"v_readfirstlane_b32 {sr(sW)}, {vr(vT0)}")
    e(f"ds_write_b128 {vr(vT1)}, {vr(vO,4)}")
    e(f"v_and_b32 {vr(vLane)}, 63, v0")
    e(f"v_bfe_u32 {vr(vG)}, v0, 4, 2")
    e(f"v_and_b32 {vr(vCc)}, 15, v0")
    vWQ, vX, vXs, vXo, vQs = 24, 25, 96, 120, 26
    e(f"s_and_b32 {sr(sT0)}, s2, 3")
    e(f"s_mul_i32 {sr(sT1)}, {sr(sT0)}, 144")
    e(f"v_mad_u32_u24 {vr(vX)}, {vr(vG)}, 36, {sr(sT1)}")
    e(f"s_bfe_u32 {sr(sT1)}, s2, 0x50002")
    e(f"s_lshl_b32 {sr(sT2)}, {sr(sT1)}, 8")
    e(f"v_lshl_add_u32 {vr(vWQ)}, {vr(vCc)}, 4, {sr(sT2)}")
    e(f"v_lshl_add_u32 {vr(vWQ)}, {vr(vX)}, 13, {vr(vWQ)}")
    e(f"v_lshrrev_b32 {vr(vT0)}, 3, {vr(vCc)}")
    e(f"v_mul_u32_u24 {vr(vT0)}, 1152, {vr(vT0)}")
    e(f"v_lshl_add_u32 {vr(vX)}, {vr(vX)}, 1, {vr(vT0)}")
    e(f"s_lshr_b32 {sr(sPq)}, s2, 7")
    srd_tail(sWQ, 576 * 8192)
    srd_tail(sX, 2304)
    srd_tail(sWS, WS_BYTES)
    e(f"s_cmp_eq_u32 {sr(sPq)}, 0")
    e("s_waitcnt lgkmcnt(0)")
    e(f"s_cselect_b64 {sr(sWQ,2)}, s[14:15], s[24:25]")
    e(f"s_cselect_b64 {sr(sX,2)}, s[8:9], s[18:19]")
    e(f"s_load_dword {sr(sE)}, s[32:33], 0")
    e(f"s_cmp_lg_u32 {sr(sW)}, {QW}")
    e("s_cbranch_scc1 L_nq0")
    g.q = []
    for i in range(4):
        g.vm(f"buffer_load_dwordx4 {vr(vXs+4*i,4)}, {vr(vX)}, {sr(sX,4)}, 0 offen offset:{16*i}", "x")
    g.vm(f"buffer_load_dwordx2 {vr(vXs+16,2)}, {vr(vX)}, {sr(sX,4)}, 0 offen offset:64", "x")
    for n in range(36):
        if n: e(f"s_mov_b32 {sr(sWoff)}, {n*8192}")
        g.vm(f"buffer_load_dwordx4 {ar(4*n,4)}, {vr(vWQ)}, {sr(sWQ,4)}, {sr(sWoff) if n else 0} offen" + (NT if opts.get("wqnt", 1) else ""), ("wq", n))
        if n == opts.get("qbar", 15): e("s_barrier")
    stamp2(3)
    e("s_branch L_nq1")
    g.lab("L_nq0")
    e("s_barrier")
    g.lab("L_nq1")
    e(f"s_mov_b32 {sr(sWS)}, s32"); e(f"s_mov_b32 {sr(sWS+1)}, s33")
    e(f"v_and_b32 {vr(vT0)}, 1, {vr(vLane)}")
    e(f"v_lshlrev_b32 {vr(vT0)}, 4, {vr(vT0)}")
    e(f"v_mov_b32 {vr(vT1)}, 0xffff")
    e(f"v_lshlrev_b32 {vr(vT0)}, {vr(vT0)}, {vr(vT1)}")
    e(f"v_bfe_u32 {vr(vT1)}, {vr(vLane)}, 1, 2")
    for d in range(4):
        e(f"v_cmp_eq_u32 vcc, {d}, {vr(vT1)}")
        e(f"v_cndmask_b32 {vr(vMk+d)}, 0, {vr(vT0)}, vcc")
    e(f"s_cbranch_scc1 L_nq2")
    e(f"s_lshl3_add_u32 {sr(sT0)}, {sr(sPq)}, {sr(sT0)}")
    e(f"s_lshl_b32 {sr(sT0)}, {sr(sT0)}, 15")
    e(f"s_lshl_b32 {sr(sT1)}, {sr(sT1)}, 10")
    e(f"s_add_u32 {sr(sT0)}, {sr(sT0)}, {sr(sT1)}")
    e(f"s_add_u32 {sr(sT0)}, {sr(sT0)}, {Q_OFF}")
    e(f"v_and_b32 {vr(vT0)}, 31, {vr(vLane)}")
    e(f"v_lshl_add_u32 {vr(vQs)}, {vr(vT0)}, 4, {sr(sT0)}")
    e(f"v_lshrrev_b32 {vr(vT0)}, 5, {vr(vLane)}")
    e(f"v_lshl_add_u32 {vr(vQs)}, {vr(vT0)}, 17, {vr(vQs)}")
    e(f"s_mov_b32 {sr(sSelLo)}, 0x01000100")
    e(f"s_mov_b32 {sr(sSelHi)}, 0x03020302")
    e("s_waitcnt lgkmcnt(0)")
    e(f"s_add_u32 {sr(sT2)}, {sr(sE)}, 1")
    e(f"s_mul_i32 {sr(sNon)}, {sr(sT2)}, 0x9E3779B1")
    e(f"s_or_b32 {sr(sNon)}, {sr(sNon)}, 1")
    OE = opts.get("oe", 0)
    def org_store(lbl):
        e(f"s_cmp_gt_u32 s2, {7 if opts.get('org', 0) else 0}")
        e(f"s_cbranch_scc1 {lbl}")
        if opts.get("org", 0) == 2:
            e(f"s_memrealtime {sr(sT2,2)}")
            e("s_waitcnt lgkmcnt(0)")
        else: e(f"s_mov_b32 {sr(sT2)}, s94")
        e(f"s_xor_b32 {sr(sT0)}, {sr(sT2)}, {sr(sNon)}")
        e(f"v_mov_b32 {vr(vS)}, {sr(sT2)}")
        e(f"v_mov_b32 {vr(vS+1)}, {sr(sT0)}")
        e(f"v_lshlrev_b32 {vr(vT0)}, 7, {vr(vCc)}")
        e(f"s_lshl3_add_u32 {sr(sT0)}, s2, {ORG_OFF}")
        e(f"s_mov_b64 exec, 0xffff")
        e(f"buffer_store_dwordx2 {vr(vS,2)}, {vr(vT0)}, {sr(sWS,4)}, {sr(sT0)} offen sc1")
        e(f"s_mov_b64 exec, -1")
        g.lab(lbl)
    if OE: org_store("L_nq3")
    stamp2(5)
    g.wait_tag("x")
    stamp2(6)
    def xop(n):
        t = vXo + 8 * (n & 3)
        e(f"v_perm_b32 {vr(t+4)}, {vr(vXs+(n>>1))}, {vr(vXs+(n>>1))}, {sr(sSelHi if n & 1 else sSelLo)}")
        for d in range(4):
            e(f"v_and_b32 {vr(t+d)}, {vr(t+4)}, {vr(vMk+d)}")
    xop(0)
    for n in range(36):
        if n < 35: xop(n + 1)
        g.wait_tag(("wq", n))
        acc = vr(vQ + 4 * (n & 1), 4)
        e(f"v_mfma_f32_16x16x32_bf16 {acc}, {vr(vXo+8*(n&3),4)}, {ar(4*n,4)}, {acc if n > 1 else 0}")
    e("s_nop 7")
    e("s_nop 0")
    for i in range(4):
        e(f"v_add_f32 {vr(vQ+i)}, {vr(vQ+i)}, {vr(vQ+4+i)}")
    for i in range(4):
        e(f"v_xor_b32 {vr(vQ+4+i)}, {sr(sNon)}, {vr(vQ+i)}")
    e(f"buffer_store_dwordx4 {vr(vQ,4)}, {vr(vQs)}, {sr(sWS,4)}, 0 offen sc1")
    e(f"buffer_store_dwordx4 {vr(vQ+4,4)}, {vr(vQs)}, {sr(sWS,4)}, 0 offen offset:512 sc1")
    stamp(1)
    OMX = opts.get("omax", 0)
    ORG = opts.get("org", 0)
    if not OE: org_store("L_nq3")
    g.lab("L_nq2")
    g.q = []
    e(f"v_and_b32 {vr(vK)}, 3, {vr(vCc)}")
    e(f"v_lshlrev_b32 {vr(vK)}, 4, {vr(vK)}")
    e(f"v_lshl_add_u32 {vr(vK)}, {vr(vG)}, 6, {vr(vK)}")
    e(f"v_lshrrev_b32 {vr(vT0)}, 2, {vr(vCc)}")
    e(f"v_lshl_add_u32 {vr(vQa)}, {vr(vT0)}, 15, {vr(vK)}")
    e(f"v_lshlrev_b32 {vr(vV)}, 4, {vr(vCc)}")
    for i in range(2):
        e(f"v_bfe_u32 {vr(vT1)}, {vr(vCc)}, {i+2}, 1")
        e(f"v_lshl_add_u32 {vr(vK)}, {vr(vT1)}, {PM[i+1]}, {vr(vK)}")
        e(f"v_bfe_u32 {vr(vT1)}, {vr(vG)}, {i}, 1")
        e(f"v_lshl_add_u32 {vr(vV)}, {vr(vT1)}, {PM[i+1]}, {vr(vV)}")
    e(f"s_and_b32 {sr(sT0)}, s2, 7")
    e(f"s_lshr_b32 {sr(sT1)}, s2, 3")
    e(f"s_bfe_u32 {sr(sT2)}, s2, 0x10004")
    HM = opts.get("hm", 0)
    if HM & 1:
        e(f"s_and_b32 {sr(sT3)}, {sr(sT0)}, 6")
        e(f"s_add_u32 {sr(sT3)}, {sr(sT3)}, {sr(sT0)}")
        e(f"s_lshl1_add_u32 {sr(sT2)}, {sr(sT2)}, {sr(sT3)}")
    else: e(f"s_lshl1_add_u32 {sr(sT2)}, {sr(sT0)}, {sr(sT2)}")
    def head(ii):
        if HM & 2:
            e(f"s_and_b32 {sr(sWoO)}, {sr(ii)}, 2")
            e(f"s_add_u32 {sr(ii)}, {sr(ii)}, {sr(sWoO)}")
            e(f"s_and_b32 {sr(sWoO)}, {sr(sT0)}, 6")
            e(f"s_add_u32 {sr(sT0)}, {sr(sT0)}, {sr(sWoO)}")
            e(f"s_lshl1_add_u32 {sr(sT0)}, {sr(sT0)}, {sr(ii)}")
        else: e(f"s_lshl2_add_u32 {sr(sT0)}, {sr(sT0)}, {sr(ii)}")
    e(f"s_bfe_u32 {sr(sT3)}, s2, 0x10003")
    e(f"s_lshl_b32 {sr(sQa)}, {sr(sT3)}, 17")
    e(f"s_lshl_b32 {sr(sAo)}, {sr(sT2)}, 11")
    e(f"s_add_u32 {sr(sQa)}, {sr(sQa)}, {sr(sAo)}")
    e(f"s_add_u32 {sr(sQa)}, {sr(sQa)}, {Q_OFF}")
    e(f"s_lshl4_add_u32 {sr(sT2)}, {sr(sT3)}, {sr(sT2)}")
    e(f"s_lshl_b32 {sr(sAo)}, {sr(sT2)}, 21")
    e(f"s_add_u32 {sr(sAo)}, {sr(sAo)}, 0x180000")
    e(f"s_lshr_b32 {sr(sT3)}, s2, 5")
    e(f"s_lshl3_add_u32 {sr(sAr)}, {sr(sT2)}, {sr(sT3)}")
    e(f"s_mul_i32 {sr(sAL)}, {sr(sT2)}, {RMA}")
    e(f"s_lshl4_add_u32 {sr(sAL)}, {sr(sT3)}, {sr(sAL)}")
    e(f"s_add_u32 {sr(sAL)}, {sr(sAL)}, {sr(sW)}")
    add64(sAK, 10, sr(sAo)); add64(sAV, 12, sr(sAo))
    e(f"s_mov_b32 {sr(sAK+2)}, 0x80000"); e(f"s_mov_b32 {sr(sAV+2)}, 0x80000")
    def a_unit(n):
        phys(sAL, 4 * (n & 3), 0x7ffff)
        if n < 4: issue(True, aA + 16 * n, sAK, "a", PSPL)
        else: issue(False, vVb + 16 * (n - 4), sAV, "a", PSPV)
    T0N = opts.get("t0n", 2)
    HW = opts.get("hw", 0)
    if HW:
        e(f"s_cmp_ge_u32 {sr(sT1)}, 24")
        e("s_cbranch_scc1 L_setH")
    for n in range(T0N): a_unit(n)
    stamp2(4)
    if not HW:
        e(f"s_cmp_ge_u32 {sr(sT1)}, 24")
        e("s_cbranch_scc1 L_setH")
    e(f"s_mov_b32 {sr(sIsH)}, 0")
    e(f"s_mul_i32 {sr(sT2)}, {sr(sT1)}, 171")
    e(f"s_lshr_b32 {sr(sT2)}, {sr(sT2)}, 9")
    e(f"s_mul_i32 {sr(sT3)}, {sr(sT2)}, 3")
    e(f"s_sub_u32 {sr(sT1)}, {sr(sT1)}, {sr(sT3)}")
    if "ra" in opts:
        if "rc" in opts:
            e(f"s_lshr_b32 {sr(sRot)}, {sr(sT2)}, 1")
            e(f"s_mul_i32 {sr(sRot)}, {sr(sRot)}, {opts['ra']}")
            e(f"s_and_b32 {sr(sT3)}, {sr(sT2)}, 1")
            e(f"s_mul_i32 {sr(sT3)}, {sr(sT3)}, {opts['rc']}")
            e(f"s_add_u32 {sr(sRot)}, {sr(sRot)}, {sr(sT3)}")
        else: e(f"s_mul_i32 {sr(sRot)}, {sr(sT2)}, {opts['ra']}")
        e(f"s_mul_i32 {sr(sT3)}, {sr(sT0)}, {opts.get('rb', 3)}")
        e(f"s_add_u32 {sr(sRot)}, {sr(sRot)}, {sr(sT3)}")
    e(f"s_lshr_b32 {sr(sT3)}, {sr(sT2)}, 1")
    head(sT3)
    e(f"s_and_b32 {sr(sT2)}, {sr(sT2)}, 1")
    e(f"s_lshl_b32 {sr(sQo)}, {sr(sT2)}, 17")
    e(f"s_lshl_b32 {sr(sT3)}, {sr(sT0)}, 10")
    e(f"s_add_u32 {sr(sQo)}, {sr(sQo)}, {sr(sT3)}")
    e(f"s_add_u32 {sr(sQo)}, {sr(sQo)}, {Q_OFF + 8*32768}")
    e(f"s_lshl_b32 {sr(sT2)}, {sr(sT2)}, 5")
    e(f"s_add_u32 {sr(sT2)}, {sr(sT2)}, {sr(sT0)}")
    e(f"s_lshl_b32 {sr(sKVo)}, {sr(sT2)}, 21")
    if "ra" not in opts: e(f"s_mul_i32 {sr(sRot)}, {sr(sT2)}, {RM}")
    e(f"s_mul_i32 {sr(sR0)}, {sr(sT2)}, 3")
    e(f"s_add_u32 {sr(sR0)}, {sr(sR0)}, {sr(sT1)}")
    e(f"s_cmp_eq_u32 {sr(sT1)}, 1")
    e(f"s_cselect_b32 {sr(sIt)}, {RB[1]}, 0")
    e(f"s_cselect_b32 {sr(sDoff)}, {RB[2]}, 0")
    e(f"s_cmp_eq_u32 {sr(sT1)}, 0")
    e(f"s_cselect_b32 {sr(sDoff)}, {RB[1]}, {sr(sDoff)}")
    e(f"s_cmp_eq_u32 {sr(sT1)}, 2")
    e(f"s_cselect_b32 {sr(sIt)}, {RB[2]}, {sr(sIt)}")
    e(f"s_cselect_b32 {sr(sDoff)}, 512, {sr(sDoff)}")
    e("s_branch L_common")
    g.lab("L_setH")
    e(f"s_mov_b32 {sr(sIsH)}, 1")
    e(f"s_bfe_u32 {sr(sT2)}, s2, 0x20004")
    head(sT2)
    e(f"s_bfe_u32 {sr(sT2)}, s2, 0x10003")
    e(f"s_lshl_b32 {sr(sT2)}, {sr(sT2)}, 5")
    e(f"s_add_u32 {sr(sIt)}, {sr(sT2)}, {sr(sT0)}")
    e(f"s_add_u32 {sr(sR0)}, {sr(sIt)}, 192")
    e(f"s_lshl_b32 {sr(sKVo)}, {sr(sIt)}, 21")
    e(f"s_mov_b32 {sr(sRot)}, 0")
    g.lab("L_common")
    e(f"s_mul_i32 {sr(sWoO)}, {sr(sT0)}, 147456")
    e(f"s_mul_i32 {sr(sT0)}, {sr(sR0)}, {YS}")
    e(f"s_add_u32 {sr(sT0)}, {sr(sT0)}, {Y_OFF}")
    e(f"s_mul_i32 {sr(sT2)}, {sr(sW)}, 384")
    e(f"s_add_u32 {sr(sT0)}, {sr(sT0)}, {sr(sT2)}")
    e(f"v_mov_b32 {vr(vSt0)}, {OOB}")
    e(f"v_mov_b32 {vr(vSt1)}, {OOB}")
    SPM = opts.get("sm", 0)
    vIx = 183
    e(f"s_mov_b64 exec, {0xffffff if SPM else 0xffff}")
    e(f"v_lshl_add_u32 {vr(vSt0)}, {vr(vLane)}, 4, {sr(sT0)}")
    e(f"s_mov_b64 exec, 0xff")
    e(f"v_mov_b32 {vr(vSt1)}, {vr(vSt0)}")
    e(f"s_mov_b64 exec, -1")
    add64(sK, 20, sr(sKVo)); add64(sV, 22, sr(sKVo))
    srd_tail(sK, 0x200000); srd_tail(sV, 0x200000)
    e(f"s_cmp_eq_u32 {sr(sIsH)}, 1")
    e(f"s_cselect_b64 {sr(sWO,2)}, s[16:17], s[26:27]")
    add64(sWO, sWO, sr(sWoO))
    srd_tail(sWO, 147456)
    e(f"s_mov_b32 {sr(sC)}, 0x{f32bits(CSCALE):08x}")
    e(f"s_lshl_b32 {sr(sLdsW)}, {sr(sW)}, 10")
    e(f"v_bfe_u32 {vr(vT0)}, {vr(vLane)}, 3, 2")
    e(f"v_xor_b32 {vr(vT0)}, {sr(sW)}, {vr(vT0)}")
    e(f"v_lshlrev_b32 {vr(vT0)}, 5, {vr(vT0)}")
    e(f"v_lshrrev_b32 {vr(vT1)}, 2, {vr(vLane)}")
    e(f"v_lshl_add_u32 {vr(vT0)}, {vr(vT1)}, 7, {vr(vT0)}")
    e(f"v_and_b32 {vr(vT1)}, 3, {vr(vLane)}")
    e(f"v_lshl_add_u32 {vr(vTR)}, {vr(vT1)}, 3, {vr(vT0)}")
    e(f"s_mov_b32 {sr(sOut)}, s28"); e(f"s_mov_b32 {sr(sOut+1)}, s29"); srd_tail(sOut, 4608)
    e(f"v_bfe_u32 {vr(vT0)}, {vr(vLane)}, 3, 2")
    e(f"v_lshrrev_b32 {vr(vT1)}, 5, {vr(vLane)}")
    e(f"v_lshl_add_u32 {vr(vT0)}, {vr(vT1)}, 3, {vr(vT0)}")
    e(f"s_and_b32 {sr(sT0)}, {sr(sW)}, 1")
    e(f"s_lshl_b32 {sr(sT0)}, {sr(sT0)}, 4")
    e(f"s_lshr_b32 {sr(sT1)}, {sr(sW)}, 1")
    e(f"s_lshl_b32 {sr(sT1)}, {sr(sT1)}, 2")
    e(f"s_add_u32 {sr(sT0)}, {sr(sT0)}, {sr(sT1)}")
    e(f"v_add_u32 {vr(vT0)}, {sr(sT0)}, {vr(vT0)}")
    e(f"v_mul_u32_u24 {vr(vWOj)}, 1152, {vr(vT0)}")
    e(f"v_lshlrev_b32 {vr(vT1)}, 1, {vr(vG)}")
    e(f"v_and_b32 {vr(vT0)}, 7, {vr(vLane)}")
    e(f"v_xor_b32 {vr(vT1)}, {vr(vT1)}, {vr(vT0)}")
    e(f"v_lshl_add_u32 {vr(vWOj)}, {vr(vT1)}, 4, {vr(vWOj)}")
    e(f"v_lshlrev_b32 {vr(vHa)}, 2, {vr(vLane)}")
    e(f"v_lshlrev_b32 {vr(vSa)}, 4, {vr(vG)}")
    e(f"v_add_u32 {vr(vSa)}, {LDS_SC}, {vr(vSa)}")
    e("s_waitcnt lgkmcnt(0)")
    e(f"s_add_u32 {sr(sE)}, {sr(sE)}, 1")
    e(f"s_mul_i32 {sr(sNon)}, {sr(sE)}, 0x9E3779B1")
    e(f"s_or_b32 {sr(sNon)}, {sr(sNon)}, 1")
    e(f"v_bfe_i32 {vr(vNl)}, v0, 0, 1")
    e(f"v_and_b32 {vr(vNl)}, {sr(sNon)}, {vr(vNl)}")
    QPOS = opts.get("qpos", 8)
    if HW:
        assert QPOS == 8
        e(f"s_cmp_eq_u32 {sr(sIsH)}, 1")
        e("s_cbranch_scc1 L_nqp")
    DPN = [0]
    doff = lambda n: (n & 3) * 36864 + (n >> 2) * 128
    def dma_pre(k):
        for _ in range(k):
            n = DPN[0]
            if n >= 36: return
            e(f"s_add_u32 m0, {sr(sLdsW)}, {4096*n}")
            e(f"s_mov_b32 {sr(sWoff)}, {doff(n)}")
            g.vm(f"buffer_load_dwordx4 {vr(vWOj)}, {sr(sWO,4)}, {sr(sWoff)} offen lds", "d")
            DPN[0] += 1
    DPA = opts.get("dpa", 0); DPK = opts.get("dpk", 0)
    assert HW or not DPA
    NPRE = min(36, DPA * (QPOS - max(T0N, opts.get("dp0", 2))) + DPK * U)
    for n in range(T0N, QPOS):
        a_unit(n)
        if n >= opts.get("dp0", 2): dma_pre(DPA)
    def qloads(nh, so, tag, sc):
        for i in range(4 * nh):
            g.vm(f"buffer_load_dwordx4 {vr(vQl+4*i,4)}, {vr(vQa)}, {sr(sWS,4)}, {sr(so)} offen offset:{256*i}{sc}", tag)
    def qcheck(nh):
        for hd in range(nh):
            for i in range(8):
                e(f"v_bitop3_b32 {vr(vQl+16*hd+8+i)}, {vr(vQl+16*hd+i)}, {vr(vQl+16*hd+8+i)}, {sr(sNon)} bitop3:0x96")
        R = [vQl + 16 * hd + 8 + i for hd in range(nh) for i in range(8)]
        e(f"v_or_b32 {vr(vT0)}, {vr(R[0])}, {vr(R[1])}")
        for i in range(2, len(R), 2):
            e(f"v_or3_b32 {vr(vT0)}, {vr(vT0)}, {vr(R[i])}, {vr(R[i+1])}")
        e(f"v_cmp_ne_u32 vcc, 0, {vr(vT0)}")
    def qget(nh, so, qq, nm):
        qcheck(nh)
        e(f"s_cbranch_vccz L_qok{nm}")
        e(f"s_mov_b32 {sr(sSpin)}, 0x40000")
        g.lab(f"L_qretry{nm}")
        qloads(nh, so, None, " sc1")
        e(f"s_sub_u32 {sr(sSpin)}, {sr(sSpin)}, 1")
        e("s_waitcnt vmcnt(0)")
        e(f"s_cbranch_scc1 L_qok{nm}")
        qcheck(nh)
        e(f"s_cbranch_vccnz L_qretry{nm}")
        g.lab(f"L_qok{nm}")
        for hd in range(nh):
            for i in range(8):
                e(f"v_add_f32_dpp {vr(vQl+16*hd+8+i)}, {vr(vQl+16*hd+i)}, {vr(vQl+16*hd+i)} row_ror:4 {DP}")
        for hd in range(nh):
            bm = "0xf" if nh == 1 else ("0xc" if hd else "0x3")
            for i in range(8):
                e(f"v_add_f32_dpp {vr(vQl+i)}, {vr(vQl+16*hd+8+i)}, {vr(vQl+16*hd+8+i)} row_ror:8 row_mask:0xf bank_mask:{bm}")
        for d in range(4):
            e(f"v_cvt_pk_bf16_f32 {vr(qq+d)}, {vr(vQl+2*d)}, {vr(vQl+2*d+1)}")
    QSC = " sc1" if opts.get("qsc", 0) else ""
    e(f"s_cmp_eq_u32 {sr(sIsH)}, 1")
    e("s_cbranch_scc1 L_nqp")
    def org_load():
        e(f"s_and_b32 {sr(sT3)}, s2, 15")
        e(f"s_lshl_b32 {sr(sT3)}, {sr(sT3)}, 7")
        e(f"s_add_u32 {sr(sT3)}, {sr(sT3)}, {ORG_OFF}")
        if ORG:
            e(f"v_lshlrev_b32 {vr(vT1)}, 3, {vr(vLane)}")
            e("s_mov_b64 exec, 0xff")
            g.vm(f"buffer_load_dwordx2 {vr(vS,2)}, {vr(vT1)}, {sr(sWS,4)}, {sr(sT3)} offen sc1", "org")
        else:
            e("s_mov_b64 exec, 1")
            g.vm(f"buffer_load_dwordx2 {vr(vS,2)}, off, {sr(sWS,4)}, {sr(sT3)} sc1", "org")
        e("s_mov_b64 exec, -1")
    if not OE: org_load()
    qloads(1, sQo, "ql", QSC)
    g.lab("L_nqp")
    for n in range(QPOS, 8): a_unit(n)
    for i in range(4, 8):
        e(f"v_mov_b32 {vr(vO+i)}, 0")
    e(f"v_mov_b32 {vr(vM)}, 0xff800000")
    e(f"v_mov_b32 {vr(vL)}, 0")
    e(f"v_mov_b32 {vr(vL2)}, 0")
    e(f"s_mov_b32 {sr(sDlds)}, {sr(sLdsW)}")
    if PROF == 3:
        e(f"v_mov_b32 {vr(vTk)}, 0"); e(f"v_mov_b32 {vr(vTk+1)}, 0")
        e("s_mov_b32 s19, 0")
    if PROF == 11:
        for r in (82, 84, 88): e(f"s_mov_b32 s{r}, 0")
    e(f"s_cmp_eq_u32 {sr(sIsH)}, 1")
    e("s_cbranch_scc1 L_H")
    e(f"s_add_u32 {sr(sBase)}, {sr(sIt)}, {sr(sRot)}")
    e(f"s_sub_u32 {sr(sLim)}, {sr(sDoff)}, {sr(sIt)}")
    e(f"s_lshl_b32 {sr(sLim)}, {sr(sLim)}, 6")
    e(f"s_lshl_b32 {sr(sL0)}, {sr(sW)}, 6")
    e(f"s_add_u32 {sr(sDyn)}, {sr(sBase)}, {4*SB}")
    e(f"s_mov_b32 {sr(sDoff)}, {doff(NPRE)}")
    e(f"s_add_u32 {sr(sDlds)}, {sr(sDlds)}, {4096*NPRE}")
    assert not (NPRE and opts.get('dm0', 0))
    e(f"s_mov_b32 {sr(sDt)}, {NPRE - opts.get('dm0', 0) if not opts.get('xd', 0) else 100}")
    LT = [tuple(int(ch, 16) for ch in "%03x" % (opts.get("lt", 0) >> sh & 0xfff)) for sh in (36, 24, 12, 0)]
    LT = [t for t in LT if t != (0, 0, 0)]
    if LT:
        e(f"s_mul_i32 {sr(sPub)}, {sr(sR0)}, 43691")
        e(f"s_lshr_b32 {sr(sPub)}, {sr(sPub)}, 15")
        e(f"s_add_u32 {sr(sPub)}, {sr(sPub)}, {LT_OFF}")
        e(f"s_or_b32 {sr(sT0)}, {sr(sIt)}, {sr(sW)}")
        e(f"s_cselect_b32 {sr(sPub)}, 0, {sr(sPub)}")
        e(f"s_mov_b32 {sr(sCor)}, 0")
    phys(sBase, sr(sW))
    e(f"s_mov_b32 {sr(sOff0)}, {sr(sOff)}")
    e(f"s_mov_b32 {sr(sL)}, {sr(sL0)}")
    E3 = opts.get("ws3", 0)
    assert E3 < U and QW == 3 and all(4 * SB <= RB[i + 1] - RB[i] - 3 * E3 for i in range(3))
    e(f"s_sub_u32 {sr(sLimK)}, {sr(sLim)}, {192*E3}")
    if E3:
        e(f"s_cmp_eq_u32 {sr(sW)}, 3")
        e(f"s_cselect_b32 {sr(sT0)}, 0, {sr(sLimK)}")
        e(f"s_cselect_b32 {sr(sT2)}, 4, 3")
        e(f"s_lshl_b32 {sr(sT1)}, {sr(sT2)}, {PM[4]}")
        e(f"s_add_u32 {sr(sT1)}, {sr(sT1)}, {HOLE}")
        e(f"s_lshl_b32 {sr(sT2)}, {sr(sT2)}, 6")
        e(f"s_add_u32 {sr(sL)}, {sr(sL)}, {sr(sT0)}")
        e(f"s_lshr_b32 {sr(sT0)}, {sr(sL)}, 6")
        phys(sBase, sr(sT0))
    for d in range(U):
        if OE and d == OE - 1: org_load()
        dma_pre(DPK)
        issue(True, 16 * d, sK, "k")
        e(f"s_mov_b32 {sr(sTi+d)}, {sr(sL)}")
        if d < E3:
            e(f"s_add_u32 {sr(sOff)}, {sr(sOff)}, {sr(sT1)}")
            e(f"s_and_b32 {sr(sOff)}, {sr(sOff)}, {TMASK}")
            e(f"s_add_u32 {sr(sL)}, {sr(sL)}, {sr(sT2)}")
            if d == E3 - 1:
                e(f"s_cmp_eq_u32 {sr(sW)}, 3")
                e(f"s_cselect_b32 {sr(sOff)}, {sr(sOff)}, {sr(sOff0)}")
                e(f"s_cselect_b32 {sr(sL)}, {sr(sL)}, {sr(sL0)}")
        else: adv()
    e(f"s_bfe_u32 {sr(sIt)}, s2, 0x20003")
    e(f"s_mul_i32 {sr(sIt)}, {sr(sIt)}, {-opts.get('stg', 0)}")
    e(f"s_mov_b32 {sr(sPh)}, 0")
    e(f"s_mov_b32 {sr(sLev)}, {opts.get('lev0', 4)}")
    e(f"s_mov_b32 {sr(sSt)}, {SB - U}")
    e(f"s_mov_b32 {sr(sRem)}, 900")
    g.wait_tag("ql")
    if ORG:
        if OE:
            nw = len(g.q) - 1 - g.q.index("org")
            qget(1, sQo, vQ, "B")
            e(f"s_waitcnt vmcnt({nw})")
        e(f"v_xor_b32 {vr(vS+1)}, {vr(vS)}, {vr(vS+1)}")
        e(f"v_subrev_u32 {vr(vS)}, s94, {vr(vS)}")
        e(f"v_cmp_ne_u32 {sr(sT2,2)}, {sr(sNon)}, {vr(vS+1)}")
        if OE: e("s_nop 1")
        else: qget(1, sQo, vQ, "B")
        for m in ("quad_perm:[1,0,3,2]", "quad_perm:[2,3,0,1]", "row_half_mirror"):
            e(f"{'v_max_i32_dpp' if OMX else 'v_add_u32_dpp'} {vr(vS)}, {vr(vS)}, {vr(vS)} {m} {DP}")
            e("s_nop 1")
        e(f"v_readfirstlane_b32 {sr(sT0)}, {vr(vS)}")
        e(f"s_and_b32 {sr(sT2)}, {sr(sT2)}, 0xff")
        e(f"s_cselect_b32 {sr(sT0)}, {opts.get('orf', 3300 if ORG == 2 else 0)*(1 if OMX else 8)//10}, {sr(sT0)}")
        e(f"s_lshl_b32 {sr(sSch)}, s94, 4")
        e(f"s_mul_i32 {sr(sT0)}, {sr(sT0)}, {16 if OMX else 2}")
        e(f"s_add_u32 {sr(sSch)}, {sr(sSch)}, {sr(sT0)}")
    else:
        e(f"v_readfirstlane_b32 {sr(sT0)}, {vr(vS)}")
        e(f"v_readfirstlane_b32 {sr(sT1)}, {vr(vS+1)}")
        qget(1, sQo, vQ, "B")
        e(f"s_xor_b32 {sr(sT1)}, {sr(sT1)}, {sr(sT0)}")
        e(f"s_cmp_eq_u32 {sr(sT1)}, {sr(sNon)}")
        e(f"s_cselect_b32 s94, {sr(sT0)}, s94")
        e(f"s_lshl_b32 {sr(sSch)}, s94, 4")
    e(f"s_add_u32 {sr(sSch)}, {sr(sSch)}, {opts.get('t0', 7000)*16//10}")
    if opts.get("tq", 0):
        e(f"s_lshr_b32 {sr(sT0)}, {sr(sLim)}, 6")
        e(f"s_sub_i32 {sr(sT0)}, {sr(sT0)}, 171")
        e(f"s_mul_i32 {sr(sT0)}, {sr(sT0)}, {opts.get('tq')*16//10}")
        e(f"s_sub_i32 {sr(sSch)}, {sr(sSch)}, {sr(sT0)}")
    if opts.get("xb", 0):
        e(f"s_and_b32 {sr(sT0)}, s2, 7")
        e(f"s_lshl2_add_u32 {sr(sT0)}, {sr(sT0)}, 0x40000")
        e(f"s_bfe_i32 {sr(sT0)}, {opts['xb']}, {sr(sT0)}")
        e(f"s_mul_i32 {sr(sT0)}, {sr(sT0)}, 80")
        e(f"s_add_i32 {sr(sSch)}, {sr(sSch)}, {sr(sT0)}")
    if opts.get("tw", 0):
        e(f"s_cmp_eq_u32 {sr(sW)}, {QW}")
        e(f"s_cselect_b32 {sr(sT0)}, {opts.get('tw')*16//10}, 0")
        e(f"s_add_u32 {sr(sSch)}, {sr(sSch)}, {sr(sT0)}")
    stamp(2)

    def qk(kr, qq, acc):
        for j in range(4):
            e(f"v_mfma_f32_16x16x32_bf16 {vr(acc+4*j,4)}, {ar(kr+4*j,4)}, {vr(qq,4)}, 0")
    def fold(acc, S, full):
        for k in range(0 if full else 1, 4):
            for r in range(4):
                qp = f"quad_perm:[{k},{k},{k},{k}] {DP}"
                if k == 0: e(f"v_mov_b32_dpp {vr(S+r)}, {vr(acc+4*r)} {qp}")
                else: e(f"v_add_f32_dpp {vr(S+r)}, {vr(acc+4*r+k)}, {vr(S+r if full or k > 1 else acc+4*r)} {qp}")
    def probs(S, M, L):
        for r in range(4):
            e(f"v_fma_f32 {vr(vE+r)}, {vr(S+r)}, {sr(sC)}, -{vr(M)}")
        for r in range(4):
            e(f"v_exp_f32 {vr(vE+r)}, {vr(vE+r)}")
        e(f"v_add_f32 {vr(vT0)}, {vr(vE)}, {vr(vE+1)}")
        e(f"v_add_f32 {vr(L)}, {vr(L)}, {vr(vE+2)}")
        e(f"v_add_f32 {vr(vT0)}, {vr(vT0)}, {vr(vE+3)}")
        for r in range(4):
            e(f"v_cvt_pk_bf16_f32 {vr(vE+r)}, {vr(vE+r)}, {vr(vE+r)}")
        e(f"v_add_f32 {vr(L)}, {vr(L)}, {vr(vT0)}")
        for r in range(4):
            for d in range(4):
                e(f"v_and_b32 {vr(vP+4*r+d)}, {vr(vE+r)}, {vr(vMk+d)}")
    def pv(reg, O):
        for r in range(4):
            e(f"v_mfma_f32_16x16x32_bf16 {vr(O,4)}, {vr(vP+4*r,4)}, {vr(reg+4*r,4)}, {vr(O,4)}")
    def gmax(M, op="v_max_f32"):
        for sw in ("v_permlane32_swap_b32", "v_permlane16_swap_b32"):
            e(f"v_mov_b32 {vr(vT0)}, {vr(M)}")
            e("s_nop 1")
            e(f"{sw} {vr(M)}, {vr(vT0)}")
            e("s_nop 1")
            e(f"{op} {vr(M)}, {vr(M)}, {vr(vT0)}")
    def dma_load(nt=opts.get("wont", 0) & 1, lbl=None):
        e(f"s_mov_b32 m0, {sr(sDlds)}")
        e(f"s_add_u32 {sr(sDlds)}, {sr(sDlds)}, 4096")
        e(f"buffer_load_dwordx4 {vr(vWOj)}, {sr(sWO,4)}, {sr(sDoff)} offen" + (" nt" if nt else "") + " lds")
        e(f"s_add_u32 {sr(sDoff)}, {sr(sDoff)}, 36864")
        e(f"s_cmp_ge_u32 {sr(sDoff)}, 147456")
        e(f"s_cselect_b32 {sr(sT0)}, {147456 - 128}, 0")
        e(f"s_sub_u32 {sr(sDoff)}, {sr(sDoff)}, {sr(sT0)}")
        if lbl:
            if opts.get('taud', 0): e(f"s_add_u32 {sr(sSch)}, {sr(sSch)}, {opts.get('taud', 0)*16//10}")
            g.lab(lbl)
        e(f"s_add_u32 {sr(sDt)}, {sr(sDt)}, 1")
    DMK = opts.get("dmk", 5); DMV = opts.get("dmv", 7)
    def dma_one(lbl):
        e(f"s_cmp_lt_u32 {sr(sDt)}, 36")
        e(f"s_cbranch_scc0 {lbl}")
        dma_load(lbl=lbl)
    def level(tau):
        BS = opts.get('bsh', 5) + 4
        e("s_waitcnt lgkmcnt(0)")
        e(f"s_add_u32 {sr(sSch)}, {sr(sSch)}, {tau*16//10 if tau else sr(sTau)}")
        e(f"s_lshl_b32 {sr(sNow)}, {sr(sNow)}, 4")
        e(f"s_sub_i32 {sr(sLev)}, {sr(sNow)}, {sr(sSch)}")
        if PROF == 11:
            e(f"s_lshl_b32 {sr(sT0)}, s94, 4")
            e(f"s_sub_u32 {sr(sT0)}, {sr(sNow)}, {sr(sT0)}")
            for r, T in ((82, 12000), (84, 24000), (88, 36000)):
                e(f"s_cmp_lt_u32 {sr(sT0)}, {T*16//10}")
                e(f"s_addc_u32 s{r}, s{r}, 0")
        if PROF == 3:
            n = len(g.lines)
            sTr = sLev
            if LT and opts.get("trb", 1):
                sTr = sT0
                e(f"s_add_i32 {sr(sT0)}, {sr(sLev)}, {sr(sCor)}")
            e(f"s_and_b32 m0, s19, 63")
            e(f"s_add_u32 s19, s19, 1")
            e(f"s_cmp_gt_u32 s19, 64")
            e(f"s_cbranch_scc1 L_tr{n}")
            e(f"v_writelane_b32 {vr(vTk)}, {sr(sTr)}, m0")
            g.lab(f"L_tr{n}")
            e(f"s_cbranch_scc0 L_ts{n}")
            e(f"v_writelane_b32 {vr(vTk+1)}, {sr(sTr)}, m0")
            g.lab(f"L_ts{n}")
        if FLV >= 0: e(f"s_mov_b32 {sr(sLev)}, {FLV}")
        else: e(f"s_ashr_i32 {sr(sLev)}, {sr(sLev)}, {BS}")
    def hook_dispatch(hooks, nm):
        e(f"s_bitcmp1_b32 {sum(1 << k for k in hooks)}, {sr(sIt)}")
        e(f"s_cbranch_scc0 L_body{nm}")
        ks = sorted(hooks)
        for n, k in enumerate(ks):
            if n < len(ks) - 1:
                e(f"s_cmp_lg_u32 {sr(sIt)}, {k}")
                e(f"s_cbranch_scc1 L_hk{nm}{n+1}")
            hooks[k]()
            if n < len(ks) - 1:
                e(f"s_branch L_body{nm}")
                g.lab(f"L_hk{nm}{n+1}")
        g.lab(f"L_body{nm}")
    def call(l): e(f"s_call_b64 {sr(sRet,2)}, {l}")
    def lt_w(p):
        e(f"s_cmp_eq_u32 {sr(sPub)}, 0")
        e(f"s_cbranch_scc1 L_lw{p}")
        e(f"s_sub_i32 {sr(sT0)}, {sr(sNow)}, {sr(sSch)}")
        e(f"s_add_i32 {sr(sT0)}, {sr(sT0)}, {sr(sCor)}")
        e(f"s_pack_ll_b32_b16 {sr(sT0)}, {sr(sNon)}, {sr(sT0)}")
        e(f"v_mov_b32 {vr(vLt)}, {sr(sT0)}")
        e("s_mov_b64 exec, 1")
        e(f"buffer_store_dword {vr(vLt)}, off, {sr(sWS,4)}, {sr(sPub)} offset:{256*p} sc1")
        e("s_mov_b64 exec, -1")
        g.lab(f"L_lw{p}")
    def lt_r(p):
        e(f"buffer_load_dword {vr(vLt)}, {vr(vHa)}, {sr(sWS,4)}, 0 offen offset:{LT_OFF + 256*p}" + (" sc1" if opts.get("ltsc", 0) else ""))
    def lt_a(p):
        e(f"s_waitcnt vmcnt({4*U})")
        call("L_LA")
    def lt_hooks(ph, hooks):
        for p, (f, w, r) in enumerate(LT):
            if f != ph: continue
            for it, fn in ((w, lt_w), (r, lt_r), (r + 1, lt_a)):
                hooks.setdefault(it, []).append(lambda fn=fn, p=p: fn(p))
        return {k: (lambda v=v: [f() for f in v]) for k, v in hooks.items()}
    TAUK = opts.get("tauk", opts.get("tau", 410)); TAUV = opts.get("tauv", opts.get("tau", 410))

    AH0 = opts.get("ah0", 1)
    hk = {AH0: ["L_AQ"], AH0 + 1: ["L_AK"], AH0 + 2: ["L_AV0"], AH0 + 3: ["L_AV1"]}
    assert (AH0 + 4 + 3 * opts.get('stg', 0) + 1) * U <= min(RB[i + 1] - RB[i] for i in range(3)) // 4
    if opts.get("xa", 0): hk = {AH0: ["L_AV1"]}
    def mkh(ls):
        def f():
            for l in ls:
                if l == "L_AK": e(f"s_waitcnt vmcnt({4*U})")
                call(l)
        return f
    e(f"s_movk_i32 {sr(sTau)}, {opts.get('tau0', TAUK)*16//10}")
    g.lab("L_loopK")
    HK = {k: [mkh(v)] for k, v in hk.items()}
    for it, t in ((opts.get("i1", 3), opts.get("tau1", TAUK)), (opts.get("i2", 5), TAUK)):
        HK.setdefault(it, []).append(lambda t=t: e(f"s_movk_i32 {sr(sTau)}, {t*16//10}"))
    hook_dispatch(lt_hooks(1, HK), "K")
    for i in range(U):
        e(f"v_add_u32 {vr(vSb)}, {sr(sTi+i)}, {vr(vSa)}")
        e(f"s_mov_b32 {sr(sTi+i)}, {sr(sL)}")
        e(f"s_waitcnt vmcnt({4*(U-1)})")
        e(f"s_memrealtime {sr(sNow,2)}")
        qk(16 * i, vQ, vP)
        throttle(f"K{i}")
        e(f"s_cmp_lg_u32 {sr(sPh)}, 0")
        e(f"s_cbranch_scc1 L_Kv{i}")
        issue(True, 16 * i, sK)
        adv()
        e(f"s_cmp_lt_u32 {sr(sL)}, {sr(sLimK)}")
        e(f"s_cbranch_scc1 L_Kc{i}")
        e(f"s_mov_b32 {sr(sPh)}, 1")
        e(f"s_mov_b32 {sr(sL)}, {sr(sL0)}")
        e(f"s_mov_b32 {sr(sOff)}, {sr(sOff0)}")
        e(f"s_branch L_Kc{i}")
        g.lab(f"L_Kv{i}")
        issue(False, vVb + 16 * i, sV)
        adv()
        e(f"s_add_u32 {sr(sPh)}, {sr(sPh)}, 1")
        g.lab(f"L_Kc{i}")
        fold(vP, vS, False)
        e(f"s_mov_b32 exec_lo, 0x00010001"); e(f"s_mov_b32 exec_hi, 0x00010001")
        e(f"ds_write_b128 {vr(vSb)}, {vr(vS,4)}")
        e("s_mov_b64 exec, -1")
        e(f"v_max3_f32 {vr(vM)}, {vr(vM)}, {vr(vS)}, {vr(vS+1)}")
        e(f"v_max3_f32 {vr(vM)}, {vr(vM)}, {vr(vS+2)}, {vr(vS+3)}")
        level(0)
        if DMK >> i & 1:
            for m in range(opts.get("dmn", 1)): dma_one(f"L_dma{i}_{m}")
        e(f"s_cmp_lg_u32 {sr(sPh)}, {U+1}")
        e(f"s_cbranch_scc1 L_Kn{i}")
        call("L_TR")
        e(f"s_branch L_V{(i+1) % U}")
        g.lab(f"L_Kn{i}")
    e(f"s_add_u32 {sr(sIt)}, {sr(sIt)}, 1")
    e(f"s_branch L_loopK")

    def tail_setup():
        e(f"s_mul_i32 {sr(sT0)}, {sr(sW)}, {OT_STRIDE}")
        e(f"s_add_u32 {sr(sT0)}, {sr(sT0)}, {LDS_OT}")
        if SPM:
            e(f"v_lshrrev_b32 {vr(vT0)}, 1, {vr(vCc)}")
            e(f"v_lshl_add_u32 {vr(vAw)}, {vr(vT0)}, 5, {sr(sT0)}")
            e(f"v_and_b32 {vr(vT0)}, 1, {vr(vCc)}")
            e(f"v_lshl_add_u32 {vr(vAw)}, {vr(vT0)}, 3, {vr(vAw)}")
            e(f"v_and_b32 {vr(vT0)}, 1, {vr(vG)}")
            e(f"v_lshl_add_u32 {vr(vAw)}, {vr(vT0)}, 2, {vr(vAw)}")
        else:
            e(f"v_lshl_add_u32 {vr(vAw)}, {vr(vCc)}, 4, {sr(sT0)}")
            e(f"v_and_b32 {vr(vT0)}, 1, {vr(vG)}")
            e(f"v_lshl_add_u32 {vr(vAw)}, {vr(vT0)}, 3, {vr(vAw)}")
        e(f"s_lshl_b32 {sr(sT0)}, {sr(sW)}, 4")
        e(f"s_add_u32 {sr(sT0)}, {sr(sT0)}, {LDS_M}")
        e(f"v_lshl_add_u32 {vr(vAm)}, {vr(vG)}, 2, {sr(sT0)}")
        e(f"v_and_b32 {vr(vT0)}, 3, {vr(vCc)}")
        e(f"v_mul_u32_u24 {vr(vAr)}, {OT_STRIDE}, {vr(vT0)}")
        e(f"v_lshl_add_u32 {vr(vAr)}, {vr(vG)}, {5 if SPM else 4}, {vr(vAr)}")
        if SPM:
            e(f"v_and_b32 {vr(vT0)}, 4, {vr(vCc)}")
            e(f"v_lshl_add_u32 {vr(vAr)}, {vr(vT0)}, 2, {vr(vAr)}")
            e(f"v_bfe_i32 {vr(vT0)}, {vr(vCc)}, 2, 1")
            e(f"v_and_b32 {vr(vIx)}, 0xaaaaaaaa, {vr(vT0)}")
            e(f"v_or_b32 {vr(vIx)}, 0x44444444, {vr(vIx)}")
        e(f"v_add_u32 {vr(vAr)}, {LDS_OT}, {vr(vAr)}")
        e(f"v_lshlrev_b32 {vr(vAx)}, 2, {vr(vCc)}")
        e(f"v_add_u32 {vr(vAx)}, {LDS_M}, {vr(vAx)}")
    def h_arr():
        g.lab("L_ar0")
        e(f"s_cmp_lt_u32 {sr(sDt)}, 36")
        e(f"s_cbranch_scc0 L_ar1")
        dma_load()
        e("s_branch L_ar0")
        g.lab("L_ar1")
    def dry():
        n = len(g.lines)
        e(f"s_cmp_eq_u32 {sr(sW)}, {opts.get('dryw', 0)}")
        e(f"s_cbranch_scc0 L_dry{n}")
        e(f"v_mov_b32 {vr(184)}, {vr(vSt0)}")
        e(f"v_mov_b32 {vr(185)}, {vr(vSt1)}")
        e(f"v_mov_b32 {vr(vSt0)}, {OOB}")
        e(f"v_mov_b32 {vr(vSt1)}, {OOB}")
        e(f"s_mov_b32 {sr(sIsH)}, 2")
        call("L_T2b")
        e(f"s_mov_b32 {sr(sIsH)}, 0")
        e(f"v_mov_b32 {vr(vSt0)}, {vr(184)}")
        e(f"v_mov_b32 {vr(vSt1)}, {vr(185)}")
        if SPM:
            for i in range(18): e(f"v_mov_b64 {vr(208+2*i,2)}, 0")
        g.lab(f"L_dry{n}")
    def h_arr2():
        if opts.get("dry", 0) & 2: dry()
        e(f"s_waitcnt vmcnt({4*U})")
        e(f"v_mov_b32 {vr(vT0)}, {LDS_CNT}")
        e(f"v_mov_b32 {vr(vT1)}, 1")
        e("s_mov_b64 exec, 1")
        e(f"ds_add_u32 {vr(vT0)}, {vr(vT1)}")
        e("s_mov_b64 exec, -1")
    def h_t1():
        stamp(3)
        if opts.get("taut", 0): e(f"s_add_u32 {sr(sSch)}, {sr(sSch)}, {opts.get('taut')*16//10}")
        e(f"v_mov_b32 {vr(vT0)}, {LDS_CNT}")
        g.lab(f"L_wa")
        e(f"ds_read_b32 {vr(vT1)}, {vr(vT0)}")
        e("s_waitcnt lgkmcnt(0)")
        e(f"v_readfirstlane_b32 {sr(sT0)}, {vr(vT1)}")
        e("s_nop 3")
        e(f"s_cmp_lt_u32 {sr(sT0)}, 4")
        e(f"s_cbranch_scc1 L_wa")
        e(f"ds_read_b128 {vr(vS,4)}, {vr(vT0)} offset:16")
        call("L_T1")
        e(f"v_max3_f32 {vr(vT0)}, {vr(vS)}, {vr(vS+1)}, {vr(vS+2)}")
        e(f"v_max_f32 {vr(vT0)}, {vr(vT0)}, {vr(vS+3)}")
        e(f"v_sub_f32 {vr(vT1)}, {vr(vM)}, {vr(vT0)}")
        e(f"v_exp_f32 {vr(vT1)}, {vr(vT1)}")
        e(f"v_mov_b32 {vr(vM)}, {vr(vT0)}")
        e(f"v_mul_f32 {vr(vL)}, {vr(vT1)}, {vr(vL)}")
        for i in range(4):
            e(f"v_mul_f32 {vr(vO+i)}, {vr(vT1)}, {vr(vO+i)}")
        if opts.get("dry", 0) & 1: dry()
        stamp(4)
    HA = opts.get("ha", 6); HT = opts.get("ht", 7)
    assert 2 <= HA < HT and (HT + 1) * U <= SB - U
    pc = lambda m: bin(m & ((1 << U) - 1)).count("1")
    g.lab("L_loopV")
    hook_dispatch(lt_hooks(2, {HA - 1: [h_arr], HA: [h_arr2], HT: [h_t1]}), "V")
    for i in range(U):
        g.lab(f"L_V{i}")
        e(f"v_add_u32 {vr(vSb)}, {sr(sTi+i)}, {vr(vSa)}")
        e(f"ds_read_b128 {vr(vS,4)}, {vr(vSb)}")
        e(f"v_mov_b32 {vr(vSb)}, {LDS_CNT + 12}")
        e(f"v_mov_b32 {vr(vT1)}, 1")
        e("s_waitcnt lgkmcnt(0)")
        probs(vS, vM, vL)
        CE = opts.get("ce", 0)
        def claim():
            e(f"s_cmp_gt_i32 {sr(sSt)}, 0")
            e(f"s_cbranch_scc1 L_c1{i}")
            e("s_mov_b64 exec, 1")
            e(f"ds_add_rtn_u32 {vr(vT1)}, {vr(vSb)}, {vr(vT1)}")
            e("s_mov_b64 exec, -1")
            g.lab(f"L_c1{i}")
        if CE: claim()
        e(f"s_waitcnt vmcnt({4*(U-1)})")
        for r in range(U - 1, 0, -1):
            e(f"s_cmp_ge_u32 {sr(sRem)}, {r}")
            e(f"s_cbranch_scc1 L_v1{i}")
            e(f"s_waitcnt vmcnt({4*(r-1)})")
        g.lab(f"L_v1{i}")
        pv(vVb + 16 * i, vO)
        e(f"s_sub_u32 {sr(sRem)}, {sr(sRem)}, 1")
        e(f"s_cbranch_scc1 L_end")
        e(f"s_cmp_lt_u32 {sr(sRem)}, {U}")
        e(f"s_cbranch_scc1 L_nv{i}")
        e(f"s_memrealtime {sr(sNow,2)}")
        throttle(f"V{i}")
        if not CE: claim()
        else: e(f"s_cmp_gt_i32 {sr(sSt)}, 0")
        e(f"s_cbranch_scc1 L_c2{i}")
        e("s_waitcnt lgkmcnt(0)")
        e(f"v_readfirstlane_b32 {sr(sCl)}, {vr(vT1)}")
        e(f"s_add_u32 {sr(sL)}, {sr(sCl)}, {4*SB}")
        e(f"s_lshl_b32 {sr(sL)}, {sr(sL)}, 6")
        phys(sCl, sr(sDyn))
        e(f"s_cmp_ge_u32 {sr(sL)}, {sr(sLim)}")
        e(f"s_cselect_b32 {sr(sRem)}, {U-2}, {sr(sRem)}")
        e(f"s_cselect_b32 {sr(sSt)}, 1000, {sr(sSt)}")
        e(f"s_cbranch_scc1 L_nv{i}")
        g.lab(f"L_c2{i}")
        issue(False, vVb + 16 * i, sV)
        e(f"s_mov_b32 {sr(sTi+i)}, {sr(sL)}")
        e(f"s_sub_u32 {sr(sSt)}, {sr(sSt)}, 1")
        adv()
        level(TAUV)
        if DMV >> i & 1: dma_one(f"L_dmv{i}")
        g.lab(f"L_nv{i}")
    e(f"s_add_u32 {sr(sIt)}, {sr(sIt)}, 1")
    e(f"s_branch L_loopV")
    g.lab("L_end")
    stamp(5)

    NSL = opts.get("nsl", 1)
    def schedule(main, ops, per=2):
        pos = [0]; hist = []
        mpos = {}
        def emit(text, kind, wr=(), rd=(), n=1):
            e(text); hist.append((pos[0] + n - 1, kind, set(wr), set(rd))); pos[0] += n
        def need(op):
            t = 0
            if op.get("after") is not None:
                if op["after"] not in mpos: return None
                t = mpos[op["after"]] + 1 + (2 if op["kind"] == "dpp" else 0)
            for (p, k, wr, rd) in hist:
                d = None
                if k == "mfma":
                    if wr & (op["rd"] | op["wr"]): d = 8
                elif k in ("valu", "dpp", "swap", "trans"):
                    if wr & op["rd"]:
                        d = 0
                        if op["kind"] in ("dpp", "swap"): d = 2
                        elif k == "trans": d = 1
                elif k == "store":
                    if rd & op["wr"]: d = 2
                if d is not None: t = max(t, p + 1 + d)
            return t
        done = [False] * len(ops)
        mw = {}
        for i, (t_, k_, w_) in enumerate(main):
            for r in w_: mw[r] = i
        def ready(i):
            op = ops[i]
            for j in range(i):
                if not done[j]:
                    o = ops[j]
                    if (o["wr"] & (op["rd"] | op["wr"])) or (o["rd"] & op["wr"]) or (o["kind"] == "store" and op["kind"] == "store"): return None
            for r in op["rd"] | op["wr"]:
                if r in mw and mw[r] not in mpos: return None
            return need(op)
        def fill(n):
            k = 0
            while k < n:
                c = [i for i in range(len(ops)) if not done[i] and ready(i) is not None and ready(i) <= pos[0]]
                if not c:
                    w = [ready(i) - pos[0] for i in range(len(ops)) if not done[i] and ready(i) is not None]
                    if w and min(w) <= 2 and k + min(w) < n + NSL:
                        emit(f"s_nop {min(w)-1}", "nop", n=min(w)); k += min(w); n = max(n, k + 1)
                        continue
                    break
                i = c[0]
                emit(ops[i]["text"], ops[i]["kind"], ops[i]["wr"], ops[i]["rd"], ops[i].get("n", 1)); done[i] = True
                k += 2 if ops[i]["kind"] == "trans" else 1
        for i, (text, kind, wr) in enumerate(main):
            mpos[i] = pos[0]
            emit(text, kind, wr)
            if kind in ("mfma", "wait0"): fill(per)
        stamp9(2)
        while not all(done):
            fill(1000)
            if all(done): break
            c = [ready(i) for i in range(len(ops)) if not done[i] and ready(i) is not None]
            w = min(c) - pos[0]
            assert w > 0
            emit(f"s_nop {w-1}", "nop", n=w)
    def T2():
        vAcc, vLr, vPk, t0, t1, Out = 208, 181, 56, 48, 49, 16
        if PROF == 3:
            e(f"s_lshl_b32 s88, s2, 10")
            e(f"s_add_u32 s88, s88, 0x300000")
            e(f"v_lshlrev_b32 {vr(vV)}, 1, v0")
            e(f"buffer_store_short {vr(vTk)}, {vr(vV)}, {sr(sWS,4)}, s88 offen")
            e(f"buffer_store_short {vr(vTk+1)}, {vr(vV)}, {sr(sWS,4)}, s88 offen offset:512")
        e(f"ds_write_b32 {vr(vAm)}, {vr(vL)}")
        e("s_nop 5")
        for d in range(2):
            e(f"v_cvt_pk_bf16_f32 {vr(vPk+d)}, {vr(vO+2*d)}, {vr(vO+2*d+1)}")
        if SPM: e(f"ds_write2_b32 {vr(vAw)}, {vr(vPk)}, {vr(vPk+1)} offset1:4")
        else: e(f"ds_write_b64 {vr(vAw)}, {vr(vPk,2)}")
        e("s_waitcnt lgkmcnt(0)")
        e("s_barrier")
        g.lab("L_T2b")
        stamp9(1)
        NJ = 2 if SPM else 4
        for j in range(NJ):
            e(f"ds_read_b128 {ar(4*j,4)}, {vr(vAr)} offset:{256//NJ*j}")
        e(f"ds_read_b32 {vr(vLr)}, {vr(vAx)}")
        nrd = NJ + 1
        main = []; ops = []
        TO = [0, 6, 2, 8, 3, 4, 7, 1, 5] if SPM else [6, 7, 8, 0, 1, 2, 3, 4, 5]
        def op(text, rd, wr, kind="valu", **kw):
            ops.append(dict(text=text, rd=set(rd), wr=set(wr), kind=kind, **kw))
        for n, t in enumerate(TO):
            for j in range(NJ):
                if n == 0:
                    main.append((f"s_waitcnt lgkmcnt({nrd - j - 1})", "wait", ()))
                if n == 1 and j == 0:
                    main.append((f"s_waitcnt lgkmcnt(0)", "wait", ())); mlw = len(main) - 1
                a = vAcc + 4 * t
                cc = "0" if j == 0 else vr(a, 4)
                if SPM: main.append((f"v_smfmac_f32_16x16x64_bf16 {vr(a,4)}, {ar(4*j,4)}, {ar(aW+8*(t*2+j),8)}, {vr(vIx)}", "mfma", range(a, a + 4)))
                else: main.append((f"v_mfma_f32_16x16x32_bf16 {vr(a,4)}, {ar(4*j,4)}, {ar(aW+4*(t*4+j),4)}, {cc}", "mfma", range(a, a + 4)))
        for src, dst, rot in ((vLr, t0, 8), (t0, t1, 4), (t1, t0, 2), (t0, t1, 1)):
            op(f"v_add_f32_dpp {vr(dst)}, {vr(src)}, {vr(src)} row_ror:{rot} {DP}", [src], [dst], "dpp", after=mlw)
        op(f"v_rcp_f32 {vr(t0)}, {vr(t1)}", [t1], [t0], "trans")
        K, R, t2 = 50, 52, 51
        op(f"v_log_f32 {vr(K)}, {vr(t1)}", [t1], [K], "trans")
        op(f"v_add_f32 {vr(K)}, {vr(K)}, {vr(vM)}", [K], [K])
        op(f"v_xor_b32 {vr(K)}, {vr(K)}, {vr(vNl)}", [K], [K])
        S = lambda t: vAcc + 4 * t
        def comb(t):
            a = S(t)
            op(f"v_pk_add_f32 {vr(a,2)}, {vr(a,2)}, {vr(a+2,2)}", range(a, a + 4), [a, a + 1])
            op(f"v_add_f32 {vr(a)}, {vr(a)}, {vr(a+1)}", [a, a + 1], [a])
            op(f"v_mul_f32 {vr(a)}, {vr(t0)}, {vr(a)}", [a, t0], [a])
        def pk(d, x, y): op(f"v_cvt_pk_bf16_f32 {vr(d)}, {vr(x)}, {vr(y)}", [x, y], [d])
        if SPM:
            def inl(t):
                a = S(t)
                op(f"v_pk_add_f32 {vr(a,2)}, {vr(a,2)}, {vr(a+2,2)}", range(a, a + 4), [a, a + 1])
                op(f"v_add_f32 {vr(a)}, {vr(a)}, {vr(a+1)}", [a, a + 1], [a])
            def swp(a, b): op(f"v_permlane16_swap_b32 {vr(a)}, {vr(b)}", [a, b], [a, b], "swap")
            def pair(a, b):
                swp(a, b)
                op(f"v_add_f32 {vr(a)}, {vr(a)}, {vr(b)}", [a, b], [a])
                op(f"v_mul_f32 {vr(a)}, {vr(t0)}, {vr(a)}", [a, t0], [a])
            Z, D = R, R + 1
            inl(0); inl(6); pair(S(0), S(6))
            op(f"v_mov_b32_dpp {vr(Z)}, {vr(S(0))} row_ror:8 {DP}", [S(0)], [Z], "dpp")
            inl(2); inl(8); pair(S(2), S(8))
            inl(3); inl(4); pair(S(3), S(4))
            swp(S(3), Z)
            op(f"v_mov_b32_dpp {vr(S(3))}, {vr(S(2))} row_ror:8 row_mask:0xa bank_mask:0xf", [S(2), S(3)], [S(3)], "dpp")
            pk(Out + 1, S(2), S(3))
            inl(7)
            op(f"v_mov_b32_dpp {vr(D)}, {vr(S(7))} row_ror:8 {DP}", [S(7)], [D], "dpp")
            inl(1)
            pair(S(1), S(7)); pk(Out, S(0), S(1))
            op(f"v_bitop3_b32 {vr(Out+3)}, {vr(Out)}, {vr(Out+1)}, {vr(K)} bitop3:0x96", [Out, Out + 1, K], [Out + 3])
            inl(5); pair(S(5), D); pk(Out + 2, Z, S(5))
            op(f"v_xor_b32 {vr(Out+3)}, {vr(Out+3)}, {vr(Out+2)}", [Out + 3, Out + 2], [Out + 3])
            schedule(main, ops, opts.get("per", 3))
            e(f"buffer_store_dwordx4 {vr(Out,4)}, {vr(vSt0)}, {sr(sWS,4)}, 0 offen sc1")
            return
        comb(6); comb(7); pk(R, S(6), S(7))
        op(f"v_mov_b32_dpp {vr(R+2)}, {vr(R)} row_ror:8 {DP}", [R], [R + 2], "dpp")
        op(f"v_bitop3_b32 {vr(R+3)}, {vr(R)}, {vr(R+2)}, {vr(K)} bitop3:0x96", [R, R + 2, K], [R + 3])
        comb(8)
        op(f"v_mov_b32_dpp {vr(t2)}, {vr(S(8))} row_ror:8 {DP}", [S(8)], [t2], "dpp")
        pk(R + 1, S(8), t2)
        op(f"v_xor_b32 {vr(R+3)}, {vr(R+3)}, {vr(R+1)}", [R + 3, R + 1], [R + 3])
        op(f"buffer_store_dwordx4 {vr(R,4)}, {vr(vSt1)}, {sr(sWS,4)}, 0 offen offset:256 sc1", range(R, R + 4), [], "store")
        for d in range(3):
            comb(2 * d); comb(2 * d + 1); pk(Out + d, S(2 * d), S(2 * d + 1))
            if d == 1: op(f"v_bitop3_b32 {vr(Out+3)}, {vr(Out)}, {vr(Out+1)}, {vr(K)} bitop3:0x96", [Out, Out + 1, K], [Out + 3])
        op(f"v_xor_b32 {vr(Out+3)}, {vr(Out+3)}, {vr(Out+2)}", [Out + 3, Out + 2], [Out + 3])
        schedule(main, ops, opts.get("per", 2))
        e(f"buffer_store_dwordx4 {vr(Out,4)}, {vr(vSt0)}, {sr(sWS,4)}, 0 offen sc1")
    g.lab("L_T2")
    T2()
    e(f"s_cmp_eq_u32 {sr(sIsH)}, 1")
    e("s_cbranch_scc1 L_H2")
    if opts.get("dry", 0):
        e(f"s_cmp_eq_u32 {sr(sIsH)}, 2")
        e("s_cbranch_scc1 L_ret")
    stamp(6)
    if PROF: e("s_branch L_done")
    else: e("s_endpgm")

    g.lab("L_H")
    e(f"s_mov_b32 {sr(sDoff)}, 0")
    e(f"v_lshlrev_b32 {vr(vSb)}, 4, v0")
    def h_a():
        if HW:
            for n in range(8): a_unit(n)
        call("L_AQ")
        e("s_waitcnt vmcnt(0)")
        call("L_AK"); call("L_AV0"); call("L_AV1")
        if opts.get("xq", 0) == 1: e("s_branch L_done")
    def h_pf():
        e(f"s_bfe_u32 {sr(sT0)}, s2, 0x10003")
        e(f"s_mul_i32 {sr(sT0)}, {sr(sT0)}, 73728")
        e(f"s_add_u32 {sr(sT0)}, {sr(sT0)}, {sr(sWoO)}")
        add64(sK, 26, sr(sT0))
        e(f"s_mov_b32 {sr(sK+2)}, 73728")
        e(f"s_mov_b32 {sr(sT1)}, 0")
        g.lab("L_hpf")
        e(f"buffer_load_dwordx4 {vr(vTmp+4,4)}, {vr(vSb)}, {sr(sK,4)}, {sr(sT1)} offen")
        e(f"s_waitcnt vmcnt({opts.get('pfd', 4)})")
        e(f"s_add_u32 {sr(sT1)}, {sr(sT1)}, 4096")
        e(f"s_cmp_lt_u32 {sr(sT1)}, 73728")
        e("s_cbranch_scc1 L_hpf")
    def h_dma():
        e(f"s_mov_b32 {sr(sDt)}, 0")
        g.lab("L_hdma")
        dma_load(opts.get("wont", 0) & 2)
        e(f"s_waitcnt vmcnt({opts.get('hd', 2)})")
        e(f"s_cmp_lt_u32 {sr(sDt)}, 36")
        e("s_cbranch_scc1 L_hdma")
    if not opts.get("pf", 1): h_pf = lambda: None
    for f in [(h_a, h_pf, h_dma), (h_pf, h_dma, h_a), (h_pf, h_a, h_dma), (h_dma, h_pf, h_a), (h_dma, h_a, h_pf)][HW]: f()
    if opts.get("xq", 0) == 2: e("s_branch L_done")
    vFa, vFb, vDa, vF0, vFn, vD0 = 96, 97, 98, 100, 104, 108
    e(f"s_lshr_b32 {sr(sT0)}, {sr(sIt)}, 1")
    e(f"s_and_b32 {sr(sT1)}, {sr(sIt)}, 1")
    e(f"s_mul_i32 {sr(sT2)}, {sr(sT0)}, {8*AFS}")
    e(f"s_lshl_b32 {sr(sT3)}, {sr(sT1)}, 6")
    e(f"s_add_u32 {sr(sT2)}, {sr(sT2)}, {sr(sT3)}")
    e(f"s_add_u32 {sr(sT2)}, {sr(sT2)}, {AF_OFF}")
    e(f"v_mov_b32 {vr(vT1)}, {AFS}")
    e(f"v_and_b32 {vr(vT0)}, 7, {vr(vLane)}")
    e(f"v_mad_u32_u24 {vr(vFa)}, {vr(vT0)}, {vr(vT1)}, {sr(sT2)}")
    e(f"v_lshrrev_b32 {vr(vT0)}, 5, v0")
    e(f"v_mad_u32_u24 {vr(vFb)}, {vr(vT0)}, {vr(vT1)}, {sr(sT2)}")
    e(f"s_mul_i32 {sr(sT2)}, {sr(sT0)}, {8*ARS}")
    e(f"s_lshl_b32 {sr(sT3)}, {sr(sT1)}, 9")
    e(f"s_add_u32 {sr(sT2)}, {sr(sT2)}, {sr(sT3)}")
    e(f"s_add_u32 {sr(sT2)}, {sr(sT2)}, {AR_OFF}")
    e(f"v_mov_b32 {vr(vT1)}, {ARS}")
    e(f"v_mad_u32_u24 {vr(vDa)}, {vr(vT0)}, {vr(vT1)}, {sr(sT2)}")
    e(f"v_and_b32 {vr(vT0)}, 31, {vr(vLane)}")
    e(f"v_lshl_add_u32 {vr(vDa)}, {vr(vT0)}, 4, {vr(vDa)}")
    e("s_waitcnt vmcnt(0)")
    e("s_barrier")
    call("L_T1")
    if opts.get("xq", 0) == 3: e("s_branch L_done")
    e(f"s_mov_b32 {sr(sSpin)}, 0x8000")
    g.lab("L_hp")
    for i in range(opts.get("hsn", 3 if HW else 0)): e("s_sleep 127")
    for r, a in ((vF0, vFa), (vFn, vFb), (vD0, vDa)):
        e(f"buffer_load_dwordx4 {vr(r,4)}, {vr(a)}, {sr(sWS,4)}, 0 offen sc1")
    e(f"s_sub_u32 {sr(sSpin)}, {sr(sSpin)}, 1")
    e("s_waitcnt vmcnt(0)")
    e("s_cbranch_scc1 L_hp1")
    for r in (vF0, vFn, vD0):
        for i in range(2):
            e(f"v_bitop3_b32 {vr(r+2+i)}, {vr(r+i)}, {vr(r+2+i)}, {sr(sNon)} bitop3:0x96")
    e(f"v_or3_b32 {vr(vT0)}, {vr(vF0+2)}, {vr(vF0+3)}, {vr(vFn+2)}")
    e(f"v_or3_b32 {vr(vT1)}, {vr(vFn+3)}, {vr(vD0+2)}, {vr(vD0+3)}")
    e(f"v_or_b32 {vr(vT0)}, {vr(vT0)}, {vr(vT1)}")
    e(f"v_cmp_ne_u32 vcc, 0, {vr(vT0)}")
    e("s_cbranch_vccz L_hp1")
    if not opts.get("hsn", 3 if HW else 0): e(f"s_sleep {opts.get('hsl', 64)}")
    e("s_branch L_hp")
    g.lab("L_hp1")
    for src, dst, rot in ((vF0, vM, 4), (vM, vT1, 2), (vT1, vM, 1)):
        e(f"v_max_f32_dpp {vr(dst)}, {vr(src)}, {vr(src)} row_ror:{rot} {DP}")
        e("s_nop 1")
    e(f"v_sub_f32 {vr(vT1)}, {vr(vF0)}, {vr(vM)}")
    e(f"v_sub_f32 {vr(vFn)}, {vr(vFn)}, {vr(vM)}")
    e(f"v_exp_f32 {vr(vT1)}, {vr(vT1)}")
    e(f"v_exp_f32 {vr(vFn)}, {vr(vFn)}")
    for i in range(2):
        e(f"v_lshlrev_b32 {vr(vO+2*i)}, 16, {vr(vD0+i)}")
        e(f"v_and_b32 {vr(vO+2*i+1)}, 0xffff0000, {vr(vD0+i)}")
    e(f"v_mul_f32 {vr(vT1)}, {vr(vT1)}, {vr(vF0+1)}")
    for i in range(4):
        e(f"v_mul_f32 {vr(vO+i)}, {vr(vFn)}, {vr(vO+i)}")
    for src, dst, rot in ((vT1, vL, 4), (vL, vT1, 2), (vT1, vL, 1)):
        e(f"v_add_f32_dpp {vr(dst)}, {vr(src)}, {vr(src)} row_ror:{rot} {DP}")
        e("s_nop 1")
    e(f"v_mul_f32 {vr(vL)}, 0x3d800000, {vr(vL)}")
    for i in range(4):
        e(f"v_mov_b32 {vr(vO2+i)}, {vr(vO+i)}")
    e("s_nop 1")
    for i in range(4):
        e(f"v_permlane32_swap_b32 {vr(vO+i)}, {vr(vO2+i)}")
    e("s_nop 1")
    for i in range(4):
        e(f"v_add_f32 {vr(vO+i)}, {vr(vO+i)}, {vr(vO2+i)}")
    if opts.get("xq", 0) == 4: e("s_branch L_done")
    e("s_branch L_T2")
    g.lab("L_H2")
    if opts.get("xq", 0) == 5: e("s_branch L_done")
    e("s_waitcnt vmcnt(0)")
    e("s_barrier")
    sP, sCb, sSl, sRow = sCi, sT1, sT2, sT3
    e(f"s_cmp_lt_u32 s2, {192 + 40}")
    e(f"s_cselect_b32 {sr(sP)}, 1, 0")
    e(f"s_cmp_lg_u32 {sr(sW)}, 0")
    e("s_cbranch_scc1 L_H3")
    e(f"s_lshl_b32 {sr(sT0)}, s2, 2")
    e(f"s_add_u32 {sr(sT0)}, {sr(sT0)}, {HF_OFF - 192*4}")
    e(f"v_mov_b32 {vr(vEp)}, {sr(sNon)}")
    e("s_mov_b64 exec, 1")
    e(f"buffer_store_dword {vr(vEp)}, off, {sr(sWS,4)}, {sr(sT0)} sc1")
    e("s_mov_b64 exec, -1")
    e(f"s_cmp_eq_u32 {sr(sP)}, 1")
    e("s_cbranch_scc1 L_H3")
    e(f"s_mov_b32 {sr(sSpin)}, 0x40000")
    g.lab("L_hf")
    e(f"s_sleep {opts.get('hsf', 100)}")
    e(f"buffer_load_dword {vr(vEp+1)}, {vr(vHa)}, {sr(sWS,4)}, 0 offen offset:{HF_OFF} sc1")
    e(f"s_sub_u32 {sr(sSpin)}, {sr(sSpin)}, 1")
    e("s_waitcnt vmcnt(0)")
    e("s_cbranch_scc1 L_H3")
    e(f"v_cmp_ne_u32 vcc, {sr(sNon)}, {vr(vEp+1)}")
    e("s_cbranch_vccnz L_hf")
    e(f"s_cmp_lg_u32 s2, 255")
    e("s_cbranch_scc1 L_H3")
    e(f"v_mov_b32 {vr(vEp+1)}, {sr(sE)}")
    e("s_mov_b64 exec, 1")
    e(f"buffer_store_dword {vr(vEp+1)}, off, {sr(sWS,4)}, 0 sc1")
    e("s_mov_b64 exec, -1")
    g.lab("L_H3")
    if opts.get("xq", 0) == 6: e("s_branch L_done")
    e(f"s_mul_i32 {sr(sT0)}, {sr(sP)}, 40")
    e(f"s_add_u32 {sr(sSl)}, s2, {sr(sT0)}")
    e(f"s_sub_u32 {sr(sSl)}, {sr(sSl)}, {192 + 40}")
    e(f"s_cmp_ge_u32 {sr(sSl)}, 24")
    e("s_cbranch_scc1 L_done")
    e(f"s_cmp_ge_u32 {sr(sSl)}, 12")
    e(f"s_cselect_b32 {sr(sCb)}, 1, 0")
    e(f"s_cselect_b32 {sr(sRow)}, 12, 0")
    e(f"s_sub_u32 {sr(sSl)}, {sr(sSl)}, {sr(sRow)}")
    e(f"s_lshl_b32 {sr(sRow)}, {sr(sCb)}, 5")
    e(f"v_lshrrev_b32 {vr(vT0)}, 3, v0")
    e(f"v_add_u32 {vr(vT0)}, {sr(sRow)}, {vr(vT0)}")
    e(f"s_lshl1_add_u32 {sr(sRow)}, {sr(sP)}, 1")
    e(f"v_mul_u32_u24 {vr(vT0)}, {sr(sRow)}, {vr(vT0)}")
    e(f"s_cmp_eq_u32 {sr(sP)}, 0")
    e(f"s_cselect_b32 {sr(sRow)}, 192, 0")
    e(f"v_add_u32 {vr(vT0)}, {sr(sRow)}, {vr(vT0)}")
    e(f"v_and_b32 {vr(vT1)}, 7, v0")
    e(f"s_lshl_b32 {sr(sRow)}, {sr(sSl)}, 7")
    e(f"s_add_u32 {sr(sRow)}, {sr(sRow)}, {Y_OFF}")
    e(f"v_mov_b32 {vr(vYo)}, {YS}")
    e(f"v_mad_u32_u24 {vr(vYo)}, {vr(vT0)}, {vr(vYo)}, {sr(sRow)}")
    e(f"v_lshl_add_u32 {vr(vYo)}, {vr(vT1)}, 4, {vr(vYo)}")
    vCx = vMlo
    e(f"s_lshl_b32 {sr(sRow)}, {sr(sW)}, 8")
    e(f"s_add_u32 {sr(sRow)}, {sr(sRow)}, {LDS_SC}")
    e(f"v_lshl_add_u32 {vr(vCx)}, {vr(vT1)}, 2, {sr(sRow)}")
    e(f"v_lshrrev_b32 {vr(vT0)}, 1, {vr(vG)}")
    e(f"v_lshl_add_u32 {vr(vCx)}, {vr(vT0)}, 5, {vr(vCx)}")
    e(f"v_and_b32 {vr(vT0)}, 1, {vr(vG)}")
    e(f"v_lshl_add_u32 {vr(vCw)}, {vr(vT0)}, 6, {vr(vCx)}")
    e(f"v_lshlrev_b32 {vr(vCr)}, 2, v0")
    e(f"v_add_u32 {vr(vCr)}, {LDS_SC}, {vr(vCr)}")
    e(f"s_mul_i32 {sr(sCb)}, {sr(sCb)}, 1152")
    e(f"s_mul_i32 {sr(sT0)}, {sr(sP)}, 576")
    e(f"s_add_u32 {sr(sCb)}, {sr(sCb)}, {sr(sT0)}")
    e(f"s_mul_i32 {sr(sT0)}, {sr(sSl)}, 11")
    e(f"s_lshr_b32 {sr(sT0)}, {sr(sT0)}, 5")
    e(f"s_lshl4_add_u32 {sr(sCb)}, {sr(sT0)}, {sr(sCb)}")
    e(f"s_mul_i32 {sr(sT0)}, {sr(sT0)}, 3")
    e(f"s_sub_u32 {sr(sSl)}, {sr(sSl)}, {sr(sT0)}")
    e(f"s_mov_b32 {sr(sT0)}, 0x18100800")
    e(f"s_mov_b32 {sr(sRow)}, 0x2820")
    e(f"s_cmp_eq_u32 {sr(sSl)}, 2")
    e(f"s_cselect_b32 {sr(sT0)}, 0x41403830, {sr(sT0)}")
    e(f"s_cselect_b32 {sr(sRow)}, 0x3931, {sr(sRow)}")
    e(f"s_cselect_b32 {sr(sSl)}, 0, {sr(sSl)}")
    e(f"s_lshl3_add_u32 {sr(sCb)}, {sr(sSl)}, {sr(sCb)}")
    e(f"v_bfe_u32 {vr(vT0)}, v0, 3, 3")
    e(f"v_or_b32 {vr(vT0)}, 0x0c0c0c00, {vr(vT0)}")
    e(f"v_mov_b32 {vr(vOa)}, {sr(sRow)}")
    e(f"v_perm_b32 {vr(vOa)}, {vr(vOa)}, {sr(sT0)}, {vr(vT0)}")
    e(f"v_lshl_add_u32 {vr(vOa)}, {vr(vOa)}, 3, {vr(vT1)}")
    e(f"v_add_lshl_u32 {vr(vOa)}, {vr(vOa)}, {sr(sCb)}, 1")
    vMx, vRes, vWt = 48, 40, 56
    vZc, vUn = 76, 120
    assert 2 * YS < 4096
    e(f"s_mov_b32 {sr(sSpin)}, 0x100000")
    e(f"s_cmp_eq_u32 {sr(sP)}, 0")
    e("s_cbranch_scc1 L_finA")
    def check(vD, n):
        for i in range(n):
            e(f"v_bitop3_b32 {vr(vMx+i)}, {vr(vD+4*i)}, {vr(vD+4*i+1)}, {vr(vD+4*i+2)} bitop3:0x96")
        for i in range(n):
            e(f"v_bitop3_b32 {vr(vWt+1+i)}, {vr(vMx+i)}, {vr(vD+4*i+3)}, {vr(vNl)} bitop3:0x96")
        if n == 1: e("s_nop 1")
        for i in range(n):
            e(f"v_xor_b32_dpp {vr(vMx+i)}, {vr(vWt+1+i)}, {vr(vWt+1+i)} quad_perm:[1,0,3,2] {DP}")
        for i in range(n):
            e(f"v_xor_b32_dpp {vr(vMx+3+i)}, {vr(vWt+1+i)}, {vr(vWt+1+i)} quad_perm:[2,3,0,1] {DP}")
        for i in range(n):
            e(f"v_or_b32 {vr(vMx+i)}, {vr(vMx+i)}, {vr(vMx+3+i)}")
    PD = opts.get("pd", 2)
    VS = [64, 84, 96, 108][:PD]; MS = [16, 22, 36, 48][:PD]
    SM = opts.get("psm", 0x000f000f)
    TC = opts.get("tc", 0)
    if TC:
        assert ORG == 1 and not OMX
        org_load()
        if LT: lt_r(len(LT) - 1)
        e("s_waitcnt vmcnt(0)")
        e(f"v_xor_b32 {vr(vS+1)}, {vr(vS)}, {vr(vS+1)}")
        e(f"v_subrev_u32 {vr(vS)}, s94, {vr(vS)}")
        e(f"v_cmp_ne_u32 {sr(sT2,2)}, {sr(sNon)}, {vr(vS+1)}")
        for m in ("quad_perm:[1,0,3,2]", "quad_perm:[2,3,0,1]", "row_half_mirror"):
            e("s_nop 1")
            e(f"v_add_u32_dpp {vr(vS)}, {vr(vS)}, {vr(vS)} {m} {DP}")
        e("s_nop 1")
        e(f"v_readfirstlane_b32 {sr(sT0)}, {vr(vS)}")
        e(f"s_and_b32 {sr(sT2)}, {sr(sT2)}, 0xff")
        e(f"s_cselect_b32 {sr(sT0)}, 0, {sr(sT0)}")
        e(f"s_ashr_i32 {sr(sT0)}, {sr(sT0)}, 3")
        e(f"s_add_u32 {sr(sSch)}, s94, {sr(sT0)}")
        e(f"s_add_u32 {sr(sSch)}, {sr(sSch)}, {TC // 10}")
        if LT:
            e(f"s_mov_b32 {sr(sNow)}, {sr(sSch)}")
            e(f"s_mov_b32 {sr(sSch)}, 0")
            e(f"s_mov_b32 {sr(sCor)}, 0")
            call("L_LA")
            e(f"s_mul_i32 {sr(sSch)}, {sr(sSch)}, {opts.get('tcg', 4)}")
            e(f"s_ashr_i32 {sr(sSch)}, {sr(sSch)}, 6")
            e(f"s_add_u32 {sr(sSch)}, {sr(sSch)}, {sr(sNow)}")
    e(f"s_mov_b32 exec_lo, {SM}"); e(f"s_mov_b32 exec_hi, {SM}")
    g.lab("L_pollc")
    e(f"s_sleep {opts.get('csl', 16)}")
    e(f"buffer_load_dwordx4 {vr(VS[0],4)}, {vr(vYo)}, {sr(sWS,4)}, 0 offen offset:{2*YS} sc1")
    if TC: e(f"s_memrealtime {sr(sNow,2)}")
    e(f"s_sub_u32 {sr(sSpin)}, {sr(sSpin)}, 1")
    e("s_cbranch_scc1 L_pollc_done")
    if TC:
        e("s_waitcnt lgkmcnt(0)")
        e(f"s_sub_u32 {sr(sT0)}, {sr(sNow)}, {sr(sSch)}")
        e(f"s_cmp_ge_i32 {sr(sT0)}, 0")
        if not opts.get("tcw", 0): e("s_cbranch_scc1 L_pollc_done")
    e("s_waitcnt vmcnt(0)")
    if TC and opts.get("tcw", 0): e("s_cbranch_scc1 L_pollc_done")
    check(VS[0], 1)
    e(f"v_cmp_eq_u32 vcc, 0, {vr(vMx)}")
    if opts.get("pth", 1) > 1:
        e(f"s_bcnt1_i32_b64 {sr(sT2)}, vcc")
        e(f"s_cmp_lt_u32 {sr(sT2)}, {4*opts['pth']}")
        e("s_cbranch_scc1 L_pollc")
    else: e("s_cbranch_vccz L_pollc")
    g.lab("L_pollc_done")
    stamp9(3)
    e("s_mov_b64 exec, -1")
    e(f"s_mov_b32 {sr(sSpin)}, 0x100000")
    def poll(n, first=False):
        for i in range(3):
            if not first: e(f"s_or_b64 exec, {sr(MS[n]+2*i,2)}, 1")
            e(f"buffer_load_dwordx4 {vr(VS[n]+4*i,4)}, {vr(vYo)}, {sr(sWS,4)}, 0 offen offset:{YS*i} sc1")
        e("s_mov_b64 exec, -1")
    for i in range(3):
        e(f"s_mov_b64 {sr(MS[PD-1]+2*i,2)}, -1")
    for n in range(PD - 1):
        poll(n, True)
        e(f"s_sleep {opts.get('pds', 8)}")
    g.lab("L_polld")
    for n in range(PD):
        vD = VS[n]
        poll((n - 1) % PD)
        e(f"s_waitcnt vmcnt({3*(PD-1)})")
        check(vD, 3)
        e(f"v_max3_f32 {vr(vWt)}, {vr(vWt+1)}, {vr(vWt+2)}, {vr(vWt+3)}")
        e(f"v_or3_b32 {vr(vMx+3)}, {vr(vMx)}, {vr(vMx+1)}, {vr(vMx+2)}")
        for i in range(3): e(f"v_sub_f32 {vr(vWt+1+i)}, {vr(vWt+1+i)}, {vr(vWt)}")
        e(f"v_cmp_ne_u32 vcc, 0, {vr(vMx+3)}")
        for i in range(3): e(f"v_exp_f32 {vr(vWt+1+i)}, {vr(vWt+1+i)}")
        e(f"s_cbranch_vccz L_polld_done{n}")
        for i in range(3):
            e(f"v_cmp_ne_u32 {sr(MS[n]+2*i,2)}, 0, {vr(vMx+i)}")
    e(f"s_sub_u32 {sr(sSpin)}, {sr(sSpin)}, 1")
    e(f"s_cbranch_scc0 L_polld")
    def unpack(d, s_):
        for m in range(3):
            e(f"v_lshlrev_b32 {vr(d+2*m)}, 16, {vr(s_+m)}")
            e(f"v_and_b32 {vr(d+2*m+1)}, 0xffff0000, {vr(s_+m)}")
    for n in range(PD - 1, -1, -1):
        vD = VS[n]
        g.lab(f"L_polld_done{n}")
        stamp9(4)
        if PROF == 9:
            e(f"s_sub_u32 s90, 0x100000, {sr(sSpin)}")
            e(f"s_mul_i32 s90, s90, {PD}")
            e(f"s_add_u32 s90, s90, {n}")
        e(f"v_add_f32 {vr(vWt)}, {vr(vWt+1)}, {vr(vWt+2)}")
        unpack(vZc, vD)
        e(f"v_add_f32 {vr(vWt)}, {vr(vWt)}, {vr(vWt+3)}")
        unpack(vUn, vD + 4)
        e(f"v_rcp_f32 {vr(vWt)}, {vr(vWt)}")
        unpack(vUn + 6, vD + 8)
        if n: e("s_branch L_fin1")
    g.lab("L_fin1")
    for i in range(3): e(f"v_mul_f32 {vr(vWt+2+2*i)}, {vr(vWt+3-i)}, {vr(vWt)}" if False else f"v_mul_f32 {vr(vMx+2*i)}, {vr(vWt+1+i)}, {vr(vWt)}")
    for m in range(3):
        e(f"v_pk_mul_f32 {vr(vZc+2*m,2)}, {vr(vZc+2*m,2)}, {vr(vMx,2)} op_sel_hi:[1,0]")
    for i in range(2):
        for m in range(3):
            e(f"v_pk_fma_f32 {vr(vZc+2*m,2)}, {vr(vUn+6*i+2*m,2)}, {vr(vMx+2+2*i,2)}, {vr(vZc+2*m,2)} op_sel_hi:[1,0,1]")
    g.lab("L_fin2")
    for k in range(6):
        e(f"v_add_f32_dpp {vr(vRes+k)}, {vr(vZc+k)}, {vr(vZc+k)} row_ror:8 {DP}")
    for m in range(3):
        e(f"v_permlane32_swap_b32 {vr(vRes+2*m)}, {vr(vRes+2*m+1)}")
    for m in (2, 0, 1):
        e(f"v_add_f32 {vr(vRes+2*m)}, {vr(vRes+2*m)}, {vr(vRes+2*m+1)}")
    e(f"v_mov_b32 {vr(vRes+5)}, {vr(vRes+4)}")
    e("s_nop 0")
    e(f"v_permlane16_swap_b32 {vr(vRes)}, {vr(vRes+2)}")
    e(f"v_permlane16_swap_b32 {vr(vRes+4)}, {vr(vRes+5)}")
    e(f"v_add_f32 {vr(vRes)}, {vr(vRes)}, {vr(vRes+2)}")
    e(f"v_add_f32 {vr(vRes+4)}, {vr(vRes+4)}, {vr(vRes+5)}")
    e(f"ds_write_b32 {vr(vCw)}, {vr(vRes)}")
    e(f"ds_write_b32 {vr(vCx)}, {vr(vRes+4)} offset:128")
    e(f"s_cmp_lg_u32 {sr(sW)}, 0")
    e("s_mov_b32 exec_hi, 0xffff")
    e("s_waitcnt lgkmcnt(0)")
    e("s_barrier")
    stamp9(6)
    e("s_cbranch_scc1 L_done0")
    for w in range(4):
        e(f"ds_read_b32 {vr(vRes+w)}, {vr(vCr)} offset:{256*w}")
    e("s_waitcnt lgkmcnt(0)")
    e(f"v_add_f32 {vr(vRes)}, {vr(vRes)}, {vr(vRes+1)}")
    e(f"v_add_f32 {vr(vRes+2)}, {vr(vRes+2)}, {vr(vRes+3)}")
    e(f"v_add_f32 {vr(vRes)}, {vr(vRes)}, {vr(vRes+2)}")
    e(f"v_cvt_pk_bf16_f32 {vr(vRes)}, {vr(vRes)}, {vr(vRes)}")
    e(f"buffer_store_short {vr(vRes)}, {vr(vOa)}, {sr(sOut,4)}, 0 offen")
    g.lab("L_done0")
    e("s_mov_b64 exec, -1")
    g.lab("L_done")
    if PROF:
        e("s_waitcnt vmcnt(0)")
        stamp(7)
        e("s_getreg_b32 s96, hwreg(HW_REG_XCC_ID)")
        e("s_getreg_b32 s97, hwreg(HW_REG_HW_ID)")
        e("s_waitcnt lgkmcnt(0)")
        e(f"s_lshl_b32 {sr(sT0)}, s2, 2")
        e(f"s_add_u32 {sr(sT0)}, {sr(sT0)}, {sr(sW)}")
        e(f"s_lshl_b32 {sr(sT0)}, {sr(sT0)}, 6")
        e(f"s_add_u32 {sr(sT0)}, {sr(sT0)}, 0x200000")
        e(f"v_mov_b32 v20, {sr(sT0)}")
        for i in range(8):
            e(f"v_mov_b32 v{24+i}, s{80+2*i}")
        e("v_mov_b32 v32, s96")
        e("v_mov_b32 v33, s97")
        e("s_mov_b64 exec, 1")
        e(f"buffer_store_dwordx4 v[24:27], v20, {sr(sWS,4)}, 0 offen")
        e(f"buffer_store_dwordx4 v[28:31], v20, {sr(sWS,4)}, 0 offen offset:16")
        e(f"buffer_store_dwordx2 v[32:33], v20, {sr(sWS,4)}, 0 offen offset:32")
    g.lab("L_exit")
    e("s_endpgm")
    g.lab("L_finA")
    e("s_barrier")
    e(f"buffer_load_dwordx4 {vr(vUn,4)}, {vr(vYo)}, {sr(sWS,4)}, 0 offen sc1")
    e("s_waitcnt vmcnt(0)")
    unpack(vZc, vUn)
    e("s_nop 0")
    e("s_branch L_fin2")

    ret = lambda: e(f"s_setpc_b64 {sr(sRet,2)}")
    g.lab("L_AQ")
    qloads(2, sQa, None, QSC)
    ret()
    g.lab("L_AK")
    qget(2, sQa, vQA, "A")
    e("s_nop 1")
    X = [vP, 72, vQl, vQl + 16]
    for n in range(4): qk(aA + 16 * n, vQA, X[n])
    for n in range(4): fold(X[n], vSA + 4 * n, True)
    e(f"v_max3_f32 {vr(vM2)}, {vr(vSA)}, {vr(vSA+1)}, {vr(vSA+2)}")
    for i in range(3, 15, 2):
        e(f"v_max3_f32 {vr(vM2)}, {vr(vM2)}, {vr(vSA+i)}, {vr(vSA+i+1)}")
    e(f"v_max_f32 {vr(vM2)}, {vr(vM2)}, {vr(vSA+15)}")
    gmax(vM2)
    e(f"v_mul_f32 {vr(vM2)}, {sr(sC)}, {vr(vM2)}")
    ret()
    g.lab(f"L_AV0")
    for n in range(4):
        if n == 2:
            ret()
            g.lab(f"L_AV1")
        probs(vSA + 4 * n, vM2, vL2)
        e("s_nop 1")
        pv(vVb + 16 * n, vO2)
    vAa, vAb, vPm, vPo = vSA, vSA + 1, vSA + 4, vQl
    e(f"v_lshlrev_b32 {vr(vAa)}, 4, v0")
    e(f"v_add_u32 {vr(vAa)}, {LDS_OT}, {vr(vAa)}")
    e(f"s_lshl4_add_u32 {sr(sT0)}, {sr(sW)}, {LDS_M}")
    e(f"v_and_b32 {vr(vAb)}, 8, {vr(vCc)}")
    e(f"v_add_u32 {vr(vAb)}, {sr(sT0)}, {vr(vAb)}")
    gmax(vL2, "v_add_f32")
    e(f"ds_write_b128 {vr(vAa)}, {vr(vO2,4)}")
    e(f"ds_write_b64 {vr(vAb)}, {vr(vM2,2)}")
    e(f"v_mov_b32 {vr(vAa)}, {LDS_CNT + 4}")
    e(f"v_mov_b32 {vr(vAb)}, 1")
    e("s_mov_b64 exec, 1")
    e("s_waitcnt lgkmcnt(0)")
    e(f"ds_add_rtn_u32 {vr(vAb)}, {vr(vAa)}, {vr(vAb)}")
    e("s_mov_b64 exec, -1")
    tail_setup()
    e("s_waitcnt lgkmcnt(0)")
    e(f"v_readfirstlane_b32 {sr(sT0)}, {vr(vAb)}")
    e(f"v_lshlrev_b32 {vr(vAa)}, 4, {vr(vLane)}")
    e(f"v_lshrrev_b32 {vr(vT1)}, 5, {vr(vLane)}")
    e(f"v_add_u32 {vr(vT0)}, {LDS_OT}, {vr(vAa)}")
    e(f"v_lshlrev_b32 {vr(vAb)}, 3, {vr(vT1)}")
    e(f"s_cmp_eq_u32 {sr(sT0)}, 3")
    e("s_cbranch_scc1 L_AM")
    ret()
    g.lab("L_AM")
    e(f"v_add_u32 {vr(vAb)}, {LDS_M}, {vr(vAb)}")
    for w in range(4):
        e(f"ds_read_b64 {vr(vPm+2*w,2)}, {vr(vAb)} offset:{16*w}")
    for w in range(4):
        e(f"ds_read_b128 {vr(vPo+4*w,4)}, {vr(vT0)} offset:{1024*w}")
    e(f"v_lshlrev_b32 {vr(vAb)}, 4, {vr(vCc)}")
    e(f"v_lshl_add_u32 {vr(vAb)}, {vr(vT1)}, 6, {vr(vAb)}")
    e(f"s_mul_i32 {sr(sT0)}, {sr(sAr)}, {ARS}")
    e(f"s_add_u32 {sr(sT0)}, {sr(sT0)}, {AR_OFF}")
    e(f"s_mul_i32 {sr(sT1)}, {sr(sAr)}, {AFS}")
    e(f"s_add_u32 {sr(sT1)}, {sr(sT1)}, {AF_OFF}")
    e("s_waitcnt lgkmcnt(4)")
    e(f"v_max3_f32 {vr(vE)}, {vr(vPm)}, {vr(vPm+2)}, {vr(vPm+4)}")
    e(f"v_max_f32 {vr(vE)}, {vr(vE)}, {vr(vPm+6)}")
    for w in range(4):
        e(f"v_sub_f32 {vr(vPm+2*w)}, {vr(vPm+2*w)}, {vr(vE)}")
    for w in range(4):
        e(f"v_exp_f32 {vr(vPm+2*w)}, {vr(vPm+2*w)}")
    e(f"v_xor_b32 {vr(vE+2)}, {sr(sNon)}, {vr(vE)}")
    e(f"v_mul_f32 {vr(vE+1)}, {vr(vPm)}, {vr(vPm+1)}")
    for w in range(1, 4):
        e(f"v_fmac_f32 {vr(vE+1)}, {vr(vPm+2*w)}, {vr(vPm+2*w+1)}")
    e("s_waitcnt lgkmcnt(0)")
    for i in range(4):
        e(f"v_mul_f32 {vr(vPo+i)}, {vr(vPm)}, {vr(vPo+i)}")
    e(f"v_xor_b32 {vr(vE+3)}, {sr(sNon)}, {vr(vE+1)}")
    for w in range(1, 4):
        for i in range(4):
            e(f"v_fmac_f32 {vr(vPo+i)}, {vr(vPm+2*w)}, {vr(vPo+4*w+i)}")
    for d in range(2):
        e(f"v_cvt_pk_bf16_f32 {vr(vO2+d)}, {vr(vPo+2*d)}, {vr(vPo+2*d+1)}")
    for d in range(2):
        e(f"v_xor_b32 {vr(vO2+2+d)}, {sr(sNon)}, {vr(vO2+d)}")
    if not opts.get("xs", 0):
        XP = opts.get("xp", 0)
        e(f"buffer_store_dwordx4 {vr(vO2,4)}, {vr(vAa)}, {sr(sWS,4)}, {sr(sT0)} offen" + ("" if XP & 1 else " sc1"))
        e(f"s_mov_b32 exec_lo, 15"); e(f"s_mov_b32 exec_hi, 15")
        e(f"buffer_store_dwordx4 {vr(vE,4)}, {vr(vAb)}, {sr(sWS,4)}, {sr(sT1)} offen" + ("" if XP & 2 else " sc1"))
        e("s_mov_b64 exec, -1")
    ret()
    if LT:
        g.lab("L_LA")
        e(f"v_xor_b32 {vr(vT1)}, {sr(sNon)}, {vr(vLt)}")
        e(f"v_ashrrev_i32 {vr(vLt)}, 16, {vr(vLt)}")
        e(f"v_cmp_eq_u16 vcc, 0, {vr(vT1)}")
        e(f"v_cvt_f32_i32 {vr(vLt)}, {vr(vLt)}")
        e(f"s_bcnt1_i32_b64 {sr(sT0)}, vcc")
        if opts.get("ltr", 0):
            e(f"v_max_f32 {vr(vLt)}, 0x{f32bits(float((opts.get('tg', 800))*16//10)):08x}, {vr(vLt)}")
        e(f"v_cndmask_b32 {vr(vLt)}, 0, {vr(vLt)}, vcc")
        e(f"v_cvt_f32_u32 {vr(vT1)}, {sr(sT0)}")
        e(f"s_cmp_lt_u32 {sr(sT0)}, {opts.get('ltn', 24)}")
        e(f"v_rcp_f32 {vr(vT1)}, {vr(vT1)}")
        for rot in (8, 4, 2, 1):
            e(f"v_add_f32_dpp {vr(vLt)}, {vr(vLt)}, {vr(vLt)} row_ror:{rot} {DP}")
            e("s_nop 1")
        gmax(vLt, "v_add_f32")
        e(f"v_mul_f32 {vr(vLt)}, {vr(vLt)}, {vr(vT1)}")
        e(f"v_cvt_i32_f32 {vr(vLt)}, {vr(vLt)}")
        e("s_nop 0")
        e(f"v_readfirstlane_b32 {sr(sT0)}, {vr(vLt)}")
        e(f"s_cbranch_scc1 L_LA1")
        e(f"s_sub_i32 {sr(sT0)}, {sr(sT0)}, {(opts.get('tg', 800) + opts.get('ltr', 0))*16//10}")
        if opts.get("lt1", 1): e(f"s_max_i32 {sr(sT0)}, {sr(sT0)}, 0")
        if opts.get("ltg", 2) != 2:
            e(f"s_mul_i32 {sr(sT0)}, {sr(sT0)}, {opts['ltg']}")
            e(f"s_ashr_i32 {sr(sT0)}, {sr(sT0)}, 1")
            e(f"s_min_i32 {sr(sT0)}, {sr(sT0)}, {opts.get('ltm', 800)*16//10}")
        e(f"s_sub_i32 {sr(sSch)}, {sr(sSch)}, {sr(sCor)}")
        e(f"s_add_i32 {sr(sSch)}, {sr(sSch)}, {sr(sT0)}")
        e(f"s_mov_b32 {sr(sCor)}, {sr(sT0)}")
        g.lab("L_LA1")
        ret()
    g.lab("L_TR")
    e(f"v_mov_b32_dpp {vr(vM)}, {vr(vM)} quad_perm:[0,0,0,0] {DP}")
    gmax(vM)
    e(f"s_lshl2_add_u32 {sr(sT0)}, {sr(sW)}, {LDS_CNT + 16}")
    e(f"v_mul_f32 {vr(vM)}, {sr(sC)}, {vr(vM)}")
    e(f"v_mov_b32 {vr(vT0)}, {sr(sT0)}")
    e(f"s_mov_b32 {sr(sIt)}, 0")
    if opts.get("tx", 0): e(f"s_add_i32 {sr(sSch)}, {sr(sSch)}, {opts['tx']*16//10}")
    e(f"ds_write_b32 {vr(vT0)}, {vr(vM)}")
    ret()

    g.lab("L_T1")
    e(f"v_add_u32 {vr(vT0)}, 0x10000, {vr(vTR)}")
    e(f"v_add_u32 {vr(vT1)}, 0x20000, {vr(vTR)}")
    for t in range(9):
        for j in range(4):
            for hf in range(2):
                off = t*16384 + j*4096 + hf*2048
                a = (vTR, vT0, vT1)[off >> 16]
                e(f"ds_read_b64_tr_b16 {ar(aW+4*(t*4+j)+hf*2,2)}, {vr(a)} offset:{off & 0xffff}")
    if SPM:
        for i in range(18): e(f"v_mov_b64 {vr(208+2*i,2)}, 0")
    e("s_waitcnt lgkmcnt(0)")
    g.lab("L_ret")
    ret()

    hdr = HEADER
    hdr += f"; @launch grid=(256,1,1) block=(256,1,1) lds={LDS_TOTAL}\n"
    hdr += '.amdgcn_target "amdgcn-amd-amdhsa--gfx950"\n.text\n'
    hdr += f".globl {KN}\n.p2align 8\n.type {KN},@function\n"
    tail = f""".section .rodata,"a"
.p2align 6
.amdhsa_kernel {KN}
  .amdhsa_next_free_vgpr 512
  .amdhsa_next_free_sgpr 102
  .amdhsa_accum_offset 256
  .amdhsa_group_segment_fixed_size 0
  .amdhsa_kernarg_size 104
  .amdhsa_user_sgpr_count 2
  .amdhsa_user_sgpr_kernarg_segment_ptr 1
  .amdhsa_system_sgpr_workgroup_id_x 1
.end_amdhsa_kernel
"""
    return hdr + g.text() + tail

if __name__ == "__main__":
    out = sys.argv[1]
    opts = {}
    for a in sys.argv[2:]:
        k, v = a.split("=")
        opts[k] = int(v, 0)
    open(out, "w").write(gen(opts))
```
